```python
import torch

def _softmax(x, axis=-1):
    return torch.softmax(x, dim=axis)
def _gelu(x):
    return torch.nn.functional.gelu(x, approximate="tanh")
def _silu(x):
    return torch.nn.functional.silu(x)
def _sigmoid(x):
    return torch.sigmoid(x)
def _layernorm(x, axis=-1, eps=1e-5):
    m = x.mean(dim=axis, keepdim=True)
    v = x.var(dim=axis, keepdim=True, unbiased=False)
    return (x - m) / torch.sqrt(v + eps)
def _scatter_add(tgt, idx, src, axis=0):
    return tgt.clone().index_add_(axis, idx, src)
def _segment_sum(src, seg, n):
    out = torch.zeros((n,) + src.shape[1:], dtype=src.dtype)
    return out.index_add_(0, seg, src)
def _pad(x, pw):
    flat = tuple(v for pair in reversed(pw) for v in pair)
    return torch.nn.functional.pad(x, flat)

kernel_name = 'parallel_sum__linear_kernel_hedgehog__mixer_token_mlp__prompt'

def setup_inputs():

    _w = (lambda a: (lambda t: t.to(torch.bfloat16) if t.is_floating_point() else t)(torch.as_tensor(a)))
    def _A_setup():
        B, S, D, H = 1, 2048, 576, 32
        Dh = D // H
        return {
            "x": _w((lambda *s: torch.randn(*s, dtype=torch.bfloat16) * 0.05)(B, S, D)),
            "wqkv": _w((lambda *s: torch.randn(*s, dtype=torch.bfloat16) * 0.2)(D, 3 * D)),
            "w_phi": _w((lambda *s: torch.randn(*s, dtype=torch.bfloat16) * 0.2)(H, Dh, Dh) * (Dh ** -0.5)),
            "wo": _w((lambda *s: torch.randn(*s, dtype=torch.bfloat16) * 0.05)(D, D)),
        }
    _A_in = _A_setup()

    def _B_setup():
        B, S, D, F = 1, 2048, 576, 4608
        return {
            "x": _w((lambda *s: torch.randn(*s, dtype=torch.bfloat16) * 0.05)(B, S, D)),
            "w1": _w((lambda *s: torch.randn(*s, dtype=torch.bfloat16) * 0.8)(S, F) * (S ** -0.5)),
            "b1": _w((lambda *s: torch.randn(*s, dtype=torch.bfloat16) * 12.8)(F) * 0.02),
            "w2": _w((lambda *s: torch.randn(*s, dtype=torch.bfloat16) * 0.1)(F, S) * (F ** -0.5)),
            "b2": _w((lambda *s: torch.randn(*s, dtype=torch.bfloat16) * 1.6)(S) * 0.02),
        }
    _B_in = _B_setup()

    return {
        "A_x": _A_in["x"],
        "A_wqkv": _A_in["wqkv"],
        "A_w_phi": _A_in["w_phi"],
        "A_wo": _A_in["wo"],
        "B_x": _B_in["x"],
        "B_w1": _B_in["w1"],
        "B_b1": _B_in["b1"],
        "B_w2": _B_in["w2"],
        "B_b2": _B_in["b2"],
    }

def reference(A_x, A_wqkv, A_w_phi, A_wo, B_x, B_w1, B_b1, B_w2, B_b2):
    def _A_ref(x, wqkv, w_phi, wo):
        B, S, D = x.shape
        H = 32; Dh = D // H
        qkv = (lambda x, *d: x.permute(*d))((x @ wqkv).reshape(B, S, 3, H, Dh), 2, 0, 3, 1, 4)
        q, k, v = qkv[0], qkv[1], qkv[2]
        pq = torch.einsum("bhsd,hdf->bhsf", q, w_phi)
        pk = torch.einsum("bhsd,hdf->bhsf", k, w_phi)
        phi_q = torch.concatenate([_softmax(pq, axis=-1), _softmax(-pq, axis=-1)], axis=-1)
        phi_k = torch.concatenate([_softmax(pk, axis=-1), _softmax(-pk, axis=-1)], axis=-1)
        kv = torch.einsum("bhsf,bhsd->bhfd", phi_k, v)
        z  = torch.einsum("bhsf->bhf", phi_k)
        num = torch.einsum("bhqf,bhfd->bhqd", phi_q, kv)
        den = torch.einsum("bhqf,bhf->bhq", phi_q, z)[..., None] + 1e-6
        o = num / den
        return (lambda x, *d: x.permute(*d))(o, 0, 2, 1, 3).reshape(B, S, D) @ wo

    def _B_ref(x, w1, b1, w2, b2):
        B, S, D = x.shape
        h = _layernorm(x, axis=-1)
        u = torch.einsum("bsd,sf->bdf", h, w1) + b1
        u = _gelu(u)
        y = torch.einsum("bdf,fs->bds", u, w2) + b2
        return (lambda x, *d: x.permute(*d))(y, 0, 2, 1)

    x = A_x
    xn = _layernorm(x, axis=-1)
    return x + _A_ref(xn, A_wqkv, A_w_phi, A_wo) + _B_ref(xn, B_w1, B_b1, B_w2, B_b2)
```

```python
import struct
def f2u(x):
    return struct.unpack("<I", struct.pack("<f", x))[0]
def fhex(x):
    return hex(f2u(x))

HEADER = open("parallel_sum__linear_kernel_hedgehog__mixer_token_mlp__prompt.s.ref").read().split("; Override launch geometry")[0]

class Asm:
    def __init__(self):
        self.lines = []
        self.launches = []
        self.kds = []
        self.uid = 0
    def __call__(self, s):
        for l in s.split("\n"):
            l = l.strip()
            if l:
                self.lines.append(l if l.endswith(":") or l.startswith(".") or l.startswith(";") else "    " + l)
    def label(self, base="L"):
        self.uid += 1
        return f"{base}_{self.uid}"
    def kernel(self, name):
        self.lines.append(f".globl {name}\n.p2align 8\n.type {name},@function\n{name}:")
    def kd(self, name, vgpr, sgpr=102, accum=None):
        if accum is None:
            accum = min(256, (vgpr + 3) // 4 * 4)
        self.kds.append(f""".p2align 6
.amdhsa_kernel {name}
  .amdhsa_next_free_vgpr {vgpr}
  .amdhsa_next_free_sgpr {sgpr}
  .amdhsa_accum_offset {accum}
  .amdhsa_group_segment_fixed_size 0
  .amdhsa_kernarg_size 96
  .amdhsa_user_sgpr_count 2
  .amdhsa_user_sgpr_kernarg_segment_ptr 1
  .amdhsa_system_sgpr_workgroup_id_x 1
.end_amdhsa_kernel""")
    def launch(self, name, grid, block, lds=0):
        self.launches.append((name, grid, block, lds))
    def text(self, single=None):
        out = [HEADER.rstrip()]
        if single:
            n, g, b, l = self.launches[0]
            out.append(f"; @launch grid=({g},1,1) block=({b},1,1) lds={l}")
        else:
            for n, g, b, l in self.launches:
                out.append(f"; @launch kernel={n} grid=({g},1,1) block=({b},1,1) lds={l}")
        out.append('.amdgcn_target "amdgcn-amd-amdhsa--gfx950"\n.text')
        out += self.lines
        out.append('.section .rodata,"a"')
        out += self.kds
        return "\n".join(out) + "\n"
    KA = dict(x=0, wqkv=8, wphi=16, wo=24, bx=32, w1=40, b1=48, w2=56, b2=64, out=72, dbg=80, ws=88)
    SZ = dict(x=2359296, wqkv=1990656, wphi=20736, wo=663552, bx=2359296, w1=18874368, b1=9216, w2=18874368, b2=4096,
              out=2359296, dbg=256, ws=268435456)
    def load_ptr(self, name, s):
        self(f"s_load_dwordx2 s[{s}:{s+1}], s[0:1], {self.KA[name]}")
    def srd_finish(self, name, s, size=None):
        self(f"s_mov_b32 s{s+2}, {size if size is not None else self.SZ[name]}\ns_mov_b32 s{s+3}, 0x20000")
```

```python
import sys
sys.path.insert(0, "work")
from asmlib import *
S, D, F, H, DH = 2048, 576, 4608, 32, 18
XN = 0
HT = XN + S * D * 4
QKV = HT + S * D * 4
U = QKV + S * 1728 * 4
Y = U + D * F * 4
PHI = Y + D * S * 4
KV = PHI + 2 * H * 36 * S * 4
O = KV + H * 36 * 32 * 4
END = O + S * D * 4

def wave_sum(a, v, t):
    for off in (0x041F, 0x081F, 0x101F, 0x201F, 0x401F):
        a(f"ds_swizzle_b32 v{t}, v{v} offset:{off}\ns_waitcnt lgkmcnt(0)\nv_add_f32 v{v}, v{v}, v{t}")
    a(f"s_nop 1\nv_readlane_b32 s40, v{v}, 0\nv_readlane_b32 s41, v{v}, 32\ns_nop 2\nv_mov_b32 v{v}, s40\nv_add_f32 v{v}, s41, v{v}")

def rnd_bf16(a, v):
    a(f"v_cvt_pk_bf16_f32 v{v}, v{v}, v{v}\nv_and_b32 v{v}, 0xffff0000, v{v}")

def k_ln(a):
    n = "ln_kernel"
    a.kernel(n); a.launch(n, S, 64); a.kd(n, 64)
    a(f"s_cmp_ge_u32 s2, {S}\ns_cbranch_scc1 ln_end")
    a.load_ptr("x", 4); a.load_ptr("ws", 8)
    a("s_waitcnt lgkmcnt(0)")
    a.srd_finish("x", 4); a.srd_finish("ws", 8)
    a(f"s_mul_i32 s12, s2, {D*2}\nv_lshlrev_b32 v1, 1, v0")
    for i in range(9):
        a(f"buffer_load_ushort v{10+i}, v1, s[4:7], s12 offen offset:{i*128}")
    a("s_waitcnt vmcnt(0)")
    for i in range(9): a(f"v_lshlrev_b32 v{10+i}, 16, v{10+i}")
    for p in range(2):
        a("v_mov_b32 v2, 0")
        for i in range(9): a(f"v_add_f32 v2, v2, v{10+i}")
        wave_sum(a, 2, 3)
        a(f"v_mul_f32 v2, {fhex(1.0/D)}, v2")
        for i in range(9): a(f"v_sub_f32 v{10+i}, v{10+i}, v2")
        a("v_mov_b32 v2, 0")
        for i in range(9): a(f"v_fmac_f32 v2, v{10+i}, v{10+i}")
        wave_sum(a, 2, 3)
        a(f"v_mul_f32 v2, {fhex(1.0/D)}, v2\nv_add_f32 v2, {fhex(1e-5)}, v2\nv_rsq_f32 v2, v2\ns_nop 1")
        for i in range(9):
            a(f"v_mul_f32 v{10+i}, v{10+i}, v2"); rnd_bf16(a, 10 + i)
        if p == 0:
            a(f"s_mul_i32 s12, s2, {D*4}\ns_add_u32 s12, s12, {XN}\nv_lshlrev_b32 v1, 2, v0")
            for i in range(9): a(f"buffer_store_dword v{10+i}, v1, s[8:11], s12 offen offset:{i*256}")
        else:
            a(f"s_lshl_b32 s12, s2, 2\ns_add_u32 s12, s12, {HT}\nv_lshlrev_b32 v1, 13, v0")
            for i in range(9):
                a(f"buffer_store_dword v{10+i}, v1, s[8:11], s12 offen\ns_add_u32 s12, s12, {64*S*4}")
        a("s_waitcnt vmcnt(0)")
    a("ln_end:\ns_endpgm")

def k_gemm(a, n, M, N, K, Aoff, Bname, epi, Coff):
    nb = N // 64
    grid = (M // 4) * nb
    a.kernel(n); a.launch(n, grid, 64); a.kd(n, 64)
    a(f"s_cmp_ge_u32 s2, {grid}\ns_cbranch_scc1 {n}_end")
    a.load_ptr(Bname, 4); a.load_ptr("ws", 8)
    if epi == "gelu": a.load_ptr("b1", 24)
    if epi == "b2": a.load_ptr("b2", 24)
    if epi == "final": a.load_ptr("x", 24); a.load_ptr("out", 28)
    a("s_waitcnt lgkmcnt(0)")
    a.srd_finish(Bname, 4); a.srd_finish("ws", 8)
    if epi == "gelu": a.srd_finish("b1", 24)
    if epi == "b2": a.srd_finish("b2", 24)
    if epi == "final": a.srd_finish("x", 24); a.srd_finish("out", 28)
    magic = (1 << 32) // nb + 1
    a(f"s_mul_hi_u32 s12, s2, {magic}\ns_mul_i32 s13, s12, {nb}\ns_sub_u32 s13, s2, s13")
    a(f"s_mul_i32 s14, s12, {4*K*4}\ns_add_u32 s14, s14, {Aoff}\ns_add_u32 s16, s8, s14\ns_addc_u32 s17, s9, 0")
    a("s_lshl_b32 s15, s13, 7\nv_lshlrev_b32 v1, 1, v0")
    for r in range(4): a(f"v_mov_b32 v{4+r}, 0")
    a(f"s_mov_b32 s18, {K//8}")
    a(f"{n}_loop:")
    for r in range(4): a(f"s_load_dwordx8 s[{36+8*r}:{43+8*r}], s[16:17], {r*K*4}")
    for k in range(8):
        a(f"buffer_load_ushort v{10+k}, v1, s[4:7], s15 offen\ns_add_u32 s15, s15, {N*2}")
    a("s_add_u32 s16, s16, 32\ns_addc_u32 s17, s17, 0")
    a("s_waitcnt vmcnt(0) lgkmcnt(0)")
    for k in range(8):
        a(f"v_lshlrev_b32 v{10+k}, 16, v{10+k}")
        for r in range(4): a(f"v_fmac_f32 v{4+r}, s{36+8*r+k}, v{10+k}")
    a(f"s_sub_u32 s18, s18, 1\ns_cmp_lg_u32 s18, 0\ns_cbranch_scc1 {n}_loop")
    a("s_lshl_b32 s15, s13, 7")
    if epi in ("gelu", "b2"):
        a("buffer_load_ushort v10, v1, s[24:27], s15 offen\ns_waitcnt vmcnt(0)\nv_lshlrev_b32 v10, 16, v10")
        for r in range(4): a(f"v_add_f32 v{4+r}, v{4+r}, v10")
    if epi == "gelu":
        c = 0.7978845608028654; l2 = 1.4426950408889634
        for r in range(4):
            v = 4 + r
            a(f"v_mul_f32 v11, v{v}, v{v}\nv_mul_f32 v11, {fhex(-2*c*0.044715*l2)}, v11\nv_add_f32 v11, {fhex(-2*c*l2)}, v11\nv_mul_f32 v11, v11, v{v}")
            a(f"v_exp_f32 v11, v11\ns_nop 1\nv_add_f32 v11, 1.0, v11\nv_rcp_f32 v11, v11\ns_nop 1\nv_mul_f32 v{v}, v{v}, v11")
    if epi == "final":
        a(f"s_mul_i32 s19, s12, {4*N*2}\ns_add_u32 s19, s19, s15")
        a(f"v_lshlrev_b32 v2, 13, v0\ns_lshl_b32 s20, s13, 19\ns_lshl_b32 s21, s12, 4\ns_add_u32 s20, s20, s21\ns_add_u32 s20, s20, {Y}")
        a("buffer_load_dwordx4 v[16:19], v2, s[8:11], s20 offen")
        for r in range(4): a(f"buffer_load_ushort v{10+r}, v1, s[24:27], s19 offen offset:{r*N*2}")
        a("s_waitcnt vmcnt(0)")
        for r in range(4):
            a(f"v_lshlrev_b32 v{10+r}, 16, v{10+r}\nv_add_f32 v{4+r}, v{4+r}, v{10+r}\nv_add_f32 v{4+r}, v{4+r}, v{16+r}\nv_cvt_pk_bf16_f32 v{4+r}, v{4+r}, v{4+r}")
            a(f"buffer_store_short v{4+r}, v1, s[28:31], s19 offen offset:{r*N*2}")
    else:
        a(f"s_mul_i32 s19, s12, {4*N*4}\ns_lshl_b32 s15, s13, 8\ns_add_u32 s19, s19, s15\ns_add_u32 s19, s19, {Coff}\nv_lshlrev_b32 v1, 2, v0")
        for r in range(4):
            rnd_bf16(a, 4 + r)
            a(f"buffer_store_dword v{4+r}, v1, s[8:11], s19 offen\ns_add_u32 s19, s19, {N*4}")
    a(f"{n}_end:\ns_endpgm")

def k_feat(a):
    n = "feat_kernel"
    grid = 2 * H * (S // 64)
    a.kernel(n); a.launch(n, grid, 64); a.kd(n, 96)
    a(f"s_cmp_ge_u32 s2, {grid}\ns_cbranch_scc1 {n}_end")
    a.load_ptr("wphi", 4); a.load_ptr("ws", 8)
    a("s_waitcnt lgkmcnt(0)")
    a.srd_finish("ws", 8)
    a("s_and_b32 s12, s2, 31\ns_lshr_b32 s13, s2, 5\ns_and_b32 s14, s13, 31\ns_lshr_b32 s15, s13, 5")
    a(f"s_mul_i32 s16, s14, 648\ns_add_u32 s4, s4, s16\ns_addc_u32 s5, s5, 0")
    a(f"s_mul_i32 s16, s12, {64*1728*4}\ns_mul_i32 s17, s13, 72\ns_add_u32 s16, s16, s17\ns_add_u32 s16, s16, {QKV}\nv_mul_u32_u24 v1, {1728*4}, v0")
    for j in range(18): a(f"buffer_load_dword v{10+j}, v1, s[8:11], s16 offen offset:{j*4}")
    for f in range(18): a(f"v_mov_b32 v{30+f}, 0")
    a("s_waitcnt vmcnt(0)")
    for j in range(18):
        for i in range(9): a(f"s_load_dword s{40+i}, s[4:5], {j*36+i*4}")
        a("s_waitcnt lgkmcnt(0)")
        for i in range(9):
            a(f"s_lshl_b32 s50, s{40+i}, 16\nv_fmac_f32 v{30+2*i}, s50, v{10+j}\ns_and_b32 s50, s{40+i}, 0xffff0000\nv_fmac_f32 v{31+2*i}, s50, v{10+j}")
    for f in range(18): rnd_bf16(a, 30 + f)
    l2 = 1.4426950408889634
    a(f"s_mul_i32 s16, s13, {36*S*4}\ns_lshl_b32 s17, s12, 8\ns_add_u32 s16, s16, s17\ns_add_u32 s16, s16, {PHI}\nv_lshlrev_b32 v1, 2, v0")
    for sgn in range(2):
        if sgn == 1:
            for f in range(18): a(f"v_sub_f32 v{30+f}, 0, v{30+f}")
        a("v_mov_b32 v2, v30")
        for f in range(1, 18): a(f"v_max_f32 v2, v2, v{30+f}")
        a("v_mov_b32 v3, 0")
        for f in range(18):
            a(f"v_sub_f32 v{50+f}, v{30+f}, v2\nv_mul_f32 v{50+f}, {fhex(l2)}, v{50+f}\nv_exp_f32 v{50+f}, v{50+f}\ns_nop 1\nv_add_f32 v3, v3, v{50+f}")
        a("v_rcp_f32 v3, v3\ns_nop 1")
        for f in range(18):
            a(f"v_mul_f32 v{50+f}, v{50+f}, v3"); rnd_bf16(a, 50 + f)
            a(f"buffer_store_dword v{50+f}, v1, s[8:11], s16 offen\ns_add_u32 s16, s16, {S*4}")
        a("s_waitcnt vmcnt(0)")
    a(f"{n}_end:\ns_endpgm")

def k_kv(a):
    n = "kv_kernel"
    grid = H * 36
    a.kernel(n); a.launch(n, grid, 64); a.kd(n, 96)
    a(f"s_cmp_ge_u32 s2, {grid}\ns_cbranch_scc1 {n}_end")
    a.load_ptr("ws", 8)
    a("s_waitcnt lgkmcnt(0)")
    a.srd_finish("ws", 8)
    magic = (1 << 32) // 36 + 1
    a(f"s_mul_hi_u32 s12, s2, {magic}")
    a(f"s_mul_i32 s16, s2, {S*4}\ns_add_u32 s16, s16, {PHI + H*36*S*4}\nv_lshlrev_b32 v1, 2, v0")
    a(f"s_mul_i32 s17, s12, 72\ns_add_u32 s17, s17, {QKV + 1152*4}\nv_mul_u32_u24 v2, {1728*4}, v0")
    for j in range(19): a(f"v_mov_b32 v{30+j}, 0")
    a(f"s_mov_b32 s18, 32\n{n}_loop:")
    a("buffer_load_dword v9, v1, s[8:11], s16 offen")
    for j in range(18): a(f"buffer_load_dword v{10+j}, v2, s[8:11], s17 offen offset:{j*4}")
    a(f"s_add_u32 s16, s16, 256\ns_add_u32 s17, s17, {64*1728*4}\ns_waitcnt vmcnt(0)")
    for j in range(18): a(f"v_fmac_f32 v{30+j}, v9, v{10+j}")
    a(f"v_add_f32 v48, v48, v9\ns_sub_u32 s18, s18, 1\ns_cmp_lg_u32 s18, 0\ns_cbranch_scc1 {n}_loop")
    a(f"s_lshl_b32 s16, s2, 7\ns_add_u32 s16, s16, {KV}\nv_mov_b32 v1, 0")
    for j in range(19):
        wave_sum(a, 30 + j, 3); rnd_bf16(a, 30 + j)
        a(f"buffer_store_dword v{30+j}, v1, s[8:11], s16 offen offset:{j*4}")
    a(f"{n}_end:\ns_endpgm")

def k_o(a):
    n = "o_kernel"
    grid = H * (S // 64)
    a.kernel(n); a.launch(n, grid, 64); a.kd(n, 96)
    a(f"s_cmp_ge_u32 s2, {grid}\ns_cbranch_scc1 {n}_end")
    a.load_ptr("ws", 8)
    a("s_waitcnt lgkmcnt(0)")
    a.srd_finish("ws", 8)
    a("s_and_b32 s12, s2, 31\ns_lshr_b32 s13, s2, 5")
    a(f"s_mul_i32 s16, s13, {36*S*4}\ns_lshl_b32 s17, s12, 8\ns_add_u32 s16, s16, s17\ns_add_u32 s16, s16, {PHI}\nv_lshlrev_b32 v1, 2, v0")
    a(f"s_mul_i32 s17, s13, {36*128}\ns_add_u32 s17, s17, {KV}\ns_add_u32 s4, s8, s17\ns_addc_u32 s5, s9, 0")
    for j in range(19): a(f"v_mov_b32 v{30+j}, 0")
    for f in range(36):
        a(f"buffer_load_dword v9, v1, s[8:11], s16 offen\ns_add_u32 s16, s16, {S*4}")
        a(f"s_load_dwordx16 s[36:51], s[4:5], {f*128}\ns_load_dwordx4 s[52:55], s[4:5], {f*128+64}\ns_waitcnt vmcnt(0) lgkmcnt(0)")
        for j in range(19): a(f"v_fmac_f32 v{30+j}, s{36+j}, v9")
    a(f"v_add_f32 v48, {fhex(1e-6)}, v48\nv_rcp_f32 v48, v48")
    a(f"s_mul_i32 s16, s12, {64*D*4}\ns_mul_i32 s17, s13, 72\ns_add_u32 s16, s16, s17\ns_add_u32 s16, s16, {O}\nv_mul_u32_u24 v2, {D*4}, v0")
    for j in range(18):
        a(f"v_mul_f32 v{30+j}, v{30+j}, v48"); rnd_bf16(a, 30 + j)
        a(f"buffer_store_dword v{30+j}, v2, s[8:11], s16 offen offset:{j*4}")
    a(f"{n}_end:\ns_endpgm")

def k_chase(a, name, buf, n, stride, base=0, flags=""):
    a.kernel(name); a.launch(name, 1, 64); a.kd(name, 16)
    a(f"s_cmp_ge_u32 s2, 1\ns_cbranch_scc1 {name}_end")
    a.load_ptr(buf, 4)
    a("s_waitcnt lgkmcnt(0)")
    a.srd_finish(buf, 4)
    a(f"v_mov_b32 v1, 0\ns_mov_b32 s12, {base}\ns_mov_b32 s13, {n}\n{name}_loop:")
    a(f"buffer_load_dword v2, v1, s[4:7], s12 offen {flags}\ns_waitcnt vmcnt(0)\ns_add_u32 s12, s12, {stride}")
    a(f"s_sub_u32 s13, s13, 1\ns_cmp_lg_u32 s13, 0\ns_cbranch_scc1 {name}_loop")
    a(f"{name}_end:\ns_endpgm")

def build(pre=None):
    a = Asm()
    if pre: pre(a)
    k_ln(a)
    k_gemm(a, "qkv_kernel", S, 1728, D, XN, "wqkv", "none", QKV)
    k_feat(a); k_kv(a); k_o(a)
    k_gemm(a, "g1_kernel", D, F, S, HT, "w1", "gelu", U)
    k_gemm(a, "g2_kernel", D, S, F, U, "w2", "b2", Y)
    k_gemm(a, "fin_kernel", S, D, D, O, "wo", "final", 0)
    return a.text()

if __name__ == "__main__":
    open("naive0.s", "w").write(build())
    open("naive1.s", "w").write(build(lambda a: k_chase(a, "p_kernel", "bx", 2000, 1152)))
    open("naive2.s", "w").write(build(lambda a: k_chase(a, "p_kernel", "w2", 2000, 9216 + 128)))
    open("naive3.s", "w").write(build(lambda a: k_chase(a, "p_kernel", "ws", 2000, 65536 + 128, 100 << 20)))
    open("naive4.s", "w").write(build(lambda a: k_chase(a, "p_kernel", "bx", 2000, 0)))
    open("naive5.s", "w").write(build(lambda a: k_chase(a, "p_kernel", "w1", 2000, 9216 + 128)))
```

```python
import sys
sys.path.insert(0, "work")
from asmlib import *
S, D, F, H, DH = 2048, 576, 4608, 32, 18
XN = 0
HT = XN + S * D * 4
QKV = HT + S * D * 4
U = QKV + S * 1728 * 4
Y = U + D * F * 4
PHI = Y + D * S * 4
KV = PHI + 2 * H * 36 * S * 4
O = KV + H * 36 * 32 * 4
END = O + S * D * 4

def wave_sum(a, v, t):
    for off in (0x041F, 0x081F, 0x101F, 0x201F, 0x401F):
        a(f"ds_swizzle_b32 v{t}, v{v} offset:{off}\ns_waitcnt lgkmcnt(0)\nv_add_f32 v{v}, v{v}, v{t}")
    a(f"s_nop 1\nv_readlane_b32 s40, v{v}, 0\nv_readlane_b32 s41, v{v}, 32\ns_nop 2\nv_mov_b32 v{v}, s40\nv_add_f32 v{v}, s41, v{v}")

def rnd_bf16(a, v):
    a(f"v_cvt_pk_bf16_f32 v{v}, v{v}, v{v}\nv_and_b32 v{v}, 0xffff0000, v{v}")

def k_ln(a):
    n = "ln_kernel"
    a.kernel(n); a.launch(n, S, 64); a.kd(n, 64)
    a(f"s_cmp_ge_u32 s2, {S}\ns_cbranch_scc1 ln_end")
    a.load_ptr("x", 4); a.load_ptr("ws", 8)
    a("s_waitcnt lgkmcnt(0)")
    a.srd_finish("x", 4); a.srd_finish("ws", 8)
    a(f"s_mul_i32 s12, s2, {D*2}\nv_lshlrev_b32 v1, 1, v0")
    for i in range(9):
        a(f"buffer_load_ushort v{10+i}, v1, s[4:7], s12 offen offset:{i*128}")
    a("s_waitcnt vmcnt(0)")
    for i in range(9): a(f"v_lshlrev_b32 v{10+i}, 16, v{10+i}")
    for p in range(2):
        a("v_mov_b32 v2, 0")
        for i in range(9): a(f"v_add_f32 v2, v2, v{10+i}")
        wave_sum(a, 2, 3)
        a(f"v_mul_f32 v2, {fhex(1.0/D)}, v2")
        for i in range(9): a(f"v_sub_f32 v{10+i}, v{10+i}, v2")
        a("v_mov_b32 v2, 0")
        for i in range(9): a(f"v_fmac_f32 v2, v{10+i}, v{10+i}")
        wave_sum(a, 2, 3)
        a(f"v_mul_f32 v2, {fhex(1.0/D)}, v2\nv_add_f32 v2, {fhex(1e-5)}, v2\nv_rsq_f32 v2, v2\ns_nop 1")
        for i in range(9):
            a(f"v_mul_f32 v{10+i}, v{10+i}, v2"); rnd_bf16(a, 10 + i)
        if p == 0:
            a(f"s_mul_i32 s12, s2, {D*4}\ns_add_u32 s12, s12, {XN}\nv_lshlrev_b32 v1, 2, v0")
            for i in range(9): a(f"buffer_store_dword v{10+i}, v1, s[8:11], s12 offen offset:{i*256}")
        else:
            a(f"s_lshl_b32 s12, s2, 2\ns_add_u32 s12, s12, {HT}\nv_lshlrev_b32 v1, 13, v0")
            for i in range(9):
                a(f"buffer_store_dword v{10+i}, v1, s[8:11], s12 offen\ns_add_u32 s12, s12, {64*S*4}")
        a("s_waitcnt vmcnt(0)")
    a("ln_end:\ns_endpgm")

def k_gemm(a, n, M, N, K, Aoff, Bname, epi, Coff):
    nb = N // 64
    grid = (M // 4) * nb
    a.kernel(n); a.launch(n, grid, 64); a.kd(n, 64)
    a(f"s_cmp_ge_u32 s2, {grid}\ns_cbranch_scc1 {n}_end")
    a.load_ptr(Bname, 4); a.load_ptr("ws", 8)
    if epi == "gelu": a.load_ptr("b1", 24)
    if epi == "b2": a.load_ptr("b2", 24)
    if epi == "final": a.load_ptr("x", 24); a.load_ptr("out", 28)
    a("s_waitcnt lgkmcnt(0)")
    a.srd_finish(Bname, 4); a.srd_finish("ws", 8)
    if epi == "gelu": a.srd_finish("b1", 24)
    if epi == "b2": a.srd_finish("b2", 24)
    if epi == "final": a.srd_finish("x", 24); a.srd_finish("out", 28)
    magic = (1 << 32) // nb + 1
    a(f"s_mul_hi_u32 s12, s2, {magic}\ns_mul_i32 s13, s12, {nb}\ns_sub_u32 s13, s2, s13")
    a(f"s_mul_i32 s14, s12, {4*K*4}\ns_add_u32 s14, s14, {Aoff}\ns_add_u32 s16, s8, s14\ns_addc_u32 s17, s9, 0")
    a("s_lshl_b32 s15, s13, 7\nv_lshlrev_b32 v1, 1, v0")
    for r in range(4): a(f"v_mov_b32 v{4+r}, 0")
    a(f"s_mov_b32 s18, {K//8}")
    a(f"{n}_loop:")
    for r in range(4): a(f"s_load_dwordx8 s[{36+8*r}:{43+8*r}], s[16:17], {r*K*4}")
    for k in range(8):
        a(f"buffer_load_ushort v{10+k}, v1, s[4:7], s15 offen\ns_add_u32 s15, s15, {N*2}")
    a("s_add_u32 s16, s16, 32\ns_addc_u32 s17, s17, 0")
    a("s_waitcnt vmcnt(0) lgkmcnt(0)")
    for k in range(8):
        a(f"v_lshlrev_b32 v{10+k}, 16, v{10+k}")
        for r in range(4): a(f"v_fmac_f32 v{4+r}, s{36+8*r+k}, v{10+k}")
    a(f"s_sub_u32 s18, s18, 1\ns_cmp_lg_u32 s18, 0\ns_cbranch_scc1 {n}_loop")
    a("s_lshl_b32 s15, s13, 7")
    if epi in ("gelu", "b2"):
        a("buffer_load_ushort v10, v1, s[24:27], s15 offen\ns_waitcnt vmcnt(0)\nv_lshlrev_b32 v10, 16, v10")
        for r in range(4): a(f"v_add_f32 v{4+r}, v{4+r}, v10")
    if epi == "gelu":
        c = 0.7978845608028654; l2 = 1.4426950408889634
        for r in range(4):
            v = 4 + r
            a(f"v_mul_f32 v11, v{v}, v{v}\nv_mul_f32 v11, {fhex(-2*c*0.044715*l2)}, v11\nv_add_f32 v11, {fhex(-2*c*l2)}, v11\nv_mul_f32 v11, v11, v{v}")
            a(f"v_exp_f32 v11, v11\ns_nop 1\nv_add_f32 v11, 1.0, v11\nv_rcp_f32 v11, v11\ns_nop 1\nv_mul_f32 v{v}, v{v}, v11")
    if epi == "final":
        a(f"s_mul_i32 s19, s12, {4*N*2}\ns_add_u32 s19, s19, s15")
        a(f"v_lshlrev_b32 v2, 13, v0\ns_lshl_b32 s20, s13, 19\ns_lshl_b32 s21, s12, 4\ns_add_u32 s20, s20, s21\ns_add_u32 s20, s20, {Y}")
        a("buffer_load_dwordx4 v[16:19], v2, s[8:11], s20 offen")
        for r in range(4): a(f"buffer_load_ushort v{10+r}, v1, s[24:27], s19 offen offset:{r*N*2}")
        a("s_waitcnt vmcnt(0)")
        for r in range(4):
            a(f"v_lshlrev_b32 v{10+r}, 16, v{10+r}\nv_add_f32 v{4+r}, v{4+r}, v{10+r}\nv_add_f32 v{4+r}, v{4+r}, v{16+r}\nv_cvt_pk_bf16_f32 v{4+r}, v{4+r}, v{4+r}")
            a(f"buffer_store_short v{4+r}, v1, s[28:31], s19 offen offset:{r*N*2}")
    else:
        a(f"s_mul_i32 s19, s12, {4*N*4}\ns_lshl_b32 s15, s13, 8\ns_add_u32 s19, s19, s15\ns_add_u32 s19, s19, {Coff}\nv_lshlrev_b32 v1, 2, v0")
        for r in range(4):
            rnd_bf16(a, 4 + r)
            a(f"buffer_store_dword v{4+r}, v1, s[8:11], s19 offen\ns_add_u32 s19, s19, {N*4}")
    a(f"{n}_end:\ns_endpgm")

def k_feat(a):
    n = "feat_kernel"
    grid = 2 * H * (S // 64)
    a.kernel(n); a.launch(n, grid, 64); a.kd(n, 96)
    a(f"s_cmp_ge_u32 s2, {grid}\ns_cbranch_scc1 {n}_end")
    a.load_ptr("wphi", 4); a.load_ptr("ws", 8)
    a("s_waitcnt lgkmcnt(0)")
    a.srd_finish("ws", 8)
    a("s_and_b32 s12, s2, 31\ns_lshr_b32 s13, s2, 5\ns_and_b32 s14, s13, 31\ns_lshr_b32 s15, s13, 5")
    a(f"s_mul_i32 s16, s14, 648\ns_add_u32 s4, s4, s16\ns_addc_u32 s5, s5, 0")
    a(f"s_mul_i32 s16, s12, {64*1728*4}\ns_mul_i32 s17, s13, 72\ns_add_u32 s16, s16, s17\ns_add_u32 s16, s16, {QKV}\nv_mul_u32_u24 v1, {1728*4}, v0")
    for j in range(18): a(f"buffer_load_dword v{10+j}, v1, s[8:11], s16 offen offset:{j*4}")
    for f in range(18): a(f"v_mov_b32 v{30+f}, 0")
    a("s_waitcnt vmcnt(0)")
    for j in range(18):
        for i in range(9): a(f"s_load_dword s{40+i}, s[4:5], {j*36+i*4}")
        a("s_waitcnt lgkmcnt(0)")
        for i in range(9):
            a(f"s_lshl_b32 s50, s{40+i}, 16\nv_fmac_f32 v{30+2*i}, s50, v{10+j}\ns_and_b32 s50, s{40+i}, 0xffff0000\nv_fmac_f32 v{31+2*i}, s50, v{10+j}")
    for f in range(18): rnd_bf16(a, 30 + f)
    l2 = 1.4426950408889634
    a(f"s_mul_i32 s16, s13, {36*S*4}\ns_lshl_b32 s17, s12, 8\ns_add_u32 s16, s16, s17\ns_add_u32 s16, s16, {PHI}\nv_lshlrev_b32 v1, 2, v0")
    for sgn in range(2):
        if sgn == 1:
            for f in range(18): a(f"v_sub_f32 v{30+f}, 0, v{30+f}")
        a("v_mov_b32 v2, v30")
        for f in range(1, 18): a(f"v_max_f32 v2, v2, v{30+f}")
        a("v_mov_b32 v3, 0")
        for f in range(18):
            a(f"v_sub_f32 v{50+f}, v{30+f}, v2\nv_mul_f32 v{50+f}, {fhex(l2)}, v{50+f}\nv_exp_f32 v{50+f}, v{50+f}\ns_nop 1\nv_add_f32 v3, v3, v{50+f}")
        a("v_rcp_f32 v3, v3\ns_nop 1")
        for f in range(18):
            a(f"v_mul_f32 v{50+f}, v{50+f}, v3"); rnd_bf16(a, 50 + f)
            a(f"buffer_store_dword v{50+f}, v1, s[8:11], s16 offen\ns_add_u32 s16, s16, {S*4}")
        a("s_waitcnt vmcnt(0)")
    a(f"{n}_end:\ns_endpgm")

def k_kv(a):
    n = "kv_kernel"
    grid = H * 36
    a.kernel(n); a.launch(n, grid, 64); a.kd(n, 96)
    a(f"s_cmp_ge_u32 s2, {grid}\ns_cbranch_scc1 {n}_end")
    a.load_ptr("ws", 8)
    a("s_waitcnt lgkmcnt(0)")
    a.srd_finish("ws", 8)
    magic = (1 << 32) // 36 + 1
    a(f"s_mul_hi_u32 s12, s2, {magic}")
    a(f"s_mul_i32 s16, s2, {S*4}\ns_add_u32 s16, s16, {PHI + H*36*S*4}\nv_lshlrev_b32 v1, 2, v0")
    a(f"s_mul_i32 s17, s12, 72\ns_add_u32 s17, s17, {QKV + 1152*4}\nv_mul_u32_u24 v2, {1728*4}, v0")
    for j in range(19): a(f"v_mov_b32 v{30+j}, 0")
    a(f"s_mov_b32 s18, 32\n{n}_loop:")
    a("buffer_load_dword v9, v1, s[8:11], s16 offen")
    for j in range(18): a(f"buffer_load_dword v{10+j}, v2, s[8:11], s17 offen offset:{j*4}")
    a(f"s_add_u32 s16, s16, 256\ns_add_u32 s17, s17, {64*1728*4}\ns_waitcnt vmcnt(0)")
    for j in range(18): a(f"v_fmac_f32 v{30+j}, v9, v{10+j}")
    a(f"v_add_f32 v48, v48, v9\ns_sub_u32 s18, s18, 1\ns_cmp_lg_u32 s18, 0\ns_cbranch_scc1 {n}_loop")
    a(f"s_lshl_b32 s16, s2, 7\ns_add_u32 s16, s16, {KV}\nv_mov_b32 v1, 0")
    for j in range(19):
        wave_sum(a, 30 + j, 3); rnd_bf16(a, 30 + j)
        a(f"buffer_store_dword v{30+j}, v1, s[8:11], s16 offen offset:{j*4}")
    a(f"{n}_end:\ns_endpgm")

def k_o(a):
    n = "o_kernel"
    grid = H * (S // 64)
    a.kernel(n); a.launch(n, grid, 64); a.kd(n, 96)
    a(f"s_cmp_ge_u32 s2, {grid}\ns_cbranch_scc1 {n}_end")
    a.load_ptr("ws", 8)
    a("s_waitcnt lgkmcnt(0)")
    a.srd_finish("ws", 8)
    a("s_and_b32 s12, s2, 31\ns_lshr_b32 s13, s2, 5")
    a(f"s_mul_i32 s16, s13, {36*S*4}\ns_lshl_b32 s17, s12, 8\ns_add_u32 s16, s16, s17\ns_add_u32 s16, s16, {PHI}\nv_lshlrev_b32 v1, 2, v0")
    a(f"s_mul_i32 s17, s13, {36*128}\ns_add_u32 s17, s17, {KV}\ns_add_u32 s4, s8, s17\ns_addc_u32 s5, s9, 0")
    for j in range(19): a(f"v_mov_b32 v{30+j}, 0")
    for f in range(36):
        a(f"buffer_load_dword v9, v1, s[8:11], s16 offen\ns_add_u32 s16, s16, {S*4}")
        a(f"s_load_dwordx16 s[36:51], s[4:5], {f*128}\ns_load_dwordx4 s[52:55], s[4:5], {f*128+64}\ns_waitcnt vmcnt(0) lgkmcnt(0)")
        for j in range(19): a(f"v_fmac_f32 v{30+j}, s{36+j}, v9")
    a(f"v_add_f32 v48, {fhex(1e-6)}, v48\nv_rcp_f32 v48, v48")
    a(f"s_mul_i32 s16, s12, {64*D*4}\ns_mul_i32 s17, s13, 72\ns_add_u32 s16, s16, s17\ns_add_u32 s16, s16, {O}\nv_mul_u32_u24 v2, {D*4}, v0")
    for j in range(18):
        a(f"v_mul_f32 v{30+j}, v{30+j}, v48"); rnd_bf16(a, 30 + j)
        a(f"buffer_store_dword v{30+j}, v2, s[8:11], s16 offen offset:{j*4}")
    a(f"{n}_end:\ns_endpgm")

def k_chase(a, name, buf, n, stride, base=0, flags=""):
    a.kernel(name); a.launch(name, 1, 64); a.kd(name, 16)
    a(f"s_cmp_ge_u32 s2, 1\ns_cbranch_scc1 {name}_end")
    a.load_ptr(buf, 4)
    a("s_waitcnt lgkmcnt(0)")
    a.srd_finish(buf, 4)
    a(f"v_mov_b32 v1, 0\ns_mov_b32 s12, {base}\ns_mov_b32 s13, {n}\n{name}_loop:")
    a(f"buffer_load_dword v2, v1, s[4:7], s12 offen {flags}\ns_waitcnt vmcnt(0)\ns_add_u32 s12, s12, {stride}")
    a(f"s_sub_u32 s13, s13, 1\ns_cmp_lg_u32 s13, 0\ns_cbranch_scc1 {name}_loop")
    a(f"{name}_end:\ns_endpgm")

def build(pre=None):
    a = Asm()
    if pre: pre(a)
    k_ln(a)
    k_gemm(a, "qkv_kernel", S, 1728, D, XN, "wqkv", "none", QKV)
    k_feat(a); k_kv(a); k_o(a)
    k_gemm(a, "g1_kernel", D, F, S, HT, "w1", "gelu", U)
    k_gemm(a, "g2_kernel", D, S, F, U, "w2", "b2", Y)
    k_gemm(a, "fin_kernel", S, D, D, O, "wo", "final", 0)
    return a.text()

if __name__ == "__main__":
    open("naive0.s", "w").write(build())
    open("naive1.s", "w").write(build(lambda a: k_chase(a, "p_kernel", "bx", 2000, 1152)))
    open("naive2.s", "w").write(build(lambda a: k_chase(a, "p_kernel", "w2", 2000, 9216 + 128)))
    open("naive3.s", "w").write(build(lambda a: k_chase(a, "p_kernel", "ws", 2000, 65536 + 128, 100 << 20)))
    open("naive4.s", "w").write(build(lambda a: k_chase(a, "p_kernel", "bx", 2000, 0)))
    open("naive5.s", "w").write(build(lambda a: k_chase(a, "p_kernel", "w1", 2000, 9216 + 128)))

def k_stream(a, name, mb, flags="", store=False):
    per = mb * (1 << 20) // 256
    a.kernel(name); a.launch(name, 256, 512); a.kd(name, 16)
    a(f"s_cmp_ge_u32 s2, 256\ns_cbranch_scc1 {name}_end")
    a.load_ptr("ws", 4)
    a("s_waitcnt lgkmcnt(0)")
    a.srd_finish("ws", 4)
    a(f"v_lshlrev_b32 v1, 4, v0\ns_mul_i32 s12, s2, {per}\ns_add_u32 s12, s12, {64 << 20}\ns_mov_b32 s13, {per // 8192}")
    a("v_mov_b32 v4, 0\nv_mov_b32 v5, 0\nv_mov_b32 v6, 0\nv_mov_b32 v7, 0")
    a(f"{name}_loop:")
    if store:
        a(f"buffer_store_dwordx4 v[4:7], v1, s[4:7], s12 offen {flags}\ns_add_u32 s12, s12, 8192")
    else:
        a(f"buffer_load_dwordx4 v[4:7], v1, s[4:7], s12 offen {flags}\ns_add_u32 s12, s12, 8192")
    a(f"s_sub_u32 s13, s13, 1\ns_cmp_lg_u32 s13, 0\ns_cbranch_scc1 {name}_loop")
    a(f"s_waitcnt vmcnt(0)\n{name}_end:\ns_endpgm")
def k_empty(a, name, n):
    a.kernel(name); a.kd(name, 16)
    for i in range(n): a.launch(name, 256, 512, 131072)
    a("s_endpgm")
if __name__ == "__main__":
    open("naive1.s", "w").write(build(lambda a: k_stream(a, "p_kernel", 128)))
    open("naive2.s", "w").write(build(lambda a: k_stream(a, "p_kernel", 128, "nt")))
    open("naive3.s", "w").write(build(lambda a: k_empty(a, "p_kernel", 40)))
    open("naive4.s", "w").write(build(lambda a: k_stream(a, "p_kernel", 128, "", True)))
    open("naive5.s", "w").write(build(lambda a: k_stream(a, "p_kernel", 128, "nt", True)))
```

```python
from gen import *

A_SLOT, A_NS, A_W = 30720, 5, 16384
IMG_P = 480
WPH = LN_SCR
ZERO = LN_SCR + 3072
JUNK = LN_SCR + 3200
TAB = 0


def emit(a):
    o = a.o
    ACC = 24
    P, Q = 136, 180
    bA, bA4, bB0, bB1 = 1, 2, 3, 4
    cA, cA4, cB0, cB1 = 5, 6, 7, 8
    vH, vW = 10, 12
    vS = 16
    vG, vN, vOOB = 224, 225, 226
    a(f"s_sub_u32 s54, s{sIDX}, 24\ns_and_b32 s55, s{sWAVE}, 3\ns_lshr_b32 s56, s{sWAVE}, 2")
    a(f"v_lshrrev_b32 v{vG}, 4, v0\nv_and_b32 v{vN}, 15, v0\nv_mov_b32 v{vOOB}, {OOB}")
    a(f"s_lshl_b32 s3, s{sWAVE}, 7\nv_add_u32 v230, s3, v0")
    for i in range(2):
        a(f"v_add_u32 v231, {64*i}, v230")
        a.divmod_const(232, 233, 231, 27, 234)
        a.divmod_const(235, 236, 233, 9, 234)
        a(f"v_mul_u32_u24 v232, 3456, v232\nv_mul_u32_u24 v235, 1152, v235\nv_lshlrev_b32 v236, 4, v236\nv_add3_u32 v232, v232, v235, v236")
        a(f"v_subrev_u32 v232, {1024*i}, v232\nv_cmp_gt_u32 vcc, 864, v231\ns_nop 1\nv_cndmask_b32 v{vW+i}, v{vOOB}, v232, vcc")
    a(f"s_mul_i32 s57, s{sXCD}, 144\ns_lshl_b32 s59, s{sWAVE}, 11\ns_add_u32 s60, s59, {A_W}")
    issued = []
    def w_dma(st):
        r = [f"s_add_u32 m0, s60, {(st % A_NS)*A_SLOT}"]
        for i in range(2):
            r.append(f"buffer_load_dwordx4 v{vW+i}, {srd(rWQKV)}, s57 offen offset:{1024*i} lds")
            issued.append(st)
        r.append(f"s_add_u32 s57, s57, {32*3456}")
        return r
    def h_dma(st):
        r = [f"s_add_u32 m0, s59, {(st % A_NS)*A_SLOT}"]
        for i in range(2):
            r.append(f"buffer_load_dwordx4 v{vH+i}, {srd(rWS)}, s58 offen offset:{1024*i} sc1 lds")
            issued.append(st)
        r.append("s_add_u32 s58, s58, 0x200")
        return r
    def emit_dma(r):
        a(r[0] + "\ns_nop 0")
        for x in r[1:]: a(x)
    def vm(st):
        last = max(i for i, x in enumerate(issued) if x == st)
        return len(issued) - 1 - last
    a(f"s_cmp_eq_u32 s{sWAVE}, 7\ns_cselect_b32 s61, 0, -1")
    def fix7(r):
        imm = r[0].split(",")[-1].strip()
        return [f"s_and_b32 s3, s61, {imm}\ns_add_u32 m0, s60, s3\ns_nop 0"] + r[1:]
    a(f"s_cmp_eq_u32 s{sWAVE}, 7\ns_cselect_b32 s60, {LN_SCR + 4096}, s60")
    a.att_prefetch_start()
    a(f"s_cmp_eq_u32 s{sWAVE}, 7\ns_cbranch_scc1 L_att_nopre")
    for st in range(A_NS):
        for x in fix7(w_dma(st)): a(x)
    a("L_att_nopre:")
    a("v_lshrrev_b32 v230, 5, v0\nv_and_b32 v231, 31, v0\nv_xor_b32 v231, v231, v230\nv_mul_u32_u24 v230, 9216, v230\nv_lshl_add_u32 v230, v231, 4, v230")
    a(f"v_mov_b32 v{vH}, v230\nv_add_u32 v{vH+1}, {2*9216-1024}, v230")
    a(f"s_lshl_b32 s58, s54, 5\ns_lshl_b32 s3, s{sWAVE}, 2\ns_add_u32 s58, s58, s3\ns_mul_i32 s58, s58, 9216\ns_add_u32 s58, s58, {HT}")
    a(f"v_bfe_u32 v230, v0, 2, 2\nv_lshlrev_b32 v230, 1, v230\nv_lshl_add_u32 v230, v{vG}, 3, v230\nv_and_b32 v231, 3, v0")
    a(f"s_mul_i32 s3, s56, 72\ns_add_u32 s3, s3, {A_W}\nv_mul_u32_u24 v232, 432, v230\nv_add_u32 v232, s3, v232")
    a(f"v_lshl_add_u32 v{cA}, v231, 3, v232\nv_min_u32 v233, 2, v231\nv_mul_u32_u24 v233, 144, v233\nv_add3_u32 v{cA4}, v232, v233, 64")
    a(f"v_lshrrev_b32 v233, 1, v231\nv_xor_b32 v234, v230, v233\nv_lshlrev_b32 v234, 4, v234\nv_lshl_add_u32 v234, v233, 9, v234")
    a(f"v_and_b32 v233, 1, v231\nv_lshl_add_u32 v234, v233, 3, v234\ns_lshl_b32 s3, s55, 12\nv_add_u32 v{cB0}, s3, v234\nv_xor_b32 v{cB1}, 16, v{cB0}")
    for x, y in ((bA, cA), (bA4, cA4), (bB0, cB0), (bB1, cB1)): a(f"v_mov_b32 v{x}, v{y}")
    for i in range(112): a(f"v_mov_b32 v{ACC+i}, 0")
    a(f"s_cmp_lg_u32 s{sWAVE}, 7\ns_cbranch_scc1 L_att_np")
    a.wait_A_group("s54", 230)
    a("L_att_np:")
    a("s_barrier")
    a.stamp(3)
    a(f"s_lshl_b32 s3, s54, 2\ns_add_u32 s3, s3, s55\ns_lshl_b32 s3, s3, 8\ns_add_u32 s3, s3, {S2}\nv_lshlrev_b32 v230, 2, v{vN}")
    emit_dma(h_dma(0))
    for t in range(4):
        a(f"buffer_load_dword v{vS+2*t}, v230, {srd(rWS)}, s3 offen offset:{64*t} sc1")
        issued.append(-1)
    a(f"s_min_u32 s3, s{sWAVE}, 2\ns_lshl_b32 s3, s3, 10\ns_add_u32 m0, s3, {WPH}\ns_mul_i32 s48, s{sXCD}, 2592\ns_add_u32 s3, s3, s48\nv_lshlrev_b32 v231, 4, v0")
    a(f"buffer_load_dwordx4 v231, {srd(rWPHI)}, s3 offen lds")
    issued.append(-1)
    a(f"v_mov_b32 v232, 0\nv_add_u32 v231, {ZERO}, v230\nds_write_b32 v231, v232")
    emit_dma(h_dma(1))

    TOFF = [0, 32, 144, 176, None, 288, 320]
    def reads(st):
        r = []
        def rb(tt):
            return [f"ds_read_b64_tr_b16 v[{st+28+4*tt+2*rho}:{st+29+4*tt+2*rho}], v{bB1 if rho else bB0} offset:{1024*tt}" for rho in range(2)]
        r += rb(0)
        for T in range(7):
            for rho in range(2):
                if T == 4:
                    r.append(f"ds_read_b64_tr_b16 v[{st+4*T+2*rho}:{st+4*T+2*rho+1}], v{bA4} offset:{432*rho}")
                else:
                    r.append(f"ds_read_b64_tr_b16 v[{st+4*T+2*rho}:{st+4*T+2*rho+1}], v{bA} offset:{432*rho+TOFF[T]}")
        for tt in range(1, 4): r += rb(tt)
        return r
    def mfmas(st):
        m = []
        for tt in range(4):
            for T in range(7):
                d = ACC + 28 * tt + 4 * T
                m.append(f"v_mfma_f32_16x16x32_bf16 v[{d}:{d+3}], v[{st+4*T}:{st+4*T+3}], v[{st+28+4*tt}:{st+31+4*tt}], v[{d}:{d+3}]")
        return m
    def advance(st):
        off = (st % A_NS) * A_SLOT
        if off == 0:
            return [f"v_mov_b32 v{bA}, v{cA}\nv_mov_b32 v{bA4}, v{cA4}", f"v_mov_b32 v{bB0}, v{cB0}\nv_mov_b32 v{bB1}, v{cB1}"]
        return [f"v_add_u32 v{x}, {off}, v{y}" for x, y in ((bA, cA), (bA4, cA4), (bB0, cB0), (bB1, cB1))]
    a(f"s_waitcnt vmcnt({vm(0)})\ns_barrier")
    a.stamp(4)
    for r in reads(P): a(r)
    for r in advance(1): a(r)
    emit_dma(h_dma(2))
    NS_ = 18
    a.align8()
    pendH = [3, 4]
    for n in range(NS_):
        st, nx = (P, Q)[n & 1], (P, Q)[(n + 1) & 1]
        if n + 1 < NS_:
            a(f"s_waitcnt vmcnt({vm(n+1)}) lgkmcnt(0)\ns_barrier")
            ds = reads(nx)
            if n + 2 < NS_: ds += advance(n + 2)
            dm = []
            if n + A_NS < NS_: pendH.append(n + A_NS)
            for _ in range(2 if len(pendH) > 1 else 1):
                if pendH:
                    r = h_dma(pendH.pop(0))
                    dm += [r[0] + "\ns_nop 0\ns_nop 0\n" + r[1], r[2] + "\n" + r[3]]
            if n + A_NS < NS_:
                r = fix7(w_dma(n + A_NS))
                dm += [r[0] + "\n" + r[1], r[2] + "\n" + r[3]]
            dm += a.att_prefetch_step(n, issued)
            mf = mfmas(st)
            k = 0
            for i, m_ in enumerate(mf):
                a(m_)
                if ds:
                    a(ds.pop(0))
                    if ds: a(ds.pop(0))
                elif dm and i % 2 == 0:
                    a(dm.pop(0))
            for x in dm: a(x)
        else:
            a("s_waitcnt vmcnt(0) lgkmcnt(0)\ns_barrier")
            for m_ in mfmas(st): a(m_)
    a.stamp(5)
    a.att_prefetch_tail(0)

    PK = 136
    G_ = 192
    A2 = 212
    GH = 228
    A2H = list(range(248, 256)) + [222, 223]
    a(f"v_bfe_u32 v1, v0, 2, 1\nv_and_b32 v2, 3, v0\ns_mul_i32 s3, s56, 1296\ns_add_u32 s3, s3, {WPH}")
    a(f"v_lshl_add_u32 v2, v2, 1, s3\nv_mul_u32_u24 v3, 144, v{vG}\nv_add_u32 v3, v3, v2\nv_mov_b32 v4, {ZERO}\nv_mul_u32_u24 v1, 18, v1\nv_lshlrev_b32 v5, 2, v{vG}")
    a("v_sub_u32 v5, v5, v1")
    for j in range(8):
        pc = (j & 3) + 16 * (j >> 2)
        a(f"v_add_u32 v6, {pc}, v5\nv_cmp_gt_u32 vcc, 18, v6\nv_add_u32 v7, {pc*36}, v3\ns_nop 0\nv_cndmask_b32 v7, v4, v7, vcc")
        for u in range(5):
            a(f"ds_read_u16 v{(GH if j & 1 else G_)+4*u+(j>>1)}, v7 offset:{8*u}")
    a(f"v_bfe_u32 v6, v0, 2, 2\nv_lshl_add_u32 v7, v{vG}, 1, 1\nv_cmp_eq_u32 vcc, v6, v7")
    for j in range(4):
        a(f"v_add_u32 v7, {(32+j)*36}, v2\ns_nop 0\nv_cndmask_b32 v7, v4, v7, vcc")
        for u in range(5):
            a(f"ds_read_u16 v{A2H[2*u+(j>>1)] if j & 1 else A2+2*u+(j>>1)}, v7 offset:{8*u}")
    a.align8()
    for tt in range(4):
        for i in range(14):
            r = ACC + 28 * tt + 2 * i
            a(f"v_pk_mul_f32 v[{r}:{r+1}], v[{r}:{r+1}], v[{vS+2*tt}:{vS+2*tt+1}] op_sel_hi:[1,0]")
        for i in range(14):
            r = ACC + 28 * tt + 2 * i
            a(f"v_cvt_pk_bf16_f32 v{PK+14*tt+i}, v{r}, v{r+1}")
    a(f"s_mul_i32 s3, s55, {64*IMG_P}\nv_mul_u32_u24 v8, {IMG_P}, v{vN}\nv_add_u32 v8, s3, v8")
    a(f"s_mul_i32 s3, s56, 72\ns_add_u32 s3, s3, 320\nv_lshl_add_u32 v9, v{vG}, 3, s3\nv_add_u32 v9, v9, v8")
    a(f"s_add_u32 s3, s3, 64\nv_mov_b32 v10, 472\nv_mov_b32 v11, s3\nv_cmp_eq_u32 vcc, 2, v{vG}\nv_mov_b32 v12, 464\ns_nop 0\nv_cndmask_b32 v10, v10, v11, vcc")
    a(f"v_cmp_eq_u32 vcc, 3, v{vG}\nv_mov_b32 v11, 0x3f803f80\ns_nop 0\nv_cndmask_b32 v10, v10, v12, vcc\nv_add_u32 v10, v10, v8")
    for tt in range(4):
        r = PK + 14 * tt
        a(f"v_cndmask_b32 v12, v{r+8}, v11, vcc\nv_cndmask_b32 v13, v{r+9}, v11, vcc")
        a(f"ds_write_b64 v9, v[{r+10}:{r+11}] offset:{16*IMG_P*tt}\nds_write_b64 v9, v[{r+12}:{r+13}] offset:{16*IMG_P*tt+32}")
        a(f"ds_write_b64 v10, v[12:13] offset:{16*IMG_P*tt}")
    a(f"v_and_b32 v11, 1, v{vG}\nv_mul_u32_u24 v11, 80, v11\nv_lshrrev_b32 v12, 1, v{vG}\nv_mul_u32_u24 v12, 40, v12\ns_mul_i32 s3, s56, 160")
    a("v_add3_u32 v9, v8, v11, v12\nv_add_u32 v9, s3, v9")
    A0, A1 = 24, 44
    PA = 64
    E1 = 84
    O_Q = 104
    QR = [104, 114, 124, 14]
    KR = 228
    a(f"s_waitcnt lgkmcnt(0)\nv_cmp_gt_u32 vcc, 8, v{vN}")
    for i in range(20): a(f"v_lshl_or_b32 v{G_+i}, v{GH+i}, 16, v{G_+i}")
    for i in range(10): a(f"v_lshl_or_b32 v{A2+i}, v{A2H[i]}, 16, v{A2+i}")
    for i in range(20):
        a(f"v_cndmask_b32 v{A0+i}, 0, v{G_+i}, vcc\nv_sub_u32 v{A1+i}, v{G_+i}, v{A0+i}")
    a(f"s_mov_b32 s62, {fhex(LOG2E)}\ns_mov_b32 s63, {fhex(LOG2E)}")
    E2 = G_
    for tt in range(4):
        r = PK + 14 * tt
        a.align8()
        for u in range(5):
            d = PA + 4 * u
            a(f"v_mfma_f32_16x16x32_bf16 v[{d}:{d+3}], v[{A0+4*u}:{A0+4*u+3}], v[{r}:{r+3}], 0")
        for u in range(5):
            d = PA + 4 * u
            a(f"v_mfma_f32_16x16x32_bf16 v[{d}:{d+3}], v[{A1+4*u}:{A1+4*u+3}], v[{r+4}:{r+7}], v[{d}:{d+3}]")
        a("s_nop 1\ns_nop 0")
        for u in range(5):
            d = PA + 4 * u
            a(f"v_mfma_f32_16x16x16_bf16 v[{d}:{d+3}], v[{A2+2*u}:{A2+2*u+1}], v[{r+8}:{r+9}], v[{d}:{d+3}]")
        a(f"v_mov_b32 v{QR[tt]+9}, 0\ns_nop 6")
        a(f"v_max_f32 v2, v{PA}, v{PA+1}\nv_min_f32 v4, v{PA}, v{PA+1}")
        for i in range(1, 9):
            a(f"v_max3_f32 v2, v2, v{PA+2*i}, v{PA+2*i+1}\nv_min3_f32 v4, v4, v{PA+2*i}, v{PA+2*i+1}")
        a("v_mul_f32 v2, s62, v2\nv_mul_f32 v4, s62, v4")
        for i in range(9):
            a(f"v_pk_fma_f32 v[{E1+2*i}:{E1+2*i+1}], v[{PA+2*i}:{PA+2*i+1}], s[62:63], v[2:3] op_sel_hi:[1,1,0] neg_lo:[0,0,1] neg_hi:[0,0,1]")
        for i in range(9):
            a(f"v_pk_fma_f32 v[{E2+2*i}:{E2+2*i+1}], v[{PA+2*i}:{PA+2*i+1}], s[62:63], v[4:5] op_sel_hi:[1,1,0] neg_lo:[1,0,0] neg_hi:[1,0,0]")
        for E in (E1, E2):
            for i in range(18): a(f"v_exp_f32 v{E+i}, v{E+i}")
        a(f"v_pk_add_f32 v[2:3], v[{E1}:{E1+1}], v[{E1+2}:{E1+3}]\nv_pk_add_f32 v[4:5], v[{E2}:{E2+1}], v[{E2+2}:{E2+3}]")
        for i in range(2, 9):
            a(f"v_pk_add_f32 v[2:3], v[2:3], v[{E1+2*i}:{E1+2*i+1}]\nv_pk_add_f32 v[4:5], v[4:5], v[{E2+2*i}:{E2+2*i+1}]")
        a("v_add_f32 v2, v2, v3\nv_add_f32 v4, v4, v5\nv_rcp_f32 v2, v2\nv_rcp_f32 v4, v4")
        for E, c in ((E1, 2), (E2, 4)):
            for i in range(9):
                a(f"v_pk_mul_f32 v[{E+2*i}:{E+2*i+1}], v[{E+2*i}:{E+2*i+1}], v[{c}:{c+1}] op_sel_hi:[1,0]")
        if tt: a("s_waitcnt lgkmcnt(0)\ns_nop 0")
        for i in range(9):
            a(f"v_cvt_pk_bf16_f32 v{QR[tt]+i}, v{E1+2*i}, v{E1+2*i+1}")
        for i in range(9):
            a(f"v_cvt_pk_bf16_f32 v{KR+i}, v{E2+2*i}, v{E2+2*i+1}")
        for i in range(9):
            if i == 8: a("s_nop 0")
            a(f"v_permlane32_swap_b32 v{QR[tt]+i}, v{KR+i}")
        for i in range(4):
            a(f"ds_write_b64 v9, v[{KR+2*i}:{KR+2*i+1}] offset:{16*IMG_P*tt+8*i}")
        a(f"ds_write_b32 v9, v{KR+8} offset:{16*IMG_P*tt+32}")
        a.att_prefetch_tail(1 + tt)
    a.stamp(6)
    a(f"s_lshr_b32 s57, s{sWAVE}, 1\ns_and_b32 s58, s{sWAVE}, 1")
    a(f"v_bfe_u32 v1, v0, 2, 4\nv_mul_u32_u24 v1, {IMG_P}, v1\nv_and_b32 v2, 3, v0")
    a("s_mul_i32 s3, s57, 80\nv_lshl_add_u32 v3, v2, 3, s3\nv_add_u32 v3, v3, v1")
    a("s_lshr_b32 s3, s57, 1\ns_mul_i32 s3, s3, 72\ns_add_u32 s3, s3, 320\ns_and_b32 s48, s57, 1\ns_mul_i32 s48, s48, 40\ns_add_u32 s48, s48, s3\ns_add_u32 s3, s3, 32")
    a("v_lshl_add_u32 v4, v2, 3, s48\nv_mov_b32 v5, 464\nv_mov_b32 v6, s3\nv_cmp_eq_u32 vcc, 0, v2\ns_nop 1\nv_cndmask_b32 v5, v5, v6, vcc")
    a("s_cmp_eq_u32 s58, 0\ns_cselect_b64 vcc, -1, 0\nv_cndmask_b32 v4, v5, v4, vcc\nv_add_u32 v4, v4, v1")
    a(f"v_add_u32 v5, {128*IMG_P}, v3\nv_add_u32 v6, {128*IMG_P}, v4")
    KA = 24
    FR = [40, 56, 72, 88]
    a("s_waitcnt lgkmcnt(0)\ns_barrier")
    def kvr(ks):
        st = FR[ks & 3]
        ra, rb_ = (3, 4) if ks < 4 else (5, 6)
        off = (ks & 3) * 32 * IMG_P
        r = [f"ds_read_b64_tr_b16 v[{st+12+2*rho}:{st+13+2*rho}], v{rb_} offset:{off+rho*16*IMG_P}" for rho in range(2)]
        for mt in range(3):
            r += [f"ds_read_b64_tr_b16 v[{st+4*mt+2*rho}:{st+4*mt+2*rho+1}], v{ra} offset:{off+rho*16*IMG_P+32*mt}" for rho in range(2)]
        return r
    for x in kvr(0): a(x)
    for ks in range(8):
        if ks + 1 < 8:
            for x in kvr(ks + 1): a(x)
        a(f"s_waitcnt lgkmcnt({8 if ks + 1 < 8 else 0})")
        st = FR[ks & 3]
        for mt in range(3):
            d = KA + 4 * mt
            a(f"v_mfma_f32_16x16x32_bf16 v[{d}:{d+3}], v[{st+4*mt}:{st+4*mt+3}], v[{st+12}:{st+15}], {'0' if ks == 0 else f'v[{d}:{d+3}]'}")
    a(f"s_lshl_b32 s3, s58, 4\nv_mul_u32_u24 v1, 21, v{vG}\nv_add3_u32 v1, v1, v{vN}, s3\nv_lshlrev_b32 v1, 4, v1")
    a(f"s_cmp_eq_u32 s58, 0\ns_cselect_b32 s3, 16, 5\nv_cmp_gt_u32 vcc, s3, v{vN}\ns_nop 1\nv_cndmask_b32 v1, v{vOOB}, v1, vcc")
    a(f"v_cmp_gt_u32 vcc, 2, v{vG}\ns_nop 1\nv_cndmask_b32 v2, v{vOOB}, v1, vcc")
    a(f"s_lshl_b32 s59, s{sXCD}, 3\ns_add_u32 s59, s59, s54\ns_mul_i32 s3, s59, 13440\ns_mul_i32 s48, s57, 3360\ns_add_u32 s3, s3, s48\ns_add_u32 s3, s3, {KVP}")
    for mt in range(3):
        a(f"buffer_store_dwordx4 v[{KA+4*mt}:{KA+4*mt+3}], v{1 if mt < 2 else 2}, {srd(rWS)}, s3 offen offset:{1344*mt} sc1")
    a(f"s_lshl_b32 s3, s{sWAVE}, 6\nv_add_u32 v1, s3, v0\nv_add_u32 v2, 512, v1")
    for i, c in ((0, 1), (1, 2)):
        a.divmod_const(3, 4, c, 210, 5)
        a.divmod_const(6, 7, 4, 21, 5)
        a(f"v_mul_u32_u24 v3, 1680, v3\nv_mul_u32_u24 v7, 80, v7\nv_lshlrev_b32 v6, 3, v6\nv_add3_u32 v{8+i}, v3, v7, v6")
    a(f"v_lshlrev_b32 v1, 4, v1\nv_cmp_gt_u32 vcc, 840, v2\nv_lshlrev_b32 v2, 4, v2\nv_mov_b32 v3, {JUNK}\nv_cndmask_b32 v2, v{vOOB}, v2, vcc\nv_cndmask_b32 v9, v3, v9, vcc")
    a("s_waitcnt vmcnt(0)\ns_barrier")
    a.stamp(7)
    a(f"s_cmp_lg_u32 s{sWAVE}, 0\ns_cbranch_scc1 L_att_nkv")
    a(f"s_lshl_b32 s3, s59, 6\ns_add_u32 s3, s3, {FLKV}")
    a.set_flag("s3", 4)
    a(f"v_and_b32 v4, 7, v0\nv_lshlrev_b32 v4, 6, v4\ns_lshl_b32 s52, s{sXCD}, 9\ns_add_u32 s52, s52, {FLKV}")
    a.poll(4, 5, "s52")
    a("L_att_nkv:")
    a("s_barrier")
    a.stamp(8)
    RD = [24, 136]
    a(f"s_mul_i32 s3, s{sXCD}, {8*13440}\ns_add_u32 s3, s3, {KVP}")
    for t in range(8):
        for i in range(2):
            a(f"buffer_load_dwordx4 v[{RD[i]+4*t}:{RD[i]+4*t+3}], v{1+i}, {srd(rWS)}, s3 offen sc1")
        a("s_add_u32 s3, s3, 13440")
    a(f"v_lshrrev_b32 v3, 3, v{vN}\nv_and_b32 v4, 7, v0\nv_and_b32 v5, 1, v{vG}\nv_cmp_eq_u32 s[50:51], v3, v5")
    a(f"s_mul_i32 s3, s56, 3360\nv_mul_u32_u24 v5, 1680, v3\nv_lshrrev_b32 v6, 1, v{vG}\nv_mul_u32_u24 v6, 40, v6\nv_add3_u32 v5, v5, v6, s3")
    a(f"v_mov_b32 v7, {ZERO}")
    for t in range(4):
        if t < 3:
            a(f"v_add_u32 v6, {8*t+20}, v4\nv_lshlrev_b32 v60, 1, v3\nv_sub_u32 v6, v6, v60\nv_subrev_u32 v60, 20, v6\nv_min_u32 v6, v6, v60\nv_min_u32 v6, 20, v6")
            a("v_mul_u32_u24 v6, 80, v6\nv_add_u32 v6, v6, v5")
        else:
            a("v_add_u32 v6, 1600, v5")
        a(f"v_cndmask_b32 v{10+t}, v7, v6, s[50:51]")
    a(f"v_mul_u32_u24 v60, 18, v3\nv_add_u32 v60, v60, v4\nv_lshlrev_b32 v60, 12, v60\nv_and_b32 v61, 1, v{vG}\nv_lshl_add_u32 v60, v61, 5, v60")
    a(f"v_lshrrev_b32 v61, 1, v{vG}\nv_lshl_add_u32 v61, v61, 4, v60\nv_cmp_gt_u32 vcc, 2, v4\ns_nop 1\nv_cndmask_b32 v62, v{vOOB}, v61, vcc")
    for t in range(1, 8):
        a(f"s_waitcnt vmcnt({14-2*t})")
        for i in range(2):
            for h in range(2):
                a(f"v_pk_add_f32 v[{RD[i]+2*h}:{RD[i]+2*h+1}], v[{RD[i]+2*h}:{RD[i]+2*h+1}], v[{RD[i]+4*t+2*h}:{RD[i]+4*t+2*h+1}]")
    for i in range(2):
        a(f"v_cvt_pk_bf16_f32 v{RD[i]}, v{RD[i]}, v{RD[i]+1}\nv_cvt_pk_bf16_f32 v{RD[i]+1}, v{RD[i]+2}, v{RD[i]+3}")
        a(f"ds_write_b64 v{8+i}, v[{RD[i]}:{RD[i]+1}] offset:{TAB}")
    a("s_waitcnt lgkmcnt(0)\ns_barrier")
    a.stamp(9)
    BF = 136
    for t in range(4):
        b = BF + 12 * t
        a(f"ds_read2_b64 v[{b}:{b+3}], v{10+t} offset0:0 offset1:1\nds_read2_b64 v[{b+4}:{b+7}], v{10+t} offset0:2 offset1:3\nds_read_b32 v{b+8}, v{10+t} offset:32\nv_mov_b32 v{b+9}, 0")
    a(f"s_mul_i32 s57, s{sXCD}, 72\ns_mul_i32 s3, s56, 36\ns_add_u32 s57, s57, s3\ns_lshl_b32 s57, s57, 12\ns_lshl_b32 s3, s54, 9\ns_add_u32 s57, s57, s3")
    a(f"s_lshl_b32 s3, s55, 7\ns_add_u32 s57, s57, s3\ns_add_u32 s57, s57, {OT}\ns_add_u32 s58, s57, {8*4096}\ns_add_u32 s60, s57, {16*4096}")
    a(f"s_mov_b32 s62, {fhex(1e-6)}")
    a("s_waitcnt lgkmcnt(0)")
    DD = [24, 40, 64, 80]
    for tt in range(4):
        q = QR[tt]
        for c in range(3):
            if c == 2: a("s_nop 2")
            for t in range(4):
                d, b = DD[tt] + 4 * t, BF + 12 * t
                if c < 2:
                    a(f"v_mfma_f32_16x16x32_bf16 v[{d}:{d+3}], v[{q+4*c}:{q+4*c+3}], v[{b+4*c}:{b+4*c+3}], {'0' if c == 0 else f'v[{d}:{d+3}]'}")
                else:
                    a(f"v_mfma_f32_16x16x16_bf16 v[{d}:{d+3}], v[{q+8}:{q+9}], v[{b+8}:{b+9}], v[{d}:{d+3}]")
    OO = 192
    for tt in range(4):
        d = DD[tt]
        if tt == 3: a("s_nop 1")
        for r in range(4): a(f"v_add_f32 v{d+12+r}, s62, v{d+12+r}")
        for r in range(4): a(f"v_rcp_f32 v{d+12+r}, v{d+12+r}")
        a("s_nop 0")
        for t in range(3):
            for h in range(2):
                a(f"v_pk_mul_f32 v[{d+4*t+2*h}:{d+4*t+2*h+1}], v[{d+4*t+2*h}:{d+4*t+2*h+1}], v[{d+12+2*h}:{d+13+2*h}]")
        for t in range(3):
            for h in range(2):
                a(f"v_cvt_pk_bf16_f32 v{OO+12*(tt>>1)+4*t+2*(tt&1)+h}, v{d+4*t+2*h}, v{d+4*t+2*h+1}")
        if tt & 1:
            a("s_nop 1")
            for t in range(3):
                r = OO + 12 * (tt >> 1) + 4 * t
                a(f"v_permlane16_swap_b32 v{r}, v{r+2}\nv_permlane16_swap_b32 v{r+1}, v{r+3}")
            for t in range(3):
                r = OO + 12 * (tt >> 1) + 4 * t
                a(f"buffer_store_dwordx4 v[{r}:{r+3}], v{61 if t < 2 else 62}, {srd(rWS)}, s{(57, 58, 60)[t]} offen offset:{64*(tt>>1)} sc1")
    a("s_waitcnt vmcnt(0)\ns_barrier")
    a(f"s_cmp_lg_u32 s{sWAVE}, 0\ns_cbranch_scc1 L_att_no")
    a(f"s_lshl_b32 s3, s59, 6\ns_add_u32 s3, s3, {FLO}")
    a.set_flag("s3", 4)
    a("L_att_no:")
    a.stamp(10)
    a.att_prefetch_tail(5)
```

```python
import sys
sys.path.insert(0, "work")
from asmlib import *

KNAME = "parallel_sum__linear_kernel_hedgehog__mixer_token_mlp__prompt_kernel"
S, D, F, H, DH = 2048, 576, 4608, 32, 18

EPOCH = 0
FLA, FLB, FLKV, FLO, FLX = 0x70000, 0x8000, 0xC000, 0xD000, 0x10000
STAMP = 0x20000
S2 = 0x60000
HT = 0x100000
U = 0x400000
OT = 0xA00000
KVP = 0xD00000
EX = 0xE00000

sWAVE, sXCD, sIDX, sTAG = 4, 5, 6, 7
rX, rWQKV, rWPHI, rWO, rW1, rB1, rW2, rB2, rOUT, rWS = 8, 12, 16, 20, 24, 28, 32, 36, 40, 44
sST = 64
def srd(r): return f"s[{r}:{r+3}]"

G1_SLOT, G1_NS, G1_W = 30720, 5, 18432
LN_SCR, LN_PITCH = 153600, 1216
LN_S2 = LN_SCR + 8 * LN_PITCH
G2_STEP, G2_W, G2_PITCH = 20736, 12544, 3136
SH_SCR = 147456
LDS_BYTES = 163840
OOB = 0x7FFF0000

LOG2E = 1.4426950408889634


class Gen(Asm):
    def __init__(self, **opt):
        super().__init__()
        self.o = dict(stamps=False, att=True, fs=64, ks2=2, ns2=3, pf_w1=1, pf_code=True, spin=1 << 16, prefill=True, psleep=0, rot1=4, la1=2)
        self.o.update(opt)
        self.nstamp = {}

    def stamp(self, i):
        if self.o["stamps"]:
            self(f"s_memrealtime s[{sST+2*i}:{sST+2*i+1}]")

    def dump_stamps(self, vtmp):
        if not self.o["stamps"]:
            return
        a = self
        a("s_waitcnt lgkmcnt(0)")
        a(f"s_lshl_b32 s3, s2, 3\ns_add_u32 s3, s3, s{sWAVE}\ns_lshl_b32 s3, s3, 6\ns_add_u32 s3, s3, {STAMP}")
        a(f"v_mov_b32 v{vtmp+4}, 0")
        for q in range(4):
            for i in range(4):
                a(f"v_mov_b32 v{vtmp+i}, s{sST+2*(4*q+i)}")
            a(f"buffer_store_dwordx4 v[{vtmp}:{vtmp+3}], v{vtmp+4}, {srd(rWS)}, s3 offen offset:{16*q}")
            a("s_nop 1")

    def align8(self):
        self(".p2align 3")

    def wave_sum(self, v, sdst):
        a = self
        for m in ("row_shr:1", "row_shr:2", "row_shr:4", "row_shr:8"):
            a(f"s_nop 1\nv_add_f32_dpp v{v}, v{v}, v{v} {m} row_mask:0xf bank_mask:0xf bound_ctrl:1")
        a(f"s_nop 1\nv_add_f32_dpp v{v}, v{v}, v{v} row_bcast:15 row_mask:0xa bank_mask:0xf")
        a(f"s_nop 1\nv_add_f32_dpp v{v}, v{v}, v{v} row_bcast:31 row_mask:0xc bank_mask:0xf")
        a(f"s_nop 0\nv_readlane_b32 s{sdst}, v{v}, 63")

    def divmod_const(self, vq, vr, vx, c, vt):
        m = (1 << 20) // c + 1
        for x in range(2048):
            assert (x * m) >> 20 == x // c
        assert 2047 * m < (1 << 32) and m < (1 << 24)
        self(f"v_mul_u32_u24 v{vq}, {m}, v{vx}\nv_lshrrev_b32 v{vq}, 20, v{vq}")
        self(f"v_mul_u32_u24 v{vt}, {c}, v{vq}\nv_sub_u32 v{vr}, v{vx}, v{vt}")

    def poll(self, vaddr, vdat, soff, nload=1, stride=0, wide=False, code=1):
        a = self
        lp, done = a.label("poll"), a.label("polld")
        a(f"s_mov_b32 s48, {self.o['spin']}")
        a(f"{lp}:")
        if wide:
            a(f"buffer_load_dwordx4 v[{vdat}:{vdat+3}], v{vaddr}, {srd(rWS)}, {soff} offen sc1")
            n = 4
        else:
            for i in range(nload):
                a(f"buffer_load_dword v{vdat+i}, v{vaddr}, {srd(rWS)}, {soff} offen offset:{i*stride} sc1")
            n = nload
        a("s_waitcnt vmcnt(0)")
        a(f"v_cmp_ne_u32 vcc, s{sTAG}, v{vdat}")
        for i in range(1, n):
            a(f"v_cmp_ne_u32 s[50:51], s{sTAG}, v{vdat+i}\ns_or_b64 vcc, vcc, s[50:51]")
        a(f"s_cmp_eq_u64 vcc, 0\ns_cbranch_scc1 {done}")
        if self.o["psleep"]: a(f"s_sleep {self.o['psleep']}")
        a(f"s_sub_u32 s48, s48, 1\ns_cmp_lg_u32 s48, 0\ns_cbranch_scc1 {lp}")
        a(f"{done}:")

    def set_flag(self, soff, vt):
        a = self
        a(f"v_mov_b32 v{vt}, s{sTAG}\ns_mov_b64 exec, 1")
        a(f"buffer_store_dword v{vt}, off, {srd(rWS)}, {soff} sc1")
        a("s_mov_b64 exec, -1")

    def interleave(self, mf, ds, per_gap=2, start=0):
        ds = list(ds)
        for i, m in enumerate(mf):
            self(m)
            if i >= start:
                for _ in range(per_gap):
                    if ds:
                        self(ds.pop(0))
        for d in ds:
            self(d)

    def gelu(self, regs, cA, cB, tmp, out, group=4):
        a = self
        for g0 in range(0, len(regs), group):
            rs = regs[g0:g0 + group]
            T = lambda i: f"v[{tmp+2*i}:{tmp+2*i+1}]"
            R = lambda r: f"v[{r}:{r+1}]"
            for i, r in enumerate(rs): a(f"v_pk_mul_f32 {T(i)}, {R(r)}, {R(r)}")
            for i, r in enumerate(rs): a(f"v_pk_fma_f32 {T(i)}, {T(i)}, {R(cA)}, {R(cB)}")
            for i, r in enumerate(rs): a(f"v_pk_mul_f32 {T(i)}, {T(i)}, {R(r)}")
            for i, r in enumerate(rs): a(f"v_exp_f32 v{tmp+2*i}, v{tmp+2*i}\nv_exp_f32 v{tmp+2*i+1}, v{tmp+2*i+1}")
            for i, r in enumerate(rs): a(f"v_pk_add_f32 {T(i)}, {T(i)}, 1.0 op_sel_hi:[1,0]")
            for i, r in enumerate(rs): a(f"v_rcp_f32 v{tmp+2*i}, v{tmp+2*i}\nv_rcp_f32 v{tmp+2*i+1}, v{tmp+2*i+1}")
            for i, r in enumerate(rs): a(f"v_pk_mul_f32 {T(i)}, {T(i)}, {R(r)}")
            for i, r in enumerate(rs): a(f"v_cvt_pk_bf16_f32 v{out[g0+i]}, v{tmp+2*i}, v{tmp+2*i+1}")
            yield g0

    def gelu_consts(self, cA, cB):
        c = 0.7978845608028654
        for i in range(2):
            self(f"v_mov_b32 v{cA+i}, {fhex(-2*c*0.044715*LOG2E)}\nv_mov_b32 v{cB+i}, {fhex(-2*c*LOG2E)}")

    def entry(self):
        a = self
        a.kernel(KNAME)
        if self.o["stamps"]:
            for i in range(1, 16): a(f"s_mov_b32 s{sST+2*i}, 0")
        a.stamp(0)
        a("s_cmp_ge_u32 s2, 256\ns_cbranch_scc1 L_end")
        for n, r in (("x", rX), ("ws", rWS), ("w1", rW1), ("wqkv", rWQKV), ("wphi", rWPHI), ("wo", rWO), ("b1", rB1),
                     ("w2", rW2), ("b2", rB2), ("out", rOUT)):
            a.load_ptr(n, r)
        a(f"v_lshrrev_b32 v1, 6, v0\nv_and_b32 v0, 63, v0\nv_readfirstlane_b32 s{sWAVE}, v1")
        a(f"s_and_b32 s{sXCD}, s2, 7\ns_lshr_b32 s{sIDX}, s2, 3")
        for n, r in (("x", rX), ("ws", rWS), ("w1", rW1), ("wqkv", rWQKV), ("wphi", rWPHI), ("wo", rWO), ("b1", rB1),
                     ("w2", rW2), ("b2", rB2), ("out", rOUT)):
            a.srd_finish(n, r)
        a(f"s_lshl_b32 s53, s{sXCD}, 5\ns_add_u32 s53, s53, s{sIDX}\ns_lshl_b32 s3, s53, 3\ns_add_u32 s3, s3, s{sWAVE}\ns_mul_i32 s3, s3, 1152")
        a("v_lshlrev_b32 v1, 3, v0\nv_lshlrev_b32 v7, 1, v0")
        a("s_waitcnt lgkmcnt(0)")
        a(f"buffer_load_dwordx2 v[2:3], v1, {srd(rX)}, s3 offen")
        a(f"buffer_load_dwordx2 v[4:5], v1, {srd(rX)}, s3 offen offset:512")
        a(f"buffer_load_ushort v6, v7, {srd(rX)}, s3 offen offset:1024")
        a(f"s_load_dword s{sTAG}, s[{rWS}:{rWS+1}], {EPOCH}")
        nextra = self.early_prefetch()
        a(f"s_mul_i32 s3, s{sWAVE}, {LN_PITCH}\ns_add_u32 s3, s3, {LN_SCR}")
        a("v_add_u32 v8, s3, v1\nv_add_u32 v9, s3, v7")
        a(f"s_waitcnt vmcnt({nextra})")
        a.stamp(1)
        for i in range(4):
            a(f"v_lshlrev_b32 v{10+2*i}, 16, v{2+i}\nv_and_b32 v{11+2*i}, 0xffff0000, v{2+i}")
        a("v_lshlrev_b32 v18, 16, v6")
        a("v_pk_add_f32 v[20:21], v[10:11], v[12:13]\nv_pk_add_f32 v[22:23], v[14:15], v[16:17]")
        a("v_pk_add_f32 v[20:21], v[20:21], v[22:23]\nv_add_f32 v20, v20, v18\nv_add_f32 v20, v20, v21")
        a.wave_sum(20, 48)
        a(f"v_mov_b32 v20, {fhex(-1.0/D)}\ns_nop 0\nv_mul_f32 v20, s48, v20")
        for i in range(4):
            a(f"v_pk_add_f32 v[{10+2*i}:{11+2*i}], v[{10+2*i}:{11+2*i}], v[20:21] op_sel_hi:[1,0]")
        a("v_add_f32 v18, v18, v20")
        a("v_pk_mul_f32 v[20:21], v[10:11], v[10:11]\nv_pk_mul_f32 v[22:23], v[12:13], v[12:13]")
        a("v_pk_fma_f32 v[20:21], v[14:15], v[14:15], v[20:21]\nv_pk_fma_f32 v[22:23], v[16:17], v[16:17], v[22:23]")
        a("v_pk_add_f32 v[20:21], v[20:21], v[22:23]\nv_fmac_f32 v20, v18, v18\nv_add_f32 v20, v20, v21")
        a.wave_sum(20, 48)
        a(f"v_mov_b32 v20, {fhex(1.0/D)}\nv_mov_b32 v24, {fhex(1e-5)}\nv_mul_f32 v20, s48, v20")
        a("v_add_f32 v21, v20, v24\nv_rsq_f32 v21, v21\ns_nop 0\nv_mul_f32 v22, v21, v21\nv_fma_f32 v22, v22, v20, v24")
        a("v_rsq_f32 v23, v22\ns_nop 0\nv_mul_f32 v20, v21, v23\nv_mul_f32 v22, v22, v23")
        for i in range(4):
            a(f"v_pk_mul_f32 v[{10+2*i}:{11+2*i}], v[{10+2*i}:{11+2*i}], v[20:21] op_sel_hi:[1,0]")
        a("v_mul_f32 v18, v18, v20")
        for i in range(4):
            a(f"v_cvt_pk_bf16_f32 v{2+i}, v{10+2*i}, v{11+2*i}")
        a("v_cvt_pk_bf16_f32 v6, v18, v18")
        a(f"s_lshl_b32 s3, s{sWAVE}, 2\ns_add_u32 s3, s3, {LN_S2}\nv_mov_b32 v23, s3")
        a("ds_write_b64 v8, v[2:3]\nds_write_b64 v8, v[4:5] offset:512\nds_write_b16 v9, v6 offset:1024\nds_write_b32 v23, v22")
        a("s_waitcnt lgkmcnt(0)")
        a(f"s_mul_i32 s{sTAG}, s{sTAG}, 0x9E3779B1\ns_add_u32 s{sTAG}, s{sTAG}, 0x7F4A7C15")
        a("s_barrier")
        a(f"s_cmp_lg_u32 s{sWAVE}, 0\ns_cbranch_scc1 L_ln_done")
        a("v_bfe_u32 v2, v0, 2, 2\nv_lshrrev_b32 v3, 4, v0\nv_and_b32 v4, 3, v0")
        a(f"v_mul_u32_u24 v2, {LN_PITCH}, v2\nv_lshlrev_b32 v3, 5, v3\nv_lshlrev_b32 v4, 3, v4")
        a(f"v_add3_u32 v2, v2, v3, v4\nv_add_u32 v2, {LN_SCR}, v2")
        a(f"v_and_b32 v3, 7, v0\nv_lshlrev_b32 v3, 2, v3\nv_add_u32 v4, {LN_S2}, v3")
        for b in range(9):
            a(f"ds_read_b64_tr_b16 v[{12+4*b}:{13+4*b}], v2 offset:{128*b}")
            a(f"ds_read_b64_tr_b16 v[{14+4*b}:{15+4*b}], v2 offset:{128*b+4*LN_PITCH}")
            if b == 6:
                a("s_waitcnt lgkmcnt(6)")
        a("ds_read_b32 v5, v4")
        a("v_lshlrev_b32 v6, 4, v0")
        a(f"s_mul_i32 s48, s53, 9216\ns_add_u32 s48, s48, {HT}\ns_add_u32 s49, s48, 4096\ns_add_u32 s50, s48, 8192")
        a(f"s_lshl_b32 s51, s53, 5\ns_add_u32 s51, s51, {S2}")
        for b in range(9):
            if b == 4:
                a("s_waitcnt lgkmcnt(0)")
            a(f"buffer_store_dwordx4 v[{12+4*b}:{15+4*b}], v6, {srd(rWS)}, s{48+b//4} offen offset:{1024*(b%4)} sc1")
        a("s_mov_b64 exec, 0xff")
        a(f"buffer_store_dword v5, v3, {srd(rWS)}, s51 offen sc1")
        a("s_mov_b64 exec, -1")
        a(f"s_mul_i32 s3, s53, {self.o['fs']}\ns_add_u32 s3, s3, {FLA}")
        a.stamp(14)
        a("s_waitcnt vmcnt(0)")
        a.set_flag("s3", 2)
        a("L_ln_done:")
        a.stamp(2)
        a(f"s_cmp_ge_u32 s{sIDX}, 24\ns_cbranch_scc1 L_att")
        a(f"s_cmp_ge_u32 s{sWAVE}, 4\ns_cbranch_scc1 L_aux")

    def early_prefetch(self):
        a = self
        n = 0
        if self.o["pf_code"]:
            a(f"s_lshl_b32 s48, s{sIDX}, 3\ns_add_u32 s48, s48, s{sWAVE}\ns_lshl_b32 s48, s48, 8")
            a(f"s_min_u32 s48, s48, L_code_end-L_pc0-256")
            a("s_getpc_b64 s[50:51]\nL_pc0:\ns_add_u32 s50, s50, s48\ns_addc_u32 s51, s51, 0")
            a("v_and_b32 v30, 1, v0\nv_lshlrev_b32 v30, 7, v30")
            a("global_load_dword v31, v30, s[50:51]")
            n += 1
        return n

    def wait_A_group(self, sg, vt):
        a = self
        fs = self.o["fs"]
        a(f"s_mul_i32 s52, {sg}, {32*fs}\ns_add_u32 s52, s52, {FLA}")
        a(f"v_and_b32 v{vt}, 31, v0\nv_mul_u32_u24 v{vt}, {fs}, v{vt}")
        a.poll(vt, vt + 2, "s52")

    def att_prefetch_start(self):
        pass
    def att_prefetch_step(self, n, issued):
        return []
    def att_prefetch_tail(self, i):
        pass

    def mlp_compute(self):
        a = self
        ACC, SH = 16, 64
        P, Q = 80, 120
        bA0, bA1, bB, bS = 1, 2, 3, 4
        cA0, cA1, cB, cS = 5, 6, 7, 8
        a(f"s_and_b32 s54, s{sIDX}, 3\ns_lshr_b32 s55, s{sIDX}, 2\ns_mul_i32 s3, s{sXCD}, 6\ns_add_u32 s55, s55, s3")
        a("v_lshrrev_b32 v9, 4, v0\nv_lshlrev_b32 v10, 3, v9\ns_mul_i32 s3, s55, 192")
        for t in range(6):
            a(f"buffer_load_dwordx2 v[{P+2*t}:{P+2*t+1}], v10, {srd(rB1)}, s3 offen offset:{32*t}")
        a("v_bfe_u32 v11, v0, 2, 2\nv_lshl_add_u32 v11, v9, 3, v11\nv_mul_u32_u24 v11, 192, v11")
        a("v_and_b32 v12, 3, v0\nv_lshl_add_u32 v11, v12, 3, v11")
        a(f"v_add_u32 v11, {G1_W}, v11\nv_and_b32 v12, 1, v9\nv_lshlrev_b32 v12, 5, v12")
        a(f"v_add_u32 v{cA0}, v11, v12\nv_sub_u32 v{cA1}, v11, v12\nv_add_u32 v{cA1}, 32, v{cA1}")
        a(f"v_mul_u32_u24 v11, 2304, v9\nv_and_b32 v12, 15, v0\nv_lshl_add_u32 v11, v12, 4, v11")
        a(f"s_lshl_b32 s3, s{sWAVE}, 9\nv_add_u32 v{cB}, s3, v11\nv_add_u32 v{cS}, 2048, v11")
        a("s_waitcnt vmcnt(0)")
        for t in range(6):
            for h in range(2):
                a(f"v_lshlrev_b32 v{ACC+4*t+2*h}, 16, v{P+2*t+h}\nv_and_b32 v{ACC+4*t+2*h+1}, 0xffff0000, v{P+2*t+h}")
        for i in range(24):
            a(f"v_mov_b32 v{ACC+24+i}, v{ACC+i}")
        a(f"s_mov_b32 s56, 0\ns_mov_b32 s57, 31")
        for w in range(4):
            if w < 3:
                a(f"s_cmp_lg_u32 s{sWAVE}, {w}\ns_cbranch_scc1 L_g1_w{w+1}")
            self.g1_loop(w, ACC, SH, P, Q, (bA0, bA1, bB, bS), (cA0, cA1, cB, cS))
            if w < 3:
                a(f"s_branch L_g1_done\nL_g1_w{w+1}:")
        a("L_g1_done:")
        a.stamp(5)
        self.g1_epilogue(ACC, SH, P, Q)
        self.g2_compute()

    def g1_loop(self, w, ACC, SH, P, Q, b, c):
        a = self
        bA0, bA1, bB, bS = b
        t0, ks = 3 * (w >> 1), w & 1
        for i in range(12):
            a(f"v_mov_b32 v{SH+i}, v{ACC+4*t0+i}" if ks == 0 else f"v_mov_b32 v{SH+i}, 0")
        def reads(st, k):
            r = []
            for j in range(2):
                r.append(f"ds_read_b128 v[{st+24+4*j}:{st+27+4*j}], v{bB} offset:{k*9216+256*j}")
            for t in range(6):
                for rho in range(2):
                    r.append(f"ds_read_b64_tr_b16 v[{st+4*t+2*rho}:{st+4*t+2*rho+1}], v{bA1 if t & 1 else bA0} offset:{k*6144+rho*768+(t>>1)*64}")
            if k == ks:
                r.append(f"ds_read_b128 v[{st+32}:{st+35}], v{bS} offset:{k*9216}")
            return r
        def mfmas(st, k):
            m = []
            for t in range(6):
                for j in range(2):
                    d = ACC + 24 * j + 4 * t
                    m.append(f"v_mfma_f32_16x16x32_bf16 v[{d}:{d+3}], v[{st+4*t}:{st+4*t+3}], v[{st+24+4*j}:{st+27+4*j}], v[{d}:{d+3}]")
            if k == ks:
                for i in range(3):
                    d = SH + 4 * i
                    m.append(f"v_mfma_f32_16x16x32_bf16 v[{d}:{d+3}], v[{st+4*(t0+i)}:{st+4*(t0+i)+3}], v[{st+32}:{st+35}], v[{d}:{d+3}]")
            return m
        for x, y in zip(b, c):
            a(f"v_mov_b32 v{x}, v{y}")
        a("s_barrier")
        a.stamp(3)
        a("s_barrier")
        a.stamp(4)
        for r in reads(P, 0): a(r)
        lp = a.label("g1")
        a.align8()
        a(f"{lp}:")
        a("s_waitcnt lgkmcnt(0)\ns_nop 0")
        a.interleave(mfmas(P, 0), reads(Q, 1))
        a(f"s_add_u32 s56, s56, {G1_SLOT}\ns_cmp_eq_u32 s56, {G1_SLOT*G1_NS}\ns_cselect_b32 s56, 0, s56")
        for x, y in zip(b, c):
            a(f"v_add_u32 v{x}, s56, v{y}")
        a("s_waitcnt lgkmcnt(0)\ns_barrier\ns_nop 0")
        a.interleave(mfmas(Q, 1), reads(P, 0))
        a(f"s_sub_u32 s57, s57, 1\ns_cmp_lg_u32 s57, 0\ns_cbranch_scc1 {lp}")
        a("s_waitcnt lgkmcnt(0)")
        a.align8()
        a.interleave(mfmas(P, 0), reads(Q, 1))
        a("s_waitcnt lgkmcnt(0)\ns_nop 0")
        m = mfmas(Q, 1)
        for x in m[12:] + m[:12]: a(x)

    def g2_ids(self):
        a = self
        a(f"s_lshr_b32 s58, s{sXCD}, 1\ns_mul_i32 s60, s{sIDX}, 43\ns_lshr_b32 s60, s60, 7\ns_mul_i32 s3, s60, 3\ns_sub_u32 s59, s{sIDX}, s3")
        a(f"s_and_b32 s3, s{sXCD}, 1\ns_lshl_b32 s3, s3, 3\ns_add_u32 s60, s60, s3")

    def g1_epilogue(self, ACC, SH, P, Q):
        a = self
        XR = 160
        a(f"s_mul_i32 s3, s{sWAVE}, 3072\ns_add_u32 s3, s3, {SH_SCR}\nv_lshl_add_u32 v1, v0, 4, s3")
        for i in range(3):
            a(f"ds_write_b128 v1, v[{SH+4*i}:{SH+4*i+3}] offset:{1024*i}")
        self.g2_ids()
        a(f"s_and_b32 s3, s{sWAVE}, 1\ns_lshl_b32 s3, s3, 2\ns_add_u32 s3, s3, s58\ns_lshl_b32 s3, s3, 4\ns_lshl_b32 s48, s60, 7\ns_add_u32 s61, s3, s48")
        a(f"s_lshr_b32 s3, s{sWAVE}, 1\ns_lshl_b32 s48, s59, 1\ns_add_u32 s3, s3, s48\ns_mul_i32 s3, s3, 192\ns_mul_i32 s62, s61, 1152\ns_add_u32 s62, s62, s3")
        a("v_and_b32 v2, 15, v0\nv_mul_u32_u24 v15, 1152, v2\nv_lshrrev_b32 v3, 4, v0\nv_lshl_add_u32 v15, v3, 4, v15")
        a("v_lshlrev_b32 v4, 1, v2\ns_lshl_b32 s3, s61, 1")
        for p in range(3):
            a(f"buffer_load_dwordx4 v[{XR+4*p}:{XR+4*p+3}], v15, {srd(rX)}, s62 offen offset:{64*p}")
        a(f"buffer_load_ushort v{XR+12}, v4, {srd(rB2)}, s3 offen")
        a("s_waitcnt lgkmcnt(0)\ns_barrier")
        a(f"v_mul_u32_u24 v5, 9216, v3\nv_lshl_add_u32 v5, v2, 4, v5")
        a(f"s_mul_i32 s48, s55, {12*9216}\ns_mul_i32 s3, s54, 2304\ns_add_u32 s48, s48, s3\ns_lshl_b32 s3, s{sWAVE}, 9\ns_add_u32 s48, s48, s3\ns_add_u32 s48, s48, {U}")
        a(f"s_add_u32 s49, s48, {4*9216}\ns_add_u32 s50, s48, {8*9216}")
        a.gelu_consts(6, 8)
        regs = [ACC + 2 * i for i in range(24)]
        out = [P + i for i in range(24)]
        a.align8()
        for g0 in a.gelu(regs, 6, 8, Q, out):
            n = g0 // 4
            j, p = n // 3, n % 3
            a(f"buffer_store_dwordx4 v[{P+g0}:{P+g0+3}], v5, {srd(rWS)}, s{48+p} offen offset:{256*j} sc1")
        a.stamp(6)

    def g2_compute(self):
        a = self
        XR = 160
        KS, NS = self.o["ks2"], self.o["ns2"]
        ACC = 16
        P, Q = 176, 216
        bU, bW = 1, 2
        cU, cW = 6, 7
        bO, cO = 112, 115
        a("s_waitcnt vmcnt(6)")
        a(f"v_lshlrev_b32 v{XR+12}, 16, v{XR+12}")
        for i in range(12):
            a(f"v_lshlrev_b32 v{ACC+2*i}, 16, v{XR+i}\nv_and_b32 v{ACC+2*i+1}, 0xffff0000, v{XR+i}")
        for i in range(12):
            a(f"v_pk_add_f32 v[{ACC+2*i}:{ACC+2*i+1}], v[{ACC+2*i}:{ACC+2*i+1}], v[{XR+12}:{XR+13}] op_sel_hi:[1,0]")
        for i in range(24, 96):
            a(f"v_mov_b32 v{ACC+i}, 0")
        a(f"v_and_b32 v11, 15, v0\nv_lshrrev_b32 v12, 4, v0\nv_bfe_u32 v13, v0, 2, 2\nv_and_b32 v14, 3, v0")
        a(f"v_mul_u32_u24 v{cU}, {G2_PITCH}, v12\nv_lshl_add_u32 v{cU}, v13, 7, v{cU}\nv_lshl_add_u32 v{cU}, v14, 4, v{cU}")
        a(f"s_lshr_b32 s3, s{sWAVE}, 1\ns_mul_i32 s3, s3, 1536\nv_add_u32 v{cU}, s3, v{cU}")
        a("v_lshl_add_u32 v118, v12, 2, v13")
        a(f"v_lshlrev_b32 v119, 8, v118\nv_lshl_add_u32 v119, v14, 3, v119\nv_add_u32 v119, {G2_W}, v119\nv_and_b32 v120, 7, v118")
        for j in range(4):
            a(f"s_add_u32 s3, s58, {j}\ns_and_b32 s3, s3, 3\ns_and_b32 s48, s{sWAVE}, 1\ns_lshl_b32 s48, s48, 2\ns_add_u32 s3, s3, s48")
            a(f"v_xor_b32 v121, s3, v120\nv_lshl_add_u32 v{cW+j}, v121, 5, v119")
        a("v_mul_u32_u24 v119, 384, v118\nv_lshl_add_u32 v119, v14, 4, v119\nv_bfe_u32 v120, v118, 1, 1")
        for p in range(3):
            a(f"s_lshr_b32 s3, s{sWAVE}, 1\ns_mul_i32 s3, s3, 3\ns_add_u32 s3, s3, {p}")
            a(f"v_xor_b32 v121, s3, v120\nv_lshl_add_u32 v{cO+p}, v121, 6, v119")
        bs = [(bU, cU)] + [(bW + j, cW + j) for j in range(4)]
        bo = [(bO + p, cO + p) for p in range(3)]
        for x, y in bs: a(f"v_mov_b32 v{x}, v{y}")
        a("s_waitcnt vmcnt(0)\ns_barrier")
        a(f"s_cmp_lg_u32 s{sWAVE}, 0\ns_cbranch_scc1 L_noflagB")
        a(f"s_lshl_b32 s3, s55, 2\ns_add_u32 s3, s3, s54\ns_lshl_b32 s3, s3, 4\ns_add_u32 s3, s3, {FLB}")
        a.set_flag("s3", 121)
        a("L_noflagB:")
        a.stamp(7)

        def reads(st, k, ext):
            o = k * G2_STEP
            r = []
            def rb(j):
                return [f"ds_read_b64_tr_b16 v[{st+24+4*j+2*rho}:{st+25+4*j+2*rho}], v{bW+j} offset:{o+rho*4096}" for rho in range(2)]
            def ra(m):
                p, b_ = m >> 1, m & 1
                if not ext:
                    return [f"ds_read_b128 v[{st+4*m}:{st+4*m+3}], v{bU} offset:{o+p*512+b_*64}"]
                return [f"ds_read_b64_tr_b16 v[{st+4*m+2*rho}:{st+4*m+2*rho+1}], v{bO+p} offset:{o+rho*6144+b_*8}" for rho in range(2)]
            r += rb(0)
            for m in range(6): r += ra(m)
            for j in range(1, 4): r += rb(j)
            return r
        def mfmas(st, order=(0, 1, 2, 3)):
            m = []
            for j in order:
                for t in range(6):
                    d = ACC + 24 * j + 4 * t
                    m.append(f"v_mfma_f32_16x16x32_bf16 v[{d}:{d+3}], v[{st+4*t}:{st+4*t+3}], v[{st+24+4*j}:{st+27+4*j}], v[{d}:{d+3}]")
            return m
        SLOT = KS * G2_STEP
        def advance(ext_next):
            r = [f"s_add_u32 s56, s56, {SLOT}", f"s_cmp_eq_u32 s56, {SLOT*NS}", "s_cselect_b32 s56, 0, s56\ns_nop 0"]
            l = bs[1:] + (bo if ext_next else bs[:1])
            v = [f"v_add_u32 v{x}, s56, v{y}" for x, y in l]
            if len(v) % 2: v.append("s_nop 0")
            r += [v[i] + "\n" + v[i + 1] for i in range(0, len(v), 2)]
            return r
        NSTEP = 41
        sets = (P, Q)
        def step(n, first_in_loop=False):
            st, nx = sets[n & 1], sets[(n + 1) & 1]
            cross = (n + 1) % KS == 0 and n + 1 < NSTEP
            a("s_waitcnt lgkmcnt(0)")
            a("s_barrier" if cross else "s_nop 0")
            if n + 1 >= NSTEP:
                for x in mfmas(st, (1, 2, 3, 0)): a(x)
                return
            ds = reads(nx, (n + 1) % KS, n + 1 >= 36)
            if (n + 2) % KS == 0 and n + 2 < NSTEP:
                ds = ds + advance(n + 2 >= 36)
            a.interleave(mfmas(st), ds, per_gap=1 if len(ds) <= 20 else 2)
        a("s_mov_b32 s56, 0")
        a("s_barrier")
        a.stamp(8)
        a("s_barrier")
        a.stamp(9)
        for r in reads(P, 0, False): a(r)
        if KS == 1:
            for r in advance(False): a(r)
        UN = 4
        nloop = 32 // UN
        a(f"s_mov_b32 s57, {nloop}")
        lp = a.label("g2")
        a.align8()
        a(f"{lp}:")
        for n in range(UN): step(n)
        a(f"s_sub_u32 s57, s57, 1\ns_cmp_lg_u32 s57, 0\ns_cbranch_scc1 {lp}\ns_nop 0")
        for n in range(32, NSTEP): step(n)
        a.stamp(10)
        a(f"s_mul_i32 s56, s60, 3\ns_add_u32 s56, s56, s59")
        a(f"v_lshlrev_b32 v1, 4, v0\ns_mul_i32 s57, s{sWAVE}, 3072\ns_add_u32 s57, s57, {EX}")
        for j in range(1, 4):
            a(f"s_add_u32 s3, s58, {j}\ns_and_b32 s3, s3, 3\ns_lshl_b32 s48, s56, 2\ns_add_u32 s3, s3, s48\ns_mul_i32 s3, s3, 36864")
            a(f"s_add_u32 s3, s3, s57\ns_add_u32 s3, s3, {(j-1)*12288}")
            for i in range(12):
                a(f"v_cvt_pk_bf16_f32 v{P+12*(j-1)+i}, v{ACC+24*j+2*i}, v{ACC+24*j+2*i+1}")
            for p in range(3):
                r = P + 12 * (j - 1) + 4 * p
                a(f"buffer_store_dwordx4 v[{r}:{r+3}], v1, {srd(rWS)}, s3 offen offset:{1024*p} sc1")
        a(f"s_lshl_b32 s3, s56, 2\ns_add_u32 s3, s3, s{sWAVE}\ns_lshl_b32 s3, s3, 7\ns_add_u32 s52, s3, {FLX}\ns_lshl_b32 s3, s58, 4\ns_add_u32 s3, s3, s52")
        a(f"s_lshl_b32 s48, s56, 2\ns_add_u32 s48, s48, s58\ns_mul_i32 s48, s48, 36864\ns_add_u32 s57, s57, s48")
        a("v_and_b32 v2, 3, v0\nv_lshlrev_b32 v2, 4, v2")
        a("s_waitcnt vmcnt(0)")
        a.set_flag("s3", 3)
        a.stamp(11)
        a.poll(2, 4, "s52")
        a.stamp(12)
        for j in range(3):
            a(f"s_add_u32 s3, s57, {j*12288}")
            for p in range(3):
                r = P + 12 * j + 4 * p
                a(f"buffer_load_dwordx4 v[{r}:{r+3}], v1, {srd(rWS)}, s3 offen offset:{1024*p} sc1")
        for j in range(3):
            a(f"s_waitcnt vmcnt({6-3*j})")
            for i in range(12):
                t = 40 + 2 * (i % 4)
                a(f"v_lshlrev_b32 v{t}, 16, v{P+12*j+i}\nv_and_b32 v{t+1}, 0xffff0000, v{P+12*j+i}")
                a(f"v_pk_add_f32 v[{ACC+2*i}:{ACC+2*i+1}], v[{ACC+2*i}:{ACC+2*i+1}], v[{t}:{t+1}]")
        for i in range(12):
            a(f"v_cvt_pk_bf16_f32 v{Q+i}, v{ACC+2*i}, v{ACC+2*i+1}")
        for p in range(3):
            a(f"buffer_store_dwordx4 v[{Q+4*p}:{Q+4*p+3}], v15, {srd(rOUT)}, s62 offen offset:{64*p}")
        a.stamp(13)
        a("s_branch L_fin")

    def mlp_aux(self):
        a = self
        a("L_aux:")
        a(f"s_and_b32 s54, s{sIDX}, 3\ns_lshr_b32 s55, s{sIDX}, 2\ns_mul_i32 s3, s{sXCD}, 6\ns_add_u32 s55, s55, s3")
        a(f"s_sub_u32 s53, s{sWAVE}, 4")
        a(f"s_cmp_eq_u32 s{sWAVE}, 7\ns_cbranch_scc1 L_aux7")
        vH, vW = 10, 16
        a("s_lshl_b32 s3, s53, 8\nv_add_u32 v1, s3, v0")
        for i in range(4):
            a(f"v_add_u32 v2, {64*i}, v1")
            a.divmod_const(3, 4, 2, 12, 5)
            a(f"v_bfe_u32 v5, v3, 3, 1\nv_lshlrev_b32 v5, 1, v5\nv_xor_b32 v4, v4, v5")
            a(f"v_mul_u32_u24 v3, 9216, v3\nv_lshl_add_u32 v{vW+i}, v4, 4, v3\nv_subrev_u32 v{vW+i}, {1024*i}, v{vW+i}")
        a(f"s_mul_i32 s57, s55, 192\ns_lshl_b32 s63, s53, 12\ns_add_u32 s63, s63, {G1_W}")
        a(f"s_mul_i32 s3, s{sXCD}, {self.o['rot1']*64*9216}\ns_add_u32 s57, s57, s3")
        issued = []
        def w1_load(st):
            a(f"s_add_u32 m0, s63, {(st % G1_NS)*G1_SLOT}\ns_nop 0")
            for i in range(4):
                a(f"buffer_load_dwordx4 v{vW+i}, {srd(rW1)}, s57 offen offset:{1024*i} lds")
                issued.append(("W", st))
            a(f"s_add_u32 s57, s57, {64*9216}")
            if self.o["rot1"]: a(f"s_cmp_ge_u32 s57, {2048*9216}\ns_cselect_b32 s3, {2048*9216}, 0\ns_sub_u32 s57, s57, s3")
        def h_load(st):
            for i in range(6):
                if i % 4 == 0:
                    a(f"s_add_u32 m0, s61, {(st % G1_NS)*G1_SLOT + 1024*i}\ns_nop 0")
                a(f"buffer_load_dwordx4 v{vH+i}, {srd(rWS)}, s56 offen offset:{1024*(i%4)} sc1 lds")
                issued.append(("H", st))
            a(f"s_add_u32 s56, s56, {8*9216}")
            if self.o["rot1"]: a(f"s_cmp_ge_u32 s56, {HT+256*9216}\ns_cselect_b32 s3, {256*9216}, 0\ns_sub_u32 s56, s56, s3")
        def wait_stage(st):
            last = max(i for i, x in enumerate(issued) if x[1] == st)
            n = len(issued) - 1 - last
            assert n < 64
            a(f"s_waitcnt vmcnt({n})")
        self.aux_prefetch_w1()
        if self.o["prefill"]:
            for st in range(G1_NS): w1_load(st)
        a("s_mul_i32 s3, s53, 384\nv_add_u32 v1, s3, v0")
        for i in range(6):
            a(f"v_add_u32 v2, {64*i}, v1")
            a.divmod_const(3, 4, 2, 144, 5)
            a(f"v_mul_u32_u24 v3, 9216, v3\nv_lshl_add_u32 v{vH+i}, v4, 4, v3\nv_subrev_u32 v{vH+i}, {1024*(i%4)}, v{vH+i}")
        a(f"s_mul_i32 s56, s54, 2304\ns_add_u32 s56, s56, {HT}\ns_mul_i32 s61, s53, 6144")
        a(f"s_mul_i32 s3, s{sXCD}, {self.o['rot1']*8*9216}\ns_add_u32 s56, s56, s3")
        a("s_barrier")
        a.stamp(3)
        pend = []
        for st in range(G1_NS):
            pend.append(("H", st))
            if not self.o["prefill"]: pend.append(("W", st))
        def issue(upto):
            while pend and pend[0][1] <= upto:
                k, st = pend.pop(0)
                (h_load if k == "H" else w1_load)(st)
        issue(1 if self.o["prefill"] else 0)
        for i in range(32):
            wait_stage(i)
            a("s_barrier")
            if i >= 1 and i + 4 <= 31:
                pend.extend([("H", i + 4), ("W", i + 4)])
            issue(i + self.o["la1"])
        a("s_branch L_aux_g1done")
        a("L_aux7:")
        self.aux_prefetch_w1()
        assert self.o["rot1"] == 4
        a(f"s_mov_b32 s56, s{sXCD}")
        self.wait_A_group("s56", 10)
        a("s_barrier")
        a.stamp(3)
        la = self.o["la1"]
        for i in range(32):
            if (i + la) % 4 == 0 and i + la < 32:
                a("s_add_u32 s56, s56, 1\ns_and_b32 s56, s56, 7")
                self.wait_A_group("s56", 10)
            a("s_barrier")
        a(f"s_cmp_lg_u32 s2, 0\ns_cbranch_scc1 L_noepoch\ns_mov_b32 s3, {EPOCH}")
        a.set_flag("s3", 10)
        a("L_noepoch:")
        a("L_aux_g1done:")
        a.stamp(5)
        self.g2_loader()

    def aux_prefetch_w1(self):
        a = self
        n = self.o["pf_w1"]
        if not n:
            return
        a.divmod_const(30, 31, 0, 9, 32)
        a("v_min_u32 v30, 6, v30\nv_mul_u32_u24 v30, 9216, v30\nv_lshl_add_u32 v30, v31, 7, v30")
        a(f"s_lshl_b32 s3, s{sIDX}, 2\ns_add_u32 s3, s3, s53\ns_mul_i32 s3, s3, {7*9216}\ns_mul_i32 s48, s{sXCD}, {1152 + self.o['rot1']*64*9216}\ns_add_u32 s3, s3, s48")
        for i in range(n):
            a(f"s_cmp_ge_u32 s3, {2048*9216}\ns_cselect_b32 s48, {2048*9216}, 0\ns_sub_u32 s3, s3, s48")
            a(f"buffer_load_dword v33, v30, {srd(rW1)}, s3 offen\ns_add_u32 s3, s3, {96*7*9216}")

    def g2_loader(self):
        a = self
        KS, NS = self.o["ks2"], self.o["ns2"]
        SLOT = KS * G2_STEP
        NSTEP = 41
        NST = (NSTEP + KS - 1) // KS
        vL, vW, vZ, vO, vY = 10, 11, 13, 15, 56
        self.g2_ids()
        a(f"v_lshlrev_b32 v{vL}, 4, v0\nv_lshrrev_b32 v1, 4, v0\nv_bfe_u32 v2, v0, 1, 3\nv_and_b32 v3, 1, v0")
        for i in range(2):
            a(f"v_add_u32 v4, {4*i}, v1\nv_xor_b32 v5, v2, v4\nv_lshlrev_b32 v4, 12, v4\nv_lshl_add_u32 v4, v5, 5, v4")
            a(f"v_lshl_add_u32 v{vW+i}, v3, 4, v4\nv_subrev_u32 v{vW+i}, {1024*i}, v{vW+i}")
            a(f"s_cmp_ge_u32 s53, 2\ns_cselect_b32 s3, {OOB}, 0\nv_or_b32 v{vZ+i}, s3, v{vW+i}")
        for i in range(3):
            a(f"v_add_u32 v4, {64*i}, v0")
            a.divmod_const(5, 6, 4, 24, 7)
            a(f"v_bfe_u32 v7, v5, 1, 1\nv_lshlrev_b32 v7, 2, v7\nv_xor_b32 v6, v6, v7")
            a(f"v_mul_u32_u24 v5, 1152, v5\nv_lshl_add_u32 v{vO+i}, v6, 4, v5\nv_subrev_u32 v{vO+i}, {1024*i}, v{vO+i}")
            a(f"v_or_b32 v{vY+i}, s3, v{vO+i}")
        a(f"s_mul_i32 s56, s58, 144\ns_add_u32 s56, s56, s53\ns_mul_i32 s56, s56, 9216\ns_mul_i32 s3, s59, 3072\ns_add_u32 s56, s56, s3\ns_add_u32 s56, s56, {U}")
        a(f"s_mul_i32 s57, s58, 1152\ns_lshl_b32 s3, s53, 3\ns_add_u32 s57, s57, s3\ns_lshl_b32 s57, s57, 12\ns_lshl_b32 s3, s60, 8\ns_add_u32 s57, s57, s3")
        a(f"s_mul_i32 s61, s53, {G2_PITCH}\ns_mul_i32 s62, s53, 3072\ns_lshl_b32 s63, s53, 11\ns_add_u32 s63, s63, {G2_W}")
        issued = []
        def lds(n): return ((n // KS) % NS) * SLOT + (n % KS) * G2_STEP
        def w_load(n):
            if n == 36:
                a(f"s_mul_i32 s57, s58, 144\ns_lshl_b32 s3, s53, 3\ns_add_u32 s57, s57, s3\ns_lshl_b32 s57, s57, 12\ns_lshl_b32 s3, s60, 8\ns_add_u32 s57, s57, s3\ns_add_u32 s57, s57, {OT}")
            a(f"s_add_u32 m0, s63, {lds(n)}\ns_nop 0")
            for i in range(2):
                if n < 36:
                    a(f"buffer_load_dwordx4 v{vW+i}, {srd(rW2)}, s57 offen offset:{1024*i} lds")
                else:
                    a(f"buffer_load_dwordx4 v{(vZ if n == 40 else vW)+i}, {srd(rWS)}, s57 offen offset:{1024*i} sc1 lds")
                issued.append(n // KS)
            a(f"s_add_u32 s57, s57, {32*4096}")
        def a_load(n):
            if n == 36:
                a(f"s_mul_i32 s56, s58, 144\ns_lshl_b32 s3, s53, 3\ns_add_u32 s56, s56, s3\ns_mul_i32 s56, s56, 1152\ns_mul_i32 s3, s59, 384\ns_add_u32 s56, s56, s3")
            a(f"s_add_u32 m0, s{61 if n < 36 else 62}, {lds(n)}\ns_nop 0")
            for i in range(3):
                if n < 36:
                    a(f"buffer_load_dwordx4 v{vL}, {srd(rWS)}, s56 offen offset:{1024*i} sc1 lds")
                else:
                    a(f"buffer_load_dwordx4 v{(vY if n == 40 else vO)+i}, {srd(rWO)}, s56 offen offset:{1024*i} lds")
                issued.append(n // KS)
            a(f"s_add_u32 s56, s56, {4*9216 if n < 36 else 32*1152}")
        def steps(st): return [n for n in range(st * KS, min(NSTEP, (st + 1) * KS))]
        a("s_barrier")
        for st in range(NS):
            for n in steps(st): w_load(n)
        a(f"s_cmp_eq_u32 s{sWAVE}, 7\ns_cbranch_scc1 L_nosh")
        for h in range(2):
            a(f"s_lshl_b32 s3, s53, 1\ns_add_u32 s3, s3, {h}\ns_cmp_ge_u32 s3, 3\ns_cselect_b32 s48, 3072, 0\ns_lshl_b32 s3, s3, 10\ns_add_u32 s3, s3, s48\ns_add_u32 s3, s3, {SH_SCR}")
            a(f"v_add_u32 v20, s3, v{vL}\nds_read_b128 v[{24+4*h}:{27+4*h}], v20\nds_read_b128 v[{32+4*h}:{35+4*h}], v20 offset:3072")
        a.gelu_consts(40, 42)
        a(f"v_mul_u32_u24 v21, 9216, v1\nv_and_b32 v22, 15, v0\nv_lshl_add_u32 v21, v22, 4, v21")
        a(f"s_mul_i32 s48, s55, 3\ns_add_u32 s48, s48, s53\ns_mul_i32 s48, s48, {4*9216}\ns_mul_i32 s3, s54, 2304\ns_add_u32 s48, s48, s3\ns_add_u32 s48, s48, {U + 2048}")
        a("s_waitcnt lgkmcnt(0)")
        for i in range(4):
            a(f"v_pk_add_f32 v[{24+2*i}:{25+2*i}], v[{24+2*i}:{25+2*i}], v[{32+2*i}:{33+2*i}]")
        for g0 in a.gelu([24, 26, 28, 30], 40, 42, 44, [32, 33, 34, 35]):
            a(f"buffer_store_dwordx4 v[32:35], v21, {srd(rWS)}, s48 offen sc1")
        a("L_nosh:")
        a("s_waitcnt vmcnt(0)\ns_barrier")
        issued.clear()
        a.stamp(7)
        a(f"s_cmp_lg_u32 s{sWAVE}, 7\ns_cbranch_scc1 L_nopollB")
        a("v_min_u32 v20, 23, v0\nv_lshrrev_b32 v21, 1, v20\nv_and_b32 v20, 1, v20\nv_lshl_add_u32 v20, v21, 2, v20\nv_lshlrev_b32 v20, 4, v20")
        a(f"s_mul_i32 s52, s58, 48\ns_add_u32 s52, s52, s59\ns_lshl_b32 s52, s52, 4\ns_add_u32 s52, s52, {FLB}")
        a.poll(20, 22, "s52")
        a("L_nopollB:")
        a("s_barrier")
        a.stamp(8)
        for n in steps(0): a_load(n)
        for i in range(NST):
            last = max(k for k, x in enumerate(issued) if x == i)
            nn = len(issued) - 1 - last
            assert nn < 64
            nxt = i - 1 + NS
            if self.o["att"] and i >= 1 and nxt < NST and 36 in steps(nxt):
                a(f"s_cmp_lg_u32 s{sWAVE}, 7\ns_cbranch_scc1 L_nopollO")
                a("v_and_b32 v20, 1, v0\nv_lshlrev_b32 v20, 9, v20")
                a(f"s_lshl_b32 s52, s58, 4\ns_lshr_b32 s3, s60, 1\ns_add_u32 s52, s52, s3\ns_lshl_b32 s52, s52, 6\ns_add_u32 s52, s52, {FLO}")
                a.poll(20, 22, "s52")
                a("L_nopollO:")
            a(f"s_waitcnt vmcnt({nn})\ns_barrier")
            if i == 0:
                for st in range(1, NS):
                    for n in steps(st): a_load(n)
            if i >= 1 and nxt < NST:
                for n in steps(nxt):
                    a_load(n); w_load(n)
        a.stamp(10)
        a("s_branch L_fin")

    def att(self):
        a = self
        a("L_att:")
        if self.o["att"]:
            import gen_att
            gen_att.emit(self)

    def build(self):
        a = self
        a.launch(KNAME, 256, 512, LDS_BYTES)
        a.kd(KNAME, 256)
        self.entry()
        self.mlp_compute()
        self.mlp_aux()
        self.att()
        a("L_fin:")
        a.stamp(15)
        self.dump_stamps(4)
        a("L_end:\ns_endpgm\nL_code_end:")
        return a.text(single=True)


if __name__ == "__main__":
    import json
    opt = json.loads(sys.argv[2]) if len(sys.argv) > 2 else {}
    open(sys.argv[1], "w").write(Gen(**opt).build())
```

```python
import sys
sys.path.insert(0, "work")
from asmlib import *

KNAME = "parallel_sum__linear_kernel_hedgehog__mixer_token_mlp__prompt_kernel"
S, D, F, H, DH = 2048, 576, 4608, 32, 18

EPOCH = 0
FLA, FLB, FLKV, FLO, FLX = 0x70000, 0x8000, 0xC000, 0xD000, 0x10000
STAMP = 0x20000
S2 = 0x60000
HT = 0x100000
U = 0x400000
OT = 0xA00000
KVP = 0xD00000
EX = 0xE00000

sWAVE, sXCD, sIDX, sTAG = 4, 5, 6, 7
rX, rWQKV, rWPHI, rWO, rW1, rB1, rW2, rB2, rOUT, rWS = 8, 12, 16, 20, 24, 28, 32, 36, 40, 44
sST = 64
def srd(r): return f"s[{r}:{r+3}]"

G1_SLOT, G1_NS, G1_W = 30720, 5, 18432
LN_SCR, LN_PITCH = 153600, 1216
LN_S2 = LN_SCR + 8 * LN_PITCH
G2_STEP, G2_W, G2_PITCH = 20736, 12544, 3136
SH_SCR = 147456
LDS_BYTES = 163840
OOB = 0x7FFF0000

LOG2E = 1.4426950408889634


class Gen(Asm):
    def __init__(self, **opt):
        super().__init__()
        self.o = dict(stamps=False, att=True, fs=64, ks2=2, ns2=3, pf_w1=1, pf_code=True, spin=1 << 16, prefill=True, psleep=0, rot1=4, la1=2, probe=0)
        self.o.update(opt)
        self.nstamp = {}

    def stamp(self, i):
        if self.o["stamps"]:
            self(f"s_memrealtime s[{sST+2*i}:{sST+2*i+1}]")

    def dump_stamps(self, vtmp):
        if not self.o["stamps"]:
            return
        a = self
        a("s_waitcnt lgkmcnt(0)")
        a(f"s_lshl_b32 s3, s2, 3\ns_add_u32 s3, s3, s{sWAVE}\ns_lshl_b32 s3, s3, 6\ns_add_u32 s3, s3, {STAMP}")
        a(f"v_mov_b32 v{vtmp+4}, 0")
        for q in range(4):
            for i in range(4):
                a(f"v_mov_b32 v{vtmp+i}, s{sST+2*(4*q+i)}")
            a(f"buffer_store_dwordx4 v[{vtmp}:{vtmp+3}], v{vtmp+4}, {srd(rWS)}, s3 offen offset:{16*q}")
            a("s_nop 1")

    def align8(self):
        self(".p2align 3")

    def wave_sum(self, v, sdst):
        a = self
        for m in ("row_shr:1", "row_shr:2", "row_shr:4", "row_shr:8"):
            a(f"s_nop 1\nv_add_f32_dpp v{v}, v{v}, v{v} {m} row_mask:0xf bank_mask:0xf bound_ctrl:1")
        a(f"s_nop 1\nv_add_f32_dpp v{v}, v{v}, v{v} row_bcast:15 row_mask:0xa bank_mask:0xf")
        a(f"s_nop 1\nv_add_f32_dpp v{v}, v{v}, v{v} row_bcast:31 row_mask:0xc bank_mask:0xf")
        a(f"s_nop 0\nv_readlane_b32 s{sdst}, v{v}, 63")

    def divmod_const(self, vq, vr, vx, c, vt):
        m = (1 << 20) // c + 1
        for x in range(2048):
            assert (x * m) >> 20 == x // c
        assert 2047 * m < (1 << 32) and m < (1 << 24)
        self(f"v_mul_u32_u24 v{vq}, {m}, v{vx}\nv_lshrrev_b32 v{vq}, 20, v{vq}")
        self(f"v_mul_u32_u24 v{vt}, {c}, v{vq}\nv_sub_u32 v{vr}, v{vx}, v{vt}")

    def poll(self, vaddr, vdat, soff, nload=1, stride=0, wide=False, code=1):
        a = self
        lp, done = a.label("poll"), a.label("polld")
        a(f"s_mov_b32 s48, {self.o['spin']}")
        a(f"{lp}:")
        if wide:
            a(f"buffer_load_dwordx4 v[{vdat}:{vdat+3}], v{vaddr}, {srd(rWS)}, {soff} offen sc1")
            n = 4
        else:
            for i in range(nload):
                a(f"buffer_load_dword v{vdat+i}, v{vaddr}, {srd(rWS)}, {soff} offen offset:{i*stride} sc1")
            n = nload
        a("s_waitcnt vmcnt(0)")
        a(f"v_cmp_ne_u32 vcc, s{sTAG}, v{vdat}")
        for i in range(1, n):
            a(f"v_cmp_ne_u32 s[50:51], s{sTAG}, v{vdat+i}\ns_or_b64 vcc, vcc, s[50:51]")
        a(f"s_cmp_eq_u64 vcc, 0\ns_cbranch_scc1 {done}")
        if self.o["psleep"]: a(f"s_sleep {self.o['psleep']}")
        a(f"s_sub_u32 s48, s48, 1\ns_cmp_lg_u32 s48, 0\ns_cbranch_scc1 {lp}")
        a(f"{done}:")

    def set_flag(self, soff, vt):
        a = self
        a(f"v_mov_b32 v{vt}, s{sTAG}\ns_mov_b64 exec, 1")
        a(f"buffer_store_dword v{vt}, off, {srd(rWS)}, {soff} sc1")
        a("s_mov_b64 exec, -1")

    def interleave(self, mf, ds, per_gap=2, start=0):
        ds = list(ds)
        for i, m in enumerate(mf):
            self(m)
            if i >= start:
                for _ in range(per_gap):
                    if ds:
                        self(ds.pop(0))
        for d in ds:
            self(d)

    def gelu(self, regs, cA, cB, tmp, out, group=4):
        a = self
        for g0 in range(0, len(regs), group):
            rs = regs[g0:g0 + group]
            T = lambda i: f"v[{tmp+2*i}:{tmp+2*i+1}]"
            R = lambda r: f"v[{r}:{r+1}]"
            for i, r in enumerate(rs): a(f"v_pk_mul_f32 {T(i)}, {R(r)}, {R(r)}")
            for i, r in enumerate(rs): a(f"v_pk_fma_f32 {T(i)}, {T(i)}, {R(cA)}, {R(cB)}")
            for i, r in enumerate(rs): a(f"v_pk_mul_f32 {T(i)}, {T(i)}, {R(r)}")
            for i, r in enumerate(rs): a(f"v_exp_f32 v{tmp+2*i}, v{tmp+2*i}\nv_exp_f32 v{tmp+2*i+1}, v{tmp+2*i+1}")
            for i, r in enumerate(rs): a(f"v_pk_add_f32 {T(i)}, {T(i)}, 1.0 op_sel_hi:[1,0]")
            for i, r in enumerate(rs): a(f"v_rcp_f32 v{tmp+2*i}, v{tmp+2*i}\nv_rcp_f32 v{tmp+2*i+1}, v{tmp+2*i+1}")
            for i, r in enumerate(rs): a(f"v_pk_mul_f32 {T(i)}, {T(i)}, {R(r)}")
            for i, r in enumerate(rs): a(f"v_cvt_pk_bf16_f32 v{out[g0+i]}, v{tmp+2*i}, v{tmp+2*i+1}")
            yield g0

    def gelu_consts(self, cA, cB):
        c = 0.7978845608028654
        for i in range(2):
            self(f"v_mov_b32 v{cA+i}, {fhex(-2*c*0.044715*LOG2E)}\nv_mov_b32 v{cB+i}, {fhex(-2*c*LOG2E)}")

    def entry(self):
        a = self
        a.kernel(KNAME)
        if self.o["stamps"]:
            for i in range(1, 16): a(f"s_mov_b32 s{sST+2*i}, 0")
        a.stamp(0)
        if self.o["probe"]: a("s_memrealtime s[96:97]")
        a("s_cmp_ge_u32 s2, 256\ns_cbranch_scc1 L_end")
        for n, r in (("x", rX), ("ws", rWS), ("w1", rW1), ("wqkv", rWQKV), ("wphi", rWPHI), ("wo", rWO), ("b1", rB1),
                     ("w2", rW2), ("b2", rB2), ("out", rOUT)):
            a.load_ptr(n, r)
        a(f"v_lshrrev_b32 v1, 6, v0\nv_and_b32 v0, 63, v0\nv_readfirstlane_b32 s{sWAVE}, v1")
        a(f"s_and_b32 s{sXCD}, s2, 7\ns_lshr_b32 s{sIDX}, s2, 3")
        for n, r in (("x", rX), ("ws", rWS), ("w1", rW1), ("wqkv", rWQKV), ("wphi", rWPHI), ("wo", rWO), ("b1", rB1),
                     ("w2", rW2), ("b2", rB2), ("out", rOUT)):
            a.srd_finish(n, r)
        a(f"s_lshl_b32 s53, s{sXCD}, 5\ns_add_u32 s53, s53, s{sIDX}\ns_lshl_b32 s3, s53, 3\ns_add_u32 s3, s3, s{sWAVE}\ns_mul_i32 s3, s3, 1152")
        a("v_lshlrev_b32 v1, 3, v0\nv_lshlrev_b32 v7, 1, v0")
        a("s_waitcnt lgkmcnt(0)")
        a(f"buffer_load_dwordx2 v[2:3], v1, {srd(rX)}, s3 offen")
        a(f"buffer_load_dwordx2 v[4:5], v1, {srd(rX)}, s3 offen offset:512")
        a(f"buffer_load_ushort v6, v7, {srd(rX)}, s3 offen offset:1024")
        a(f"s_load_dword s{sTAG}, s[{rWS}:{rWS+1}], {EPOCH}")
        nextra = self.early_prefetch()
        a(f"s_mul_i32 s3, s{sWAVE}, {LN_PITCH}\ns_add_u32 s3, s3, {LN_SCR}")
        a("v_add_u32 v8, s3, v1\nv_add_u32 v9, s3, v7")
        a(f"s_waitcnt vmcnt({nextra})")
        a.stamp(1)
        for i in range(4):
            a(f"v_lshlrev_b32 v{10+2*i}, 16, v{2+i}\nv_and_b32 v{11+2*i}, 0xffff0000, v{2+i}")
        a("v_lshlrev_b32 v18, 16, v6")
        a("v_pk_add_f32 v[20:21], v[10:11], v[12:13]\nv_pk_add_f32 v[22:23], v[14:15], v[16:17]")
        a("v_pk_add_f32 v[20:21], v[20:21], v[22:23]\nv_add_f32 v20, v20, v18\nv_add_f32 v20, v20, v21")
        a.wave_sum(20, 48)
        a(f"v_mov_b32 v20, {fhex(-1.0/D)}\ns_nop 0\nv_mul_f32 v20, s48, v20")
        for i in range(4):
            a(f"v_pk_add_f32 v[{10+2*i}:{11+2*i}], v[{10+2*i}:{11+2*i}], v[20:21] op_sel_hi:[1,0]")
        a("v_add_f32 v18, v18, v20")
        a("v_pk_mul_f32 v[20:21], v[10:11], v[10:11]\nv_pk_mul_f32 v[22:23], v[12:13], v[12:13]")
        a("v_pk_fma_f32 v[20:21], v[14:15], v[14:15], v[20:21]\nv_pk_fma_f32 v[22:23], v[16:17], v[16:17], v[22:23]")
        a("v_pk_add_f32 v[20:21], v[20:21], v[22:23]\nv_fmac_f32 v20, v18, v18\nv_add_f32 v20, v20, v21")
        a.wave_sum(20, 48)
        a(f"v_mov_b32 v20, {fhex(1.0/D)}\nv_mov_b32 v24, {fhex(1e-5)}\nv_mul_f32 v20, s48, v20")
        a("v_add_f32 v21, v20, v24\nv_rsq_f32 v21, v21\ns_nop 0\nv_mul_f32 v22, v21, v21\nv_fma_f32 v22, v22, v20, v24")
        a("v_rsq_f32 v23, v22\ns_nop 0\nv_mul_f32 v20, v21, v23\nv_mul_f32 v22, v22, v23")
        for i in range(4):
            a(f"v_pk_mul_f32 v[{10+2*i}:{11+2*i}], v[{10+2*i}:{11+2*i}], v[20:21] op_sel_hi:[1,0]")
        a("v_mul_f32 v18, v18, v20")
        for i in range(4):
            a(f"v_cvt_pk_bf16_f32 v{2+i}, v{10+2*i}, v{11+2*i}")
        a("v_cvt_pk_bf16_f32 v6, v18, v18")
        a(f"s_lshl_b32 s3, s{sWAVE}, 2\ns_add_u32 s3, s3, {LN_S2}\nv_mov_b32 v23, s3")
        a("ds_write_b64 v8, v[2:3]\nds_write_b64 v8, v[4:5] offset:512\nds_write_b16 v9, v6 offset:1024\nds_write_b32 v23, v22")
        a("s_waitcnt lgkmcnt(0)")
        a(f"s_mul_i32 s{sTAG}, s{sTAG}, 0x9E3779B1\ns_add_u32 s{sTAG}, s{sTAG}, 0x7F4A7C15")
        a("s_barrier")
        a(f"s_cmp_lg_u32 s{sWAVE}, 0\ns_cbranch_scc1 L_ln_done")
        a("v_bfe_u32 v2, v0, 2, 2\nv_lshrrev_b32 v3, 4, v0\nv_and_b32 v4, 3, v0")
        a(f"v_mul_u32_u24 v2, {LN_PITCH}, v2\nv_lshlrev_b32 v3, 5, v3\nv_lshlrev_b32 v4, 3, v4")
        a(f"v_add3_u32 v2, v2, v3, v4\nv_add_u32 v2, {LN_SCR}, v2")
        a(f"v_and_b32 v3, 7, v0\nv_lshlrev_b32 v3, 2, v3\nv_add_u32 v4, {LN_S2}, v3")
        for b in range(9):
            a(f"ds_read_b64_tr_b16 v[{12+4*b}:{13+4*b}], v2 offset:{128*b}")
            a(f"ds_read_b64_tr_b16 v[{14+4*b}:{15+4*b}], v2 offset:{128*b+4*LN_PITCH}")
            if b == 6:
                a("s_waitcnt lgkmcnt(6)")
        a("ds_read_b32 v5, v4")
        a("v_lshlrev_b32 v6, 4, v0")
        a(f"s_mul_i32 s48, s53, 9216\ns_add_u32 s48, s48, {HT}\ns_add_u32 s49, s48, 4096\ns_add_u32 s50, s48, 8192")
        a(f"s_lshl_b32 s51, s53, 5\ns_add_u32 s51, s51, {S2}")
        for b in range(9):
            if b == 4:
                a("s_waitcnt lgkmcnt(0)")
            a(f"buffer_store_dwordx4 v[{12+4*b}:{15+4*b}], v6, {srd(rWS)}, s{48+b//4} offen offset:{1024*(b%4)} sc1")
        a("s_mov_b64 exec, 0xff")
        a(f"buffer_store_dword v5, v3, {srd(rWS)}, s51 offen sc1")
        a("s_mov_b64 exec, -1")
        a(f"s_mul_i32 s3, s53, {self.o['fs']}\ns_add_u32 s3, s3, {FLA}")
        a.stamp(14)
        a("s_waitcnt vmcnt(0)")
        a.set_flag("s3", 2)
        a("L_ln_done:")
        a.stamp(2)
        a(f"s_cmp_ge_u32 s{sIDX}, 24\ns_cbranch_scc1 L_att")
        a(f"s_cmp_ge_u32 s{sWAVE}, 4\ns_cbranch_scc1 L_aux")

    def early_prefetch(self):
        a = self
        n = 0
        if self.o["pf_code"]:
            a(f"s_lshl_b32 s48, s{sIDX}, 3\ns_add_u32 s48, s48, s{sWAVE}\ns_lshl_b32 s48, s48, 8")
            a(f"s_min_u32 s48, s48, L_code_end-L_pc0-256")
            a("s_getpc_b64 s[50:51]\nL_pc0:\ns_add_u32 s50, s50, s48\ns_addc_u32 s51, s51, 0")
            a("v_and_b32 v30, 1, v0\nv_lshlrev_b32 v30, 7, v30")
            a("global_load_dword v31, v30, s[50:51]")
            n += 1
        return n

    def wait_A_group(self, sg, vt):
        a = self
        fs = self.o["fs"]
        a(f"s_mul_i32 s52, {sg}, {32*fs}\ns_add_u32 s52, s52, {FLA}")
        a(f"v_and_b32 v{vt}, 31, v0\nv_mul_u32_u24 v{vt}, {fs}, v{vt}")
        a.poll(vt, vt + 2, "s52")

    def att_prefetch_start(self):
        pass
    def att_prefetch_step(self, n, issued):
        return []
    def att_prefetch_tail(self, i):
        pass

    def mlp_compute(self):
        a = self
        ACC, SH = 16, 64
        P, Q = 80, 120
        bA0, bA1, bB, bS = 1, 2, 3, 4
        cA0, cA1, cB, cS = 5, 6, 7, 8
        a(f"s_and_b32 s54, s{sIDX}, 3\ns_lshr_b32 s55, s{sIDX}, 2\ns_mul_i32 s3, s{sXCD}, 6\ns_add_u32 s55, s55, s3")
        a("v_lshrrev_b32 v9, 4, v0\nv_lshlrev_b32 v10, 3, v9\ns_mul_i32 s3, s55, 192")
        for t in range(6):
            a(f"buffer_load_dwordx2 v[{P+2*t}:{P+2*t+1}], v10, {srd(rB1)}, s3 offen offset:{32*t}")
        a("v_bfe_u32 v11, v0, 2, 2\nv_lshl_add_u32 v11, v9, 3, v11\nv_mul_u32_u24 v11, 192, v11")
        a("v_and_b32 v12, 3, v0\nv_lshl_add_u32 v11, v12, 3, v11")
        a(f"v_add_u32 v11, {G1_W}, v11\nv_and_b32 v12, 1, v9\nv_lshlrev_b32 v12, 5, v12")
        a(f"v_add_u32 v{cA0}, v11, v12\nv_sub_u32 v{cA1}, v11, v12\nv_add_u32 v{cA1}, 32, v{cA1}")
        a(f"v_mul_u32_u24 v11, 2304, v9\nv_and_b32 v12, 15, v0\nv_lshl_add_u32 v11, v12, 4, v11")
        a(f"s_lshl_b32 s3, s{sWAVE}, 9\nv_add_u32 v{cB}, s3, v11\nv_add_u32 v{cS}, 2048, v11")
        a("s_waitcnt vmcnt(0)")
        for t in range(6):
            for h in range(2):
                a(f"v_lshlrev_b32 v{ACC+4*t+2*h}, 16, v{P+2*t+h}\nv_and_b32 v{ACC+4*t+2*h+1}, 0xffff0000, v{P+2*t+h}")
        for i in range(24):
            a(f"v_mov_b32 v{ACC+24+i}, v{ACC+i}")
        a(f"s_mov_b32 s56, 0\ns_mov_b32 s57, 31")
        for w in range(4):
            if w < 3:
                a(f"s_cmp_lg_u32 s{sWAVE}, {w}\ns_cbranch_scc1 L_g1_w{w+1}")
            self.g1_loop(w, ACC, SH, P, Q, (bA0, bA1, bB, bS), (cA0, cA1, cB, cS))
            if w < 3:
                a(f"s_branch L_g1_done\nL_g1_w{w+1}:")
        a("L_g1_done:")
        a.stamp(5)
        self.g1_epilogue(ACC, SH, P, Q)
        self.g2_compute()

    def g1_loop(self, w, ACC, SH, P, Q, b, c):
        a = self
        bA0, bA1, bB, bS = b
        t0, ks = 3 * (w >> 1), w & 1
        for i in range(12):
            a(f"v_mov_b32 v{SH+i}, v{ACC+4*t0+i}" if ks == 0 else f"v_mov_b32 v{SH+i}, 0")
        def reads(st, k):
            r = []
            for j in range(2):
                r.append(f"ds_read_b128 v[{st+24+4*j}:{st+27+4*j}], v{bB} offset:{k*9216+256*j}")
            for t in range(6):
                for rho in range(2):
                    r.append(f"ds_read_b64_tr_b16 v[{st+4*t+2*rho}:{st+4*t+2*rho+1}], v{bA1 if t & 1 else bA0} offset:{k*6144+rho*768+(t>>1)*64}")
            if k == ks:
                r.append(f"ds_read_b128 v[{st+32}:{st+35}], v{bS} offset:{k*9216}")
            return r
        def mfmas(st, k):
            m = []
            for t in range(6):
                for j in range(2):
                    d = ACC + 24 * j + 4 * t
                    m.append(f"v_mfma_f32_16x16x32_bf16 v[{d}:{d+3}], v[{st+4*t}:{st+4*t+3}], v[{st+24+4*j}:{st+27+4*j}], v[{d}:{d+3}]")
            if k == ks:
                for i in range(3):
                    d = SH + 4 * i
                    m.append(f"v_mfma_f32_16x16x32_bf16 v[{d}:{d+3}], v[{st+4*(t0+i)}:{st+4*(t0+i)+3}], v[{st+32}:{st+35}], v[{d}:{d+3}]")
            return m
        for x, y in zip(b, c):
            a(f"v_mov_b32 v{x}, v{y}")
        a("s_barrier")
        a.stamp(3)
        a("s_barrier")
        a.stamp(4)
        for r in reads(P, 0): a(r)
        lp = a.label("g1")
        a.align8()
        a(f"{lp}:")
        a("s_waitcnt lgkmcnt(0)\ns_nop 0")
        a.interleave(mfmas(P, 0), reads(Q, 1))
        a(f"s_add_u32 s56, s56, {G1_SLOT}\ns_cmp_eq_u32 s56, {G1_SLOT*G1_NS}\ns_cselect_b32 s56, 0, s56")
        for x, y in zip(b, c):
            a(f"v_add_u32 v{x}, s56, v{y}")
        a("s_waitcnt lgkmcnt(0)\ns_barrier\ns_nop 0")
        a.interleave(mfmas(Q, 1), reads(P, 0))
        a(f"s_sub_u32 s57, s57, 1\ns_cmp_lg_u32 s57, 0\ns_cbranch_scc1 {lp}")
        a("s_waitcnt lgkmcnt(0)")
        a.align8()
        a.interleave(mfmas(P, 0), reads(Q, 1))
        a("s_waitcnt lgkmcnt(0)\ns_nop 0")
        m = mfmas(Q, 1)
        for x in m[12:] + m[:12]: a(x)

    def g2_ids(self):
        a = self
        a(f"s_lshr_b32 s58, s{sXCD}, 1\ns_mul_i32 s60, s{sIDX}, 43\ns_lshr_b32 s60, s60, 7\ns_mul_i32 s3, s60, 3\ns_sub_u32 s59, s{sIDX}, s3")
        a(f"s_and_b32 s3, s{sXCD}, 1\ns_lshl_b32 s3, s3, 3\ns_add_u32 s60, s60, s3")

    def g1_epilogue(self, ACC, SH, P, Q):
        a = self
        XR = 160
        a(f"s_mul_i32 s3, s{sWAVE}, 3072\ns_add_u32 s3, s3, {SH_SCR}\nv_lshl_add_u32 v1, v0, 4, s3")
        for i in range(3):
            a(f"ds_write_b128 v1, v[{SH+4*i}:{SH+4*i+3}] offset:{1024*i}")
        self.g2_ids()
        a(f"s_and_b32 s3, s{sWAVE}, 1\ns_lshl_b32 s3, s3, 2\ns_add_u32 s3, s3, s58\ns_lshl_b32 s3, s3, 4\ns_lshl_b32 s48, s60, 7\ns_add_u32 s61, s3, s48")
        a(f"s_lshr_b32 s3, s{sWAVE}, 1\ns_lshl_b32 s48, s59, 1\ns_add_u32 s3, s3, s48\ns_mul_i32 s3, s3, 192\ns_mul_i32 s62, s61, 1152\ns_add_u32 s62, s62, s3")
        a("v_and_b32 v2, 15, v0\nv_mul_u32_u24 v15, 1152, v2\nv_lshrrev_b32 v3, 4, v0\nv_lshl_add_u32 v15, v3, 4, v15")
        a("v_lshlrev_b32 v4, 1, v2\ns_lshl_b32 s3, s61, 1")
        for p in range(3):
            a(f"buffer_load_dwordx4 v[{XR+4*p}:{XR+4*p+3}], v15, {srd(rX)}, s62 offen offset:{64*p}")
        a(f"buffer_load_ushort v{XR+12}, v4, {srd(rB2)}, s3 offen")
        a("s_waitcnt lgkmcnt(0)\ns_barrier")
        a(f"v_mul_u32_u24 v5, 9216, v3\nv_lshl_add_u32 v5, v2, 4, v5")
        a(f"s_mul_i32 s48, s55, {12*9216}\ns_mul_i32 s3, s54, 2304\ns_add_u32 s48, s48, s3\ns_lshl_b32 s3, s{sWAVE}, 9\ns_add_u32 s48, s48, s3\ns_add_u32 s48, s48, {U}")
        a(f"s_add_u32 s49, s48, {4*9216}\ns_add_u32 s50, s48, {8*9216}")
        a.gelu_consts(6, 8)
        regs = [ACC + 2 * i for i in range(24)]
        out = [P + i for i in range(24)]
        a.align8()
        for g0 in a.gelu(regs, 6, 8, Q, out):
            n = g0 // 4
            j, p = n // 3, n % 3
            a(f"buffer_store_dwordx4 v[{P+g0}:{P+g0+3}], v5, {srd(rWS)}, s{48+p} offen offset:{256*j} sc1")
        a.stamp(6)

    def g2_compute(self):
        a = self
        XR = 160
        KS, NS = self.o["ks2"], self.o["ns2"]
        ACC = 16
        P, Q = 176, 216
        bU, bW = 1, 2
        cU, cW = 6, 7
        bO, cO = 112, 115
        a("s_waitcnt vmcnt(6)")
        a(f"v_lshlrev_b32 v{XR+12}, 16, v{XR+12}")
        for i in range(12):
            a(f"v_lshlrev_b32 v{ACC+2*i}, 16, v{XR+i}\nv_and_b32 v{ACC+2*i+1}, 0xffff0000, v{XR+i}")
        for i in range(12):
            a(f"v_pk_add_f32 v[{ACC+2*i}:{ACC+2*i+1}], v[{ACC+2*i}:{ACC+2*i+1}], v[{XR+12}:{XR+13}] op_sel_hi:[1,0]")
        for i in range(24, 96):
            a(f"v_mov_b32 v{ACC+i}, 0")
        a(f"v_and_b32 v11, 15, v0\nv_lshrrev_b32 v12, 4, v0\nv_bfe_u32 v13, v0, 2, 2\nv_and_b32 v14, 3, v0")
        a(f"v_mul_u32_u24 v{cU}, {G2_PITCH}, v12\nv_lshl_add_u32 v{cU}, v13, 7, v{cU}\nv_lshl_add_u32 v{cU}, v14, 4, v{cU}")
        a(f"s_lshr_b32 s3, s{sWAVE}, 1\ns_mul_i32 s3, s3, 1536\nv_add_u32 v{cU}, s3, v{cU}")
        a("v_lshl_add_u32 v118, v12, 2, v13")
        a(f"v_lshlrev_b32 v119, 8, v118\nv_lshl_add_u32 v119, v14, 3, v119\nv_add_u32 v119, {G2_W}, v119\nv_and_b32 v120, 7, v118")
        for j in range(4):
            a(f"s_add_u32 s3, s58, {j}\ns_and_b32 s3, s3, 3\ns_and_b32 s48, s{sWAVE}, 1\ns_lshl_b32 s48, s48, 2\ns_add_u32 s3, s3, s48")
            a(f"v_xor_b32 v121, s3, v120\nv_lshl_add_u32 v{cW+j}, v121, 5, v119")
        a("v_mul_u32_u24 v119, 384, v118\nv_lshl_add_u32 v119, v14, 4, v119\nv_bfe_u32 v120, v118, 1, 1")
        for p in range(3):
            a(f"s_lshr_b32 s3, s{sWAVE}, 1\ns_mul_i32 s3, s3, 3\ns_add_u32 s3, s3, {p}")
            a(f"v_xor_b32 v121, s3, v120\nv_lshl_add_u32 v{cO+p}, v121, 6, v119")
        bs = [(bU, cU)] + [(bW + j, cW + j) for j in range(4)]
        bo = [(bO + p, cO + p) for p in range(3)]
        for x, y in bs: a(f"v_mov_b32 v{x}, v{y}")
        a("s_waitcnt vmcnt(0)\ns_barrier")
        a(f"s_cmp_lg_u32 s{sWAVE}, 0\ns_cbranch_scc1 L_noflagB")
        a(f"s_lshl_b32 s3, s55, 2\ns_add_u32 s3, s3, s54\ns_lshl_b32 s3, s3, 4\ns_add_u32 s3, s3, {FLB}")
        a.set_flag("s3", 121)
        a("L_noflagB:")
        a.stamp(7)

        def reads(st, k, ext):
            o = k * G2_STEP
            r = []
            def rb(j):
                return [f"ds_read_b64_tr_b16 v[{st+24+4*j+2*rho}:{st+25+4*j+2*rho}], v{bW+j} offset:{o+rho*4096}" for rho in range(2)]
            def ra(m):
                p, b_ = m >> 1, m & 1
                if not ext:
                    return [f"ds_read_b128 v[{st+4*m}:{st+4*m+3}], v{bU} offset:{o+p*512+b_*64}"]
                return [f"ds_read_b64_tr_b16 v[{st+4*m+2*rho}:{st+4*m+2*rho+1}], v{bO+p} offset:{o+rho*6144+b_*8}" for rho in range(2)]
            r += rb(0)
            for m in range(6): r += ra(m)
            for j in range(1, 4): r += rb(j)
            return r
        def mfmas(st, order=(0, 1, 2, 3)):
            m = []
            for j in order:
                for t in range(6):
                    d = ACC + 24 * j + 4 * t
                    m.append(f"v_mfma_f32_16x16x32_bf16 v[{d}:{d+3}], v[{st+4*t}:{st+4*t+3}], v[{st+24+4*j}:{st+27+4*j}], v[{d}:{d+3}]")
            return m
        SLOT = KS * G2_STEP
        def advance(ext_next):
            r = [f"s_add_u32 s56, s56, {SLOT}", f"s_cmp_eq_u32 s56, {SLOT*NS}", "s_cselect_b32 s56, 0, s56\ns_nop 0"]
            l = bs[1:] + (bo if ext_next else bs[:1])
            v = [f"v_add_u32 v{x}, s56, v{y}" for x, y in l]
            if len(v) % 2: v.append("s_nop 0")
            r += [v[i] + "\n" + v[i + 1] for i in range(0, len(v), 2)]
            return r
        NSTEP = 41
        sets = (P, Q)
        def step(n, first_in_loop=False):
            st, nx = sets[n & 1], sets[(n + 1) & 1]
            cross = (n + 1) % KS == 0 and n + 1 < NSTEP
            a("s_waitcnt lgkmcnt(0)")
            a("s_barrier" if cross else "s_nop 0")
            if n + 1 >= NSTEP:
                for x in mfmas(st, (1, 2, 3, 0)): a(x)
                return
            ds = reads(nx, (n + 1) % KS, n + 1 >= 36)
            if (n + 2) % KS == 0 and n + 2 < NSTEP:
                ds = ds + advance(n + 2 >= 36)
            a.interleave(mfmas(st), ds, per_gap=1 if len(ds) <= 20 else 2)
        a("s_mov_b32 s56, 0")
        a("s_barrier")
        a.stamp(8)
        a("s_barrier")
        a.stamp(9)
        for r in reads(P, 0, False): a(r)
        if KS == 1:
            for r in advance(False): a(r)
        UN = 4
        nloop = 32 // UN
        a(f"s_mov_b32 s57, {nloop}")
        lp = a.label("g2")
        a.align8()
        a(f"{lp}:")
        for n in range(UN): step(n)
        a(f"s_sub_u32 s57, s57, 1\ns_cmp_lg_u32 s57, 0\ns_cbranch_scc1 {lp}\ns_nop 0")
        for n in range(32, NSTEP): step(n)
        a.stamp(10)
        a(f"s_mul_i32 s56, s60, 3\ns_add_u32 s56, s56, s59")
        a(f"v_lshlrev_b32 v1, 4, v0\ns_mul_i32 s57, s{sWAVE}, 3072\ns_add_u32 s57, s57, {EX}")
        for j in range(1, 4):
            a(f"s_add_u32 s3, s58, {j}\ns_and_b32 s3, s3, 3\ns_lshl_b32 s48, s56, 2\ns_add_u32 s3, s3, s48\ns_mul_i32 s3, s3, 36864")
            a(f"s_add_u32 s3, s3, s57\ns_add_u32 s3, s3, {(j-1)*12288}")
            for i in range(12):
                a(f"v_cvt_pk_bf16_f32 v{P+12*(j-1)+i}, v{ACC+24*j+2*i}, v{ACC+24*j+2*i+1}")
            for p in range(3):
                r = P + 12 * (j - 1) + 4 * p
                a(f"buffer_store_dwordx4 v[{r}:{r+3}], v1, {srd(rWS)}, s3 offen offset:{1024*p} sc1")
        a(f"s_lshl_b32 s3, s56, 2\ns_add_u32 s3, s3, s{sWAVE}\ns_lshl_b32 s3, s3, 7\ns_add_u32 s52, s3, {FLX}\ns_lshl_b32 s3, s58, 4\ns_add_u32 s3, s3, s52")
        a(f"s_lshl_b32 s48, s56, 2\ns_add_u32 s48, s48, s58\ns_mul_i32 s48, s48, 36864\ns_add_u32 s57, s57, s48")
        a("v_and_b32 v2, 3, v0\nv_lshlrev_b32 v2, 4, v2")
        a("s_waitcnt vmcnt(0)")
        a.set_flag("s3", 3)
        a.stamp(11)
        a.poll(2, 4, "s52")
        a.stamp(12)
        for j in range(3):
            a(f"s_add_u32 s3, s57, {j*12288}")
            for p in range(3):
                r = P + 12 * j + 4 * p
                a(f"buffer_load_dwordx4 v[{r}:{r+3}], v1, {srd(rWS)}, s3 offen offset:{1024*p} sc1")
        for j in range(3):
            a(f"s_waitcnt vmcnt({6-3*j})")
            for i in range(12):
                t = 40 + 2 * (i % 4)
                a(f"v_lshlrev_b32 v{t}, 16, v{P+12*j+i}\nv_and_b32 v{t+1}, 0xffff0000, v{P+12*j+i}")
                a(f"v_pk_add_f32 v[{ACC+2*i}:{ACC+2*i+1}], v[{ACC+2*i}:{ACC+2*i+1}], v[{t}:{t+1}]")
        for i in range(12):
            a(f"v_cvt_pk_bf16_f32 v{Q+i}, v{ACC+2*i}, v{ACC+2*i+1}")
        for p in range(3):
            a(f"buffer_store_dwordx4 v[{Q+4*p}:{Q+4*p+3}], v15, {srd(rOUT)}, s62 offen offset:{64*p}")
        a.stamp(13)
        a("s_branch L_fin")

    def mlp_aux(self):
        a = self
        a("L_aux:")
        a(f"s_and_b32 s54, s{sIDX}, 3\ns_lshr_b32 s55, s{sIDX}, 2\ns_mul_i32 s3, s{sXCD}, 6\ns_add_u32 s55, s55, s3")
        a(f"s_sub_u32 s53, s{sWAVE}, 4")
        a(f"s_cmp_eq_u32 s{sWAVE}, 7\ns_cbranch_scc1 L_aux7")
        vH, vW = 10, 16
        a("s_lshl_b32 s3, s53, 8\nv_add_u32 v1, s3, v0")
        for i in range(4):
            a(f"v_add_u32 v2, {64*i}, v1")
            a.divmod_const(3, 4, 2, 12, 5)
            a(f"v_bfe_u32 v5, v3, 3, 1\nv_lshlrev_b32 v5, 1, v5\nv_xor_b32 v4, v4, v5")
            a(f"v_mul_u32_u24 v3, 9216, v3\nv_lshl_add_u32 v{vW+i}, v4, 4, v3\nv_subrev_u32 v{vW+i}, {1024*i}, v{vW+i}")
        a(f"s_mul_i32 s57, s55, 192\ns_lshl_b32 s63, s53, 12\ns_add_u32 s63, s63, {G1_W}")
        a(f"s_mul_i32 s3, s{sXCD}, {self.o['rot1']*64*9216}\ns_add_u32 s57, s57, s3")
        issued = []
        def w1_load(st):
            a(f"s_add_u32 m0, s63, {(st % G1_NS)*G1_SLOT}\ns_nop 0")
            for i in range(4):
                a(f"buffer_load_dwordx4 v{vW+i}, {srd(rW1)}, s57 offen offset:{1024*i} lds")
                issued.append(("W", st))
            a(f"s_add_u32 s57, s57, {64*9216}")
            if self.o["rot1"]: a(f"s_cmp_ge_u32 s57, {2048*9216}\ns_cselect_b32 s3, {2048*9216}, 0\ns_sub_u32 s57, s57, s3")
        def h_load(st):
            for i in range(6):
                if i % 4 == 0:
                    a(f"s_add_u32 m0, s61, {(st % G1_NS)*G1_SLOT + 1024*i}\ns_nop 0")
                a(f"buffer_load_dwordx4 v{vH+i}, {srd(rWS)}, s56 offen offset:{1024*(i%4)} sc1 lds")
                issued.append(("H", st))
            a(f"s_add_u32 s56, s56, {8*9216}")
            if self.o["rot1"]: a(f"s_cmp_ge_u32 s56, {HT+256*9216}\ns_cselect_b32 s3, {256*9216}, 0\ns_sub_u32 s56, s56, s3")
        def wait_stage(st):
            last = max(i for i, x in enumerate(issued) if x[1] == st)
            n = len(issued) - 1 - last
            assert n < 64
            a(f"s_waitcnt vmcnt({n})")
        self.aux_prefetch_w1()
        if self.o["prefill"]:
            for st in range(G1_NS): w1_load(st)
        a("s_mul_i32 s3, s53, 384\nv_add_u32 v1, s3, v0")
        for i in range(6):
            a(f"v_add_u32 v2, {64*i}, v1")
            a.divmod_const(3, 4, 2, 144, 5)
            a(f"v_mul_u32_u24 v3, 9216, v3\nv_lshl_add_u32 v{vH+i}, v4, 4, v3\nv_subrev_u32 v{vH+i}, {1024*(i%4)}, v{vH+i}")
        a(f"s_mul_i32 s56, s54, 2304\ns_add_u32 s56, s56, {HT}\ns_mul_i32 s61, s53, 6144")
        a(f"s_mul_i32 s3, s{sXCD}, {self.o['rot1']*8*9216}\ns_add_u32 s56, s56, s3")
        a("s_barrier")
        a.stamp(3)
        pend = []
        for st in range(G1_NS):
            pend.append(("H", st))
            if not self.o["prefill"]: pend.append(("W", st))
        def issue(upto):
            while pend and pend[0][1] <= upto:
                k, st = pend.pop(0)
                (h_load if k == "H" else w1_load)(st)
        issue(1 if self.o["prefill"] else 0)
        for i in range(32):
            wait_stage(i)
            a("s_barrier")
            if i >= 1 and i + 4 <= 31:
                pend.extend([("H", i + 4), ("W", i + 4)])
            issue(i + self.o["la1"])
        a("s_branch L_aux_g1done")
        a("L_aux7:")
        self.aux_prefetch_w1()
        assert self.o["rot1"] == 4
        a(f"s_mov_b32 s56, s{sXCD}")
        self.wait_A_group("s56", 10)
        a("s_barrier")
        a.stamp(3)
        la = self.o["la1"]
        for i in range(32):
            if (i + la) % 4 == 0 and i + la < 32:
                a("s_add_u32 s56, s56, 1\ns_and_b32 s56, s56, 7")
                self.wait_A_group("s56", 10)
            a("s_barrier")
        a(f"s_cmp_lg_u32 s2, 0\ns_cbranch_scc1 L_noepoch\ns_mov_b32 s3, {EPOCH}")
        a.set_flag("s3", 10)
        a("L_noepoch:")
        a("L_aux_g1done:")
        a.stamp(5)
        self.g2_loader()

    def aux_prefetch_w1(self):
        a = self
        n = self.o["pf_w1"]
        if not n:
            return
        a.divmod_const(30, 31, 0, 9, 32)
        a("v_min_u32 v30, 6, v30\nv_mul_u32_u24 v30, 9216, v30\nv_lshl_add_u32 v30, v31, 7, v30")
        a(f"s_lshl_b32 s3, s{sIDX}, 2\ns_add_u32 s3, s3, s53\ns_mul_i32 s3, s3, {7*9216}\ns_mul_i32 s48, s{sXCD}, {1152 + self.o['rot1']*64*9216}\ns_add_u32 s3, s3, s48")
        for i in range(n):
            a(f"s_cmp_ge_u32 s3, {2048*9216}\ns_cselect_b32 s48, {2048*9216}, 0\ns_sub_u32 s3, s3, s48")
            a(f"buffer_load_dword v33, v30, {srd(rW1)}, s3 offen\ns_add_u32 s3, s3, {96*7*9216}")

    def g2_loader(self):
        a = self
        KS, NS = self.o["ks2"], self.o["ns2"]
        SLOT = KS * G2_STEP
        NSTEP = 41
        NST = (NSTEP + KS - 1) // KS
        vL, vW, vZ, vO, vY = 10, 11, 13, 15, 56
        self.g2_ids()
        a(f"v_lshlrev_b32 v{vL}, 4, v0\nv_lshrrev_b32 v1, 4, v0\nv_bfe_u32 v2, v0, 1, 3\nv_and_b32 v3, 1, v0")
        for i in range(2):
            a(f"v_add_u32 v4, {4*i}, v1\nv_xor_b32 v5, v2, v4\nv_lshlrev_b32 v4, 12, v4\nv_lshl_add_u32 v4, v5, 5, v4")
            a(f"v_lshl_add_u32 v{vW+i}, v3, 4, v4\nv_subrev_u32 v{vW+i}, {1024*i}, v{vW+i}")
            a(f"s_cmp_ge_u32 s53, 2\ns_cselect_b32 s3, {OOB}, 0\nv_or_b32 v{vZ+i}, s3, v{vW+i}")
        for i in range(3):
            a(f"v_add_u32 v4, {64*i}, v0")
            a.divmod_const(5, 6, 4, 24, 7)
            a(f"v_bfe_u32 v7, v5, 1, 1\nv_lshlrev_b32 v7, 2, v7\nv_xor_b32 v6, v6, v7")
            a(f"v_mul_u32_u24 v5, 1152, v5\nv_lshl_add_u32 v{vO+i}, v6, 4, v5\nv_subrev_u32 v{vO+i}, {1024*i}, v{vO+i}")
            a(f"v_or_b32 v{vY+i}, s3, v{vO+i}")
        a(f"s_mul_i32 s56, s58, 144\ns_add_u32 s56, s56, s53\ns_mul_i32 s56, s56, 9216\ns_mul_i32 s3, s59, 3072\ns_add_u32 s56, s56, s3\ns_add_u32 s56, s56, {U}")
        a(f"s_mul_i32 s57, s58, 1152\ns_lshl_b32 s3, s53, 3\ns_add_u32 s57, s57, s3\ns_lshl_b32 s57, s57, 12\ns_lshl_b32 s3, s60, 8\ns_add_u32 s57, s57, s3")
        a(f"s_mul_i32 s61, s53, {G2_PITCH}\ns_mul_i32 s62, s53, 3072\ns_lshl_b32 s63, s53, 11\ns_add_u32 s63, s63, {G2_W}")
        issued = []
        def lds(n): return ((n // KS) % NS) * SLOT + (n % KS) * G2_STEP
        def w_load(n):
            if n == 36:
                a(f"s_mul_i32 s57, s58, 144\ns_lshl_b32 s3, s53, 3\ns_add_u32 s57, s57, s3\ns_lshl_b32 s57, s57, 12\ns_lshl_b32 s3, s60, 8\ns_add_u32 s57, s57, s3\ns_add_u32 s57, s57, {OT}")
            a(f"s_add_u32 m0, s63, {lds(n)}\ns_nop 0")
            for i in range(2):
                if n < 36:
                    a(f"buffer_load_dwordx4 v{vW+i}, {srd(rW2)}, s57 offen offset:{1024*i} lds")
                else:
                    a(f"buffer_load_dwordx4 v{(vZ if n == 40 else vW)+i}, {srd(rWS)}, s57 offen offset:{1024*i} sc1 lds")
                issued.append(n // KS)
            a(f"s_add_u32 s57, s57, {32*4096}")
        def a_load(n):
            if n == 36:
                a(f"s_mul_i32 s56, s58, 144\ns_lshl_b32 s3, s53, 3\ns_add_u32 s56, s56, s3\ns_mul_i32 s56, s56, 1152\ns_mul_i32 s3, s59, 384\ns_add_u32 s56, s56, s3")
            a(f"s_add_u32 m0, s{61 if n < 36 else 62}, {lds(n)}\ns_nop 0")
            for i in range(3):
                if n < 36:
                    a(f"buffer_load_dwordx4 v{vL}, {srd(rWS)}, s56 offen offset:{1024*i} sc1 lds")
                else:
                    a(f"buffer_load_dwordx4 v{(vY if n == 40 else vO)+i}, {srd(rWO)}, s56 offen offset:{1024*i} lds")
                issued.append(n // KS)
            a(f"s_add_u32 s56, s56, {4*9216 if n < 36 else 32*1152}")
        def steps(st): return [n for n in range(st * KS, min(NSTEP, (st + 1) * KS))]
        a("s_barrier")
        for st in range(NS):
            for n in steps(st): w_load(n)
        a(f"s_cmp_eq_u32 s{sWAVE}, 7\ns_cbranch_scc1 L_nosh")
        for h in range(2):
            a(f"s_lshl_b32 s3, s53, 1\ns_add_u32 s3, s3, {h}\ns_cmp_ge_u32 s3, 3\ns_cselect_b32 s48, 3072, 0\ns_lshl_b32 s3, s3, 10\ns_add_u32 s3, s3, s48\ns_add_u32 s3, s3, {SH_SCR}")
            a(f"v_add_u32 v20, s3, v{vL}\nds_read_b128 v[{24+4*h}:{27+4*h}], v20\nds_read_b128 v[{32+4*h}:{35+4*h}], v20 offset:3072")
        a.gelu_consts(40, 42)
        a(f"v_mul_u32_u24 v21, 9216, v1\nv_and_b32 v22, 15, v0\nv_lshl_add_u32 v21, v22, 4, v21")
        a(f"s_mul_i32 s48, s55, 3\ns_add_u32 s48, s48, s53\ns_mul_i32 s48, s48, {4*9216}\ns_mul_i32 s3, s54, 2304\ns_add_u32 s48, s48, s3\ns_add_u32 s48, s48, {U + 2048}")
        a("s_waitcnt lgkmcnt(0)")
        for i in range(4):
            a(f"v_pk_add_f32 v[{24+2*i}:{25+2*i}], v[{24+2*i}:{25+2*i}], v[{32+2*i}:{33+2*i}]")
        for g0 in a.gelu([24, 26, 28, 30], 40, 42, 44, [32, 33, 34, 35]):
            a(f"buffer_store_dwordx4 v[32:35], v21, {srd(rWS)}, s48 offen sc1")
        a("L_nosh:")
        a("s_waitcnt vmcnt(0)\ns_barrier")
        issued.clear()
        a.stamp(7)
        a(f"s_cmp_lg_u32 s{sWAVE}, 7\ns_cbranch_scc1 L_nopollB")
        a("v_min_u32 v20, 23, v0\nv_lshrrev_b32 v21, 1, v20\nv_and_b32 v20, 1, v20\nv_lshl_add_u32 v20, v21, 2, v20\nv_lshlrev_b32 v20, 4, v20")
        a(f"s_mul_i32 s52, s58, 48\ns_add_u32 s52, s52, s59\ns_lshl_b32 s52, s52, 4\ns_add_u32 s52, s52, {FLB}")
        a.poll(20, 22, "s52")
        a("L_nopollB:")
        a("s_barrier")
        a.stamp(8)
        for n in steps(0): a_load(n)
        for i in range(NST):
            last = max(k for k, x in enumerate(issued) if x == i)
            nn = len(issued) - 1 - last
            assert nn < 64
            nxt = i - 1 + NS
            if self.o["att"] and i >= 1 and nxt < NST and 36 in steps(nxt):
                a(f"s_cmp_lg_u32 s{sWAVE}, 7\ns_cbranch_scc1 L_nopollO")
                a("v_and_b32 v20, 1, v0\nv_lshlrev_b32 v20, 9, v20")
                a(f"s_lshl_b32 s52, s58, 4\ns_lshr_b32 s3, s60, 1\ns_add_u32 s52, s52, s3\ns_lshl_b32 s52, s52, 6\ns_add_u32 s52, s52, {FLO}")
                a.poll(20, 22, "s52")
                a("L_nopollO:")
            a(f"s_waitcnt vmcnt({nn})\ns_barrier")
            if i == 0:
                for st in range(1, NS):
                    for n in steps(st): a_load(n)
            if i >= 1 and nxt < NST:
                for n in steps(nxt):
                    a_load(n); w_load(n)
        a.stamp(10)
        a("s_branch L_fin")

    def att(self):
        a = self
        a("L_att:")
        if self.o["att"]:
            import gen_att
            gen_att.emit(self)

    def build(self):
        a = self
        a.launch(KNAME, 256, 512, LDS_BYTES)
        a.kd(KNAME, 256)
        self.entry()
        self.mlp_compute()
        self.mlp_aux()
        self.att()
        a("L_fin:")
        a.stamp(15)
        if self.o["probe"]:
            a(f"s_cmp_lg_u32 s2, {self.o.get('probe_wg', 0)}\ns_cbranch_scc1 L_end\nL_probe:\ns_memrealtime s[98:99]\ns_waitcnt lgkmcnt(0)\ns_sub_u32 s98, s98, s96\ns_cmp_lt_u32 s98, {self.o['probe']*100}\ns_cbranch_scc1 L_probe")
        self.dump_stamps(4)
        a("L_end:\ns_endpgm\nL_code_end:")
        return a.text(single=True)


if __name__ == "__main__":
    import json
    opt = json.loads(sys.argv[2]) if len(sys.argv) > 2 else {}
    open(sys.argv[1], "w").write(Gen(**opt).build())
```

```python
from gen import *
import re

A_SLOT, A_NS, A_W = 30720, 4, 16384
IMG_P = 472
PARK = 122880
WPH = PARK + 20480
JUNK7 = WPH + 4096
ZERO = JUNK7 + 2048
JUNK = ZERO + 128
TAB = LN_SCR
KVB = 15360
assert JUNK + 8 <= LN_SCR

cA, cA4, cB0, cB1 = 224, 225, 226, 227
vH, vW = 228, 230
aV, aT4, aK, aKA, aKB, aP, aR, aL, aB, aO, aF, aPK, vT, aS2 = 232, 233, 234, 235, 236, 237, 239, 241, 243, 247, 249, 250, 251, 252
aG = 253
sTB, sTG, sHP = 96, 97, 98


def setup(a):
    o = a.o
    vG, vN, vOOB = 70, 71, 72
    a(f"s_sub_u32 s{sTB}, s{sIDX}, 24\ns_and_b32 s{sTG}, s{sWAVE}, 3\ns_lshr_b32 s{sHP}, s{sWAVE}, 2")
    a(f"v_lshrrev_b32 v{vG}, 4, v0\nv_and_b32 v{vN}, 15, v0\nv_mov_b32 v{vOOB}, {OOB}")
    for i in range(2):
        a(f"s_lshl_b32 s3, s{sWAVE}, 7\ns_add_u32 s3, s3, {64*i}\nv_add_u32 v73, s3, v0")
        a.divmod_const(74, 75, 73, 27, 76)
        a.divmod_const(77, 78, 75, 9, 76)
        a(f"v_mul_u32_u24 v74, 3456, v74\nv_mul_u32_u24 v77, 1152, v77\nv_lshlrev_b32 v78, 4, v78\nv_cmp_gt_u32 vcc, 864, v73\nv_add3_u32 v74, v74, v77, v78")
        a(f"v_subrev_u32 v74, {1024*i}, v74\nv_cndmask_b32 v{vW+i}, v{vOOB}, v74, vcc")
    a(f"s_mul_i32 s28, s{sXCD}, 144\ns_lshl_b32 s99, s{sWAVE}, 11\ns_add_u32 s62, s99, {A_W}")
    a(f"s_cmp_eq_u32 s{sWAVE}, 7\ns_cselect_b32 s61, 0, -1\ns_cselect_b32 s62, {JUNK7}, s62")
    a(f"v_lshrrev_b32 v73, 5, v0\nv_and_b32 v74, 31, v0\nv_xor_b32 v74, v74, v73\nv_mul_u32_u24 v75, 9216, v73\nv_lshl_add_u32 v{vH}, v74, 4, v75")
    a(f"v_add_u32 v{vH+1}, {2*9216-1024}, v{vH}")
    a(f"s_lshl_b32 s29, s{sTB}, 5\ns_lshl_b32 s3, s{sWAVE}, 2\ns_add_u32 s29, s29, s3\ns_mul_i32 s29, s29, 9216\ns_add_u32 s29, s29, {HT}")
    a(f"v_lshrrev_b32 v74, 2, v0\nv_lshlrev_b32 v74, 1, v74\nv_and_b32 v75, 3, v0")
    a(f"s_mul_i32 s38, s{sHP}, 72\ns_add_u32 s3, s38, {A_W}\nv_mul_u32_u24 v76, 432, v74\nv_add_u32 v76, s3, v76")
    a(f"v_lshl_add_u32 v{cA}, v75, 3, v76\nv_min_u32 v77, 2, v75\nv_mul_u32_u24 v77, 144, v77\nv_add3_u32 v{cA4}, v76, v77, 64")
    a(f"v_lshrrev_b32 v77, 1, v75\nv_xor_b32 v78, v74, v77\nv_lshlrev_b32 v78, 4, v78\nv_lshl_add_u32 v78, v77, 9, v78")
    a(f"v_and_b32 v77, 1, v75\nv_lshl_add_u32 v78, v77, 3, v78\ns_lshl_b32 s3, s{sTG}, 12\nv_add_u32 v{cB0}, s3, v78\nv_xor_b32 v{cB1}, 16, v{cB0}")
    a(f"v_lshlrev_b32 v{aS2}, 2, v{vN}\nv_mov_b32 v74, 0\nv_add_u32 v75, {ZERO}, v{aS2}\nds_write_b32 v75, v74\nds_write_b32 v75, v74 offset:64")


def late_setup(g):
    o = g.o
    out = []
    def a(t):
        t = re.sub(r"v7(\d)\b", lambda m: f"v{5+int(m.group(1))}", t)
        t = re.sub(r"s3\b", "s41", t)
        ls = t.split("\n")
        k = 0
        while k < len(ls):
            if ls[k].startswith("s_bitcmp"):
                out.append("\n".join(ls[k:k+3])); k += 3
            elif ls[k].startswith("s_nop"):
                k += 1
            else:
                out.append(ls[k]); k += 1
    vG, vN, vOOB = 70, 71, 72
    a(f"v_lshrrev_b32 v{vG}, 4, v0\nv_and_b32 v{vN}, 15, v0\nv_mov_b32 v{vOOB}, {OOB}\nv_lshrrev_b32 v73, 5, v0\nv_and_b32 v75, 3, v0")
    a(f"s_lshl_b32 s3, s{sHP}, 11\ns_add_u32 s3, s3, {WPH}\nv_lshl_add_u32 v76, v75, 1, s3\nv_bfe_u32 v77, v0, 2, 2\nv_mul_u32_u24 v77, 18, v77")
    a(f"s_and_b32 s38, s{sTG}, 1\ns_lshl_b32 s38, s38, 1\ns_lshr_b32 s39, s{sTG}, 1\ns_lshl_b32 s3, s39, 4\ns_add_u32 s3, s3, s38\nv_lshl_add_u32 v78, v{vG}, 2, s3")
    a(f"v_sub_u32 v77, v78, v77\nv_cmp_gt_u32 vcc, 18, v77\nv_mul_u32_u24 v78, 36, v78\nv_add_u32 v78, v78, v76\nv_mov_b32 v79, {ZERO}\nv_cndmask_b32 v{aG}, v79, v78, vcc")
    a(f"s_lshl_b32 s39, s39, 1\ns_add_u32 s39, s39, 5\nv_lshrrev_b32 v74, 2, v0\nv_cmp_eq_u32 vcc, s39, v74\ns_mul_i32 s38, s38, 36\ns_add_u32 s38, s38, {32*36}\nv_add_u32 v78, s38, v76\nv_cndmask_b32 v{aG+1}, v79, v78, vcc")
    a(f"s_mul_i32 s3, s{sHP}, 10240\ns_add_u32 s3, s3, {PARK}\nv_lshl_add_u32 v{aPK}, v0, 4, s3\ns_lshl_b32 s3, s{sTG}, 2\nv_add_u32 v15, s3, v{aPK}")
    n_first = len(out)
    a(f"v_lshlrev_b32 v74, 1, v74\ns_mul_i32 s38, s{sHP}, 72")
    a(f"v_lshlrev_b32 v{vT}, 12, v{vG}\nv_lshl_add_u32 v{vT}, v{vN}, 7, v{vT}")
    a(f"s_lshl_b32 s63, s{sTB}, 3\ns_add_u32 s63, s63, s{sWAVE}\ns_lshl_b32 s63, s63, 2\ns_lshr_b32 s3, s{sXCD}, 1\ns_mul_i32 s3, s3, 1152\ns_add_u32 s63, s63, s3\ns_add_u32 s63, s63, {o['aw2r']}")
    a(f"s_lshl_b32 s63, s63, 12\ns_and_b32 s3, s{sXCD}, 1\ns_lshl_b32 s3, s3, 11\ns_add_u32 s63, s63, s3")
    a(f"v_lshlrev_b32 v{aF}, 9, v0")
    a(f"s_mul_i32 s3, s{sTG}, {64*IMG_P}\nv_mul_u32_u24 v76, {IMG_P}, v{vN}\nv_add_u32 v76, s3, v76")
    a(f"s_add_u32 s3, s38, 320\nv_lshl_add_u32 v{aV}, v{vG}, 3, s3\nv_add_u32 v{aV}, v{aV}, v76")
    a(f"s_add_u32 s3, s3, 64\nv_cmp_eq_u32 vcc, 3, v{vG}\nv_mov_b32 v77, s3\nv_mov_b32 v78, 464\nv_cndmask_b32 v77, v77, v78, vcc\nv_add_u32 v{aT4}, v77, v76")
    a(f"v_and_b32 v79, 1, v{vG}\nv_mul_u32_u24 v77, 80, v79\nv_mul_u32_u24 v78, {16*IMG_P}, v73\ns_mul_i32 s3, s{sHP}, 160\nv_add3_u32 v{aK}, v76, v77, v78\nv_add_u32 v{aK}, s3, v{aK}")
    a(f"v_and_b32 v76, 14, v74\nv_add_u32 v76, v76, v73\nv_mul_u32_u24 v76, {2*IMG_P}, v76")
    a(f"s_lshr_b32 s39, s{sWAVE}, 1\ns_mul_i32 s3, s39, 80\nv_lshl_add_u32 v{aKA}, v75, 3, s3\nv_add_u32 v{aKA}, v{aKA}, v76")
    a(f"s_add_u32 s38, s38, 320\ns_and_b32 s3, s39, 1\ns_mul_i32 s3, s3, 40\ns_add_u32 s3, s3, s38\nv_lshl_add_u32 v77, v75, 3, s3\ns_add_u32 s38, s38, 32")
    a(f"v_cmp_eq_u32 vcc, 0, v75\nv_mov_b32 v78, 464\nv_mov_b32 v{aKB}, s38\nv_cndmask_b32 v78, v78, v{aKB}, vcc")
    a(f"s_bitcmp0_b32 s{sWAVE}, 0\ns_cselect_b64 vcc, -1, 0\ns_cselect_b32 s38, 16, 8\nv_cndmask_b32 v77, v78, v77, vcc\nv_add_u32 v{aKB}, v77, v76")
    a(f"v_cmp_gt_u32 vcc, s38, v{vN}\nv_mul_u32_u24 v76, s38, v{vG}\nv_add_lshl_u32 v76, v76, v{vN}, 4\ns_lshl_b32 s40, s38, 6")
    a(f"v_cndmask_b32 v{aP}, v{vOOB}, v76, vcc\nv_cmp_gt_u32 vcc, 2, v{vG}\ns_lshl_b32 s30, s{sXCD}, 3\ns_add_u32 s30, s30, s{sTB}\nv_cndmask_b32 v{aP+1}, v{vOOB}, v{aP}, vcc")
    a(f"s_mul_i32 s30, s30, {KVB}\ns_mul_i32 s3, s39, 3840\ns_add_u32 s30, s30, s3\ns_add_u32 s30, s30, {KVP}")
    a(f"s_lshl_b32 s36, s{sXCD}, 12\ns_add_u32 s36, s36, {FLKV}\ns_lshl_b32 s3, s39, 7\ns_add_u32 s36, s36, s3")
    a(f"s_lshl_b32 s31, s{sTB}, 1\ns_and_b32 s3, s{sWAVE}, 1\ns_add_u32 s31, s31, s3\ns_lshl_b32 s31, s31, 2\ns_add_u32 s31, s31, s36\ns_lshl_b32 s3, s{sTB}, 9\ns_add_u32 s36, s36, s3")
    a(f"s_and_b32 s3, s{sWAVE}, 1\ns_mul_i32 s3, s3, 120\nv_add_u32 v76, s3, v0\ns_mul_i32 s38, s39, 1920\ns_add_u32 s38, s38, {TAB}")
    for i in range(2):
        if i: a("v_add_u32 v76, 64, v76")
        a(f"v_cmp_gt_u32 vcc, 160, v76\nv_lshrrev_b32 v77, 4, v76\nv_and_b32 v78, 15, v76\nv_lshrrev_b32 v74, 3, v76\nv_subrev_u32 v74, 20, v74\nv_and_or_b32 v75, v76, 7, 16")
        a(f"v_cndmask_b32 v77, v74, v77, vcc\nv_cndmask_b32 v78, v75, v78, vcc")
        a(f"v_mul_u32_u24 v78, 80, v78\nv_lshlrev_b32 v77, 3, v77\nv_add3_u32 v{aL+i}, v78, v77, s38\nv_lshlrev_b32 v{aR+i}, 4, v76")
    a(f"v_cmp_gt_u32 vcc, 56, v0\nv_mov_b32 v77, {JUNK}\ns_nop 0\nv_cndmask_b32 v{aR+1}, v{vOOB}, v{aR+1}, vcc\nv_cndmask_b32 v{aL+1}, v77, v{aL+1}, vcc")
    a(f"v_lshrrev_b32 v76, 3, v{vN}\nv_and_b32 v77, 7, v0\nv_cmp_eq_u32 vcc, v76, v79")
    a(f"s_mul_i32 s3, s{sHP}, 3840\ns_add_u32 s3, s3, {TAB}\nv_mul_u32_u24 v74, 1920, v76\nv_mul_u32_u24 v75, 40, v73\nv_add3_u32 v74, v74, v75, s3")
    a(f"v_lshlrev_b32 v75, 1, v76\nv_sub_u32 v75, v77, v75\nv_mov_b32 v{aO}, {ZERO}")
    for t in range(4):
        if t < 3:
            a(f"v_add_u32 v78, {8*t+20}, v75\nv_add_u32 v{aB+t}, {8*t}, v75\nv_min_u32 v78, v78, v{aB+t}\nv_min_u32 v78, 20, v78\nv_mul_u32_u24 v78, 80, v78\nv_add_u32 v78, v78, v74")
        else:
            a("v_add_u32 v78, 1600, v74")
        a(f"v_cndmask_b32 v{aB+t}, v{aO}, v78, vcc")
    a(f"v_mul_u32_u24 v76, 18, v76\nv_add_lshl_u32 v76, v76, v77, 4\nv_lshl_add_u32 v78, v79, 1, v73\nv_cmp_gt_u32 vcc, 2, v77")
    a(f"s_mul_i32 s3, s{sTG}, {8*1152}\ns_mul_i32 s38, s{sHP}, 576\ns_add_u32 s3, s3, s38\nv_mul_u32_u24 v78, 1152, v78\nv_add3_u32 v{aO}, v78, v76, s3")
    a(f"v_mov_b32 v78, {40960}\nv_cndmask_b32 v{aO+1}, v78, v{aO}, vcc")
    a(f"s_mul_i32 s37, s{sTB}, {32*9216}\ns_mul_i32 s3, s{sXCD}, 1152\ns_add_u32 s37, s37, s3\ns_add_u32 s37, s37, {OT}")
    return out, n_first


def early(a):
    a(f"s_and_b32 s3, s{sWAVE}, 3\ns_cmp_lg_u32 s3, 1\ns_cbranch_scc1 L_att_g0\ns_lshr_b32 s49, s{sWAVE}, 2")
    a(f"s_lshl_b32 s3, s49, 11\ns_add_u32 m0, s3, {WPH}\ns_lshl_b32 s48, s{sXCD}, 1\ns_add_u32 s48, s48, s49\ns_mul_i32 s48, s48, 1296")
    a(f"buffer_load_dwordx4 v63, {srd(rWPHI)}, s48 offen lds\nbuffer_load_dwordx4 v63, {srd(rWPHI)}, s48 offen offset:1024 lds")
    a("L_att_g0:")


def mix(a, base, ins, every, start=0):
    ins = list(ins)
    for i, x in enumerate(base):
        a(x)
        if ins and i >= start and (i - start) % every == 0:
            a(ins.pop(0))
    for x in ins: a(x)


def emit(a):
    o = a.o
    ACC = 24
    P, Q = 136, 180
    bA, bA4, bB0, bB1 = 1, 2, 3, 4
    vS = 16
    issued = []
    def w_dma(st):
        r = [f"s_and_b32 s3, s61, {(st % A_NS)*A_SLOT}", "s_add_u32 m0, s62, s3", "s_nop 0"]
        for i in range(2):
            r.append(f"buffer_load_dwordx4 v{vW+i}, {srd(rWQKV)}, s28 offen offset:{1024*i} lds")
            issued.append(st)
        r.append(f"s_add_u32 s28, s28, {32*3456}")
        return r
    def h_dma(st):
        r = [f"s_add_u32 m0, s99, {(st % A_NS)*A_SLOT}", "s_nop 0"]
        for i in range(2):
            r.append(f"buffer_load_dwordx4 v{vH+i}, {srd(rWS)}, s29 offen offset:{1024*i} sc1 lds")
            issued.append(st)
        r.append("s_add_u32 s29, s29, 0x200")
        return r
    def emit_l(r):
        for x in r: a(x)
    def vm(st):
        last = max(i for i, x in enumerate(issued) if x == st)
        return len(issued) - 1 - last
    tch = [o["aw2r"]]
    def w2_touch(n):
        for _ in range(n):
            if tch[0] >= 1152: return
            if tch[0] + 256 > 1152:
                a(f"s_sub_u32 s63, s63, {(tch[0] + 256 - 1152) * 4096}")
            a(f"buffer_load_dword v255, v{vT}, {srd(rW2)}, s63 offen\ns_add_u32 s63, s63, {256*4096}")
            tch[0] += 256
    a(f"s_add_u32 s3, s{sXCD}, 24")
    a.A_addr(f"s{sTB}", "s3")
    a(f"s_cmp_eq_u32 s{sWAVE}, 7\ns_cbranch_scc0 L_att_s7")
    a.spoll_issue(50, a.A_PARTS)
    a("L_att_s7:")
    if o["awq"]:
        a(f"s_lshl_b32 s52, s{sTB}, 3\ns_add_u32 s52, s52, s{sWAVE}")
        a.touch_pattern(80, o["awq"], 3456, True)
    a.bar_pub()
    if o["awq"]:
        a.touch_wqkv(80, "s52", o["awq"], 56 * o["w1a"], 255)
        issued.append(-1)
    NPRE = o.get("apre", 2)
    for st in range(NPRE): emit_l(w_dma(st))
    for x, y in ((bA, cA), (bA4, cA4), (bB0, cB0), (bB1, cB1)): a(f"v_mov_b32 v{x}, v{y}")
    a(f"s_cmp_lg_u32 s{sWAVE}, 7\ns_cbranch_scc1 L_att_np")
    a.spoll_check(50, a.A_PARTS, a.A_REGS)
    a("L_att_np:")
    a("s_barrier")
    a.stamp(3)
    emit_l(h_dma(0))
    emit_l(h_dma(1))
    a(f"s_lshl_b32 s3, s{sTB}, 2\ns_add_u32 s3, s3, s{sTG}\ns_lshl_b32 s3, s3, 8\ns_add_u32 s3, s3, {S2}")
    for t in range(4):
        a(f"buffer_load_dword v{vS+2*t}, v{aS2}, {srd(rWS)}, s3 offen offset:{64*t} sc1")
        issued.append(-1)

    TOFF = [0, 32, 144, 176, None, 288, 320]
    def reads(st):
        r = []
        def rb(tt):
            return [f"ds_read_b64_tr_b16 v[{st+28+4*tt+2*rho}:{st+29+4*tt+2*rho}], v{bB1 if rho else bB0} offset:{1024*tt}" for rho in range(2)]
        r += rb(0)
        for T in range(7):
            for rho in range(2):
                if T == 4:
                    r.append(f"ds_read_b64_tr_b16 v[{st+4*T+2*rho}:{st+4*T+2*rho+1}], v{bA4} offset:{432*rho}")
                else:
                    r.append(f"ds_read_b64_tr_b16 v[{st+4*T+2*rho}:{st+4*T+2*rho+1}], v{bA} offset:{432*rho+TOFF[T]}")
        for tt in range(1, 4): r += rb(tt)
        return r
    def mfmas(st, first=False):
        m = []
        for tt in range(4):
            for T in range(7):
                d = ACC + 28 * tt + 4 * T
                m.append(f"v_mfma_f32_16x16x32_bf16 v[{d}:{d+3}], v[{st+4*T}:{st+4*T+3}], v[{st+28+4*tt}:{st+31+4*tt}], {'0' if first else f'v[{d}:{d+3}]'}")
        return m
    def advance(st):
        off = (st % A_NS) * A_SLOT
        return [f"v_add_u32 v{x}, {off}, v{y}" for x, y in ((bA, cA), (bA4, cA4), (bB0, cB0), (bB1, cB1))]
    a(f"s_waitcnt vmcnt({vm(0)})\ns_barrier")
    a.stamp(4)
    for r in reads(P): a(r)
    for r in advance(1): a(r)
    NS_ = 18
    nh, nw = [2], [NPRE]
    LA = o.get("ala", 2)
    def more(upto, cap):
        r = []
        k = 0
        while k < cap and min(nh[0], nw[0]) <= min(upto, NS_ - 1):
            if nw[0] <= nh[0]:
                r += w_dma(nw[0]); nw[0] += 1
            else:
                r += h_dma(nh[0]); nh[0] += 1
            k += 1
        return r
    emit_l(more(2, 2))
    if o.get("aprio"):
        a(f"s_cmp_lg_u32 s{sHP}, {o['aprio'] - 1}\ns_cbranch_scc1 L_att_pr\ns_setprio 1\nL_att_pr:")
    tails = []
    fill, nf = late_setup(a)
    assert nf <= 56 and len(fill) <= 28 * 16
    PQ, PKk, PT, PV = 136, 152, 168, 4
    def conv(tt):
        r = ACC + 28 * tt
        pv = PV + 6 * (tt & 1)
        l = [f"v_cvt_pk_bf16_f32 v{PKk+4*tt+i}, v{r+8+2*i}, v{r+9+2*i}" for i in range(4)]
        l += [f"v_cvt_pk_bf16_f32 v{PT+2*tt+i}, v{r+16+2*i}, v{r+17+2*i}" for i in range(2)]
        l += [f"v_cvt_pk_bf16_f32 v{PQ+4*tt+i}, v{r+2*i}, v{r+1+2*i}" for i in range(4)]
        l += [f"v_pk_mul_f32 v[{r+16+2*i}:{r+17+2*i}], v[{r+16+2*i}:{r+17+2*i}], v[{vS+2*tt}:{vS+2*tt+1}] op_sel_hi:[1,0]" for i in range(6)]
        l += [f"v_cvt_pk_bf16_f32 v{pv+i}, v{r+16+2*i}, v{r+17+2*i}" for i in range(6)]
        l += [f"v_cndmask_b32 v{pv}, v{pv}, v3, vcc", f"v_cndmask_b32 v{pv+1}, v{pv+1}, v3, vcc"]
        l += [f"ds_write_b64 v{aV}, v[{pv+2}:{pv+3}] offset:{16*IMG_P*tt}", f"ds_write_b64 v{aV}, v[{pv+4}:{pv+5}] offset:{16*IMG_P*tt+32}"]
        l += [f"s_mov_b32 exec_lo, 0\nds_write_b64 v{aT4}, v[{pv}:{pv+1}] offset:{16*IMG_P*tt}\ns_mov_b32 exec_lo, -1"]
        return l
    for n in range(NS_):
        st, nx = (P, Q)[n & 1], (P, Q)[(n + 1) & 1]
        if n + 1 < NS_:
            rel = o.get("arel", 1)
            assert not rel or LA <= 2
            tailn = 2 if 3 <= n <= 12 else 0
            a(f"s_waitcnt vmcnt({vm(n+1)}) lgkmcnt({min(15, 6 + tailn) if rel else 0})\ns_barrier")
            ds = reads(nx)
            if n + 2 < NS_: ds += advance(n + 2)
            dm = more(n + 1 + LA, 3)
            if "a" in o["dbg"]: dm = []
            if "b" in o["dbg"]: ds = []
            if "f" in o["dbg"] and n == 0:
                for x in fill: a(x)
                fill.clear()
            if o.get("adm") == 1:
                ds = ds[:22] + ["\n".join(dm)] + ds[22:]; dm = []
            if o.get("adm") == 2:
                emit_l(dm); dm = []
            if dm:
                la_, lb_, lc_, ld_ = (a.label("ad") for _ in range(4))
                a(f"s_cmp_eq_u32 s{sHP}, 1\ns_cbranch_scc1 {la_}\n{lb_}:")
                tails.append((la_, dm, lb_))
            if 2 <= n <= 11:
                k_ = n - 2
                ds += [f"ds_read_u16 v17, v{aG + k_ // 5} offset:{8*(k_%5)}", f"ds_read_u16 v19, v{aG + k_ // 5} offset:{8*(k_%5)+36}"]
            if 3 <= n <= 12:
                k_ = n - 3
                ds = ds[:8] + [f"v_lshl_or_b32 v21, v19, 16, v17\nds_write_b32 v15, v21 offset:{1024*k_}"] + ds[8:]
            for i_, m_ in enumerate(mfmas(st, n == 0)):
                if rel and i_ == 7: a("s_waitcnt lgkmcnt(7)")
                a(m_)
                if ds: a(ds.pop(0))
                if fill: a(fill.pop(0))
            for x in ds: a(x)
            if dm:
                a(f"s_cmp_eq_u32 s{sHP}, 0\ns_cbranch_scc1 {lc_}\n{ld_}:")
                tails.append((lc_, dm, ld_))
            if n == NS_ - 4:
                a("s_branch L_att_g")
                for l0, dm, l1 in tails:
                    a(f"{l0}:"); emit_l(dm); a(f"s_branch {l1}")
                tails = []
                a("L_att_g:")
        else:
            a("s_waitcnt vmcnt(0) lgkmcnt(0)\ns_barrier")
            w2_touch(o["aw2"][0])
            a("s_mov_b32 vcc_lo, 0\ns_mov_b32 vcc_hi, 0xffff0000\nv_mov_b32 v3, 0x3f803f80")
            m = mfmas(st)
            for x in m[:15]: a(x)
            c0 = conv(0)
            mix(a, m[15:], ["\n".join(c0[2*i:2*i+2]) for i in range(12)], 1)
            for x in c0[24:]: a(x)
    assert not tails
    a.stamp(5)
    if o["stamps"]: a("s_waitcnt lgkmcnt(0)")
    A0, A1, A3 = 180, 200, 24
    a(f"v_xor_b32 v1, 128, v{aPK}\nv_xor_b32 v2, 256, v{aPK}")
    rd = [f"ds_read_b128 v[{A0+4*u}:{A0+4*u+3}], v{aPK} offset:{1024*u}" for u in range(5)]
    rd += [f"ds_read_b128 v[{A1+4*u}:{A1+4*u+3}], v1 offset:{1024*u}" for u in range(5)]
    rd += [f"ds_read_b128 v[{A3+4*u}:{A3+4*u+3}], v{aPK} offset:{5120+1024*u}" for u in range(5)]
    for x in rd: a(x)
    for x in conv(1): a(x)
    PA = [44, 64]
    E1, E2 = 84, 102
    def fmf(src, p, d0):
        l = []
        for part, (A_, b_) in enumerate(((A0, src + 8 * p), (A1, src + 8 * p + 4), (A3, PT + 4 * p))):
            for u in range(5):
                d = d0 + 4 * u
                l.append(f"v_mfma_f32_16x16x32_bf16 v[{d}:{d+3}], v[{A_+4*u}:{A_+4*u+3}], v[{b_}:{b_+3}], {'0' if part == 0 else f'v[{d}:{d+3}]'}")
        return l
    a("s_waitcnt lgkmcnt(3)")
    c23 = conv(2) + conv(3)
    mix(a, c23, fmf(PKk, 0, PA[0]), 3)
    vL = [120, 122]
    a(f"s_mov_b32 vcc_lo, -1\ns_mov_b32 vcc_hi, 0\ns_mov_b32 s3, {fhex(LOG2E)}\nv_cndmask_b32 v{vL[0]}, v{vS+2}, v{vS}, vcc\nv_cndmask_b32 v{vL[1]}, v{vS+6}, v{vS+4}, vcc")
    a(f"v_mul_f32 v{vL[0]}, s3, v{vL[0]}\nv_mul_f32 v{vL[1]}, s3, v{vL[1]}")
    def soft(p, X, Y, nxt=()):
        d = PA[p]
        L = vL[p]
        a(f"v_max_f32 v4, v{d}, v{d+1}\nv_min_f32 v6, v{d}, v{d+1}")
        for i in range(1, 9):
            a(f"v_max3_f32 v4, v4, v{d+2*i}, v{d+2*i+1}\nv_min3_f32 v6, v6, v{d+2*i}, v{d+2*i+1}")
        a(f"v_mul_f32 v4, v{L}, v4\nv_mul_f32 v6, v{L}, v6")
        for i in range(9):
            a(f"v_pk_fma_f32 v[{E1+2*i}:{E1+2*i+1}], v[{d+2*i}:{d+2*i+1}], v[{L}:{L+1}], v[4:5] op_sel_hi:[1,0,0] neg_lo:[0,0,1] neg_hi:[0,0,1]")
        for i in range(9):
            a(f"v_pk_fma_f32 v[{E2+2*i}:{E2+2*i+1}], v[{d+2*i}:{d+2*i+1}], v[{L}:{L+1}], v[6:7] op_sel_hi:[1,0,0] neg_lo:[1,0,0] neg_hi:[1,0,0]")
        mix(a, [f"v_exp_f32 v{E1+i}, v{E1+i}" for i in range(36)], nxt, 2)
        a(f"v_pk_add_f32 v[4:5], v[{E1}:{E1+1}], v[{E1+2}:{E1+3}]\nv_pk_add_f32 v[6:7], v[{E2}:{E2+1}], v[{E2+2}:{E2+3}]")
        for i in range(2, 9):
            a(f"v_pk_add_f32 v[4:5], v[4:5], v[{E1+2*i}:{E1+2*i+1}]\nv_pk_add_f32 v[6:7], v[6:7], v[{E2+2*i}:{E2+2*i+1}]")
        a("v_add_f32 v4, v4, v5\nv_add_f32 v6, v6, v7\nv_rcp_f32 v4, v4\nv_rcp_f32 v6, v6")
        for E, c in ((E1, 4), (E2, 6)):
            for i in range(9):
                a(f"v_pk_mul_f32 v[{E+2*i}:{E+2*i+1}], v[{E+2*i}:{E+2*i+1}], v[{c}:{c+1}] op_sel_hi:[1,0]")
        for i in range(9): a(f"v_cvt_pk_bf16_f32 v{X+i}, v{E1+2*i}, v{E1+2*i+1}")
        for i in range(9): a(f"v_cvt_pk_bf16_f32 v{Y+i}, v{E2+2*i}, v{E2+2*i+1}")
    XO, YO = 124, 14
    def kwr(p):
        for h, R in enumerate((XO, YO)):
            for i in range(4):
                a(f"ds_write_b64 v{aK}, v[{R+2*i}:{R+2*i+1}] offset:{32*IMG_P*p+40*h+8*i}")
            a(f"ds_write_b32 v{aK}, v{R+8} offset:{32*IMG_P*p+40*h+32}")
    a.align8()
    soft(0, XO, YO, fmf(PKk, 1, PA[1]))
    for u in range(5): a(f"ds_read_b128 v[{A3+4*u}:{A3+4*u+3}], v2 offset:{5120+1024*u}")
    kwr(0)
    w2_touch(o["aw2"][1])
    a.align8()
    soft(1, XO, YO, ["s_waitcnt lgkmcnt(0)"] + fmf(PQ, 0, PA[0]))
    kwr(1)
    a.stamp(6)
    a(f"v_add_u32 v1, {128*IMG_P}, v{aKA}\nv_add_u32 v2, {128*IMG_P}, v{aKB}")
    KA = 152
    FR = [64, 84, 100]
    a("s_waitcnt lgkmcnt(0)\ns_barrier")
    def kvr(ks):
        st = FR[ks % 3]
        ra, rb_ = (aKA, aKB) if ks < 4 else (1, 2)
        off = (ks & 3) * 32 * IMG_P
        r = [f"ds_read_b64_tr_b16 v[{st+12+2*rho}:{st+13+2*rho}], v{rb_} offset:{off+rho*IMG_P}" for rho in range(2)]
        for mt in range(3):
            r += [f"ds_read_b64_tr_b16 v[{st+4*mt+2*rho}:{st+4*mt+2*rho+1}], v{ra} offset:{off+rho*IMG_P+32*mt}" for rho in range(2)]
        return r
    for x in kvr(0) + kvr(1): a(x)
    for ks in range(8):
        a(f"s_waitcnt lgkmcnt({8 if ks + 1 < 8 else 0})")
        st = FR[ks % 3]
        m = [f"v_mfma_f32_16x16x32_bf16 v[{KA+4*mt}:{KA+4*mt+3}], v[{st+4*mt}:{st+4*mt+3}], v[{st+12}:{st+15}], {'0' if ks == 0 else f'v[{KA+4*mt}:{KA+4*mt+3}]'}" for mt in range(3)]
        r = kvr(ks + 2) if ks + 2 < 8 else []
        for mt in range(3):
            a(m[mt])
            for x in r[3*mt:3*mt+3]: a(x)
    a(f"s_and_b32 s3, s{sWAVE}, 1\ns_mul_i32 s3, s3, 2560\ns_add_u32 s3, s3, s30\ns_nop 4")
    for mt in range(3):
        a(f"buffer_store_dwordx4 v[{KA+4*mt}:{KA+4*mt+3}], v{aP+(mt>>1)}, {srd(rWS)}, s3 offen sc1\ns_add_u32 s3, s3, s40")
    a.stamp(7)
    QR = [124, 14, 152, 164]
    def signal():
        a("s_waitcnt vmcnt(0)")
        a.set_flags("s31", aF, 8, 8)
    def swaps(X, Y):
        a(f"v_mov_b32 v{X+9}, 0\nv_mov_b32 v{Y+9}, 0")
        for i in range(9): a(f"v_permlane32_swap_b32 v{X+i}, v{Y+i}")
    a(f"s_cmp_eq_u32 s{sHP}, 0\ns_cbranch_scc1 L_att_q0")
    signal()
    a("L_att_q0:")
    a.align8()
    soft(0, QR[0], QR[1], fmf(PQ, 1, PA[1])); swaps(QR[0], QR[1])
    a(f"s_cmp_eq_u32 s{sHP}, 1\ns_cbranch_scc1 L_att_q1")
    signal()
    a("L_att_q1:")
    RD = [180, 24]
    def gather():
        a.save_stamps()
        a.spoll("s36", [(64, 16, 0)], list(range(64, 80)))
        a.restore_stamps()
        a(f"s_mul_i32 s3, s{sTB}, {KVB}\ns_sub_u32 s3, s30, s3")
        for t in range(8):
            for i in range(2):
                a(f"buffer_load_dwordx4 v[{RD[i]+4*t}:{RD[i]+4*t+3}], v{aR+i}, {srd(rWS)}, s3 offen sc1")
            a(f"s_add_u32 s3, s3, {KVB}")
    a(f"s_cmp_eq_u32 s{sHP}, 0\ns_cbranch_scc1 L_att_q2")
    gather()
    a("L_att_q2:")
    a.align8()
    soft(1, QR[2], QR[3]); swaps(QR[2], QR[3])
    a.stamp(8)
    a(f"s_cmp_eq_u32 s{sHP}, 1\ns_cbranch_scc1 L_att_q3")
    gather()
    a("L_att_q3:")
    a(f"s_mov_b32 s48, {fhex(1e-6)}\ns_mul_i32 s3, s{sWAVE}, {4*9216}\ns_add_u32 s37, s37, s3\ns_mul_i32 s3, s{sWAVE}, {4*1152}\nv_lshl_add_u32 v1, v0, 4, s3")
    for t in range(1, 8):
        a(f"s_waitcnt vmcnt({14-2*t})")
        for i in range(2):
            for h in range(2):
                a(f"v_pk_add_f32 v[{RD[i]+2*h}:{RD[i]+2*h+1}], v[{RD[i]+2*h}:{RD[i]+2*h+1}], v[{RD[i]+4*t+2*h}:{RD[i]+4*t+2*h+1}]")
    for i in range(2):
        a(f"v_cvt_pk_bf16_f32 v{RD[i]}, v{RD[i]}, v{RD[i]+1}\nv_cvt_pk_bf16_f32 v{RD[i]+1}, v{RD[i]+2}, v{RD[i]+3}")
        a(f"ds_write_b64 v{aL+i}, v[{RD[i]}:{RD[i]+1}]")
    a("s_waitcnt lgkmcnt(0)\ns_barrier")
    a.stamp(9)
    BF = [88, 100, 112, 136]
    for t in (3, 0, 1, 2):
        b = BF[t]
        a(f"ds_read2_b64 v[{b}:{b+3}], v{aB+t} offset0:0 offset1:1\nds_read2_b64 v[{b+4}:{b+7}], v{aB+t} offset0:2 offset1:3\nds_read_b32 v{b+8}, v{aB+t} offset:32\nv_mov_b32 v{b+9}, 0")
    for i in range(5):
        lo = (64 * i) // 72
        a(f"v_cmp_le_u32 vcc, {72*(lo+1)-64*i}, v0\nv_lshlrev_b32 v2, 4, v0\nv_add_u32 v2, {1024*i+lo*8064}, v2\nv_add_u32 v3, {8064 if i < 4 else OOB}, v2\nv_cndmask_b32 v{204+i}, v2, v3, vcc")
    a("s_waitcnt lgkmcnt(0)")
    DD = [24, 40, 56, 72]
    OO = [180, 192]
    def omf(tts):
        l = []
        for c in range(3):
            for tt in tts:
                q = QR[tt]
                for t in (3, 0, 1, 2):
                    d, b = DD[tt] + 4 * t, BF[t]
                    if c < 2:
                        l.append(f"v_mfma_f32_16x16x32_bf16 v[{d}:{d+3}], v[{q+4*c}:{q+4*c+3}], v[{b+4*c}:{b+4*c+3}], {'0' if c == 0 else f'v[{d}:{d+3}]'}")
                    else:
                        l.append(f"v_mfma_f32_16x16x16_bf16 v[{d}:{d+3}], v[{q+8}:{q+9}], v[{b+8}:{b+9}], v[{d}:{d+3}]")
        return l
    def ofin(p):
        l = []
        for tt in (2 * p, 2 * p + 1):
            d = DD[tt]
            l += [f"v_add_f32 v{d+12+r}, s48, v{d+12+r}" for r in range(4)]
            l += [f"v_rcp_f32 v{d+12+r}, v{d+12+r}" for r in range(4)]
        for tt in (2 * p, 2 * p + 1):
            d = DD[tt]
            l += [f"v_pk_mul_f32 v[{d+4*t+2*h}:{d+4*t+2*h+1}], v[{d+4*t+2*h}:{d+4*t+2*h+1}], v[{d+12+2*h}:{d+13+2*h}]" for t in range(3) for h in range(2)]
            l += [f"v_cvt_pk_bf16_f32 v{OO[p]+4*t+2*(tt&1)+h}, v{d+4*t+2*h}, v{d+4*t+2*h+1}" for t in range(3) for h in range(2)]
        for t in range(3):
            r = OO[p] + 4 * t
            l += [f"v_permlane16_swap_b32 v{r}, v{r+2}", f"v_permlane16_swap_b32 v{r+1}, v{r+3}"]
        for t in range(3):
            r = OO[p] + 4 * t
            l.append(f"ds_write_b128 v{aO+(t>>1)}, v[{r}:{r+3}] offset:{128*t+4*1152*p}")
        return l
    for x in omf((0, 1)): a(x)
    m = omf((2, 3))
    a(m[0])
    mix(a, ofin(0), m[1:], 2)
    a("s_nop 3")
    for x in ofin(1): a(x)
    a("s_waitcnt lgkmcnt(0)\ns_barrier")
    for i in range(5): a(f"ds_read_b128 v[{24+4*i}:{27+4*i}], v1 offset:{1024*i}")
    for i in range(5):
        a(f"s_waitcnt lgkmcnt({4-i})\nbuffer_store_dwordx4 v[{24+4*i}:{27+4*i}], v{204+i}, {srd(rWS)}, s37 offen sc1")
    a.stamp(11)
    a("s_waitcnt vmcnt(0)\ns_barrier")
    a(f"s_cmp_lg_u32 s{sWAVE}, 0\ns_cbranch_scc1 L_att_no")
    a(f"s_lshl_b32 s3, s{sTB}, 2\ns_lshr_b32 s48, s{sXCD}, 1\ns_add_u32 s3, s3, s48\ns_lshl_b32 s3, s3, 7\ns_and_b32 s48, s{sXCD}, 1\ns_lshl_b32 s48, s48, 2\ns_add_u32 s3, s3, s48\ns_add_u32 s3, s3, {FLO}")
    a.set_flag("s3", 4)
    a("L_att_no:")
    a.stamp(10)
```

```python
import sys
sys.path.insert(0, "work")
from asmlib import *

KNAME = "parallel_sum__linear_kernel_hedgehog__mixer_token_mlp__prompt_kernel"
S, D, F, H, DH = 2048, 576, 4608, 32, 18

EPOCH = 0
FLA, FLB, FLKV, FLO, FLX = 0x80000, 0xA0000, 0xC000, 0x8000, 0xC0000
STAMP = 0x20000
S2 = 0x60000
HT = 0x100000
U = 0x400000
OT = 0xA00000
KVP = 0xD00000
EX = 0xE00000

sWAVE, sXCD, sIDX, sTAG = 4, 5, 6, 7
rX, rWQKV, rWPHI, rWO, rW1, rB1, rW2, rB2, rOUT, rWS = 8, 12, 16, 20, 24, 28, 32, 36, 40, 44
sST = 64
def srd(r): return f"s[{r}:{r+3}]"

G1_SLOT, G1_NS, G1_W = 30720, 5, 18432
LN_SCR, LN_PITCH = 153600, 1216
LN_S2 = LN_SCR + 8 * LN_PITCH
G2_US, G2_WS, G2_PITCH = 12544, 8192, 3136
G2_U = [0, 25088, 122880]
G2_W = [61440, 61440 + 16384, 61440 + 32768]
SH_SCR = 147968
LDS_BYTES = 163840
OOB = 0x7FFF0000

LOG2E = 1.4426950408889634


class Gen(Asm):
    def __init__(self, **opt):
        super().__init__()
        self.o = dict(stamps=False, att=True, pf_code=False, spin=1 << 16, prefill=2, la1=2, probe=0, clk=False, dbg='',
                      sp=1, latin=3, latc=1, un1=4, w2a=0, w2c=1, w2p=4, w2e=0, aw2=(1, 1), aw2r=0, awq=3, rot=7, w1a=2, w1c=2, spn=600, w2r=512, sp2=1, spn2=336)
        self.o.update(opt)
        self.nstamp = {}

    def stamp(self, i):
        if self.o["stamps"]:
            self(f"{'s_memtime' if self.o['clk'] else 's_memrealtime'} s[{sST+2*i}:{sST+2*i+1}]")

    def dump_stamps(self, vtmp):
        if not self.o["stamps"]:
            return
        a = self
        a("s_waitcnt lgkmcnt(0)")
        a(f"s_lshl_b32 s3, s2, 3\ns_add_u32 s3, s3, s{sWAVE}\ns_lshl_b32 s3, s3, 6\ns_add_u32 s3, s3, {STAMP}")
        a(f"v_mov_b32 v{vtmp+4}, 0")
        for q in range(4):
            for i in range(4):
                a(f"v_mov_b32 v{vtmp+i}, s{sST+2*(4*q+i)}")
            a(f"buffer_store_dwordx4 v[{vtmp}:{vtmp+3}], v{vtmp+4}, {srd(rWS)}, s3 offen offset:{16*q}")
            a("s_nop 1")

    def align8(self):
        self(".p2align 3")

    def wave_sum(self, v, sdst):
        a = self
        for m in ("row_shr:1", "row_shr:2", "row_shr:4", "row_shr:8"):
            a(f"s_nop 1\nv_add_f32_dpp v{v}, v{v}, v{v} {m} row_mask:0xf bank_mask:0xf bound_ctrl:1")
        a(f"s_nop 1\nv_add_f32_dpp v{v}, v{v}, v{v} row_bcast:15 row_mask:0xa bank_mask:0xf")
        a(f"s_nop 1\nv_add_f32_dpp v{v}, v{v}, v{v} row_bcast:31 row_mask:0xc bank_mask:0xf")
        a(f"s_nop 0\nv_readlane_b32 s{sdst}, v{v}, 63\ns_nop 1")

    def divmod_const(self, vq, vr, vx, c, vt):
        m = (1 << 20) // c + 1
        for x in range(2048):
            assert (x * m) >> 20 == x // c
        assert 2047 * m < (1 << 32) and m < (1 << 24)
        self(f"v_mul_u32_u24 v{vq}, {m}, v{vx}\nv_lshrrev_b32 v{vq}, 20, v{vq}")
        self(f"v_mul_u32_u24 v{vt}, {c}, v{vq}\nv_sub_u32 v{vr}, v{vx}, v{vt}")

    def save_stamps(self):
        if self.o["stamps"]:
            self("s_waitcnt lgkmcnt(0)")
            for i in range(16): self(f"v_writelane_b32 v9, s{sST+2*i}, {i}")
    def restore_stamps(self):
        if self.o["stamps"]:
            for i in range(16): self(f"v_readlane_b32 s{sST+2*i}, v9, {i}")

    def spoll_issue(self, sbase, parts, glc=" glc"):
        for d, w, off in parts:
            dst = f"s{d}" if w == 1 else f"s[{d}:{d+w-1}]"
            self(f"s_load_dword{'' if w == 1 else 'x'+str(w)} {dst}, s[{sbase}:{sbase+1}], {off}{glc}")

    def spoll_check(self, sbase, parts, regs):
        a = self
        lp, done = a.label("poll"), a.label("polld")
        a(f"s_mov_b32 s48, {self.o['spin']}")
        a(f"{lp}:\ns_waitcnt lgkmcnt(0)")
        pairs = [r for r in regs if r % 2 == 0 and r + 1 in regs]
        single = [r for r in regs if r not in pairs and r - 1 not in pairs]
        r0 = pairs[0]
        a(f"s_xor_b32 s49, s{r0}, s{sTAG}\ns_xor_b32 s3, s{r0+1}, s{sTAG}\ns_or_b32 s49, s49, s3")
        for r in single:
            a(f"s_xor_b32 s3, s{r}, s{sTAG}\ns_or_b32 s49, s49, s3")
        for r in pairs[1:]:
            a(f"s_cmp_lg_u64 s[{r}:{r+1}], s[{r0}:{r0+1}]\ns_cselect_b32 s49, 1, s49")
        a(f"s_cmp_eq_u32 s49, 0\ns_cbranch_scc1 {done}")
        a(f"s_sub_u32 s48, s48, 1\ns_cmp_eq_u32 s48, 0\ns_cbranch_scc1 {done}")
        self.spoll_issue(sbase, parts)
        a(f"s_branch {lp}\n{done}:")

    def spoll(self, soff, parts, regs, first_plain=False):
        self(f"s_add_u32 s50, s{rWS}, {soff}\ns_addc_u32 s51, s{rWS+1}, 0")
        self.spoll_issue(50, parts, "" if first_plain else " glc")
        self.spoll_check(50, parts, regs)

    def set_flag(self, soff, vt):
        a = self
        a(f"v_mov_b32 v{vt}, s{sTAG}\ns_mov_b64 exec, 1")
        a(f"buffer_store_dword v{vt}, off, {srd(rWS)}, {soff} sc1")
        a("s_mov_b64 exec, -1")

    def set_flags(self, soff, vaddr, vt, nl):
        a = self
        a(f"v_mov_b32 v{vt}, s{sTAG}\ns_mov_b32 exec_lo, {hex((1 << nl) - 1)}\ns_mov_b32 exec_hi, 0")
        a(f"buffer_store_dword v{vt}, v{vaddr}, {srd(rWS)}, {soff} offen sc1")
        a("s_mov_b64 exec, -1")

    def interleave(self, mf, ds, per_gap=2, start=0):
        ds = list(ds)
        if "m" in self.o["dbg"]: mf = mf[:1]
        if "d" in self.o["dbg"]: ds = [x for x in ds if not x.startswith("ds_")]
        for i, m in enumerate(mf):
            self(m)
            if i >= start:
                for _ in range(per_gap):
                    if ds:
                        self(ds.pop(0))
        for d in ds:
            self(d)

    def sched(self, mf, prev, ds, extra=(), waits=(0,), bar=None, tail_busy=1):
        a = self
        ds, extra = list(ds), list(extra)
        if "d" in self.o["dbg"]: ds = []
        n = len(mf)
        waits = sorted(set(waits))
        npre = [(1 if i in waits or (bar and bar[0] == i and bar[1]) else 0) + (1 if bar and bar[0] == i else 0) for i in range(n)] + [tail_busy]
        first = bar[0] if bar else 0
        cnt = [0] * n
        free = [g for g in range(first, n) if npre[g + 1] < 2]
        k = len(ds)
        for g in free[:k]: cnt[g] = 1
        k -= min(k, len(free))
        for g in sorted(range(first, n), key=lambda g: (cnt[g] * 2 + npre[g + 1], g)):
            if k: cnt[g] += 1; k -= 1
        assert k == 0
        new = 0
        for i, (t, need) in enumerate(mf):
            if bar and bar[0] == i and bar[1]:
                a("s_waitcnt lgkmcnt(0)")
            elif i in waits:
                nxt = [w for w in waits if w > i]
                end = nxt[0] if nxt else n
                idx = max(prev.index(x) for k_ in range(i, end) for x in mf[k_][1])
                a(f"s_waitcnt lgkmcnt({min(15, len(prev) - 1 - idx + new)})")
            if bar and bar[0] == i: a("s_barrier")
            if not ("m" in self.o["dbg"] and i): a(t)
            for _ in range(cnt[i]):
                a(ds.pop(0)[0]); new += 1
            room = 3 - 2 * cnt[i] - npre[i + 1]
            while extra and room > 0:
                a(extra.pop(0)); room -= 1
        for e in extra: a(e)

    def gelu(self, regs, cA, cB, tmp, out, group=4):
        a = self
        for g0 in range(0, len(regs), group):
            rs = regs[g0:g0 + group]
            T = lambda i: f"v[{tmp+2*i}:{tmp+2*i+1}]"
            R = lambda r: f"v[{r}:{r+1}]"
            for i, r in enumerate(rs): a(f"v_pk_mul_f32 {T(i)}, {R(r)}, {R(r)}")
            for i, r in enumerate(rs): a(f"v_pk_fma_f32 {T(i)}, {T(i)}, {R(cA)}, {R(cB)}")
            for i, r in enumerate(rs): a(f"v_pk_mul_f32 {T(i)}, {T(i)}, {R(r)}")
            for i, r in enumerate(rs): a(f"v_exp_f32 v{tmp+2*i}, v{tmp+2*i}\nv_exp_f32 v{tmp+2*i+1}, v{tmp+2*i+1}")
            for i, r in enumerate(rs): a(f"v_pk_add_f32 {T(i)}, {T(i)}, 1.0 op_sel_hi:[1,0]")
            for i, r in enumerate(rs): a(f"v_rcp_f32 v{tmp+2*i}, v{tmp+2*i}\nv_rcp_f32 v{tmp+2*i+1}, v{tmp+2*i+1}")
            for i, r in enumerate(rs): a(f"v_pk_mul_f32 {T(i)}, {T(i)}, {R(r)}")
            for i, r in enumerate(rs): a(f"v_cvt_pk_bf16_f32 v{out[g0+i]}, v{tmp+2*i}, v{tmp+2*i+1}")
            yield g0

    def gelu_consts(self, cA, cB):
        c = 0.7978845608028654
        for i in range(2):
            self(f"v_mov_b32 v{cA+i}, {fhex(-2*c*0.044715*LOG2E)}\nv_mov_b32 v{cB+i}, {fhex(-2*c*LOG2E)}")

    def entry(self):
        a = self
        a.kernel(KNAME)
        if self.o["stamps"]:
            for i in range(1, 16): a(f"s_mov_b32 s{sST+2*i}, 0")
        a.stamp(0)
        if self.o["probe"]: a("s_memrealtime s[100:101]")
        a("s_cmp_ge_u32 s2, 256\ns_cbranch_scc1 L_end")
        for n, r in (("x", rX), ("ws", rWS), ("w1", rW1), ("wqkv", rWQKV), ("wphi", rWPHI), ("wo", rWO), ("b1", rB1),
                     ("w2", rW2), ("b2", rB2), ("out", rOUT)):
            a.load_ptr(n, r)
        a(f"v_lshrrev_b32 v1, 6, v0\nv_and_b32 v0, 63, v0\nv_readfirstlane_b32 s{sWAVE}, v1")
        a(f"s_and_b32 s{sXCD}, s2, 7\ns_lshr_b32 s{sIDX}, s2, 3")
        for n, r in (("x", rX), ("ws", rWS), ("w1", rW1), ("wqkv", rWQKV), ("wphi", rWPHI), ("wo", rWO), ("b1", rB1),
                     ("w2", rW2), ("b2", rB2), ("out", rOUT)):
            a.srd_finish(n, r)
        a(f"s_lshl_b32 s53, s{sXCD}, 5\ns_add_u32 s53, s53, s{sIDX}\ns_lshl_b32 s3, s53, 3\ns_add_u32 s3, s3, s{sWAVE}\ns_mul_i32 s3, s3, 1152")
        a("v_lshlrev_b32 v1, 3, v0\nv_lshlrev_b32 v7, 1, v0")
        a("s_waitcnt lgkmcnt(0)")
        a(f"buffer_load_dwordx2 v[2:3], v1, {srd(rX)}, s3 offen")
        a(f"buffer_load_dwordx2 v[4:5], v1, {srd(rX)}, s3 offen offset:512")
        a(f"buffer_load_ushort v6, v7, {srd(rX)}, s3 offen offset:1024")
        a(f"s_load_dword s{sTAG}, s[{rWS}:{rWS+1}], {EPOCH}")
        a(f"s_mul_i32 s3, s{sWAVE}, {LN_PITCH}\ns_add_u32 s3, s3, {LN_SCR}")
        a("v_add_u32 v8, s3, v1\nv_add_u32 v9, s3, v7")
        a(f"s_lshl_b32 s3, s{sWAVE}, 2\ns_add_u32 s3, s3, {LN_S2}\nv_mov_b32 v25, s3\nv_mov_b32 v24, {fhex(1e-5)}\nv_mov_b32 v26, {fhex(-1.0/D)}\nv_mov_b32 v27, {fhex(1.0/D)}")
        a("v_bfe_u32 v60, v0, 2, 2\nv_lshrrev_b32 v61, 4, v0\nv_and_b32 v62, 3, v0")
        a(f"v_mul_u32_u24 v60, {LN_PITCH}, v60\nv_lshlrev_b32 v61, 5, v61\nv_lshlrev_b32 v62, 3, v62")
        a(f"v_add3_u32 v60, v60, v61, v62\nv_add_u32 v60, {LN_SCR}, v60")
        a(f"v_and_b32 v61, 7, v0\nv_lshlrev_b32 v61, 2, v61\nv_add_u32 v62, {LN_S2}, v61\nv_lshlrev_b32 v63, 4, v0\nv_lshlrev_b32 v64, 9, v0")
        a(f"s_mul_i32 s56, s53, 9216\ns_add_u32 s56, s56, {HT}\ns_add_u32 s57, s56, 4096\ns_add_u32 s58, s56, 8192\ns_lshl_b32 s59, s53, 5\ns_add_u32 s59, s59, {S2}")
        a(f"s_lshr_b32 s60, s{sIDX}, 3\ns_lshl_b32 s60, s60, 7\ns_and_b32 s48, s{sIDX}, 7\ns_lshl_b32 s48, s48, 2\ns_add_u32 s60, s60, s48\ns_lshl_b32 s48, s{sXCD}, 14\ns_add_u32 s60, s60, s48\ns_add_u32 s60, s60, {FLA}")
        a(f"s_cmp_ge_u32 s{sIDX}, 24\ns_cbranch_scc1 L_att")
        self.early_prefetch(False)
        self.ln_compute()
        a(f"s_cmp_ge_u32 s{sWAVE}, 4\ns_cbranch_scc1 L_aux")
        a(f"s_cmp_lg_u32 s{sWAVE}, 0\ns_cbranch_scc1 L_ln_done")
        self.ln_publish()
        a("L_ln_done:")
        a.stamp(2)

    def ln_compute(self):
        a = self
        a.stamp(1)
        for i in range(4):
            a(f"v_lshlrev_b32 v{10+2*i}, 16, v{2+i}\nv_and_b32 v{11+2*i}, 0xffff0000, v{2+i}")
        a("v_lshlrev_b32 v18, 16, v6")
        a("v_pk_add_f32 v[20:21], v[10:11], v[12:13]\nv_pk_add_f32 v[22:23], v[14:15], v[16:17]")
        a("v_pk_add_f32 v[20:21], v[20:21], v[22:23]\nv_add_f32 v20, v20, v18\nv_add_f32 v20, v20, v21")
        a.wave_sum(20, 48)
        a("v_mul_f32 v20, s48, v26")
        for i in range(4):
            a(f"v_pk_add_f32 v[{10+2*i}:{11+2*i}], v[{10+2*i}:{11+2*i}], v[20:21] op_sel_hi:[1,0]")
        a("v_add_f32 v18, v18, v20")
        a("v_pk_mul_f32 v[20:21], v[10:11], v[10:11]\nv_pk_mul_f32 v[22:23], v[12:13], v[12:13]")
        a("v_pk_fma_f32 v[20:21], v[14:15], v[14:15], v[20:21]\nv_pk_fma_f32 v[22:23], v[16:17], v[16:17], v[22:23]")
        a("v_pk_add_f32 v[20:21], v[20:21], v[22:23]\nv_fmac_f32 v20, v18, v18\nv_add_f32 v20, v20, v21")
        a.wave_sum(20, 48)
        a("v_mul_f32 v20, s48, v27\nv_add_f32 v21, v20, v24\nv_rsq_f32 v21, v21\ns_nop 0\nv_mul_f32 v22, v21, v21\nv_fma_f32 v22, v22, v20, v24")
        a("v_rsq_f32 v23, v22\ns_nop 0\nv_mul_f32 v20, v21, v23\nv_mul_f32 v22, v22, v23")
        for i in range(4):
            a(f"v_pk_mul_f32 v[{10+2*i}:{11+2*i}], v[{10+2*i}:{11+2*i}], v[20:21] op_sel_hi:[1,0]")
        a("v_mul_f32 v18, v18, v20")
        for i in range(4):
            a(f"v_cvt_pk_bf16_f32 v{2+i}, v{10+2*i}, v{11+2*i}")
        a("v_cvt_pk_bf16_f32 v6, v18, v18")
        a("ds_write_b64 v8, v[2:3]\nds_write_b64 v8, v[4:5] offset:512\nds_write_b16 v9, v6 offset:1024\nds_write_b32 v25, v22")
        a("s_waitcnt lgkmcnt(0)")
        a("s_barrier")
        self.make_tag()

    def ln_publish(self):
        a = self
        for b in range(9):
            a(f"ds_read_b64_tr_b16 v[{12+4*b}:{13+4*b}], v60 offset:{128*b}")
            a(f"ds_read_b64_tr_b16 v[{14+4*b}:{15+4*b}], v60 offset:{128*b+4*LN_PITCH}")
            if b >= 4:
                a("s_waitcnt lgkmcnt(8)")
                a(f"buffer_store_dwordx4 v[{12+4*(b-4)}:{15+4*(b-4)}], v63, {srd(rWS)}, s{56+(b-4)//4} offen offset:{1024*((b-4)%4)} sc1")
        a("ds_read_b32 v5, v62")
        a("s_waitcnt lgkmcnt(0)")
        for b in range(5, 9):
            a(f"buffer_store_dwordx4 v[{12+4*b}:{15+4*b}], v63, {srd(rWS)}, s{56+b//4} offen offset:{1024*(b%4)} sc1")
        a("s_mov_b64 exec, 0xff")
        a(f"buffer_store_dword v5, v61, {srd(rWS)}, s59 offen sc1")
        a("s_mov_b64 exec, -1")
        a.stamp(14)
        a("s_waitcnt vmcnt(0)")
        a.set_flags("s60", 64, 2, 32)

    def make_tag(self):
        self(f"s_mul_i32 s{sTAG}, s{sTAG}, 0x9E3779B1\ns_add_u32 s{sTAG}, s{sTAG}, 0x7F4A7C15")

    def bar_pub(self):
        self("s_barrier")

    def touch_pattern(self, vdst, R, stride, seg3=False):
        a = self
        a.divmod_const(vdst, vdst + 1, 0, 9, vdst + 2)
        a(f"v_min_u32 v{vdst}, {R-1}, v{vdst}\nv_mul_u32_u24 v{vdst}, {stride}, v{vdst}")
        if not seg3:
            a(f"v_lshl_add_u32 v{vdst}, v{vdst+1}, 7, v{vdst}")
        else:
            a.divmod_const(vdst + 2, vdst + 3, vdst + 1, 3, vdst + 4)
            a(f"v_mul_u32_u24 v{vdst+2}, 1152, v{vdst+2}\nv_mul_u32_u24 v{vdst+3}, 70, v{vdst+3}\nv_and_b32 v{vdst+3}, 0xfc, v{vdst+3}")
            a(f"v_add3_u32 v{vdst}, v{vdst}, v{vdst+2}, v{vdst+3}")

    def touch_w1(self, vpat, sid, R, row0):
        a = self
        a(f"s_mul_i32 s3, {sid}, {R}\ns_add_u32 s3, s3, {row0}\ns_and_b32 s48, s{sXCD}, {self.o['rot']}\ns_lshl_b32 s48, s48, 8\ns_add_u32 s3, s3, s48\ns_and_b32 s3, s3, 2047")
        a(f"s_min_u32 s3, s3, {2048-R}\ns_mul_i32 s3, s3, 9216\ns_mul_i32 s48, s{sXCD}, 1152\ns_add_u32 s3, s3, s48")
        a(f"buffer_load_dword v{vpat+5}, v{vpat}, {srd(rW1)}, s3 offen")

    def touch_wqkv(self, vpat, sid, R, row0, dst=None):
        a = self
        a(f"s_mul_i32 s3, {sid}, {R}\ns_add_u32 s3, s3, {row0}\ns_min_u32 s3, s3, {576-R}\ns_mul_i32 s3, s3, 3456\ns_mul_i32 s48, s{sXCD}, 144\ns_add_u32 s3, s3, s48")
        a(f"buffer_load_dword v{dst or vpat+5}, v{vpat}, {srd(rWQKV)}, s3 offen")

    def early_prefetch(self, att):
        a = self
        o = self.o
        n = o["w1a"] + (1 if o["pf_code"] else 0)
        if not n:
            a("s_waitcnt vmcnt(0)"); return
        l0, l1, pc = a.label("t0"), a.label("t0"), a.label("pc")
        a(f"s_cmp_eq_u32 s{sWAVE}, 7\ns_cbranch_scc1 {l0}\ns_waitcnt vmcnt(0)\ns_branch {l1}\n{l0}:")
        if o["pf_code"]:
            a(f"s_mul_i32 s48, s{sIDX}, 2304\ns_min_u32 s48, s48, L_code_end-{KNAME}-2304")
            a(f"s_getpc_b64 s[50:51]\n{pc}:\ns_sub_u32 s50, s50, {pc}-{KNAME}\ns_subb_u32 s51, s51, 0\ns_add_u32 s50, s50, s48\ns_addc_u32 s51, s51, 0")
            a("v_min_u32 v254, 17, v0\nv_lshlrev_b32 v254, 7, v254")
            a("global_load_dword v255, v254, s[50:51]")
        if not att:
            self.touch_pattern(248, 7, 9216)
            for k in range(o["w1a"]):
                self.touch_w1(248, f"s{sIDX}", 7, 168 * k)
        else:
            a(f"s_sub_u32 s52, s{sIDX}, 24")
            self.touch_pattern(80, 7, 3456, True)
            for k in range(o["w1a"]):
                self.touch_wqkv(80, "s52", 7, 56 * k, 255)
        a(f"s_waitcnt vmcnt({n})\n{l1}:")

    A_PARTS = [(64 + 8 * i, 8, 128 * i) for i in range(4)]
    A_REGS = list(range(64, 96))
    def A_addr(self, sg, rep=f"s{sIDX}"):
        self(f"s_lshl_b32 s52, {sg}, 5\ns_add_u32 s52, s52, {rep}\ns_lshl_b32 s52, s52, 9\ns_add_u32 s52, s52, {FLA}\ns_add_u32 s50, s{rWS}, s52\ns_addc_u32 s51, s{rWS+1}, 0")
    def wait_A_group(self, sg, rep=f"s{sIDX}"):
        self.A_addr(sg, rep)
        self.spoll_issue(50, self.A_PARTS)
        self.spoll_check(50, self.A_PARTS, self.A_REGS)

    def g2_ids(self):
        a = self
        a(f"s_lshr_b32 s58, s{sXCD}, 1\ns_mul_i32 s60, s{sIDX}, 43\ns_lshr_b32 s60, s60, 7\ns_mul_i32 s3, s60, 3\ns_sub_u32 s59, s{sIDX}, s3")
        a(f"s_and_b32 s3, s{sXCD}, 1\ns_lshl_b32 s3, s3, 3\ns_add_u32 s60, s60, s3")

    def mlp_compute(self):
        a = self
        ACC, SH = 16, 64
        P, Q = 80, 120
        b = ((1, 2, 3), (4, 8, 9))
        c = (5, 6, 7)
        self.bar_pub()
        a(f"s_and_b32 s54, s{sIDX}, 3\ns_lshr_b32 s55, s{sIDX}, 2\ns_mul_i32 s3, s{sXCD}, 6\ns_add_u32 s55, s55, s3")
        a("v_lshrrev_b32 v9, 4, v0\nv_lshlrev_b32 v10, 3, v9\ns_mul_i32 s3, s55, 192")
        for t in range(6):
            a(f"buffer_load_dwordx2 v[{P+2*t}:{P+2*t+1}], v10, {srd(rB1)}, s3 offen offset:{32*t}")
        a("v_bfe_u32 v11, v0, 2, 2\nv_lshl_add_u32 v11, v9, 3, v11\nv_mul_u32_u24 v11, 192, v11")
        a("v_and_b32 v12, 3, v0\nv_lshl_add_u32 v11, v12, 3, v11")
        a(f"v_add_u32 v11, {G1_W}, v11\nv_and_b32 v12, 1, v9\nv_lshlrev_b32 v12, 5, v12")
        a(f"v_add_u32 v{c[0]}, v11, v12\nv_sub_u32 v{c[1]}, v11, v12\nv_add_u32 v{c[1]}, 32, v{c[1]}")
        a(f"v_mul_u32_u24 v11, 2304, v9\nv_and_b32 v12, 15, v0\nv_lshl_add_u32 v11, v12, 4, v11")
        a(f"v_mov_b32 v{c[2]}, v11")
        self.precompute_tail()
        a("s_barrier")
        a.stamp(3)
        a("s_waitcnt vmcnt(0)")
        for t in range(6):
            for h in range(2):
                a(f"v_lshlrev_b32 v{ACC+4*t+2*h}, 16, v{P+2*t+h}\nv_and_b32 v{ACC+4*t+2*h+1}, 0xffff0000, v{P+2*t+h}")
        for i in range(24):
            a(f"v_mov_b32 v{ACC+24+i}, v{ACC+i}")
        for w in range(4):
            if w < 3:
                a(f"s_cmp_lg_u32 s{sWAVE}, {w}\ns_cbranch_scc1 L_g1_w{w+1}")
            self.g1_loop(w, ACC, SH, P, Q, b, c)
            if w < 3:
                a(f"s_branch L_g1_done\nL_g1_w{w+1}:")
        a("L_g1_done:")
        a.stamp(5)
        self.g1_epilogue(ACC, SH, P, Q)
        self.g2_compute()

    vOUT, vSHW, vUST, vB2, vFB = 15, 13, 14, 12, 11
    cU, cW, cO, cP = 176, 177, 181, 184
    cGA, cGB = 76, 78
    def precompute_tail(self):
        a = self
        self.g2_ids()
        a(f"s_mul_i32 s3, s{sWAVE}, 3072\ns_add_u32 s3, s3, {SH_SCR}\nv_lshl_add_u32 v{self.vSHW}, v0, 4, s3")
        a(f"s_and_b32 s3, s{sWAVE}, 1\ns_lshl_b32 s3, s3, 2\ns_add_u32 s3, s3, s58\ns_lshl_b32 s3, s3, 4\ns_lshl_b32 s48, s60, 7\ns_add_u32 s61, s3, s48")
        a(f"s_lshr_b32 s3, s{sWAVE}, 1\ns_lshl_b32 s48, s59, 1\ns_add_u32 s3, s3, s48\ns_mul_i32 s3, s3, 192\ns_mul_i32 s62, s61, 1152\ns_add_u32 s62, s62, s3")
        a("s_lshl_b32 s61, s61, 1")
        a(f"v_and_b32 v190, 15, v0\nv_lshrrev_b32 v191, 4, v0\nv_bfe_u32 v192, v0, 2, 2\nv_and_b32 v193, 3, v0")
        a(f"v_mul_u32_u24 v{self.vOUT}, 1152, v190\nv_lshl_add_u32 v{self.vOUT}, v191, 4, v{self.vOUT}\nv_lshlrev_b32 v{self.vB2}, 1, v190")
        a(f"v_mul_u32_u24 v{self.vUST}, 9216, v191\nv_lshl_add_u32 v{self.vUST}, v190, 4, v{self.vUST}")
        a(f"s_mul_i32 s96, s55, {12*9216}\ns_mul_i32 s3, s54, 2304\ns_add_u32 s96, s96, s3\ns_lshl_b32 s3, s{sWAVE}, 9\ns_add_u32 s96, s96, s3\ns_add_u32 s96, s96, {U}")
        a(f"s_add_u32 s97, s96, {4*9216}\ns_add_u32 s98, s96, {8*9216}")
        a(f"s_mul_i32 s99, s58, {48*512}\ns_and_b32 s3, s{sXCD}, 1\ns_lshl_b32 s3, s3, 7\ns_add_u32 s99, s99, s3\ns_lshr_b32 s3, s{sIDX}, 2\ns_lshl_b32 s3, s3, 2\ns_add_u32 s99, s99, s3\ns_add_u32 s99, s99, {FLB}")
        a(f"v_sub_u32 v194, s54, v191\nv_lshl_add_u32 v195, v194, 4, v190\nv_lshlrev_b32 v195, 9, v195\nv_lshl_add_u32 v195, v191, 8, v195")
        a(f"v_cmp_gt_u32 vcc, 3, v194\nv_mov_b32 v196, {OOB}\ns_nop 0\nv_cndmask_b32 v{self.vFB}, v196, v195, vcc")
        a.gelu_consts(self.cGA, self.cGB)
        cU, cW, cO = self.cU, self.cW, self.cO
        a(f"v_mul_u32_u24 v{cU}, {G2_PITCH}, v191\nv_lshl_add_u32 v{cU}, v192, 7, v{cU}\nv_lshl_add_u32 v{cU}, v193, 4, v{cU}")
        a(f"s_lshr_b32 s3, s{sWAVE}, 1\ns_mul_i32 s3, s3, 1536\nv_add_u32 v{cU}, s3, v{cU}")
        a("v_lshl_add_u32 v194, v191, 2, v192")
        a(f"v_lshlrev_b32 v195, 8, v194\nv_lshl_add_u32 v195, v193, 3, v195\nv_add_u32 v195, {G2_W[0]}, v195\nv_and_b32 v196, 7, v194")
        for j in range(4):
            a(f"s_add_u32 s3, s58, {j}\ns_and_b32 s3, s3, 3\ns_and_b32 s48, s{sWAVE}, 1\ns_lshl_b32 s48, s48, 2\ns_add_u32 s3, s3, s48")
            a(f"v_xor_b32 v197, s3, v196\nv_lshl_add_u32 v{cW+j}, v197, 5, v195")
        a(f"v_lshrrev_b32 v195, 1, v193\nv_lshlrev_b32 v196, 3, v195\nv_xor_b32 v196, v196, v194\nv_lshlrev_b32 v196, 4, v196\nv_lshl_add_u32 v195, v195, 9, v196")
        a(f"v_and_b32 v196, 1, v193\nv_lshl_add_u32 v195, v196, 3, v195\nv_add_u32 v195, {G2_W[0]}, v195")
        for j in range(4):
            a(f"s_add_u32 s3, s58, {j}\ns_and_b32 s3, s3, 3\ns_and_b32 s48, s{sWAVE}, 1\ns_lshl_b32 s48, s48, 2\ns_add_u32 s3, s3, s48\ns_lshl_b32 s3, s3, 10")
            a(f"v_add_u32 v{self.cP+j}, s3, v195")
        a("v_mul_u32_u24 v195, 384, v194\nv_lshl_add_u32 v195, v193, 4, v195\nv_bfe_u32 v196, v194, 1, 1")
        for p in range(3):
            a(f"s_lshr_b32 s3, s{sWAVE}, 1\ns_mul_i32 s3, s3, 3\ns_add_u32 s3, s3, {p}")
            a(f"v_xor_b32 v197, s3, v196\nv_lshl_add_u32 v{cO+p}, v197, 6, v195")

    def g1_loop(self, w, ACC, SH, P, Q, b, c):
        a = self
        t0, ks = 3 * (w >> 1), w & 1
        for i in range(12):
            a(f"v_mov_b32 v{SH+i}, v{ACC+4*t0+i}" if ks == 0 else f"v_mov_b32 v{SH+i}, 0")
        def reads(st, k, bb):
            bA0, bA1, bB = bb
            rb = lambda j: (f"ds_read_b128 v[{st+24+4*j}:{st+27+4*j}], v{bB} offset:{k*9216+256*j+512*w}", f"B{j}")
            ra = lambda t, rho: (f"ds_read_b64_tr_b16 v[{st+4*t+2*rho}:{st+4*t+2*rho+1}], v{bA1 if t & 1 else bA0} offset:{k*6144+rho*768+(t>>1)*64}", f"A{t}{rho}")
            r = [rb(0), ra(0, 0), ra(0, 1), rb(1)]
            for t in range(1, 6): r += [ra(t, 0), ra(t, 1)]
            if k == ks:
                r.append((f"ds_read_b128 v[{st+32}:{st+35}], v{bB} offset:{k*9216+2048}", "S"))
            return r
        ids = lambda k: [x[1] for x in reads(P, k, b[0])]
        def mfmas(st, k):
            m = []
            for t in range(6):
                for j in range(2):
                    d = ACC + 24 * j + 4 * t
                    m.append((f"v_mfma_f32_16x16x32_bf16 v[{d}:{d+3}], v[{st+4*t}:{st+4*t+3}], v[{st+24+4*j}:{st+27+4*j}], v[{d}:{d+3}]", [f"A{t}1", f"B{j}"]))
            if k == ks:
                for i in range(3):
                    d = SH + 4 * i
                    m.append((f"v_mfma_f32_16x16x32_bf16 v[{d}:{d+3}], v[{st+4*(t0+i)}:{st+4*(t0+i)+3}], v[{st+32}:{st+35}], v[{d}:{d+3}]", ["S"]))
            return m
        W = tuple(self.o.get("w1w", (0, 2, 6, 10)))
        sadv = [f"s_add_u32 s56, s56, {G1_SLOT}", f"s_cmp_eq_u32 s56, {G1_SLOT*G1_NS}", "s_cselect_b32 s56, 0, s56"]
        def stage(par, last=False, tail=()):
            cur, nx = b[par], b[par ^ 1]
            vadv = [f"v_add_u32 v{x}, s56, v{y}" for x, y in zip(nx, c)]
            a.sched(mfmas(P, 0), ids(0), reads(Q, 1, cur), extra=() if last else vadv, waits=W, tail_busy=2)
            if not last:
                a.sched(mfmas(Q, 1), ids(1), reads(P, 0, nx), extra=sadv + list(tail), waits=W, bar=(0, False), tail_busy=2 if tail else 1)
            else:
                m = mfmas(Q, 1)
                a("s_waitcnt lgkmcnt(0)")
                for x in m[12:] + m[:12]: a(x[0])
        for x, y in zip(b[0], c):
            a(f"v_mov_b32 v{x}, v{y}")
        UN = self.o["un1"]
        assert UN % 2 == 0
        nl = 31 // UN
        a(f"s_mov_b32 s56, {G1_SLOT}\ns_mov_b32 s57, {nl}")
        a("s_barrier")
        a.stamp(4)
        if self.o["stamps"]: a("s_waitcnt lgkmcnt(0)")
        for r in reads(P, 0, b[0]): a(r[0])
        lp = a.label("g1")
        a(f"{lp}:")
        for u in range(UN):
            stage(u & 1, tail=("s_sub_u32 s57, s57, 1", "s_cmp_lg_u32 s57, 0") if u == UN - 1 else ())
        a(f"s_cbranch_scc1 {lp}")
        XR = 160
        xl = [f"buffer_load_dwordx4 v[{XR+4*p}:{XR+4*p+3}], v{self.vOUT}, {srd(rX)}, s62 offen offset:{64*p}" for p in range(3)]
        xl.append(f"buffer_load_ushort v{XR+12}, v{self.vB2}, {srd(rB2)}, s61 offen")
        for u in range(31 - nl * UN): stage(u & 1, tail=xl if u == 30 - nl * UN else ())
        stage(1, last=True)

    def g1_epilogue(self, ACC, SH, P, Q):
        a = self
        XR = 160
        for i in range(3):
            a(f"ds_write_b128 v{self.vSHW}, v[{SH+4*i}:{SH+4*i+3}] offset:{1024*i}")
        a("s_waitcnt lgkmcnt(0)\ns_barrier")
        regs = [ACC + 2 * i for i in range(24)]
        out = [P + i for i in range(24)]
        a.align8()
        for g0 in a.gelu(regs, self.cGA, self.cGB, Q, out):
            n = g0 // 4
            j, p = n // 3, n % 3
            a(f"buffer_store_dwordx4 v[{P+g0}:{P+g0+3}], v{self.vUST}, {srd(rWS)}, s{96+p} offen offset:{256*j} sc1")
        a.stamp(6)

    def g2_compute(self):
        a = self
        XR = 160
        ACC = 16
        P, Q = 176, 216
        bU, bU2, bW, bO, bO2 = 1, 2, 3, 112, 115
        a(f"v_mov_b32 v{bU}, v{self.cU}\nv_add_u32 v{bU2}, {G2_U[2]}, v{self.cU}")
        bP = 122
        for j in range(4): a(f"v_mov_b32 v{bW+j}, v{self.cW+j}\nv_mov_b32 v{bP+j}, v{self.cP+j}")
        for p in range(3): a(f"v_mov_b32 v{bO+p}, v{self.cO+p}\nv_add_u32 v{bO2+p}, {G2_U[2]}, v{self.cO+p}")
        a("s_waitcnt vmcnt(6)")
        a(f"v_lshlrev_b32 v{XR+12}, 16, v{XR+12}")
        for i in range(12):
            a(f"v_lshlrev_b32 v{ACC+2*i}, 16, v{XR+i}\nv_and_b32 v{ACC+2*i+1}, 0xffff0000, v{XR+i}")
        for i in range(12):
            a(f"v_pk_add_f32 v[{ACC+2*i}:{ACC+2*i+1}], v[{ACC+2*i}:{ACC+2*i+1}], v[{XR+12}:{XR+13}] op_sel_hi:[1,0]")
        a("s_waitcnt vmcnt(0)\ns_barrier")
        a(f"s_cmp_lg_u32 s{sWAVE}, 0\ns_cbranch_scc1 L_noflagB")
        a.set_flags("s99", self.vFB, 121, 32)
        a("L_noflagB:\ns_barrier")
        a.stamp(7)
        for i in range(24, 96):
            a(f"v_mov_b32 v{ACC+i}, 0")
        a(f"s_mul_i32 s56, s60, 3\ns_add_u32 s56, s56, s59")
        a(f"v_lshlrev_b32 v8, 4, v0\ns_mul_i32 s63, s{sWAVE}, 3072\ns_add_u32 s63, s63, {EX}")
        for j in range(1, 4):
            a(f"s_add_u32 s3, s58, {j}\ns_and_b32 s3, s3, 3\ns_lshl_b32 s48, s56, 2\ns_add_u32 s3, s3, s48\ns_mul_i32 s3, s3, 36864")
            a(f"s_add_u32 s3, s3, s63\ns_add_u32 s{95+j}, s3, {(j-1)*12288}")
        a(f"s_lshl_b32 s3, s56, 4\ns_add_u32 s3, s3, s{sWAVE}\ns_lshl_b32 s3, s3, 7\ns_add_u32 s99, s3, {FLX}\ns_lshl_b32 s3, s58, 9\ns_add_u32 s52, s3, s99")
        a("s_add_u32 s3, s58, 1\nv_add_u32 v10, s3, v0\nv_and_b32 v10, 3, v10\nv_lshlrev_b32 v10, 9, v10\nv_lshl_add_u32 v10, v0, 2, v10")
        a(f"s_lshl_b32 s48, s56, 2\ns_add_u32 s48, s48, s58\ns_mul_i32 s48, s48, 36864\ns_add_u32 s63, s63, s48")
        a(f"s_add_u32 s50, s{rWS}, s52\ns_addc_u32 s51, s{rWS+1}, 0\ns_load_dword s3, s[50:51], 0 glc\ns_waitcnt lgkmcnt(0)")

        def reads(st, n):
            sl, k, ext = (n >> 1) % 3, n & 1, n >= 36
            ou = (G2_U[sl] if sl < 2 else 0) + k * G2_US
            ow = G2_W[sl] - G2_W[0] + k * G2_WS
            r = []
            def rb(j):
                return [(f"ds_read_b64_tr_b16 v[{st+24+4*j+2*rho}:{st+25+4*j+2*rho}], v{(bP if ext else bW)+j} offset:{ow+rho*(256 if ext else 4096)}", f"B{j}{rho}") for rho in range(2)]
            def ra(m):
                p, b_ = m >> 1, m & 1
                if not ext:
                    return [(f"ds_read_b128 v[{st+4*m}:{st+4*m+3}], v{bU if sl < 2 else bU2} offset:{ou+p*512+b_*64}", f"A{m}1")]
                return [(f"ds_read_b64_tr_b16 v[{st+4*m+2*rho}:{st+4*m+2*rho+1}], v{(bO if sl < 2 else bO2)+p} offset:{ou+rho*6144+b_*8}", f"A{m}{rho}") for rho in range(2)]
            r += rb(0)
            for m in range(6): r += ra(m)
            for j in range(1, 4): r += rb(j)
            return r
        def mfmas(st, order=(0, 1, 2, 3)):
            m = []
            for j in order:
                for t in range(6):
                    d = ACC + 24 * j + 4 * t
                    m.append((f"v_mfma_f32_16x16x32_bf16 v[{d}:{d+3}], v[{st+4*t}:{st+4*t+3}], v[{st+24+4*j}:{st+27+4*j}], v[{d}:{d+3}]", [f"A{t}1", f"B{j}1"]))
            return m
        NSTEP = 41
        sets = (P, Q)
        def step(n, extra=()):
            st, nx = sets[n & 1], sets[(n + 1) & 1]
            prev = [x[1] for x in reads(st, n)]
            if n + 1 >= NSTEP:
                a("s_waitcnt lgkmcnt(0)\ns_nop 0")
                for x in mfmas(st, (1, 2, 3, 0)): a(x[0])
                return
            ds = reads(nx, n + 1)
            if n & 1:
                a.sched(mfmas(st), prev, ds, extra, waits=(0, 3), bar=(3, True), tail_busy=2 if extra else 1)
            else:
                a.sched(mfmas(st), prev, ds, extra, waits=(0, 6, 12))
        a("s_barrier")
        a.stamp(8)
        a("s_barrier")
        a.stamp(9)
        if self.o["stamps"]: a("s_waitcnt lgkmcnt(0)")
        for r in reads(P, 0): a(r[0])
        a("s_mov_b32 s57, 5")
        lp = a.label("g2")
        a.align8()
        a(f"{lp}:")
        for n in range(6): step(n, ("s_sub_u32 s57, s57, 1", "s_cmp_lg_u32 s57, 0") if n == 5 else ())
        a(f"s_cbranch_scc1 {lp}")
        for n in range(30, NSTEP): step(n)
        a.stamp(10)
        for j in range(1, 4):
            for i in range(12):
                a(f"v_cvt_pk_bf16_f32 v{P+12*(j-1)+i}, v{ACC+24*j+2*i}, v{ACC+24*j+2*i+1}")
                if i % 4 == 3:
                    r = P + 12 * (j - 1) + i - 3
                    a(f"buffer_store_dwordx4 v[{r}:{r+3}], v8, {srd(rWS)}, s{95+j} offen offset:{1024*(i//4)} sc1")
        a("s_waitcnt vmcnt(0)")
        a.set_flags("s99", 10, 9, 3)
        a.stamp(11)
        parts = [(56, 4, 0)]
        a.spoll_issue(50, parts)
        a.spoll_check(50, parts, [56, 57, 58])
        a.stamp(12)
        for j in range(3):
            for p in range(3):
                r = P + 12 * j + 4 * p
                a(f"buffer_load_dwordx4 v[{r}:{r+3}], v8, {srd(rWS)}, s63 offen offset:{1024*p} sc1")
            if j < 2: a("s_add_u32 s63, s63, 12288")
        for j in range(3):
            a(f"s_waitcnt vmcnt({6-3*j})")
            for i in range(12):
                t = 40 + 2 * (i % 4)
                a(f"v_lshlrev_b32 v{t}, 16, v{P+12*j+i}\nv_and_b32 v{t+1}, 0xffff0000, v{P+12*j+i}")
                a(f"v_pk_add_f32 v[{ACC+2*i}:{ACC+2*i+1}], v[{ACC+2*i}:{ACC+2*i+1}], v[{t}:{t+1}]")
        for i in range(12):
            a(f"v_cvt_pk_bf16_f32 v{Q+i}, v{ACC+2*i}, v{ACC+2*i+1}")
        for p in range(3):
            a(f"buffer_store_dwordx4 v[{Q+4*p}:{Q+4*p+3}], v{self.vOUT}, {srd(rOUT)}, s62 offen offset:{64*p} {self.o.get('outf', '')}")
        a.stamp(13)
        a("s_branch L_fin")

    def latin_seq(self, l):
        Dl = self.o["latin"]
        return sorted(range(32), key=lambda s_: (s_ - Dl - 0.5) if (Dl and s_ % 6 == l) else s_)

    def mlp_aux(self):
        a = self
        o = self.o
        a("L_aux:")
        a(f"s_and_b32 s54, s{sIDX}, 3\ns_lshr_b32 s55, s{sIDX}, 2\ns_mul_i32 s3, s{sXCD}, 6\ns_add_u32 s55, s55, s3")
        a(f"s_sub_u32 s53, s{sWAVE}, 4")
        self.g2_loader_setup()
        seqs = [self.latin_seq(l) for l in range(6)]
        la = o["la1"]
        need = lambda pos: max(max(sq[:min(pos, 31) + 1]) for sq in seqs) // 4
        g_first = need(1)
        assert g_first <= 1
        a(f"s_cmp_eq_u32 s{sWAVE}, 7\ns_cbranch_scc1 L_aux7")
        vH, vW = 40, 46
        a("s_lshl_b32 s3, s53, 8\nv_add_u32 v1, s3, v0")
        for i in range(4):
            a(f"v_add_u32 v2, {64*i}, v1")
            a.divmod_const(3, 4, 2, 12, 5)
            a(f"v_bfe_u32 v5, v3, 3, 1\nv_lshlrev_b32 v5, 1, v5\nv_xor_b32 v4, v4, v5")
            a(f"v_mul_u32_u24 v3, 9216, v3\nv_lshl_add_u32 v{vW+i}, v4, 4, v3\nv_subrev_u32 v{vW+i}, {1024*i}, v{vW+i}")
        a(f"s_mul_i32 s12, s55, 192\ns_lshl_b32 s14, s53, 12\ns_add_u32 s14, s14, {G1_W}")
        a(f"s_mul_i32 s13, s54, 2304\ns_add_u32 s13, s13, {HT}\ns_mul_i32 s15, s53, 6144\ns_and_b32 s28, s{sXCD}, {o['rot']}\ns_lshl_b32 s28, s28, 2")
        TB = [16, 17, 18, 19, 36, 37]
        if o["latin"]:
            a(f"s_lshr_b32 s3, s{sIDX}, 2\ns_mul_i32 s48, s54, {o['latc']}\ns_add_u32 s3, s3, s48")
            for _ in range(2): a("s_cmp_ge_u32 s3, 6\ns_cselect_b32 s48, 6, 0\ns_sub_u32 s3, s3, s48")
            for l in range(6):
                words = [sum(seqs[l][n] << (5 * (n % 6)) for n in range(6 * k, min(32, 6 * k + 6))) for k in range(6)]
                if l: a(f"s_cmp_eq_u32 s3, {l}")
                for k in range(6):
                    a(f"s_mov_b32 s{TB[k]}, {words[k]}" if l == 0 else f"s_cselect_b32 s{TB[k]}, {words[k]}, s{TB[k]}")
        def stage_of(pos):
            if o["latin"]:
                a(f"s_bfe_u32 s3, s{TB[pos//6]}, {(5 << 16) | (5 * (pos % 6))}\ns_add_u32 s3, s3, s28")
            else:
                a(f"s_add_u32 s3, s28, {pos}")
            a("s_and_b32 s3, s3, 31")
        issued = []
        def w1_load(st):
            stage_of(0 if "W" in o["dbg"] else st)
            a(f"s_mul_i32 s3, s3, {64*9216}\ns_add_u32 m0, s14, {(st % G1_NS)*G1_SLOT}\ns_add_u32 s3, s3, s12")
            for i in range(4):
                if "w" in o["dbg"] and i > 0: continue
                a(f"buffer_load_dwordx4 v{vW+i}, {srd(rW1)}, s3 offen offset:{1024*i} lds")
                issued.append(st)
        def h_load(st):
            stage_of(0 if "H" in o["dbg"] else st)
            a(f"s_mul_i32 s3, s3, {8*9216}\ns_add_u32 s3, s3, s13")
            for i in range(6):
                if "h" in o["dbg"] and i > 0: continue
                if i % 4 == 0:
                    a(f"s_add_u32 m0, s15, {(st % G1_NS)*G1_SLOT + 1024*i}\ns_nop 0")
                a(f"buffer_load_dwordx4 v{vH+i}, {srd(rWS)}, s3 offen offset:{1024*(i%4)} sc1 lds")
                issued.append(st)
        def wait_stage(st):
            last = max(i for i, x in enumerate(issued) if x == st)
            n = len(issued) - 1 - last
            assert n < 64
            a(f"s_waitcnt vmcnt({n})")
        a("s_mul_i32 s3, s53, 384\nv_add_u32 v1, s3, v0")
        for i in range(6):
            a(f"v_add_u32 v2, {64*i}, v1")
            a.divmod_const(3, 4, 2, 144, 5)
            a(f"v_mul_u32_u24 v3, 9216, v3\nv_lshl_add_u32 v{vH+i}, v4, 4, v3\nv_subrev_u32 v{vH+i}, {1024*(i%4)}, v{vH+i}")
        self.sp_setup()
        self.bar_pub()
        assert o["prefill"] <= 5
        for st in range(o["prefill"]): w1_load(st)
        if g_first == 1:
            a(f"s_cmp_lg_u32 s{sWAVE}, 6\ns_cbranch_scc1 L_nog1\ns_and_b32 s29, s{sXCD}, {o['rot']}\ns_add_u32 s29, s29, 1\ns_and_b32 s29, s29, 7")
            self.wait_A_group("s29")
            a("L_nog1:")
        a("s_barrier")
        a.stamp(3)
        assert la <= 3
        done = [0]
        def issue(upto):
            while done[0] <= min(upto, 31):
                st = done[0]
                h_load(st)
                if st >= o["prefill"]: w1_load(st)
                done[0] += 1
        issue(1 if o["prefill"] >= 2 else 0)
        for i in range(32):
            wait_stage(i)
            a("s_barrier")
            issue(i + la)
            self.sp_step(i)
            if i == 30: self.g2_prefill(issued)
        a("s_branch L_aux_g1done")
        a("L_aux7:")
        a(f"s_and_b32 s29, s{sXCD}, {o['rot']}")
        self.A_addr("s29"); self.spoll_issue(50, self.A_PARTS)
        self.touch_pattern(248, 7, 9216)
        self.bar_pub()
        for k in range(o["w1c"]):
            self.touch_w1(248, f"s{sIDX}", 7, 168 * (o["w1a"] + k))
        self.spoll_check(50, self.A_PARTS, self.A_REGS)
        a("s_barrier")
        a(f"s_add_u32 s29, s29, {g_first}")
        g_ok, g_fly, t_fly = g_first, None, 0
        for i in range(32):
            while g_ok < need(i + la) or (g_fly is not None and i - t_fly >= 2):
                if g_fly is None:
                    a("s_add_u32 s29, s29, 1\ns_and_b32 s29, s29, 7")
                    self.A_addr("s29"); self.spoll_issue(50, self.A_PARTS)
                self.spoll_check(50, self.A_PARTS, self.A_REGS)
                g_ok += 1; g_fly = None
            if g_fly is None and g_ok < 7:
                a("s_add_u32 s29, s29, 1\ns_and_b32 s29, s29, 7")
                self.A_addr("s29"); self.spoll_issue(50, self.A_PARTS)
                g_fly, t_fly = g_ok + 1, i
            a("s_barrier")
            if i == 30: self.g2_prefill([])
        assert g_ok == 7 and g_fly is None
        a(f"s_cmp_lg_u32 s2, 0\ns_cbranch_scc1 L_noepoch\ns_mov_b32 s3, {EPOCH}")
        a.set_flag("s3", 20)
        a("L_noepoch:")
        a("L_aux_g1done:")
        a.stamp(5)
        self.g2_loader()

    def sp_setup(self):
        a, o = self, self.o
        if not o["sp"]: return
        r0 = 2048 - o["spn"]
        a(f"s_and_b32 s38, s{sXCD}, {o['rot']}\ns_lshl_b32 s38, s38, 8\ns_add_u32 s38, s38, s{sIDX}\ns_add_u32 s38, s38, {r0}")
        a(f"s_mul_i32 s39, s{sXCD}, 1152\ns_mul_i32 s3, s53, 384\ns_add_u32 s39, s39, s3\ns_add_u32 s39, s39, 60")
        self.sp_row = r0
    def sp_step(self, i):
        a, o = self, self.o
        if not o["sp"]: return
        n = int((i + 1) * o["sp"]) - int(i * o["sp"])
        for _ in range(n):
            if self.sp_row >= 2048: return
            a(f"s_and_b32 s3, s38, 2047\ns_mul_i32 s3, s3, 9216\ns_add_u32 s3, s3, s39\ns_add_u32 s40, s{rW1}, s3\ns_addc_u32 s41, s{rW1+1}, 0\ns_add_u32 s38, s38, 24")
            for k in range(3): a(f"s_load_dwordx2 s[42:43], s[40:41], {128*k}")
            self.sp_row += 24

    def sp2_setup(self):
        a, o = self, self.o
        if not o["sp2"]: return
        r0 = 1152 - o["spn2"]
        a(f"s_mul_i32 s38, s58, 1152\ns_add_u32 s38, s38, s{sIDX}\ns_add_u32 s38, s38, {r0}\ns_lshl_b32 s38, s38, 12")
        a(f"s_and_b32 s3, s{sXCD}, 1\ns_lshl_b32 s3, s3, 2\ns_add_u32 s3, s3, s53\ns_lshl_b32 s3, s3, 9\ns_add_u32 s38, s38, s3\ns_add_u32 s38, s38, 60")
        a(f"s_add_u32 s40, s{rW2}, s38\ns_addc_u32 s41, s{rW2+1}, 0")
        self.sp_row = r0
    def sp2_step(self, i):
        a, o = self, self.o
        if not o["sp2"]: return
        n = int((i + 1) * o["sp2"]) - int(i * o["sp2"])
        for _ in range(n):
            if self.sp_row + 24 > 1152: return
            for k in range(4): a(f"s_load_dwordx2 s[42:43], s[40:41], {128*k}")
            a(f"s_add_u32 s40, s40, {24*4096}\ns_addc_u32 s41, s41, 0")
            self.sp_row += 24

    gP = 18
    gL, gW, gZ, gO, gY = 10, 11, 13, 15, 56
    def g2_loader_setup(self):
        a = self
        vL, vW, vZ, vO, vY = self.gL, self.gW, self.gZ, self.gO, self.gY
        self.g2_ids()
        a(f"v_lshlrev_b32 v{vL}, 4, v0\nv_lshrrev_b32 v1, 4, v0\nv_bfe_u32 v2, v0, 1, 3\nv_and_b32 v3, 1, v0")
        for i in range(2):
            a(f"v_add_u32 v4, {4*i}, v1\nv_xor_b32 v5, v2, v4\nv_lshlrev_b32 v4, 12, v4\nv_lshl_add_u32 v4, v5, 5, v4")
            a(f"v_lshl_add_u32 v{vW+i}, v3, 4, v4\nv_subrev_u32 v{vW+i}, {1024*i}, v{vW+i}")
            a(f"v_lshrrev_b32 v4, 5, v0\nv_lshlrev_b32 v5, 3, v4\nv_and_b32 v6, 31, v0\nv_xor_b32 v5, v5, v6\nv_mul_u32_u24 v4, 9216, v4\nv_lshl_add_u32 v4, v5, 4, v4")
            a(f"v_add_u32 v{self.gP+i}, {i*(2*9216-1024)}, v4\nv_cmp_gt_u32 vcc, 16, v6\nv_mov_b32 v5, {OOB}\ns_nop 0\nv_cndmask_b32 v{vZ+i}, v5, v{self.gP+i}, vcc")
        a(f"s_cmp_ge_u32 s53, 2\ns_cselect_b32 s3, {OOB}, 0")
        for i in range(3):
            a(f"v_add_u32 v4, {64*i}, v0")
            a.divmod_const(5, 6, 4, 24, 7)
            a(f"v_bfe_u32 v7, v5, 1, 1\nv_lshlrev_b32 v7, 2, v7\nv_xor_b32 v6, v6, v7")
            a(f"v_mul_u32_u24 v5, 1152, v5\nv_lshl_add_u32 v{vO+i}, v6, 4, v5\nv_subrev_u32 v{vO+i}, {1024*i}, v{vO+i}")
            a(f"v_or_b32 v{vY+i}, s3, v{vO+i}")
        a(f"s_mul_i32 s56, s58, 144\ns_add_u32 s56, s56, s53\ns_mul_i32 s56, s56, 9216\ns_mul_i32 s3, s59, 3072\ns_add_u32 s56, s56, s3\ns_add_u32 s56, s56, {U}")
        a(f"s_mul_i32 s57, s58, 1152\ns_lshl_b32 s3, s53, 3\ns_add_u32 s57, s57, s3\ns_lshl_b32 s57, s57, 12\ns_lshl_b32 s3, s60, 8\ns_add_u32 s57, s57, s3")
        a(f"s_mul_i32 s61, s53, {G2_PITCH}\ns_mul_i32 s62, s53, 3072\ns_lshl_b32 s63, s53, 11")
        for h in range(2):
            a(f"s_lshl_b32 s3, s53, 1\ns_add_u32 s3, s3, {h}\ns_cmp_ge_u32 s3, 3\ns_cselect_b32 s48, 3072, 0\ns_lshl_b32 s3, s3, 10\ns_add_u32 s3, s3, s48\ns_add_u32 s3, s3, {SH_SCR}")
            a(f"v_add_u32 v{60+h}, s3, v{vL}")
        a.gelu_consts(64, 66)
        a(f"v_mul_u32_u24 v62, 9216, v1\nv_and_b32 v63, 15, v0\nv_lshl_add_u32 v62, v63, 4, v62")
        a(f"s_mul_i32 s96, s55, 3\ns_add_u32 s96, s96, s53\ns_mul_i32 s96, s96, {4*9216}\ns_mul_i32 s3, s54, 2304\ns_add_u32 s96, s96, s3\ns_add_u32 s96, s96, {U + 2048}")
        a(f"s_mul_i32 s3, s58, 3\ns_add_u32 s3, s3, s59\ns_lshl_b32 s3, s3, 4\ns_add_u32 s3, s3, s60\ns_lshl_b32 s3, s3, 9\ns_add_u32 s3, s3, {FLB}")
        a(f"s_add_u32 s98, s{rWS}, s3\ns_addc_u32 s99, s{rWS+1}, 0\ns_lshl_b32 s3, s53, 7\ns_load_dword s30, s[98:99], s3 glc")
        a("v_min_u32 v68, 2, v1\nv_lshlrev_b32 v68, 12, v68\nv_lshl_add_u32 v68, v63, 7, v68")
        a(f"s_lshl_b32 s97, s{sIDX}, 2\ns_add_u32 s97, s97, s53\ns_mul_i32 s97, s97, 3\ns_mul_i32 s3, s58, 1152\ns_add_u32 s97, s97, s3\ns_add_u32 s97, s97, {self.o['w2r']}\ns_lshl_b32 s97, s97, 12")
        a(f"s_and_b32 s3, s{sXCD}, 1\ns_lshl_b32 s3, s3, 11\ns_add_u32 s97, s97, s3")

    def g2_w_load(self, n, issued):
        a = self
        if n == 36:
            a(f"s_lshl_b32 s57, s60, 2\ns_add_u32 s57, s57, s53\ns_mul_i32 s57, s57, {4*9216}\ns_mul_i32 s3, s58, 2304\ns_add_u32 s57, s57, s3\ns_add_u32 s57, s57, {OT}")
        a(f"s_add_u32 m0, s63, {G2_W[(n >> 1) % 3] + (n & 1) * G2_WS}\ns_nop 0")
        for i in range(2):
            if n < 36:
                a(f"buffer_load_dwordx4 v{self.gW+i}, {srd(rW2)}, s57 offen offset:{1024*i} lds")
            else:
                a(f"buffer_load_dwordx4 v{(self.gZ if n == 40 else self.gP)+i}, {srd(rWS)}, s57 offen offset:{1024*i} sc1 lds")
            issued.append(100 + (n >> 1))
        a(f"s_add_u32 s57, s57, {32*4096 if n < 36 else 512}")

    def w2_touch(self):
        self(f"buffer_load_dword v69, v68, {srd(rW2)}, s97 offen\ns_add_u32 s97, s97, {288*4096}")

    def g2_prefill(self, issued):
        if self.o["w2a"]:
            self.w2_touch(); issued.append(99)
        if self.o["w2e"]:
            for n in range(self.o["w2p"]): self.g2_w_load(n, issued)

    def g2_loader(self):
        a = self
        NSTEP, NST = 41, 21
        vL, vO, vY = self.gL, self.gO, self.gY
        issued = []
        def a_load(n):
            if n == 36:
                a(f"s_mul_i32 s56, s58, 144\ns_lshl_b32 s3, s53, 3\ns_add_u32 s56, s56, s3\ns_mul_i32 s56, s56, 1152\ns_mul_i32 s3, s59, 384\ns_add_u32 s56, s56, s3")
            a(f"s_add_u32 m0, s{61 if n < 36 else 62}, {G2_U[(n >> 1) % 3] + (n & 1) * G2_US}\ns_nop 0")
            for i in range(3):
                if n < 36:
                    a(f"buffer_load_dwordx4 v{vL}, {srd(rWS)}, s56 offen offset:{1024*i} sc1 lds")
                else:
                    a(f"buffer_load_dwordx4 v{(vY if n == 40 else vO)+i}, {srd(rWO)}, s56 offen offset:{1024*i} lds")
                issued.append(100 + (n >> 1))
            a(f"s_add_u32 s56, s56, {4*9216 if n < 36 else 32*1152}")
        def steps(st): return [n for n in range(st * 2, min(NSTEP, st * 2 + 2))]
        o = self.o
        a("s_barrier")
        a(f"s_cmp_eq_u32 s{sWAVE}, 7\ns_cbranch_scc1 L_nosh")
        for h in range(2):
            a(f"ds_read_b128 v[{24+4*h}:{27+4*h}], v{60+h}\nds_read_b128 v[{32+4*h}:{35+4*h}], v{60+h} offset:3072")
        a("s_waitcnt lgkmcnt(0)")
        for i in range(4):
            a(f"v_pk_add_f32 v[{24+2*i}:{25+2*i}], v[{24+2*i}:{25+2*i}], v[{32+2*i}:{33+2*i}]")
        for g0 in a.gelu([24, 26, 28, 30], 64, 66, 44, [32, 33, 34, 35]):
            a(f"buffer_store_dwordx4 v[32:35], v62, {srd(rWS)}, s96 offen sc1")
        a("L_nosh:")
        a("s_waitcnt vmcnt(0)")
        a("s_barrier")
        a("s_barrier")
        a.stamp(7)
        if not o["w2e"]:
            for n in range(o["w2p"]): self.g2_w_load(n, issued)
        if o["w2c"]: self.w2_touch(); issued.append(99)
        a(f"s_cmp_lg_u32 s{sWAVE}, 7\ns_cbranch_scc1 L_nopollB")
        a.spoll_issue(98, self.A_PARTS)
        a.spoll_check(98, self.A_PARTS, [64 + 8 * k + i for k in range(4) for i in range(6)])
        a("L_nopollB:")
        a("s_barrier")
        a.stamp(8)
        for n in steps(0):
            a_load(n)
            if n >= o["w2p"]: self.g2_w_load(n, issued)
        self.sp2_setup()
        a(f"s_lshr_b32 s52, s60, 1\ns_lshl_b32 s52, s52, 2\ns_add_u32 s52, s52, s58\ns_lshl_b32 s52, s52, 7\ns_add_u32 s52, s52, {FLO}")
        a(f"s_add_u32 s50, s{rWS}, s52\ns_addc_u32 s51, s{rWS+1}, 0")
        op = [(64, 2, 0)]
        for i in range(NST):
            last = max(k for k, x in enumerate(issued) if x == 100 + i)
            nn = len(issued) - 1 - last
            assert nn < 64
            nxt = i + 2
            if self.o["att"] and nxt in (17, 18):
                lb = a.label("nopo")
                a(f"s_cmp_lg_u32 s{sWAVE}, 7\ns_cbranch_scc1 {lb}")
                if nxt == 17: a.spoll_issue(50, op)
                else: a.spoll_check(50, op, [64, 65])
                a(f"{lb}:")
            a(f"s_waitcnt vmcnt({nn})\ns_barrier")
            if i == 0:
                for n in steps(1) + steps(2):
                    a_load(n)
                    if n >= o["w2p"]: self.g2_w_load(n, issued)
            elif nxt < NST:
                for n in steps(nxt):
                    a_load(n); self.g2_w_load(n, issued)
            self.sp2_step(i)
        a.stamp(10)
        a("s_branch L_fin")

    def att(self):
        a = self
        a("L_att:")
        import gen_att
        a(f"s_cmp_lg_u32 s{sWAVE}, 0\ns_cbranch_scc1 L_att_o")
        gen_att.setup(self)
        a("s_waitcnt vmcnt(0)")
        self.ln_compute()
        self.ln_publish()
        a("s_branch L_att_j\nL_att_o:")
        gen_att.early(self)
        self.early_prefetch(True)
        self.ln_compute()
        gen_att.setup(self)
        a("L_att_j:")
        a.stamp(2)
        if self.o["att"]:
            gen_att.emit(self)

    def build(self):
        a = self
        a.launch(KNAME, 256, 512, LDS_BYTES)
        a.kd(KNAME, 256)
        self.entry()
        self.mlp_compute()
        self.mlp_aux()
        self.att()
        a("L_fin:")
        a.stamp(15)
        if self.o["probe"]:
            a(f"s_cmp_lg_u32 s2, {self.o.get('probe_wg', 0)}\ns_cbranch_scc1 L_end\nL_probe:\ns_memrealtime s[98:99]\ns_waitcnt lgkmcnt(0)\ns_sub_u32 s98, s98, s100\ns_cmp_lt_u32 s98, {self.o['probe']*100}\ns_cbranch_scc1 L_probe")
        self.dump_stamps(4)
        a("L_end:\ns_endpgm\nL_code_end:")
        return a.text(single=True)


if __name__ == "__main__":
    import json
    opt = json.loads(sys.argv[2]) if len(sys.argv) > 2 else {}
    open(sys.argv[1], "w").write(Gen(**opt).build())
```

```python
from gen import *
import re

A_SLOT, A_NS, A_W = 30720, 4, 16384
IMG_P = 472
PARK = 122880
WPH = PARK + 20480
JUNK7 = WPH + 4096
ZERO = JUNK7 + 2048
JUNK = ZERO + 128
TAB = LN_SCR
KVB = 15360
assert JUNK + 8 <= LN_SCR

cA, cA4, cB0, cB1 = 224, 225, 226, 227
vH, vW = 228, 230
aV, aT4, aK, aKA, aKB, aP, aR, aL, aB, aO, aF, aPK, vT, aS2 = 232, 233, 234, 235, 236, 237, 239, 241, 243, 247, 249, 250, 251, 252
aG = 253
sTB, sTG, sHP = 96, 97, 98


def setup(a):
    o = a.o
    vG, vN, vOOB = 70, 71, 72
    a(f"s_sub_u32 s{sTB}, s{sIDX}, 24\ns_and_b32 s{sTG}, s{sWAVE}, 3\ns_lshr_b32 s{sHP}, s{sWAVE}, 2")
    a(f"v_lshrrev_b32 v{vG}, 4, v0\nv_and_b32 v{vN}, 15, v0\nv_mov_b32 v{vOOB}, {OOB}")
    for i in range(2):
        a(f"s_lshl_b32 s3, s{sWAVE}, 7\ns_add_u32 s3, s3, {64*i}\nv_add_u32 v73, s3, v0")
        a.divmod_const(74, 75, 73, 27, 76)
        a.divmod_const(77, 78, 75, 9, 76)
        a(f"v_mul_u32_u24 v74, 3456, v74\nv_mul_u32_u24 v77, 1152, v77\nv_lshlrev_b32 v78, 4, v78\nv_cmp_gt_u32 vcc, 864, v73\nv_add3_u32 v74, v74, v77, v78")
        a(f"v_subrev_u32 v74, {1024*i}, v74\nv_cndmask_b32 v{vW+i}, v{vOOB}, v74, vcc")
    a(f"s_mul_i32 s28, s{sXCD}, 144\ns_lshl_b32 s99, s{sWAVE}, 11\ns_add_u32 s62, s99, {A_W}")
    a(f"s_cmp_eq_u32 s{sWAVE}, 7\ns_cselect_b32 s61, 0, -1\ns_cselect_b32 s62, {JUNK7}, s62")
    a(f"v_lshrrev_b32 v73, 5, v0\nv_and_b32 v74, 31, v0\nv_xor_b32 v74, v74, v73\nv_mul_u32_u24 v75, 9216, v73\nv_lshl_add_u32 v{vH}, v74, 4, v75")
    a(f"v_add_u32 v{vH+1}, {2*9216-1024}, v{vH}")
    a(f"s_lshl_b32 s29, s{sTB}, 5\ns_lshl_b32 s3, s{sWAVE}, 2\ns_add_u32 s29, s29, s3\ns_mul_i32 s29, s29, 9216\ns_add_u32 s29, s29, {HT}")
    a(f"v_lshrrev_b32 v74, 2, v0\nv_lshlrev_b32 v74, 1, v74\nv_and_b32 v75, 3, v0")
    a(f"s_mul_i32 s38, s{sHP}, 72\ns_add_u32 s3, s38, {A_W}\nv_mul_u32_u24 v76, 432, v74\nv_add_u32 v76, s3, v76")
    a(f"v_lshl_add_u32 v{cA}, v75, 3, v76\nv_min_u32 v77, 2, v75\nv_mul_u32_u24 v77, 144, v77\nv_add3_u32 v{cA4}, v76, v77, 64")
    a(f"v_lshrrev_b32 v77, 1, v75\nv_xor_b32 v78, v74, v77\nv_lshlrev_b32 v78, 4, v78\nv_lshl_add_u32 v78, v77, 9, v78")
    a(f"v_and_b32 v77, 1, v75\nv_lshl_add_u32 v78, v77, 3, v78\ns_lshl_b32 s3, s{sTG}, 12\nv_add_u32 v{cB0}, s3, v78\nv_xor_b32 v{cB1}, 16, v{cB0}")
    a(f"v_lshlrev_b32 v{aS2}, 2, v{vN}\nv_mov_b32 v74, 0\nv_add_u32 v75, {ZERO}, v{aS2}\nds_write_b32 v75, v74\nds_write_b32 v75, v74 offset:64")


def late_setup(g):
    o = g.o
    out = []
    def a(t):
        t = re.sub(r"v7(\d)\b", lambda m: f"v{5+int(m.group(1))}", t)
        t = re.sub(r"s3\b", "s41", t)
        ls = t.split("\n")
        k = 0
        while k < len(ls):
            if ls[k].startswith("s_bitcmp"):
                out.append("\n".join(ls[k:k+3])); k += 3
            elif ls[k].startswith("s_nop"):
                k += 1
            else:
                out.append(ls[k]); k += 1
    vG, vN, vOOB = 70, 71, 72
    a(f"v_lshrrev_b32 v{vG}, 4, v0\nv_and_b32 v{vN}, 15, v0\nv_mov_b32 v{vOOB}, {OOB}\nv_lshrrev_b32 v73, 5, v0\nv_and_b32 v75, 3, v0")
    a(f"s_lshl_b32 s3, s{sHP}, 11\ns_add_u32 s3, s3, {WPH}\nv_lshl_add_u32 v76, v75, 1, s3\nv_bfe_u32 v77, v0, 2, 2\nv_mul_u32_u24 v77, 18, v77")
    a(f"s_and_b32 s38, s{sTG}, 1\ns_lshl_b32 s38, s38, 1\ns_lshr_b32 s39, s{sTG}, 1\ns_lshl_b32 s3, s39, 4\ns_add_u32 s3, s3, s38\nv_lshl_add_u32 v78, v{vG}, 2, s3")
    a(f"v_sub_u32 v77, v78, v77\nv_cmp_gt_u32 vcc, 18, v77\nv_mul_u32_u24 v78, 36, v78\nv_add_u32 v78, v78, v76\nv_mov_b32 v79, {ZERO}\nv_cndmask_b32 v{aG}, v79, v78, vcc")
    a(f"s_lshl_b32 s39, s39, 1\ns_add_u32 s39, s39, 5\nv_lshrrev_b32 v74, 2, v0\nv_cmp_eq_u32 vcc, s39, v74\ns_mul_i32 s38, s38, 36\ns_add_u32 s38, s38, {32*36}\nv_add_u32 v78, s38, v76\nv_cndmask_b32 v{aG+1}, v79, v78, vcc")
    a(f"s_mul_i32 s3, s{sHP}, 10240\ns_add_u32 s3, s3, {PARK}\nv_lshl_add_u32 v{aPK}, v0, 4, s3\ns_lshl_b32 s3, s{sTG}, 2\nv_add_u32 v15, s3, v{aPK}")
    n_first = len(out)
    a(f"v_lshlrev_b32 v74, 1, v74\ns_mul_i32 s38, s{sHP}, 72")
    a(f"v_lshlrev_b32 v{vT}, 12, v{vG}\nv_lshl_add_u32 v{vT}, v{vN}, 7, v{vT}")
    a(f"s_lshl_b32 s63, s{sTB}, 3\ns_add_u32 s63, s63, s{sWAVE}\ns_lshl_b32 s63, s63, 2\ns_add_u32 s63, s63, {o['aw2r']}")
    a(f"s_lshr_b32 s42, s{sXCD}, 1\ns_mul_i32 s42, s42, {1152*4096}\ns_and_b32 s3, s{sXCD}, 1\ns_lshl_b32 s3, s3, 11\ns_add_u32 s42, s42, s3")
    a(f"v_lshlrev_b32 v{aF}, 9, v0")
    a(f"s_mul_i32 s3, s{sTG}, {64*IMG_P}\nv_mul_u32_u24 v76, {IMG_P}, v{vN}\nv_add_u32 v76, s3, v76")
    a(f"s_add_u32 s3, s38, 320\nv_lshl_add_u32 v{aV}, v{vG}, 3, s3\nv_add_u32 v{aV}, v{aV}, v76")
    a(f"s_add_u32 s3, s3, 64\nv_cmp_eq_u32 vcc, 3, v{vG}\nv_mov_b32 v77, s3\nv_mov_b32 v78, 464\nv_cndmask_b32 v77, v77, v78, vcc\nv_add_u32 v{aT4}, v77, v76")
    a(f"v_and_b32 v79, 1, v{vG}\nv_mul_u32_u24 v77, 80, v79\nv_mul_u32_u24 v78, {16*IMG_P}, v73\ns_mul_i32 s3, s{sHP}, 160\nv_add3_u32 v{aK}, v76, v77, v78\nv_add_u32 v{aK}, s3, v{aK}")
    a(f"v_and_b32 v76, 14, v74\nv_add_u32 v76, v76, v73\nv_mul_u32_u24 v76, {2*IMG_P}, v76")
    a(f"s_lshr_b32 s39, s{sWAVE}, 1\ns_mul_i32 s3, s39, 80\nv_lshl_add_u32 v{aKA}, v75, 3, s3\nv_add_u32 v{aKA}, v{aKA}, v76")
    a(f"s_add_u32 s38, s38, 320\ns_and_b32 s3, s39, 1\ns_mul_i32 s3, s3, 40\ns_add_u32 s3, s3, s38\nv_lshl_add_u32 v77, v75, 3, s3\ns_add_u32 s38, s38, 32")
    a(f"v_cmp_eq_u32 vcc, 0, v75\nv_mov_b32 v78, 464\nv_mov_b32 v{aKB}, s38\nv_cndmask_b32 v78, v78, v{aKB}, vcc")
    a(f"s_bitcmp0_b32 s{sWAVE}, 0\ns_cselect_b64 vcc, -1, 0\ns_cselect_b32 s38, 16, 8\nv_cndmask_b32 v77, v78, v77, vcc\nv_add_u32 v{aKB}, v77, v76")
    a(f"v_cmp_gt_u32 vcc, s38, v{vN}\nv_mul_u32_u24 v76, s38, v{vG}\nv_add_lshl_u32 v76, v76, v{vN}, 4\ns_lshl_b32 s40, s38, 6")
    a(f"v_cndmask_b32 v{aP}, v{vOOB}, v76, vcc\nv_cmp_gt_u32 vcc, 2, v{vG}\ns_lshl_b32 s30, s{sXCD}, 3\ns_add_u32 s30, s30, s{sTB}\nv_cndmask_b32 v{aP+1}, v{vOOB}, v{aP}, vcc")
    a(f"s_mul_i32 s30, s30, {KVB}\ns_mul_i32 s3, s39, 3840\ns_add_u32 s30, s30, s3\ns_add_u32 s30, s30, {KVP}")
    a(f"s_lshl_b32 s36, s{sXCD}, 12\ns_add_u32 s36, s36, {FLKV}\ns_lshl_b32 s3, s39, 7\ns_add_u32 s36, s36, s3")
    a(f"s_lshl_b32 s31, s{sTB}, 1\ns_and_b32 s3, s{sWAVE}, 1\ns_add_u32 s31, s31, s3\ns_lshl_b32 s31, s31, 2\ns_add_u32 s31, s31, s36\ns_lshl_b32 s3, s{sTB}, 9\ns_add_u32 s36, s36, s3")
    a(f"s_and_b32 s3, s{sWAVE}, 1\ns_mul_i32 s3, s3, 120\nv_add_u32 v76, s3, v0\ns_mul_i32 s38, s39, 1920\ns_add_u32 s38, s38, {TAB}")
    for i in range(2):
        if i: a("v_add_u32 v76, 64, v76")
        a(f"v_cmp_gt_u32 vcc, 160, v76\nv_lshrrev_b32 v77, 4, v76\nv_and_b32 v78, 15, v76\nv_lshrrev_b32 v74, 3, v76\nv_subrev_u32 v74, 20, v74\nv_and_or_b32 v75, v76, 7, 16")
        a(f"v_cndmask_b32 v77, v74, v77, vcc\nv_cndmask_b32 v78, v75, v78, vcc")
        a(f"v_mul_u32_u24 v78, 80, v78\nv_lshlrev_b32 v77, 3, v77\nv_add3_u32 v{aL+i}, v78, v77, s38\nv_lshlrev_b32 v{aR+i}, 4, v76")
    a(f"v_cmp_gt_u32 vcc, 56, v0\nv_mov_b32 v77, {JUNK}\ns_nop 0\nv_cndmask_b32 v{aR+1}, v{vOOB}, v{aR+1}, vcc\nv_cndmask_b32 v{aL+1}, v77, v{aL+1}, vcc")
    a(f"v_lshrrev_b32 v76, 3, v{vN}\nv_and_b32 v77, 7, v0\nv_cmp_eq_u32 vcc, v76, v79")
    a(f"s_mul_i32 s3, s{sHP}, 3840\ns_add_u32 s3, s3, {TAB}\nv_mul_u32_u24 v74, 1920, v76\nv_mul_u32_u24 v75, 40, v73\nv_add3_u32 v74, v74, v75, s3")
    a(f"v_lshlrev_b32 v75, 1, v76\nv_sub_u32 v75, v77, v75\nv_mov_b32 v{aO}, {ZERO}")
    for t in range(4):
        if t < 3:
            a(f"v_add_u32 v78, {8*t+20}, v75\nv_add_u32 v{aB+t}, {8*t}, v75\nv_min_u32 v78, v78, v{aB+t}\nv_min_u32 v78, 20, v78\nv_mul_u32_u24 v78, 80, v78\nv_add_u32 v78, v78, v74")
        else:
            a("v_add_u32 v78, 1600, v74")
        a(f"v_cndmask_b32 v{aB+t}, v{aO}, v78, vcc")
    a(f"v_mul_u32_u24 v76, 18, v76\nv_add_lshl_u32 v76, v76, v77, 4\nv_lshl_add_u32 v78, v79, 1, v73\nv_cmp_gt_u32 vcc, 2, v77")
    a(f"s_mul_i32 s3, s{sTG}, {8*1152}\ns_mul_i32 s38, s{sHP}, 576\ns_add_u32 s3, s3, s38\nv_mul_u32_u24 v78, 1152, v78\nv_add3_u32 v{aO}, v78, v76, s3")
    a(f"v_mov_b32 v78, {40960}\nv_cndmask_b32 v{aO+1}, v78, v{aO}, vcc")
    a(f"s_mul_i32 s37, s{sTB}, {32*9216}\ns_mul_i32 s3, s{sXCD}, 1152\ns_add_u32 s37, s37, s3\ns_add_u32 s37, s37, {OT}")
    return out, n_first


def early(a):
    a(f"s_and_b32 s3, s{sWAVE}, 3\ns_cmp_lg_u32 s3, 1\ns_cbranch_scc1 L_att_g0\ns_lshr_b32 s49, s{sWAVE}, 2")
    a(f"s_lshl_b32 s3, s49, 11\ns_add_u32 m0, s3, {WPH}\ns_lshl_b32 s48, s{sXCD}, 1\ns_add_u32 s48, s48, s49\ns_mul_i32 s48, s48, 1296")
    a(f"buffer_load_dwordx4 v63, {srd(rWPHI)}, s48 offen lds\nbuffer_load_dwordx4 v63, {srd(rWPHI)}, s48 offen offset:1024 lds")
    a("L_att_g0:")


def mix(a, base, ins, every, start=0):
    ins = list(ins)
    for i, x in enumerate(base):
        a(x)
        if ins and i >= start and (i - start) % every == 0:
            a(ins.pop(0))
    for x in ins: a(x)


def emit(a):
    o = a.o
    ACC = 24
    P, Q = 136, 180
    bA, bA4, bB0, bB1 = 1, 2, 3, 4
    vS = 16
    a(f"s_cmp_eq_u32 s{sWAVE}, 0\ns_cbranch_scc0 L_att_s0")
    a.bar_pub()
    a("L_att_s0:")
    setup(a)
    issued = []
    def w_dma(st):
        r = [f"s_and_b32 s3, s61, {(st % A_NS)*A_SLOT}", "s_add_u32 m0, s62, s3", "s_nop 0"]
        for i in range(2):
            r.append(f"buffer_load_dwordx4 v{vW+i}, {srd(rWQKV)}, s28 offen offset:{1024*i} lds")
            issued.append(st)
        r.append(f"s_add_u32 s28, s28, {32*3456}")
        return r
    def h_dma(st):
        r = [f"s_add_u32 m0, s99, {(st % A_NS)*A_SLOT}", "s_nop 0"]
        for i in range(2):
            r.append(f"buffer_load_dwordx4 v{vH+i}, {srd(rWS)}, s29 offen offset:{1024*i} sc1 lds")
            issued.append(st)
        r.append("s_add_u32 s29, s29, 0x200")
        return r
    def emit_l(r):
        for x in r: a(x)
    def vm(st):
        last = max(i for i, x in enumerate(issued) if x == st)
        return len(issued) - 1 - last
    tch = [o["aw2r"]]
    def w2_touch(n):
        r = []
        for _ in range(n):
            if tch[0] >= 1152: break
            if tch[0] + 256 > 1152:
                r.append("s_min_u32 s63, s63, 1148")
            r += a.ord_row(3, "s63") + ["s_lshl_b32 s3, s3, 12", "s_add_u32 s3, s3, s42", f"buffer_load_dword v255, v{vT}, {srd(rW2)}, s3 offen", "s_add_u32 s63, s63, 256"]
            issued.append(-1)
            tch[0] += 256
        return r
    def wo_touch():
        issued.append(-1)
        return (f"s_lshl_b32 s3, s{sTB}, 3\ns_add_u32 s3, s3, s{sWAVE}\ns_mul_i32 s3, s3, 2688\ns_lshr_b32 s49, s{sXCD}, 1\ns_mul_i32 s49, s49, {144*1152}\ns_add_u32 s3, s3, s49\n"
                f"v_min_u32 v10, 20, v0\nv_lshlrev_b32 v10, 7, v10\nv_add_u32 v10, s3, v10\nbuffer_load_dword v255, v10, {srd(rWO)}, 0 offen").split("\n")
    a(f"s_add_u32 s3, s{sXCD}, 24")
    a.A_addr(f"s{sTB}", "s3")
    a(f"s_cmp_eq_u32 s{sWAVE}, 7\ns_cbranch_scc0 L_att_s7")
    a.spoll_issue(50, a.A_PARTS)
    a("L_att_s7:")
    if o["awq"]:
        a(f"s_lshl_b32 s52, s{sTB}, 3\ns_add_u32 s52, s52, s{sWAVE}")
        a.touch_pattern(80, o["awq"], 3456, True)
    a(f"s_cmp_eq_u32 s{sWAVE}, 0\ns_cbranch_scc1 L_att_s1")
    a.bar_pub()
    a("L_att_s1:")
    early(a)
    if o["awq"]:
        a.touch_wqkv(80, "s52", o["awq"], 56 * o["w1a"], 255)
        issued.append(-1)
    NPRE = o.get("apre", 2)
    for st in range(NPRE): emit_l(w_dma(st))
    for x, y in ((bA, cA), (bA4, cA4), (bB0, cB0), (bB1, cB1)): a(f"v_mov_b32 v{x}, v{y}")
    a(f"s_cmp_lg_u32 s{sWAVE}, 7\ns_cbranch_scc1 L_att_np")
    a.spoll_check(50, a.A_PARTS, a.A_REGS)
    a("L_att_np:")
    a("s_barrier")
    a.stamp(3)
    emit_l(h_dma(0))
    emit_l(h_dma(1))
    a(f"s_lshl_b32 s3, s{sTB}, 2\ns_add_u32 s3, s3, s{sTG}\ns_lshl_b32 s3, s3, 8\ns_add_u32 s3, s3, {S2}")
    for t in range(4):
        a(f"buffer_load_dword v{vS+2*t}, v{aS2}, {srd(rWS)}, s3 offen offset:{64*t} sc1")
        issued.append(-1)

    TOFF = [0, 32, 144, 176, None, 288, 320]
    def reads(st):
        r = []
        def rb(tt):
            return [f"ds_read_b64_tr_b16 v[{st+28+4*tt+2*rho}:{st+29+4*tt+2*rho}], v{bB1 if rho else bB0} offset:{1024*tt}" for rho in range(2)]
        r += rb(0)
        for T in range(7):
            for rho in range(2):
                if T == 4:
                    r.append(f"ds_read_b64_tr_b16 v[{st+4*T+2*rho}:{st+4*T+2*rho+1}], v{bA4} offset:{432*rho}")
                else:
                    r.append(f"ds_read_b64_tr_b16 v[{st+4*T+2*rho}:{st+4*T+2*rho+1}], v{bA} offset:{432*rho+TOFF[T]}")
        for tt in range(1, 4): r += rb(tt)
        return r
    def mfmas(st, first=False):
        m = []
        for tt in range(4):
            for T in range(7):
                d = ACC + 28 * tt + 4 * T
                m.append(f"v_mfma_f32_16x16x32_bf16 v[{d}:{d+3}], v[{st+4*T}:{st+4*T+3}], v[{st+28+4*tt}:{st+31+4*tt}], {'0' if first else f'v[{d}:{d+3}]'}")
        return m
    def advance(st):
        off = (st % A_NS) * A_SLOT
        return [f"v_add_u32 v{x}, {off}, v{y}" for x, y in ((bA, cA), (bA4, cA4), (bB0, cB0), (bB1, cB1))]
    a(f"s_waitcnt vmcnt({vm(0)})\ns_barrier")
    a.stamp(4)
    for r in reads(P): a(r)
    for r in advance(1): a(r)
    NS_ = 18
    nh, nw = [2], [NPRE]
    LA = o.get("ala", 2)
    def more(upto, cap):
        r = []
        k = 0
        while k < cap and min(nh[0], nw[0]) <= min(upto, NS_ - 1):
            if nw[0] <= nh[0]:
                r += w_dma(nw[0]); nw[0] += 1
            else:
                r += h_dma(nh[0]); nh[0] += 1
            k += 1
        return r
    emit_l(more(2, 2))
    if o.get("aprio"):
        a(f"s_cmp_lg_u32 s{sHP}, {o['aprio'] - 1}\ns_cbranch_scc1 L_att_pr\ns_setprio 1\nL_att_pr:")
    tails = []
    fill, nf = late_setup(a)
    assert nf <= 56 and len(fill) <= 28 * 16
    PQ, PKk, PT, PV = 136, 152, 168, 4
    def conv(tt):
        r = ACC + 28 * tt
        pv = PV + 6 * (tt & 1)
        l = [f"v_cvt_pk_bf16_f32 v{PKk+4*tt+i}, v{r+8+2*i}, v{r+9+2*i}" for i in range(4)]
        l += [f"v_cvt_pk_bf16_f32 v{PT+2*tt+i}, v{r+16+2*i}, v{r+17+2*i}" for i in range(2)]
        l += [f"v_cvt_pk_bf16_f32 v{PQ+4*tt+i}, v{r+2*i}, v{r+1+2*i}" for i in range(4)]
        l += [f"v_pk_mul_f32 v[{r+16+2*i}:{r+17+2*i}], v[{r+16+2*i}:{r+17+2*i}], v[{vS+2*tt}:{vS+2*tt+1}] op_sel_hi:[1,0]" for i in range(6)]
        l += [f"v_cvt_pk_bf16_f32 v{pv+i}, v{r+16+2*i}, v{r+17+2*i}" for i in range(6)]
        l += [f"v_cndmask_b32 v{pv}, v{pv}, v3, vcc", f"v_cndmask_b32 v{pv+1}, v{pv+1}, v3, vcc"]
        l += [f"ds_write_b64 v{aV}, v[{pv+2}:{pv+3}] offset:{16*IMG_P*tt}", f"ds_write_b64 v{aV}, v[{pv+4}:{pv+5}] offset:{16*IMG_P*tt+32}"]
        l += [f"s_mov_b32 exec_lo, 0\nds_write_b64 v{aT4}, v[{pv}:{pv+1}] offset:{16*IMG_P*tt}\ns_mov_b32 exec_lo, -1"]
        return l
    for n in range(NS_):
        st, nx = (P, Q)[n & 1], (P, Q)[(n + 1) & 1]
        if n + 1 < NS_:
            rel = o.get("arel", 1)
            assert not rel or LA <= 2
            tailn = 2 if 3 <= n <= 12 else 0
            a(f"s_waitcnt vmcnt({vm(n+1)}) lgkmcnt({min(14, 6 + tailn) if rel else 0})\ns_barrier")
            ds = reads(nx)
            if n + 2 < NS_: ds += advance(n + 2)
            dm = more(n + 1 + LA, 3)
            if n >= 15: dm += w2_touch(o["aw2"][n - 15])
            if n == 16 and o["awo"]: dm += wo_touch()
            if "a" in o["dbg"]: dm = []
            if "b" in o["dbg"]: ds = []
            if "f" in o["dbg"] and n == 0:
                for x in fill: a(x)
                fill.clear()
            if o.get("adm") == 1:
                ds = ds[:22] + ["\n".join(dm)] + ds[22:]; dm = []
            if o.get("adm") == 2:
                emit_l(dm); dm = []
            if dm:
                la_, lb_, lc_, ld_ = (a.label("ad") for _ in range(4))
                a(f"s_cmp_eq_u32 s{sHP}, 1\ns_cbranch_scc1 {la_}\n{lb_}:")
                tails.append((la_, dm, lb_))
            if 2 <= n <= 11:
                k_ = n - 2
                ds += [f"ds_read_u16 v17, v{aG + k_ // 5} offset:{8*(k_%5)}", f"ds_read_u16 v19, v{aG + k_ // 5} offset:{8*(k_%5)+36}"]
            if 3 <= n <= 12:
                k_ = n - 3
                ds = ds[:8] + [f"v_lshl_or_b32 v21, v19, 16, v17\nds_write_b32 v15, v21 offset:{1024*k_}"] + ds[8:]
            for i_, m_ in enumerate(mfmas(st, n == 0)):
                if rel and i_ == 7: a("s_waitcnt lgkmcnt(7)")
                a(m_)
                if ds: a(ds.pop(0))
                if fill: a(fill.pop(0))
            for x in ds: a(x)
            if dm:
                a(f"s_cmp_eq_u32 s{sHP}, 0\ns_cbranch_scc1 {lc_}\n{ld_}:")
                tails.append((lc_, dm, ld_))
            if n == NS_ - 2:
                a("s_branch L_att_g")
                for l0, dm, l1 in tails:
                    a(f"{l0}:"); emit_l(dm); a(f"s_branch {l1}")
                tails = []
                a("L_att_g:")
        else:
            a("s_waitcnt lgkmcnt(0)\ns_barrier")
            emit_l(w2_touch(o["aw2"][2]))
            a("s_mov_b32 vcc_lo, 0\ns_mov_b32 vcc_hi, 0xffff0000\nv_mov_b32 v3, 0x3f803f80")
            m = mfmas(st)
            for x in m[:15]: a(x)
            c0 = conv(0)
            mix(a, m[15:], ["\n".join(c0[2*i:2*i+2]) for i in range(12)], 1)
            for x in c0[24:]: a(x)
    assert not tails
    a.stamp(5)
    if o["stamps"]: a("s_waitcnt lgkmcnt(0)")
    A0, A1, A3 = 180, 200, 24
    a(f"v_xor_b32 v1, 128, v{aPK}\nv_xor_b32 v2, 256, v{aPK}")
    rd = [f"ds_read_b128 v[{A0+4*u}:{A0+4*u+3}], v{aPK} offset:{1024*u}" for u in range(5)]
    rd += [f"ds_read_b128 v[{A1+4*u}:{A1+4*u+3}], v1 offset:{1024*u}" for u in range(5)]
    rd += [f"ds_read_b128 v[{A3+4*u}:{A3+4*u+3}], v{aPK} offset:{5120+1024*u}" for u in range(5)]
    for x in rd: a(x)
    for x in conv(1): a(x)
    PA = [44, 64]
    E1, E2 = 84, 102
    def fmf(src, p, d0):
        l = []
        for part, (A_, b_) in enumerate(((A0, src + 8 * p), (A1, src + 8 * p + 4), (A3, PT + 4 * p))):
            for u in range(5):
                d = d0 + 4 * u
                l.append(f"v_mfma_f32_16x16x32_bf16 v[{d}:{d+3}], v[{A_+4*u}:{A_+4*u+3}], v[{b_}:{b_+3}], {'0' if part == 0 else f'v[{d}:{d+3}]'}")
        return l
    a("s_waitcnt lgkmcnt(3)")
    c23 = conv(2) + conv(3)
    mix(a, c23, fmf(PKk, 0, PA[0]), 3)
    vL = [120, 122]
    a(f"s_mov_b32 vcc_lo, -1\ns_mov_b32 vcc_hi, 0\ns_mov_b32 s3, {fhex(LOG2E)}\nv_cndmask_b32 v{vL[0]}, v{vS+2}, v{vS}, vcc\nv_cndmask_b32 v{vL[1]}, v{vS+6}, v{vS+4}, vcc")
    a(f"v_mul_f32 v{vL[0]}, s3, v{vL[0]}\nv_mul_f32 v{vL[1]}, s3, v{vL[1]}")
    def soft(p, X, Y, nxt=()):
        d = PA[p]
        L = vL[p]
        a(f"v_max_f32 v4, v{d}, v{d+1}\nv_min_f32 v6, v{d}, v{d+1}")
        for i in range(1, 9):
            a(f"v_max3_f32 v4, v4, v{d+2*i}, v{d+2*i+1}\nv_min3_f32 v6, v6, v{d+2*i}, v{d+2*i+1}")
        a(f"v_mul_f32 v4, v{L}, v4\nv_mul_f32 v6, v{L}, v6")
        for i in range(9):
            a(f"v_pk_fma_f32 v[{E1+2*i}:{E1+2*i+1}], v[{d+2*i}:{d+2*i+1}], v[{L}:{L+1}], v[4:5] op_sel_hi:[1,0,0] neg_lo:[0,0,1] neg_hi:[0,0,1]")
        for i in range(9):
            a(f"v_pk_fma_f32 v[{E2+2*i}:{E2+2*i+1}], v[{d+2*i}:{d+2*i+1}], v[{L}:{L+1}], v[6:7] op_sel_hi:[1,0,0] neg_lo:[1,0,0] neg_hi:[1,0,0]")
        mix(a, [f"v_exp_f32 v{E1+i}, v{E1+i}" for i in range(36)], nxt, 2)
        a(f"v_pk_add_f32 v[4:5], v[{E1}:{E1+1}], v[{E1+2}:{E1+3}]\nv_pk_add_f32 v[6:7], v[{E2}:{E2+1}], v[{E2+2}:{E2+3}]")
        for i in range(2, 9):
            a(f"v_pk_add_f32 v[4:5], v[4:5], v[{E1+2*i}:{E1+2*i+1}]\nv_pk_add_f32 v[6:7], v[6:7], v[{E2+2*i}:{E2+2*i+1}]")
        a("v_add_f32 v4, v4, v5\nv_add_f32 v6, v6, v7\nv_rcp_f32 v4, v4\nv_rcp_f32 v6, v6")
        for E, c in ((E1, 4), (E2, 6)):
            for i in range(9):
                a(f"v_pk_mul_f32 v[{E+2*i}:{E+2*i+1}], v[{E+2*i}:{E+2*i+1}], v[{c}:{c+1}] op_sel_hi:[1,0]")
        for i in range(9): a(f"v_cvt_pk_bf16_f32 v{X+i}, v{E1+2*i}, v{E1+2*i+1}")
        for i in range(9): a(f"v_cvt_pk_bf16_f32 v{Y+i}, v{E2+2*i}, v{E2+2*i+1}")
    XO, YO = 124, 14
    def kwr(p):
        for h, R in enumerate((XO, YO)):
            for i in range(4):
                a(f"ds_write_b64 v{aK}, v[{R+2*i}:{R+2*i+1}] offset:{32*IMG_P*p+40*h+8*i}")
            a(f"ds_write_b32 v{aK}, v{R+8} offset:{32*IMG_P*p+40*h+32}")
    a.align8()
    soft(0, XO, YO, fmf(PKk, 1, PA[1]))
    for u in range(5): a(f"ds_read_b128 v[{A3+4*u}:{A3+4*u+3}], v2 offset:{5120+1024*u}")
    kwr(0)
    emit_l(w2_touch(o["aw2"][3]))
    a.align8()
    soft(1, XO, YO, ["s_waitcnt lgkmcnt(0)"] + fmf(PQ, 0, PA[0]))
    kwr(1)
    a.stamp(6)
    a(f"v_add_u32 v1, {128*IMG_P}, v{aKA}\nv_add_u32 v2, {128*IMG_P}, v{aKB}")
    KA = 152
    FR = [64, 84, 100]
    a("s_waitcnt lgkmcnt(0)\ns_barrier")
    def kvr(ks):
        st = FR[ks % 3]
        ra, rb_ = (aKA, aKB) if ks < 4 else (1, 2)
        off = (ks & 3) * 32 * IMG_P
        r = [f"ds_read_b64_tr_b16 v[{st+12+2*rho}:{st+13+2*rho}], v{rb_} offset:{off+rho*IMG_P}" for rho in range(2)]
        for mt in range(3):
            r += [f"ds_read_b64_tr_b16 v[{st+4*mt+2*rho}:{st+4*mt+2*rho+1}], v{ra} offset:{off+rho*IMG_P+32*mt}" for rho in range(2)]
        return r
    for x in kvr(0) + kvr(1): a(x)
    for ks in range(8):
        a(f"s_waitcnt lgkmcnt({8 if ks + 1 < 8 else 0})")
        st = FR[ks % 3]
        m = [f"v_mfma_f32_16x16x32_bf16 v[{KA+4*mt}:{KA+4*mt+3}], v[{st+4*mt}:{st+4*mt+3}], v[{st+12}:{st+15}], {'0' if ks == 0 else f'v[{KA+4*mt}:{KA+4*mt+3}]'}" for mt in range(3)]
        r = kvr(ks + 2) if ks + 2 < 8 else []
        for mt in range(3):
            a(m[mt])
            for x in r[3*mt:3*mt+3]: a(x)
    a(f"s_and_b32 s3, s{sWAVE}, 1\ns_mul_i32 s3, s3, 2560\ns_add_u32 s3, s3, s30\ns_nop 4")
    for mt in range(3):
        a(f"buffer_store_dwordx4 v[{KA+4*mt}:{KA+4*mt+3}], v{aP+(mt>>1)}, {srd(rWS)}, s3 offen sc1\ns_add_u32 s3, s3, s40")
    a.stamp(7)
    QR = [124, 14, 152, 164]
    def signal():
        a("s_waitcnt vmcnt(0)")
        a.set_flags("s31", aF, 8, 8)
    def swaps(X, Y):
        a(f"v_mov_b32 v{X+9}, 0\nv_mov_b32 v{Y+9}, 0")
        for i in range(9): a(f"v_permlane32_swap_b32 v{X+i}, v{Y+i}")
    a(f"s_cmp_eq_u32 s{sHP}, 0\ns_cbranch_scc1 L_att_q0")
    signal()
    a("L_att_q0:")
    a.align8()
    soft(0, QR[0], QR[1], fmf(PQ, 1, PA[1])); swaps(QR[0], QR[1])
    a(f"s_cmp_eq_u32 s{sHP}, 1\ns_cbranch_scc1 L_att_q1")
    signal()
    a("L_att_q1:")
    RD = [180, 24]
    def gather():
        a.save_stamps()
        a.spoll("s36", [(64, 16, 0)], list(range(64, 80)))
        a.restore_stamps()
        a(f"s_mul_i32 s3, s{sTB}, {KVB}\ns_sub_u32 s3, s30, s3")
        for t in range(8):
            for i in range(2):
                a(f"buffer_load_dwordx4 v[{RD[i]+4*t}:{RD[i]+4*t+3}], v{aR+i}, {srd(rWS)}, s3 offen sc1")
            a(f"s_add_u32 s3, s3, {KVB}")
    a(f"s_cmp_eq_u32 s{sHP}, 0\ns_cbranch_scc1 L_att_q2")
    gather()
    a("L_att_q2:")
    a.align8()
    soft(1, QR[2], QR[3]); swaps(QR[2], QR[3])
    a.stamp(8)
    a(f"s_cmp_eq_u32 s{sHP}, 1\ns_cbranch_scc1 L_att_q3")
    gather()
    a("L_att_q3:")
    a(f"s_mov_b32 s48, {fhex(1e-6)}\ns_mul_i32 s3, s{sWAVE}, {4*9216}\ns_add_u32 s37, s37, s3\ns_mul_i32 s3, s{sWAVE}, {4*1152}\nv_lshl_add_u32 v1, v0, 4, s3")
    for t in range(1, 8):
        a(f"s_waitcnt vmcnt({14-2*t})")
        for i in range(2):
            for h in range(2):
                a(f"v_pk_add_f32 v[{RD[i]+2*h}:{RD[i]+2*h+1}], v[{RD[i]+2*h}:{RD[i]+2*h+1}], v[{RD[i]+4*t+2*h}:{RD[i]+4*t+2*h+1}]")
    for i in range(2):
        a(f"v_cvt_pk_bf16_f32 v{RD[i]}, v{RD[i]}, v{RD[i]+1}\nv_cvt_pk_bf16_f32 v{RD[i]+1}, v{RD[i]+2}, v{RD[i]+3}")
        a(f"ds_write_b64 v{aL+i}, v[{RD[i]}:{RD[i]+1}]")
    a("s_waitcnt lgkmcnt(0)\ns_barrier")
    a.stamp(9)
    if o["aw5"]:
        emit_l(w2_touch(2))
        if not o["awo"]: emit_l(wo_touch())
    a(f"s_mov_b32 s48, {fhex(1e-6)}")
    BF = [88, 100, 112, 136]
    for t in (3, 0, 1, 2):
        b = BF[t]
        a(f"ds_read2_b64 v[{b}:{b+3}], v{aB+t} offset0:0 offset1:1\nds_read2_b64 v[{b+4}:{b+7}], v{aB+t} offset0:2 offset1:3\nds_read_b32 v{b+8}, v{aB+t} offset:32\nv_mov_b32 v{b+9}, 0")
    for i in range(5):
        lo = (64 * i) // 72
        a(f"v_cmp_le_u32 vcc, {72*(lo+1)-64*i}, v0\nv_lshlrev_b32 v2, 4, v0\nv_add_u32 v2, {1024*i+lo*8064}, v2\nv_add_u32 v3, {8064 if i < 4 else OOB}, v2\nv_cndmask_b32 v{204+i}, v2, v3, vcc")
    a("s_waitcnt lgkmcnt(0)")
    DD = [24, 40, 56, 72]
    OO = [180, 192]
    def omf(tts):
        l = []
        for c in range(3):
            for tt in tts:
                q = QR[tt]
                for t in (3, 0, 1, 2):
                    d, b = DD[tt] + 4 * t, BF[t]
                    if c < 2:
                        l.append(f"v_mfma_f32_16x16x32_bf16 v[{d}:{d+3}], v[{q+4*c}:{q+4*c+3}], v[{b+4*c}:{b+4*c+3}], {'0' if c == 0 else f'v[{d}:{d+3}]'}")
                    else:
                        l.append(f"v_mfma_f32_16x16x16_bf16 v[{d}:{d+3}], v[{q+8}:{q+9}], v[{b+8}:{b+9}], v[{d}:{d+3}]")
        return l
    def ofin(p):
        l = []
        for tt in (2 * p, 2 * p + 1):
            d = DD[tt]
            l += [f"v_add_f32 v{d+12+r}, s48, v{d+12+r}" for r in range(4)]
            l += [f"v_rcp_f32 v{d+12+r}, v{d+12+r}" for r in range(4)]
        for tt in (2 * p, 2 * p + 1):
            d = DD[tt]
            l += [f"v_pk_mul_f32 v[{d+4*t+2*h}:{d+4*t+2*h+1}], v[{d+4*t+2*h}:{d+4*t+2*h+1}], v[{d+12+2*h}:{d+13+2*h}]" for t in range(3) for h in range(2)]
            l += [f"v_cvt_pk_bf16_f32 v{OO[p]+4*t+2*(tt&1)+h}, v{d+4*t+2*h}, v{d+4*t+2*h+1}" for t in range(3) for h in range(2)]
        for t in range(3):
            r = OO[p] + 4 * t
            l += [f"v_permlane16_swap_b32 v{r}, v{r+2}", f"v_permlane16_swap_b32 v{r+1}, v{r+3}"]
        for t in range(3):
            r = OO[p] + 4 * t
            l.append(f"ds_write_b128 v{aO+(t>>1)}, v[{r}:{r+3}] offset:{128*t+4*1152*p}")
        return l
    for x in omf((0, 1)): a(x)
    m = omf((2, 3))
    a(m[0])
    mix(a, ofin(0), m[1:], 2)
    a("s_nop 3")
    for x in ofin(1): a(x)
    a("s_waitcnt lgkmcnt(0)\ns_barrier")
    for i in range(5): a(f"ds_read_b128 v[{24+4*i}:{27+4*i}], v1 offset:{1024*i}")
    for i in range(5):
        a(f"s_waitcnt lgkmcnt({4-i})\nbuffer_store_dwordx4 v[{24+4*i}:{27+4*i}], v{204+i}, {srd(rWS)}, s37 offen sc1")
    a.stamp(11)
    a("s_waitcnt vmcnt(0)\ns_barrier")
    a(f"s_cmp_lg_u32 s{sWAVE}, 0\ns_cbranch_scc1 L_att_no")
    a(f"s_lshl_b32 s3, s{sTB}, 2\ns_lshr_b32 s48, s{sXCD}, 1\ns_add_u32 s3, s3, s48\ns_lshl_b32 s3, s3, 7\ns_and_b32 s48, s{sXCD}, 1\ns_lshl_b32 s48, s48, 2\ns_add_u32 s3, s3, s48\ns_add_u32 s3, s3, {FLO}")
    a.set_flag("s3", 4)
    a("L_att_no:")
    a.stamp(10)
```

```python
import sys
sys.path.insert(0, "work")
from asmlib import *

KNAME = "parallel_sum__linear_kernel_hedgehog__mixer_token_mlp__prompt_kernel"
S, D, F, H, DH = 2048, 576, 4608, 32, 18

EPOCH = 0
FLA, FLB, FLKV, FLO, FLX = 0x80000, 0xA0000, 0xC000, 0x8000, 0xC0000
STAMP = 0x20000
S2 = 0x60000
HT = 0x100000
U = 0x400000
OT = 0xA00000
KVP = 0xD00000
EX = 0xE00000

sWAVE, sXCD, sIDX, sTAG = 4, 5, 6, 7
rX, rWQKV, rWPHI, rWO, rW1, rB1, rW2, rB2, rOUT, rWS = 8, 12, 16, 20, 24, 28, 32, 36, 40, 44
sST = 64
def srd(r): return f"s[{r}:{r+3}]"

G1_SLOT, G1_NS, G1_W = 30720, 5, 18432
LN_SCR, LN_PITCH = 153600, 1216
LN_S2 = LN_SCR + 8 * LN_PITCH
G2_US, G2_WS, G2_PITCH = 12544, 8192, 3136
G2_U = [0, 25088, 122880]
G2_W = [61440, 61440 + 16384, 61440 + 32768]
SH_SCR = 147968
OI, OI_P = 50176, 2432
WO_AT = [0, 12544, 25088, 147968, 110592]
TO_SCR = 122880
LDS_BYTES = 163840
OOB = 0x7FFF0000

LOG2E = 1.4426950408889634
CNT = 160256

def slow_tile(ft):
    a_ = (192 * ft) & 1023
    return 192 < a_ < 512
def xcd_perm(x):
    return sorted(range(6), key=lambda e: slow_tile(6 * x + e))
def xcd_order(x):
    own = [6 * (x & 1) + e for e in xcd_perm(x)]
    oth = [6 * ((x & 1) ^ 1) + e for e in xcd_perm(x ^ 1)]
    return own[:4] + oth[:4] + own[4:] + oth[4:]
for _r in range(1152): assert (_r * 683) >> 16 == _r // 96


class Gen(Asm):
    def __init__(self, **opt):
        super().__init__()
        self.o = dict(stamps=False, att=True, pf_code=True, spin=1 << 16, prefill=2, la1=2, probe=0, clk=False, dbg='',
                      sp=1, latin=3, latc=1, un1=2, w2a=0, w2c=0, w2p=4, w2e=1, aw2=(1, 0, 1, 1), aw2r=128, awq=0, rot=7, w1a=2, w1c=0, spn=600, w2r=512, sp2=0, spn2=120, perm=1, spo=0, spc=0, odl=17, g2b=(12, 7, 11), aw5=1, tout=1, dot=1, woe=8, oe=3, awo=1)
        self.o.update(opt)
        self.nstamp = {}

    def stamp(self, i):
        if self.o["stamps"]:
            self(f"{'s_memtime' if self.o['clk'] else 's_memrealtime'} s[{sST+2*i}:{sST+2*i+1}]")

    def dump_stamps(self, vtmp):
        if not self.o["stamps"]:
            return
        a = self
        a("s_waitcnt lgkmcnt(0)")
        a(f"s_lshl_b32 s3, s2, 3\ns_add_u32 s3, s3, s{sWAVE}\ns_lshl_b32 s3, s3, 6\ns_add_u32 s3, s3, {STAMP}")
        a(f"v_mov_b32 v{vtmp+4}, 0")
        for q in range(4):
            for i in range(4):
                a(f"v_mov_b32 v{vtmp+i}, s{sST+2*(4*q+i)}")
            a(f"buffer_store_dwordx4 v[{vtmp}:{vtmp+3}], v{vtmp+4}, {srd(rWS)}, s3 offen offset:{16*q}")
            a("s_nop 1")

    def align8(self):
        self(".p2align 3")

    def wave_sum(self, v, sdst):
        a = self
        for m in ("row_shr:1", "row_shr:2", "row_shr:4", "row_shr:8"):
            a(f"s_nop 1\nv_add_f32_dpp v{v}, v{v}, v{v} {m} row_mask:0xf bank_mask:0xf bound_ctrl:1")
        a(f"s_nop 1\nv_add_f32_dpp v{v}, v{v}, v{v} row_bcast:15 row_mask:0xa bank_mask:0xf")
        a(f"s_nop 1\nv_add_f32_dpp v{v}, v{v}, v{v} row_bcast:31 row_mask:0xc bank_mask:0xf")
        a(f"s_nop 0\nv_readlane_b32 s{sdst}, v{v}, 63\ns_nop 1")

    def divmod_const(self, vq, vr, vx, c, vt):
        m = (1 << 20) // c + 1
        for x in range(2048):
            assert (x * m) >> 20 == x // c
        assert 2047 * m < (1 << 32) and m < (1 << 24)
        self(f"v_mul_u32_u24 v{vq}, {m}, v{vx}\nv_lshrrev_b32 v{vq}, 20, v{vq}")
        self(f"v_mul_u32_u24 v{vt}, {c}, v{vq}\nv_sub_u32 v{vr}, v{vx}, v{vt}")

    def tr0(self):
        if self.o.get("trace"): self("s_memtime s[92:93]")
    def tr1(self, i):
        if self.o.get("trace"): self(f"s_waitcnt lgkmcnt(0)\nv_writelane_b32 v200, s92, {i}")
    def save_stamps(self):
        if self.o["stamps"]:
            self("s_waitcnt lgkmcnt(0)")
            for i in range(16): self(f"v_writelane_b32 v9, s{sST+2*i}, {i}")
    def restore_stamps(self):
        if self.o["stamps"]:
            for i in range(16): self(f"v_readlane_b32 s{sST+2*i}, v9, {i}")

    def spoll_issue(self, sbase, parts, glc=" glc"):
        for d, w, off in parts:
            dst = f"s{d}" if w == 1 else f"s[{d}:{d+w-1}]"
            self(f"s_load_dword{'' if w == 1 else 'x'+str(w)} {dst}, s[{sbase}:{sbase+1}], {off}{glc}")

    def spoll_check(self, sbase, parts, regs):
        a = self
        lp, done = a.label("poll"), a.label("polld")
        a(f"s_mov_b32 s48, {self.o['spin']}")
        a(f"{lp}:\ns_waitcnt lgkmcnt(0)")
        pairs = [r for r in regs if r % 2 == 0 and r + 1 in regs]
        single = [r for r in regs if r not in pairs and r - 1 not in pairs]
        r0 = pairs[0]
        a(f"s_xor_b32 s49, s{r0}, s{sTAG}\ns_xor_b32 s3, s{r0+1}, s{sTAG}\ns_or_b32 s49, s49, s3")
        for r in single:
            a(f"s_xor_b32 s3, s{r}, s{sTAG}\ns_or_b32 s49, s49, s3")
        for r in pairs[1:]:
            a(f"s_cmp_lg_u64 s[{r}:{r+1}], s[{r0}:{r0+1}]\ns_cselect_b32 s49, 1, s49")
        a(f"s_cmp_eq_u32 s49, 0\ns_cbranch_scc1 {done}")
        a(f"s_sub_u32 s48, s48, 1\ns_cmp_eq_u32 s48, 0\ns_cbranch_scc1 {done}")
        self.spoll_issue(sbase, parts)
        a(f"s_branch {lp}\n{done}:")

    def spoll(self, soff, parts, regs, first_plain=False):
        self(f"s_add_u32 s50, s{rWS}, {soff}\ns_addc_u32 s51, s{rWS+1}, 0")
        self.spoll_issue(50, parts, "" if first_plain else " glc")
        self.spoll_check(50, parts, regs)

    def set_flag(self, soff, vt):
        a = self
        a(f"v_mov_b32 v{vt}, s{sTAG}\ns_mov_b64 exec, 1")
        a(f"buffer_store_dword v{vt}, off, {srd(rWS)}, {soff} sc1")
        a("s_mov_b64 exec, -1")

    def set_flags(self, soff, vaddr, vt, nl):
        a = self
        a(f"v_mov_b32 v{vt}, s{sTAG}\ns_mov_b32 exec_lo, {hex((1 << nl) - 1)}\ns_mov_b32 exec_hi, 0")
        a(f"buffer_store_dword v{vt}, v{vaddr}, {srd(rWS)}, {soff} offen sc1")
        a("s_mov_b64 exec, -1")

    def interleave(self, mf, ds, per_gap=2, start=0):
        ds = list(ds)
        if "m" in self.o["dbg"]: mf = mf[:1]
        if "d" in self.o["dbg"]: ds = [x for x in ds if not x.startswith("ds_")]
        for i, m in enumerate(mf):
            self(m)
            if i >= start:
                for _ in range(per_gap):
                    if ds:
                        self(ds.pop(0))
        for d in ds:
            self(d)

    def sched(self, mf, prev, ds, extra=(), waits=(0,), bar=None, tail_busy=1):
        a = self
        ds, extra = list(ds), list(extra)
        if "d" in self.o["dbg"]: ds = []
        n = len(mf)
        waits = sorted(set(waits))
        npre = [(1 if i in waits or (bar and bar[0] == i and bar[1]) else 0) + (1 if bar and bar[0] == i else 0) for i in range(n)] + [tail_busy]
        first = bar[0] if bar else 0
        cnt = [0] * n
        free = [g for g in range(first, n) if npre[g + 1] < 2]
        k = len(ds)
        for g in free[:k]: cnt[g] = 1
        k -= min(k, len(free))
        for g in sorted(range(first, n), key=lambda g: (cnt[g] * 2 + npre[g + 1], g)):
            if k: cnt[g] += 1; k -= 1
        assert k == 0
        new = 0
        for i, (t, need) in enumerate(mf):
            if bar and bar[0] == i and bar[1]:
                a("s_waitcnt lgkmcnt(0)")
            elif i in waits:
                nxt = [w for w in waits if w > i]
                end = nxt[0] if nxt else n
                idx = max(prev.index(x) for k_ in range(i, end) for x in mf[k_][1])
                a(f"s_waitcnt lgkmcnt({min(14, len(prev) - 1 - idx + new)})")
            if bar and bar[0] == i: a("s_barrier")
            if not ("m" in self.o["dbg"] and i): a(t)
            for _ in range(cnt[i]):
                a(ds.pop(0)[0]); new += 1
            room = 3 - 2 * cnt[i] - npre[i + 1]
            while extra and room > 0:
                a(extra.pop(0)); room -= 1
        for e in extra: a(e)

    def linear(self, mf, place, pre, order, look=3):
        a = self
        order = list(order)
        known = -1
        cnt = [0]
        last = {}
        def em(t):
            a(t); cnt[0] += len(t.split("\n"))
        for i, (t, need, acc, kind) in enumerate(mf):
            for x in pre.get(i, []):
                em(x)
                if x == "s_waitcnt lgkmcnt(0)": known = len(order) - 1
            if max(order.index(x) for x in need) > known:
                idx = max(order.index(x) for k in range(i, min(i + look, len(mf))) for x in mf[k][1] if x in order)
                c = min(14, len(order) - 1 - idx)
                em(f"s_waitcnt lgkmcnt({c})"); known = len(order) - 1 - c
            if acc in last and last[acc][1] != kind and cnt[0] - last[acc][0] < 6:
                em(f"s_nop {5 - (cnt[0] - last[acc][0])}")
            em(t); last[acc] = (cnt[0], kind)
            for x, id_ in place.get(i, []):
                em(x)
                if id_: order.append(id_)

    def gelu(self, regs, cA, cB, tmp, out, group=4):
        a = self
        for g0 in range(0, len(regs), group):
            rs = regs[g0:g0 + group]
            T = lambda i: f"v[{tmp+2*i}:{tmp+2*i+1}]"
            R = lambda r: f"v[{r}:{r+1}]"
            for i, r in enumerate(rs): a(f"v_pk_mul_f32 {T(i)}, {R(r)}, {R(r)}")
            for i, r in enumerate(rs): a(f"v_pk_fma_f32 {T(i)}, {T(i)}, {R(cA)}, {R(cB)}")
            for i, r in enumerate(rs): a(f"v_pk_mul_f32 {T(i)}, {T(i)}, {R(r)}")
            for i, r in enumerate(rs): a(f"v_exp_f32 v{tmp+2*i}, v{tmp+2*i}\nv_exp_f32 v{tmp+2*i+1}, v{tmp+2*i+1}")
            for i, r in enumerate(rs): a(f"v_pk_add_f32 {T(i)}, {T(i)}, 1.0 op_sel_hi:[1,0]")
            for i, r in enumerate(rs): a(f"v_rcp_f32 v{tmp+2*i}, v{tmp+2*i}\nv_rcp_f32 v{tmp+2*i+1}, v{tmp+2*i+1}")
            for i, r in enumerate(rs): a(f"v_pk_mul_f32 {T(i)}, {T(i)}, {R(r)}")
            for i, r in enumerate(rs): a(f"v_cvt_pk_bf16_f32 v{out[g0+i]}, v{tmp+2*i}, v{tmp+2*i+1}")
            yield g0

    def gelu_consts(self, cA, cB):
        c = 0.7978845608028654
        for i in range(2):
            self(f"v_mov_b32 v{cA+i}, {fhex(-2*c*0.044715*LOG2E)}\nv_mov_b32 v{cB+i}, {fhex(-2*c*LOG2E)}")

    def entry(self):
        a = self
        a.kernel(KNAME)
        if self.o["stamps"]:
            for i in range(1, 16): a(f"s_mov_b32 s{sST+2*i}, 0")
        a.stamp(0)
        a.load_ptr("x", rX); a.load_ptr("ws", rWS)
        a("s_cmp_ge_u32 s2, 256\ns_cbranch_scc1 L_end")
        a(f"v_readfirstlane_b32 s{sWAVE}, v0\ns_lshr_b32 s{sIDX}, s2, 3\nv_and_b32 v0, 63, v0")
        if self.o["pf_code"]:
            NL = 15
            a(f"s_cmp_lg_u32 s{sWAVE}, 0\ns_cbranch_scc1 L_nopf\ns_getpc_b64 s[50:51]\nL_pc0:")
            a(f"s_mul_i32 s48, s{sIDX}, {128*NL}\ns_min_u32 s48, s48, L_code_end-L_pc0-{128*(31+NL)+4}\nv_min_u32 v254, {31+NL}, v0\nv_lshrrev_b32 v253, 5, v0")
            a("v_lshlrev_b32 v254, 7, v254\nv_mad_u32_u24 v254, v253, s48, v254\nglobal_load_dword v255, v254, s[50:51]\nL_nopf:")
        a(f"s_lshr_b32 s{sWAVE}, s{sWAVE}, 6\ns_and_b32 s{sXCD}, s2, 7")
        a(f"s_lshl_b32 s53, s{sXCD}, 5\ns_add_u32 s53, s53, s{sIDX}\ns_lshl_b32 s3, s53, 3\ns_add_u32 s3, s3, s{sWAVE}\ns_mul_i32 s3, s3, 1152")
        a.srd_finish("x", rX)
        a("v_lshlrev_b32 v1, 3, v0\nv_lshlrev_b32 v7, 1, v0")
        a("s_waitcnt lgkmcnt(0)")
        a(f"buffer_load_dwordx2 v[2:3], v1, {srd(rX)}, s3 offen")
        a(f"buffer_load_dwordx2 v[4:5], v1, {srd(rX)}, s3 offen offset:512")
        a(f"buffer_load_ushort v6, v7, {srd(rX)}, s3 offen offset:1024")
        rest = (("w1", rW1), ("wqkv", rWQKV), ("wphi", rWPHI), ("wo", rWO), ("b1", rB1), ("w2", rW2), ("b2", rB2), ("out", rOUT))
        for n, r in rest: a.load_ptr(n, r)
        for n, r in (("ws", rWS),) + rest: a.srd_finish(n, r)
        a("s_waitcnt lgkmcnt(0)")
        a(f"s_load_dword s{sTAG}, s[{rWS}:{rWS+1}], {EPOCH}")
        a(f"s_getpc_b64 s[50:51]\nL_pc1:\ns_lshl_b32 s3, s{sXCD}, 3\ns_add_u32 s3, s3, order_table-L_pc1\ns_load_dwordx2 s[100:101], s[50:51], s3")
        a(f"s_mul_i32 s3, s{sWAVE}, {LN_PITCH}\ns_add_u32 s3, s3, {LN_SCR}")
        a("v_add_u32 v8, s3, v1\nv_add_u32 v9, s3, v7")
        a(f"s_lshl_b32 s3, s{sWAVE}, 2\ns_add_u32 s3, s3, {LN_S2}\nv_mov_b32 v25, s3\nv_mov_b32 v24, {fhex(1e-5)}\nv_mov_b32 v26, {fhex(-1.0/D)}\nv_mov_b32 v27, {fhex(1.0/D)}")
        a("v_bfe_u32 v60, v0, 2, 2\nv_lshrrev_b32 v61, 4, v0\nv_and_b32 v62, 3, v0")
        a(f"v_mul_u32_u24 v60, {LN_PITCH}, v60\nv_lshlrev_b32 v61, 5, v61\nv_lshlrev_b32 v62, 3, v62")
        a(f"v_add3_u32 v60, v60, v61, v62\nv_add_u32 v60, {LN_SCR}, v60")
        a(f"v_and_b32 v61, 7, v0\nv_lshlrev_b32 v61, 2, v61\nv_add_u32 v62, {LN_S2}, v61\nv_lshlrev_b32 v63, 4, v0\nv_lshlrev_b32 v64, 9, v0")
        a(f"s_mul_i32 s56, s53, 9216\ns_add_u32 s56, s56, {HT}\ns_add_u32 s57, s56, 4096\ns_add_u32 s58, s56, 8192\ns_lshl_b32 s59, s53, 5\ns_add_u32 s59, s59, {S2}")
        a(f"s_lshr_b32 s60, s{sIDX}, 3\ns_lshl_b32 s60, s60, 7\ns_and_b32 s48, s{sIDX}, 7\ns_lshl_b32 s48, s48, 2\ns_add_u32 s60, s60, s48\ns_lshl_b32 s48, s{sXCD}, 14\ns_add_u32 s60, s60, s48\ns_add_u32 s60, s60, {FLA}")
        self.early_prefetch()
        self.ln_compute()
        a(f"s_cmp_lg_u32 s{sWAVE}, 0\ns_cbranch_scc1 L_ln_done")
        self.ln_publish()
        a("L_ln_done:")
        a.stamp(2)
        a(f"s_cmp_ge_u32 s{sIDX}, 24\ns_cbranch_scc1 L_att")
        a(f"s_cmp_ge_u32 s{sWAVE}, 4\ns_cbranch_scc1 L_aux")

    def ln_compute(self):
        a = self
        a.stamp(1)
        for i in range(4):
            a(f"v_lshlrev_b32 v{10+2*i}, 16, v{2+i}\nv_and_b32 v{11+2*i}, 0xffff0000, v{2+i}")
        a("v_lshlrev_b32 v18, 16, v6")
        a("v_pk_add_f32 v[20:21], v[10:11], v[12:13]\nv_pk_add_f32 v[22:23], v[14:15], v[16:17]")
        a("v_pk_add_f32 v[20:21], v[20:21], v[22:23]\nv_add_f32 v20, v20, v18\nv_add_f32 v20, v20, v21")
        a.wave_sum(20, 48)
        a("v_mul_f32 v20, s48, v26")
        for i in range(4):
            a(f"v_pk_add_f32 v[{10+2*i}:{11+2*i}], v[{10+2*i}:{11+2*i}], v[20:21] op_sel_hi:[1,0]")
        a("v_add_f32 v18, v18, v20")
        a("v_pk_mul_f32 v[20:21], v[10:11], v[10:11]\nv_pk_mul_f32 v[22:23], v[12:13], v[12:13]")
        a("v_pk_fma_f32 v[20:21], v[14:15], v[14:15], v[20:21]\nv_pk_fma_f32 v[22:23], v[16:17], v[16:17], v[22:23]")
        a("v_pk_add_f32 v[20:21], v[20:21], v[22:23]\nv_fmac_f32 v20, v18, v18\nv_add_f32 v20, v20, v21")
        a.wave_sum(20, 48)
        a("v_mul_f32 v20, s48, v27\nv_add_f32 v21, v20, v24\nv_rsq_f32 v21, v21\ns_nop 0\nv_mul_f32 v22, v21, v21\nv_fma_f32 v22, v22, v20, v24")
        a("v_rsq_f32 v23, v22\ns_nop 0\nv_mul_f32 v20, v21, v23\nv_mul_f32 v22, v22, v23")
        for i in range(4):
            a(f"v_pk_mul_f32 v[{10+2*i}:{11+2*i}], v[{10+2*i}:{11+2*i}], v[20:21] op_sel_hi:[1,0]")
        a("v_mul_f32 v18, v18, v20")
        for i in range(4):
            a(f"v_cvt_pk_bf16_f32 v{2+i}, v{10+2*i}, v{11+2*i}")
        a("v_cvt_pk_bf16_f32 v6, v18, v18")
        a("ds_write_b64 v8, v[2:3]\nds_write_b64 v8, v[4:5] offset:512\nds_write_b16 v9, v6 offset:1024\nds_write_b32 v25, v22")
        a("s_waitcnt lgkmcnt(0)")
        a("s_barrier")
        self.make_tag()

    def ln_publish(self):
        a = self
        for b in range(9):
            a(f"ds_read_b64_tr_b16 v[{12+4*b}:{13+4*b}], v60 offset:{128*b}")
            a(f"ds_read_b64_tr_b16 v[{14+4*b}:{15+4*b}], v60 offset:{128*b+4*LN_PITCH}")
            if b >= 4:
                a("s_waitcnt lgkmcnt(8)")
                a(f"buffer_store_dwordx4 v[{12+4*(b-4)}:{15+4*(b-4)}], v63, {srd(rWS)}, s{56+(b-4)//4} offen offset:{1024*((b-4)%4)} sc1")
        a("ds_read_b32 v5, v62")
        a("s_waitcnt lgkmcnt(0)")
        for b in range(5, 9):
            a(f"buffer_store_dwordx4 v[{12+4*b}:{15+4*b}], v63, {srd(rWS)}, s{56+b//4} offen offset:{1024*(b%4)} sc1")
        a("s_mov_b64 exec, 0xff")
        a(f"buffer_store_dword v5, v61, {srd(rWS)}, s59 offen sc1")
        a("s_mov_b64 exec, -1")
        a.stamp(14)
        a("s_waitcnt vmcnt(0)")
        a.set_flags("s60", 64, 2, 32)

    def make_tag(self):
        self(f"s_mul_i32 s{sTAG}, s{sTAG}, 0x9E3779B1\ns_add_u32 s{sTAG}, s{sTAG}, 0x7F4A7C15")

    def bar_pub(self):
        self("s_barrier")

    def touch_pattern(self, vdst, R, stride, seg3=False):
        a = self
        a.divmod_const(vdst, vdst + 1, 0, 9, vdst + 2)
        a(f"v_min_u32 v{vdst}, {R-1}, v{vdst}\nv_mul_u32_u24 v{vdst}, {stride}, v{vdst}")
        if not seg3:
            a(f"v_lshl_add_u32 v{vdst}, v{vdst+1}, 7, v{vdst}")
        else:
            a.divmod_const(vdst + 2, vdst + 3, vdst + 1, 3, vdst + 4)
            a(f"v_mul_u32_u24 v{vdst+2}, 1152, v{vdst+2}\nv_mul_u32_u24 v{vdst+3}, 70, v{vdst+3}\nv_and_b32 v{vdst+3}, 0xfc, v{vdst+3}")
            a(f"v_add3_u32 v{vdst}, v{vdst}, v{vdst+2}, v{vdst+3}")

    def touch_w1(self, vpat, sid, R, row0):
        a = self
        a(f"s_mul_i32 s3, {sid}, {R}\ns_add_u32 s3, s3, {row0}\ns_and_b32 s48, s{sXCD}, {self.o['rot']}\ns_lshl_b32 s48, s48, 8\ns_add_u32 s3, s3, s48\ns_and_b32 s3, s3, 2047")
        a(f"s_min_u32 s3, s3, {2048-R}\ns_mul_i32 s3, s3, 9216\ns_mul_i32 s48, s{sXCD}, 1152\ns_add_u32 s3, s3, s48")
        a(f"buffer_load_dword v{vpat+5}, v{vpat}, {srd(rW1)}, s3 offen")

    def touch_wqkv(self, vpat, sid, R, row0, dst=None):
        a = self
        a(f"s_mul_i32 s3, {sid}, {R}\ns_add_u32 s3, s3, {row0}\ns_min_u32 s3, s3, {576-R}\ns_mul_i32 s3, s3, 3456\ns_mul_i32 s48, s{sXCD}, 144\ns_add_u32 s3, s3, s48")
        a(f"buffer_load_dword v{dst or vpat+5}, v{vpat}, {srd(rWQKV)}, s3 offen")

    def early_prefetch(self):
        a = self
        o = self.o
        n = o["w1a"]
        if not n:
            a("s_waitcnt vmcnt(0)"); return
        a(f"s_cmp_eq_u32 s{sWAVE}, 7\ns_cbranch_scc1 L_t0\ns_waitcnt vmcnt(0)\ns_branch L_t0c\nL_t0:")
        a(f"s_cmp_ge_u32 s{sIDX}, 24\ns_cbranch_scc1 L_t0a")
        self.touch_pattern(248, 7, 9216)
        for k in range(n):
            self.touch_w1(248, f"s{sIDX}", 7, 168 * k)
        a(f"s_branch L_t0b\nL_t0a:\ns_sub_u32 s52, s{sIDX}, 24")
        self.touch_pattern(80, 7, 3456, True)
        for k in range(n):
            self.touch_wqkv(80, "s52", 7, 56 * k, 255)
        a(f"L_t0b:\ns_waitcnt vmcnt({n})\nL_t0c:")

    A_PARTS = [(64 + 8 * i, 8, 128 * i) for i in range(4)]
    A_REGS = list(range(64, 96))
    def A_addr(self, sg, rep=f"s{sIDX}"):
        self(f"s_lshl_b32 s52, {sg}, 5\ns_add_u32 s52, s52, {rep}\ns_lshl_b32 s52, s52, 9\ns_add_u32 s52, s52, {FLA}\ns_add_u32 s50, s{rWS}, s52\ns_addc_u32 s51, s{rWS+1}, 0")
    def wait_A_group(self, sg, rep=f"s{sIDX}"):
        self.A_addr(sg, rep)
        self.spoll_issue(50, self.A_PARTS)
        self.spoll_check(50, self.A_PARTS, self.A_REGS)

    def g1_ids(self):
        self(f"s_and_b32 s54, s{sIDX}, 3\ns_and_b32 s3, s{sIDX}, 28\ns_and_b32 s55, s{sIDX}, 16\ns_add_u32 s3, s3, s55\ns_lshr_b64 s[48:49], s[100:101], s3\ns_and_b32 s55, s48, 15")
        self(f"s_lshr_b32 s3, s{sXCD}, 1\ns_mul_i32 s3, s3, 12\ns_add_u32 s55, s55, s3")

    def ord_row(self, dst, src, t0=48):
        return [f"s_mul_i32 s{dst}, {src}, 683", f"s_lshr_b32 s{dst}, s{dst}, 16", f"s_lshl_b32 s{t0}, s{dst}, 2", f"s_lshr_b64 s[{t0}:{t0+1}], s[100:101], s{t0}",
                f"s_and_b32 s{t0}, s{t0}, 15", f"s_sub_i32 s{dst}, s{t0}, s{dst}", f"s_mul_i32 s{dst}, s{dst}, 96", f"s_add_i32 s{dst}, s{dst}, {src}"]

    def g2_ids(self):
        a = self
        a(f"s_lshr_b32 s58, s{sXCD}, 1\ns_mul_i32 s60, s{sIDX}, 43\ns_lshr_b32 s60, s60, 7\ns_mul_i32 s3, s60, 3\ns_sub_u32 s59, s{sIDX}, s3")
        a(f"s_and_b32 s3, s{sXCD}, 1\ns_lshl_b32 s3, s3, 3\ns_add_u32 s60, s60, s3")

    def mlp_compute(self):
        a = self
        ACC, SH = 16, 64
        P, Q = 80, 120
        b = ((1, 2, 3), (4, 8, 9))
        c = (5, 6, 7)
        self.bar_pub()
        self.g1_ids()
        a("v_lshrrev_b32 v9, 4, v0\nv_lshlrev_b32 v10, 3, v9\ns_mul_i32 s3, s55, 192")
        for t in range(6):
            a(f"buffer_load_dwordx2 v[{P+2*t}:{P+2*t+1}], v10, {srd(rB1)}, s3 offen offset:{32*t}")
        a("v_bfe_u32 v11, v0, 2, 2\nv_lshl_add_u32 v11, v9, 3, v11\nv_mul_u32_u24 v11, 192, v11")
        a("v_and_b32 v12, 3, v0\nv_lshl_add_u32 v11, v12, 3, v11")
        a(f"v_add_u32 v11, {G1_W}, v11\nv_and_b32 v12, 1, v9\nv_lshlrev_b32 v12, 5, v12")
        a(f"v_add_u32 v{c[0]}, v11, v12\nv_sub_u32 v{c[1]}, v11, v12\nv_add_u32 v{c[1]}, 32, v{c[1]}")
        a(f"v_mul_u32_u24 v11, 2304, v9\nv_and_b32 v12, 15, v0\nv_lshl_add_u32 v11, v12, 4, v11")
        a(f"v_mov_b32 v{c[2]}, v11")
        self.precompute_tail()
        a(f"v_mov_b32 v190, {CNT}\nv_mov_b32 v191, 0\nds_write_b32 v190, v191")
        a("s_barrier")
        a.stamp(3)
        a("s_waitcnt vmcnt(0) lgkmcnt(0)")
        for t in range(6):
            for h in range(2):
                a(f"v_lshlrev_b32 v{ACC+4*t+2*h}, 16, v{P+2*t+h}\nv_and_b32 v{ACC+4*t+2*h+1}, 0xffff0000, v{P+2*t+h}")
        for i in range(24):
            a(f"v_mov_b32 v{ACC+24+i}, v{ACC+i}")
        for w in range(4):
            if w < 3:
                a(f"s_cmp_lg_u32 s{sWAVE}, {w}\ns_cbranch_scc1 L_g1_w{w+1}")
            self.g1_loop(w, ACC, SH, P, Q, b, c)
            if w < 3:
                a(f"s_branch L_g1_done\nL_g1_w{w+1}:")
        a("L_g1_done:")
        a.stamp(5)
        self.g1_epilogue(ACC, SH, P, Q)
        self.g2_compute()

    vOUT, vSHW, vUST, vB2, vFB = 15, 13, 14, 12, 11
    cU, cW, cO, cP = 176, 177, 181, 184
    cGA, cGB = 76, 78
    def precompute_tail(self):
        a = self
        self.g2_ids()
        a(f"s_mul_i32 s3, s{sWAVE}, 3072\ns_add_u32 s3, s3, {SH_SCR}\nv_lshl_add_u32 v{self.vSHW}, v0, 4, s3")
        a(f"s_and_b32 s3, s{sWAVE}, 1\ns_lshl_b32 s3, s3, 2\ns_add_u32 s3, s3, s58\ns_lshl_b32 s3, s3, 4\ns_lshl_b32 s48, s60, 7\ns_add_u32 s61, s3, s48")
        a(f"s_lshr_b32 s3, s{sWAVE}, 1\ns_lshl_b32 s48, s59, 1\ns_add_u32 s3, s3, s48\ns_mul_i32 s3, s3, 192\ns_mul_i32 s62, s61, 1152\ns_add_u32 s62, s62, s3")
        a("s_lshl_b32 s61, s61, 1")
        a(f"v_and_b32 v190, 15, v0\nv_lshrrev_b32 v191, 4, v0\nv_bfe_u32 v192, v0, 2, 2\nv_and_b32 v193, 3, v0")
        a(f"v_mul_u32_u24 v{self.vOUT}, 1152, v190\nv_lshl_add_u32 v{self.vOUT}, v191, 4, v{self.vOUT}\nv_lshlrev_b32 v{self.vB2}, 1, v190")
        a(f"v_mul_u32_u24 v{self.vUST}, 9216, v191\nv_lshl_add_u32 v{self.vUST}, v190, 4, v{self.vUST}")
        a(f"s_mul_i32 s96, s55, {12*9216}\ns_mul_i32 s3, s54, 2304\ns_add_u32 s96, s96, s3\ns_lshl_b32 s3, s{sWAVE}, 9\ns_add_u32 s96, s96, s3\ns_add_u32 s96, s96, {U}")
        a(f"s_add_u32 s97, s96, {4*9216}\ns_add_u32 s98, s96, {8*9216}")
        a(f"s_mul_i32 s53, s58, {48*512}\ns_and_b32 s3, s{sXCD}, 1\ns_lshl_b32 s3, s3, 7\ns_add_u32 s53, s53, s3\ns_and_b32 s3, s{sIDX}, 28\ns_add_u32 s53, s53, s3\ns_add_u32 s53, s53, {FLB}")
        a(f"v_sub_u32 v194, s54, v191\nv_lshl_add_u32 v195, v194, 4, v190\nv_lshlrev_b32 v195, 9, v195\nv_lshl_add_u32 v195, v191, 8, v195")
        a(f"v_cmp_gt_u32 vcc, 3, v194\nv_mov_b32 v196, {OOB}\ns_nop 0\nv_cndmask_b32 v{self.vFB}, v196, v195, vcc")
        a(f"s_mul_i32 s56, s60, 3\ns_add_u32 s56, s56, s59")
        a(f"s_lshl_b32 s3, s56, 4\ns_add_u32 s3, s3, s{sWAVE}\ns_lshl_b32 s3, s3, 7\ns_add_u32 s99, s3, {FLX}\ns_lshl_b32 s3, s58, 9\ns_add_u32 s52, s3, s99")
        a(f"s_add_u32 s50, s{rWS}, s52\ns_addc_u32 s51, s{rWS+1}, 0\ns_load_dword s52, s[50:51], 0 glc")
        a.gelu_consts(self.cGA, self.cGB)
        cU, cW, cO = self.cU, self.cW, self.cO
        a(f"v_mul_u32_u24 v{cU}, {G2_PITCH}, v191\nv_lshl_add_u32 v{cU}, v192, 7, v{cU}\nv_lshl_add_u32 v{cU}, v193, 4, v{cU}")
        a(f"s_lshr_b32 s3, s{sWAVE}, 1\ns_mul_i32 s3, s3, 1536\nv_add_u32 v{cU}, s3, v{cU}")
        a("v_lshl_add_u32 v194, v191, 2, v192")
        a(f"v_lshlrev_b32 v195, 8, v194\nv_lshl_add_u32 v195, v193, 3, v195\nv_add_u32 v195, {G2_W[0]}, v195\nv_and_b32 v196, 7, v194")
        for j in range(4):
            a(f"s_add_u32 s3, s58, {j}\ns_and_b32 s3, s3, 3\ns_and_b32 s48, s{sWAVE}, 1\ns_lshl_b32 s48, s48, 2\ns_add_u32 s3, s3, s48")
            a(f"v_xor_b32 v197, s3, v196\nv_lshl_add_u32 v{cW+j}, v197, 5, v195")
        a(f"s_and_b32 s3, s{sWAVE}, 1\ns_mul_i32 s3, s3, {2*OI_P}\ns_add_u32 s3, s3, {OI}\nv_lshrrev_b32 v195, 1, v193\nv_mul_u32_u24 v195, {OI_P}, v195\nv_lshl_add_u32 v195, v194, 4, v195")
        a(f"v_and_b32 v196, 1, v193\nv_lshlrev_b32 v196, 3, v196\nv_add3_u32 v{self.cP}, v195, v196, s3")
        a("v_mul_u32_u24 v195, 384, v194\nv_lshl_add_u32 v195, v193, 4, v195\nv_bfe_u32 v196, v194, 1, 1")
        for p in range(3):
            a(f"s_lshr_b32 s3, s{sWAVE}, 1\ns_mul_i32 s3, s3, 3\ns_add_u32 s3, s3, {p}")
            a(f"v_xor_b32 v197, s3, v196\nv_lshl_add_u32 v{cO+p}, v197, 6, v195")

    def g1_loop(self, w, ACC, SH, P, Q, b, c):
        a = self
        t0, ks = 3 * (w >> 1), w & 1
        for i in range(12):
            a(f"v_mov_b32 v{SH+i}, v{ACC+4*t0+i}" if ks == 0 else f"v_mov_b32 v{SH+i}, 0")
        def reads(st, k, bb):
            bA0, bA1, bB = bb
            rb = lambda j: (f"ds_read_b128 v[{st+24+4*j}:{st+27+4*j}], v{bB} offset:{k*9216+256*j+512*w}", f"B{j}")
            ra = lambda t, rho: (f"ds_read_b64_tr_b16 v[{st+4*t+2*rho}:{st+4*t+2*rho+1}], v{bA1 if t & 1 else bA0} offset:{k*6144+rho*768+(t>>1)*64}", f"A{t}{rho}")
            r = [rb(0), ra(0, 0), ra(0, 1), rb(1)]
            for t in range(1, 6): r += [ra(t, 0), ra(t, 1)]
            if k == ks:
                r.append((f"ds_read_b128 v[{st+32}:{st+35}], v{bB} offset:{k*9216+2048}", "S"))
            return r
        ids = lambda k: [x[1] for x in reads(P, k, b[0])]
        def mfmas(st, k):
            m = []
            for t in range(6):
                for j in range(2):
                    d = ACC + 24 * j + 4 * t
                    m.append((f"v_mfma_f32_16x16x32_bf16 v[{d}:{d+3}], v[{st+4*t}:{st+4*t+3}], v[{st+24+4*j}:{st+27+4*j}], v[{d}:{d+3}]", [f"A{t}1", f"B{j}"]))
            if k == ks:
                for i in range(3):
                    d = SH + 4 * i
                    m.append((f"v_mfma_f32_16x16x32_bf16 v[{d}:{d+3}], v[{st+4*(t0+i)}:{st+4*(t0+i)+3}], v[{st+32}:{st+35}], v[{d}:{d+3}]", ["S"]))
            return m
        W = tuple(self.o.get("w1w", (0, 2, 6, 10)))
        sadv = [f"s_add_u32 s56, s56, {G1_SLOT}", f"s_cmp_eq_u32 s56, {G1_SLOT*G1_NS}", "s_cselect_b32 s56, 0, s56"]
        def stage(par, last=False, tail=()):
            cur, nx = b[par], b[par ^ 1]
            vadv = [f"v_add_u32 v{x}, s56, v{y}" for x, y in zip(nx, c)]
            a.sched(mfmas(P, 0), ids(0), reads(Q, 1, cur), extra=() if last else vadv, waits=W, tail_busy=2)
            if not last:
                a.sched(mfmas(Q, 1), ids(1), reads(P, 0, nx), extra=sadv + list(tail), waits=W, bar=(0, False), tail_busy=2 if tail else 1)
            else:
                m = mfmas(Q, 1)
                a("s_waitcnt lgkmcnt(0)")
                for x in m[12:] + m[:12]: a(x[0])
        for x, y in zip(b[0], c):
            a(f"v_mov_b32 v{x}, v{y}")
        UN = self.o["un1"]
        assert UN % 2 == 0
        nl = 31 // UN
        a(f"s_mov_b32 s56, {G1_SLOT}\ns_mov_b32 s57, {nl}")
        a("s_barrier")
        a.stamp(4)
        if self.o["stamps"]: a("s_waitcnt lgkmcnt(0)")
        for r in reads(P, 0, b[0]): a(r[0])
        lp = a.label("g1")
        a(f"{lp}:")
        for u in range(UN):
            stage(u & 1, tail=("s_sub_u32 s57, s57, 1", "s_cmp_lg_u32 s57, 0") if u == UN - 1 else ())
        a(f"s_cbranch_scc1 {lp}")
        XR = 160
        xl = [f"buffer_load_dwordx4 v[{XR+4*p}:{XR+4*p+3}], v{self.vOUT}, {srd(rX)}, s62 offen offset:{64*p}" for p in range(3)]
        xl.append(f"buffer_load_ushort v{XR+12}, v{self.vB2}, {srd(rB2)}, s61 offen")
        for u in range(31 - nl * UN): stage(u & 1, tail=xl if u == 30 - nl * UN else ())
        stage(1, last=True)

    def g1_epilogue(self, ACC, SH, P, Q):
        a = self
        XR = 160
        for i in range(3):
            a(f"ds_write_b128 v{self.vSHW}, v[{SH+4*i}:{SH+4*i+3}] offset:{1024*i}")
        a("s_waitcnt lgkmcnt(0)\ns_barrier")
        regs = [ACC + 2 * i for i in range(24)]
        out = [P + i for i in range(24)]
        a.align8()
        for g0 in a.gelu(regs, self.cGA, self.cGB, Q, out):
            n = g0 // 4
            j, p = n // 3, n % 3
            a(f"buffer_store_dwordx4 v[{P+g0}:{P+g0+3}], v{self.vUST}, {srd(rWS)}, s{96+p} offen offset:{256*j} sc1")
        a("s_barrier")
        a.stamp(6)

    def g2_compute(self):
        a = self
        XR = 160
        ACC = 16
        P, Q = 176, 216
        bU, bU2, bW, bO, bO2, bP = 1, 2, 3, 112, 115, 118
        tW, tR, tG = 7, 122, 12
        a(f"v_mov_b32 v{bU}, v{self.cU}\nv_add_u32 v{bU2}, {G2_U[2]}, v{self.cU}\nv_mov_b32 v{bP}, v{self.cP}")
        for j in range(4): a(f"v_mov_b32 v{bW+j}, v{self.cW+j}")
        for p in range(3): a(f"v_mov_b32 v{bO+p}, v{self.cO+p}\nv_add_u32 v{bO2+p}, {WO_AT[4]}, v{self.cO+p}")
        a("s_waitcnt vmcnt(6)")
        a(f"v_lshlrev_b32 v{XR+12}, 16, v{XR+12}")
        for i in range(12):
            a(f"v_lshlrev_b32 v{ACC+2*i}, 16, v{XR+i}\nv_and_b32 v{ACC+2*i+1}, 0xffff0000, v{XR+i}")
        for i in range(12):
            a(f"v_pk_add_f32 v[{ACC+2*i}:{ACC+2*i+1}], v[{ACC+2*i}:{ACC+2*i+1}], v[{XR+12}:{XR+13}] op_sel_hi:[1,0]")
        for i in range(24, 96):
            a(f"v_mov_b32 v{ACC+i}, 0")
        a(f"v_mov_b32 v119, {CNT}\nv_mov_b32 v120, 1\ns_mov_b64 exec, 1\ns_waitcnt vmcnt(0) lgkmcnt(0)\nds_add_rtn_u32 v120, v119, v120\ns_waitcnt lgkmcnt(0)")
        a("v_readfirstlane_b32 s3, v120\ns_mov_b64 exec, -1\ns_cmp_lg_u32 s3, 3\ns_cbranch_scc1 L_noflagB")
        a.set_flags("s53", self.vFB, 121, 32)
        a("L_noflagB:")
        a.stamp(7)
        a(f"s_mul_i32 s56, s60, 3\ns_add_u32 s56, s56, s59\ns_lshl_b32 s56, s56, 2")
        a(f"v_lshlrev_b32 v8, 4, v0\ns_mul_i32 s63, s{sWAVE}, 3072\ns_add_u32 s63, s63, {EX}\nv_mov_b32 v9, s{sTAG}")
        for j in range(1, 4):
            a(f"s_add_u32 s3, s58, {j}\ns_and_b32 s3, s3, 3\ns_lshl_b32 s48, s3, 9\ns_add_u32 s48, s48, s99\ns_add_u32 s{52+j}, s48, {4*(j-1)}")
            a(f"s_add_u32 s3, s3, s56\ns_mul_i32 s3, s3, 36864\ns_add_u32 s3, s3, s63\ns_add_u32 s{95+j}, s3, {(j-1)*12288}")
        a(f"s_add_u32 s48, s56, s58\ns_mul_i32 s48, s48, 36864\ns_add_u32 s63, s63, s48")
        a(f"s_mul_i32 s3, s{sWAVE}, 3328\ns_add_u32 s3, s3, {TO_SCR}\nv_and_b32 v{tW}, 15, v0\nv_mul_u32_u24 v{tW}, 208, v{tW}\nv_lshrrev_b32 v127, 4, v0\nv_lshlrev_b32 v127, 4, v127\nv_add3_u32 v{tW}, v{tW}, v127, s3")
        for i in range(3):
            a(f"v_add_u32 v133, {64*i}, v0")
            a.divmod_const(134, 135, 133, 12, 136)
            a(f"v_lshlrev_b32 v135, 4, v135\nv_mul_u32_u24 v136, 208, v134\nv_add3_u32 v{tR+i}, v135, v136, s3\nv_mul_u32_u24 v136, 1152, v134\nv_add_u32 v{tG+i}, v135, v136")

        sets = (P, Q)
        def reads(n, tag=""):
            st, sl, k = sets[n & 1], (n >> 1) % 3, n & 1
            ou = (G2_U[sl] if sl < 2 else 0) + k * G2_US
            ow = G2_W[sl] - G2_W[0] + k * G2_WS
            rb = lambda j: [(f"ds_read_b64_tr_b16 v[{st+24+4*j+2*rho}:{st+25+4*j+2*rho}], v{bW+j} offset:{ow+rho*4096}", f"{tag}B{j}{rho}") for rho in range(2)]
            r = rb(0)
            r += [(f"ds_read_b128 v[{st+4*m}:{st+4*m+3}], v{bU if sl < 2 else bU2} offset:{ou+(m>>1)*512+(m&1)*64}", f"{tag}A{m}1") for m in range(6)]
            return r + rb(1) + rb(2) + rb(3)
        def mfmas(n, tag=""):
            st = sets[n & 1]
            m = []
            for j in range(4):
                for t in range(6):
                    d = ACC + 24 * j + 4 * t
                    m.append((f"v_mfma_f32_16x16x32_bf16 v[{d}:{d+3}], v[{st+4*t}:{st+4*t+3}], v[{st+24+4*j}:{st+27+4*j}], v[{d}:{d+3}]", [f"{tag}A{t}1", f"{tag}B{j}1"]))
            return m
        def step(n, extra=()):
            prev = [x[1] for x in reads(n)]
            if n & 1:
                a.sched(mfmas(n), prev, reads(n + 1), extra, waits=(0, 3), bar=(3, True), tail_busy=2 if extra else 1)
            else:
                a.sched(mfmas(n), prev, reads(n + 1), extra, waits=(0, 6, 12))
        a("s_barrier")
        a.stamp(9)
        if self.o["stamps"]: a("s_waitcnt lgkmcnt(0)")
        for r in reads(0): a(r[0])
        a("s_mov_b32 s57, 5")
        lp = a.label("g2")
        a.align8()
        a(f"{lp}:")
        for n in range(6): step(n, ("s_sub_u32 s57, s57, 1", "s_cmp_lg_u32 s57, 0") if n == 5 else ())
        a(f"s_cbranch_scc1 {lp}")
        a("L_g2_tail:")
        step(30); step(31)
        AR = {0: [P + 4 * t for t in range(6)], 1: [Q + 4 * t for t in range(6)], 2: [Q + 24 + 4 * t for t in range(4)] + [164, 168],
              3: [126 + 4 * t for t in range(6)], 4: [150 + 2 * t for t in range(6)]}
        BR = {0: P + 24, 1: P + 28, 2: P + 32, 3: P + 36, 4: 162}
        def ra(e):
            base, off = (bO, WO_AT[e]) if e < 3 else (bO2, WO_AT[e] - WO_AT[4])
            return [(f"ds_read_b64_tr_b16 v[{AR[e][t]+2*rho}:{AR[e][t]+2*rho+1}], v{base+(t>>1)} offset:{off+rho*6144+(t&1)*8}", f"a{e}{t}{rho}")
                    for t in range(6) for rho in range(2 if e < 4 else 1)]
        def rb(ph, e):
            return [(f"ds_read_b64_tr_b16 v[{BR[e]+2*rho}:{BR[e]+2*rho+1}], v{bP} offset:{ph*4*OI_P+e*512+rho*256}", f"b{ph}{e}{rho}") for rho in range(2 if e < 4 else 1)]
        mf, place, pre = [], {}, {}
        def put(g, items):
            for k, x in enumerate(items): place.setdefault(g + k, []).append(x)
        for n in range(32, 36):
            mf += [(t, need, t.split(",")[0], 32) for t, need in mfmas(n, str(n))]
        mf = [(t, need, acc.split()[1], kind) for t, need, acc, kind in mf]
        early = ra(3) + ra(4)
        put(0, reads(33, "33")); put(14, early[:7])
        pre[24 + 3] = ["s_waitcnt lgkmcnt(0)", "s_barrier"]
        put(24 + 3, reads(34, "34")); put(24 + 17, early[7:14])
        put(48, reads(35, "35")); put(48 + 14, early[14:])
        put(72, ra(0))
        pre[72 + 15] = ["s_barrier"]
        put(72 + 15, rb(0, 3) + rb(0, 4) + rb(0, 0) + rb(0, 1) + rb(0, 2))
        EO = (3, 4, 0, 1, 2)
        JO = (1, 2, 3, 0)
        for ph, j in enumerate(JO):
            g0 = 96 + 30 * ph
            for e in EO:
                for t in range(6):
                    d = ACC + 24 * j + 4 * t
                    if e < 4:
                        mf.append((f"v_mfma_f32_16x16x32_bf16 v[{d}:{d+3}], v[{AR[e][t]}:{AR[e][t]+3}], v[{BR[e]}:{BR[e]+3}], v[{d}:{d+3}]", [f"a{e}{t}1", f"b{ph}{e}1"], f"v[{d}:{d+3}]", 32))
                    else:
                        mf.append((f"v_mfma_f32_16x16x16_bf16 v[{d}:{d+3}], v[{AR[e][t]}:{AR[e][t]+1}], v[{BR[e]}:{BR[e]+1}], v[{d}:{d+3}]", [f"a{e}{t}0", f"b{ph}{e}0"], f"v[{d}:{d+3}]", 16))
            if ph == 0:
                put(g0, ra(1) + ra(2))
                pre[g0 + 24] = ["s_barrier"]
                put(g0 + 24, rb(1, 3) + rb(1, 4) + rb(1, 0)); put(g0 + 30, rb(1, 1) + rb(1, 2))
            elif ph < 3:
                for k, e in enumerate(EO): put(g0 + 6 * (k + 1), rb(ph + 1, e))
            if ph > 0:
                jp = JO[ph - 1]
                r0 = ACC + 24 * jp
                g = g0 + 4
                for i in range(12):
                    while len(place.get(g, [])) >= 2: g += 1
                    place.setdefault(g, []).append((f"v_cvt_pk_bf16_f32 v{r0+i}, v{r0+2*i}, v{r0+2*i+1}", None))
                    if i % 4 == 3:
                        g += 1
                        while place.get(g): g += 1
                        place[g] = [(f"buffer_store_dwordx4 v[{r0+i-3}:{r0+i}], v8, {srd(rWS)}, s{95+jp} offen offset:{1024*(i//4)} sc1", None)]
                        g += 1
                assert g < g0 + 30
        a.linear(mf, place, pre, [x[1] for x in reads(32, "32")])
        a.stamp(10)
        parts = [(56, 4, 0)]
        a.spoll_issue(50, parts)
        a("s_mov_b64 exec, 1")
        for j in range(1, 4):
            a(f"s_waitcnt vmcnt({(6, 4, 2)[j-1]})\nbuffer_store_dword v9, off, {srd(rWS)}, s{52+j} sc1")
        a("s_mov_b64 exec, -1")
        a.stamp(11)
        IN = P
        a(f"s_mov_b32 s48, {self.o['spin']}\ns_mov_b32 s49, 0\nL_x_poll:\ns_waitcnt lgkmcnt(0)")
        for j in range(3):
            a(f"s_bitcmp1_b32 s49, {j}\ns_cbranch_scc1 L_x_no{j}\ns_cmp_lg_u32 s{56+j}, s{sTAG}\ns_cbranch_scc1 L_x_no{j}\ns_add_u32 s3, s63, {12288*j}")
            for p in range(3):
                r = IN + 12 * j + 4 * p
                a(f"buffer_load_dwordx4 v[{r}:{r+3}], v8, {srd(rWS)}, s3 offen offset:{1024*p} sc1")
            a(f"s_bitset1_b32 s49, {j}\ns_mov_b32 s60, {j}\nL_x_no{j}:")
        a("s_cmp_eq_u32 s49, 7\ns_cbranch_scc1 L_x_all\ns_sub_u32 s48, s48, 1\ns_cmp_eq_u32 s48, 0\ns_cbranch_scc1 L_x_all")
        a.spoll_issue(50, parts)
        a("s_branch L_x_poll\nL_x_all:")
        a.stamp(12)
        if self.o["dot"]: a("s_mov_b32 s56, 0x3f80\ns_mov_b32 s57, 0x3f800000")
        a("s_cmp_eq_u32 s60, 2\ns_cbranch_scc1 L_x_l2\ns_waitcnt vmcnt(0)\nL_x_l2:\ns_waitcnt vmcnt(3)")
        for j in range(3):
            if j == 2: a("s_waitcnt vmcnt(0)")
            for i in range(12):
                if self.o["dot"]:
                    a(f"v_dot2c_f32_bf16 v{ACC+2*i}, s56, v{IN+12*j+i}\nv_dot2c_f32_bf16 v{ACC+2*i+1}, s57, v{IN+12*j+i}")
                    continue
                t = 40 + 2 * (i % 4)
                a(f"v_lshlrev_b32 v{t}, 16, v{IN+12*j+i}\nv_and_b32 v{t+1}, 0xffff0000, v{IN+12*j+i}")
                a(f"v_pk_add_f32 v[{ACC+2*i}:{ACC+2*i+1}], v[{ACC+2*i}:{ACC+2*i+1}], v[{t}:{t+1}]")
        of = self.o.get('outf', 'sc1')
        for i in range(12):
            a(f"v_cvt_pk_bf16_f32 v{Q+i}, v{ACC+2*i}, v{ACC+2*i+1}")
            if self.o["tout"] and i % 4 == 3: a(f"ds_write_b128 v{tW}, v[{Q+i-3}:{Q+i}] offset:{16*(i-3)}")
        if self.o["tout"]:
            for p in range(3): a(f"ds_read_b128 v[{Q+12+4*p}:{Q+15+4*p}], v{tR+p}")
            for p in range(3):
                a(f"s_waitcnt lgkmcnt({0 if self.o['stamps'] else 2-p})\nbuffer_store_dwordx4 v[{Q+12+4*p}:{Q+15+4*p}], v{tG+p}, {srd(rOUT)}, s62 offen {of}")
        else:
            for p in range(3):
                a(f"buffer_store_dwordx4 v[{Q+4*p}:{Q+4*p+3}], v{self.vOUT}, {srd(rOUT)}, s62 offen offset:{64*p} {of}")
        a.stamp(13)
        a("s_branch L_fin")

    def latin_seq(self, l):
        Dl = self.o["latin"]
        return sorted(range(32), key=lambda s_: (s_ - Dl - 0.5) if (Dl and s_ % 6 == l) else s_)

    def mlp_aux(self):
        a = self
        o = self.o
        a("L_aux:")
        self.g1_ids()
        a(f"s_sub_u32 s53, s{sWAVE}, 4")
        self.g2_loader_setup()
        seqs = [self.latin_seq(l) for l in range(6)]
        la = o["la1"]
        need = lambda pos: max(max(sq[:min(pos, 31) + 1]) for sq in seqs) // 4
        g_first = need(1)
        assert g_first <= 1
        a(f"s_cmp_eq_u32 s{sWAVE}, 7\ns_cbranch_scc1 L_aux7")
        vH, vW = 40, 46
        a("s_lshl_b32 s3, s53, 8\nv_add_u32 v1, s3, v0")
        for i in range(4):
            a(f"v_add_u32 v2, {64*i}, v1")
            if "L" in o["dbg"]:
                a.divmod_const(3, 4, 2, 24, 5); a("v_lshlrev_b32 v3, 1, v3")
            else:
                a.divmod_const(3, 4, 2, 12, 5)
            a(f"v_bfe_u32 v5, v3, 3, 1\nv_lshlrev_b32 v5, 1, v5\nv_xor_b32 v4, v4, v5")
            a(f"v_mul_u32_u24 v3, 9216, v3\nv_lshl_add_u32 v{vW+i}, v4, 4, v3\nv_subrev_u32 v{vW+i}, {1024*i}, v{vW+i}")
        a(f"s_mul_i32 s12, s55, 192\ns_lshl_b32 s14, s53, 12\ns_add_u32 s14, s14, {G1_W}")
        a(f"s_mul_i32 s13, s54, 2304\ns_add_u32 s13, s13, {HT}\ns_mul_i32 s15, s53, 6144\ns_and_b32 s28, s{sXCD}, {o['rot']}\ns_lshl_b32 s28, s28, 2")
        if "L" in o["dbg"]: a("s_and_b32 s3, s55, 1\ns_mul_i32 s3, s3, 9024\ns_add_u32 s12, s12, s3")
        TB = [16, 17, 18, 19, 36, 37]
        if o["latin"]:
            a(f"s_lshr_b32 s3, s{sIDX}, 2\ns_mul_i32 s48, s54, {o['latc']}\ns_add_u32 s3, s3, s48")
            for _ in range(2): a("s_cmp_ge_u32 s3, 6\ns_cselect_b32 s48, 6, 0\ns_sub_u32 s3, s3, s48")
            for l in range(6):
                words = [sum(seqs[l][n] << (5 * (n % 6)) for n in range(6 * k, min(32, 6 * k + 6))) for k in range(6)]
                if l: a(f"s_cmp_eq_u32 s3, {l}")
                for k in range(6):
                    a(f"s_mov_b32 s{TB[k]}, {words[k]}" if l == 0 else f"s_cselect_b32 s{TB[k]}, {words[k]}, s{TB[k]}")
        def stage_of(pos):
            if o["latin"]:
                a(f"s_bfe_u32 s3, s{TB[pos//6]}, {(5 << 16) | (5 * (pos % 6))}\ns_add_u32 s3, s3, s28")
            else:
                a(f"s_add_u32 s3, s28, {pos}")
            a("s_and_b32 s3, s3, 31")
        issued = []
        def w1_load(st):
            stage_of(0 if "W" in o["dbg"] else st)
            a(f"s_mul_i32 s3, s3, {64*9216}\ns_add_u32 m0, s14, {(st % G1_NS)*G1_SLOT}\ns_add_u32 s3, s3, s12")
            for i in range(4):
                if "w" in o["dbg"] and i > 0: continue
                a(f"buffer_load_dwordx4 v{vW+i}, {srd(rW1)}, s3 offen offset:{1024*i} lds")
                issued.append(st)
        def h_load(st):
            stage_of(0 if "H" in o["dbg"] else st)
            a(f"s_mul_i32 s3, s3, {8*9216}\ns_add_u32 s3, s3, s13")
            for i in range(6):
                if "h" in o["dbg"] and i > 0: continue
                if i % 4 == 0:
                    a(f"s_add_u32 m0, s15, {(st % G1_NS)*G1_SLOT + 1024*i}\ns_nop 0")
                a(f"buffer_load_dwordx4 v{vH+i}, {srd(rWS)}, s3 offen offset:{1024*(i%4)} sc1 lds")
                issued.append(st)
        def wait_stage(st):
            last = max(i for i, x in enumerate(issued) if x == st)
            n = len(issued) - 1 - last
            assert n < 63
            a(f"s_waitcnt vmcnt({n})")
        a("s_mul_i32 s3, s53, 384\nv_add_u32 v1, s3, v0")
        for i in range(6):
            a(f"v_add_u32 v2, {64*i}, v1")
            a.divmod_const(3, 4, 2, 144, 5)
            a(f"v_mul_u32_u24 v3, 9216, v3\nv_lshl_add_u32 v{vH+i}, v4, 4, v3\nv_subrev_u32 v{vH+i}, {1024*(i%4)}, v{vH+i}")
        self.sp_setup()
        self.bar_pub()
        assert o["prefill"] <= 5
        for st in range(o["prefill"]): w1_load(st)
        if g_first == 1:
            a(f"s_cmp_lg_u32 s{sWAVE}, 6\ns_cbranch_scc1 L_nog1\ns_and_b32 s29, s{sXCD}, {o['rot']}\ns_add_u32 s29, s29, 1\ns_and_b32 s29, s29, 7")
            self.wait_A_group("s29")
            a("L_nog1:")
        a("s_barrier")
        a.stamp(3)
        assert la <= 3
        done = [0]
        def issue(upto):
            while done[0] <= min(upto, 31):
                st = done[0]
                h_load(st)
                if st >= o["prefill"]: w1_load(st)
                done[0] += 1
        issue(1 if o["prefill"] >= 2 else 0)
        for i in range(32):
            wait_stage(i)
            a("s_barrier")
            a.tr0()
            issue(i + la)
            a.tr1(i)
            self.sp_step(i)
            if i == 30: self.g2_prefill(issued)
        a("s_branch L_aux_g1done")
        a("L_aux7:")
        a(f"s_and_b32 s29, s{sXCD}, {o['rot']}")
        self.A_addr("s29"); self.spoll_issue(50, self.A_PARTS)
        self.touch_pattern(248, 7, 9216)
        self.bar_pub()
        for k in range(o["w1c"]):
            self.touch_w1(248, f"s{sIDX}", 7, 168 * (o["w1a"] + k))
        self.spoll_check(50, self.A_PARTS, self.A_REGS)
        a("s_barrier")
        a(f"s_add_u32 s29, s29, {g_first}")
        g_ok, g_fly, t_fly = g_first, None, 0
        for i in range(32):
            while g_ok < need(i + la) or (g_fly is not None and i - t_fly >= 2):
                if g_fly is None:
                    a("s_add_u32 s29, s29, 1\ns_and_b32 s29, s29, 7")
                    self.A_addr("s29"); self.spoll_issue(50, self.A_PARTS)
                self.spoll_check(50, self.A_PARTS, self.A_REGS)
                g_ok += 1; g_fly = None
            if g_fly is None and g_ok < 7:
                a("s_add_u32 s29, s29, 1\ns_and_b32 s29, s29, 7")
                self.A_addr("s29"); self.spoll_issue(50, self.A_PARTS)
                g_fly, t_fly = g_ok + 1, i
            a("s_barrier")
            if o["spc"] and i == 24: self.code_touch("L_g1_done", "L_g2_tail", 24, f"s{sIDX}")
            if o["spc"] and i == 26: self.code_touch("L_aux7", "L_att", 24, f"s{sIDX}")
            if i == 30: self.g2_prefill([])
        assert g_ok == 7 and g_fly is None
        a(f"s_cmp_lg_u32 s2, 0\ns_cbranch_scc1 L_noepoch\ns_mov_b32 s3, {EPOCH}")
        a.set_flag("s3", 20)
        a("L_noepoch:")
        a("L_aux_g1done:")
        a.stamp(5)
        self.g2_loader()

    def sp_setup(self):
        a, o = self, self.o
        if not o["sp"]: return
        r0 = 2048 - o["spn"]
        a(f"s_and_b32 s38, s{sXCD}, {o['rot']}\ns_lshl_b32 s38, s38, 8\ns_add_u32 s38, s38, s{sIDX}\ns_add_u32 s38, s38, {r0}")
        a(f"s_mul_i32 s39, s{sXCD}, 1152\ns_mul_i32 s3, s53, 384\ns_add_u32 s39, s39, s3\ns_add_u32 s39, s39, 60")
        self.sp_row = r0
    def sp_step(self, i):
        a, o = self, self.o
        if not o["sp"]: return
        n = int((i + 1) * o["sp"]) - int(i * o["sp"])
        for _ in range(n):
            if self.sp_row >= 2048: return
            a(f"s_and_b32 s3, s38, 2047\ns_mul_i32 s3, s3, 9216\ns_add_u32 s3, s3, s39\ns_add_u32 s40, s{rW1}, s3\ns_addc_u32 s41, s{rW1+1}, 0\ns_add_u32 s38, s38, 24")
            for k in range(3): a(f"s_load_dwordx2 s[42:43], s[40:41], {128*k}")
            self.sp_row += 24

    def code_touch(self, l0, l1, nid, sid):
        a = self
        pc = a.label("pc")
        a(f"s_getpc_b64 s[40:41]\n{pc}:\ns_lshl_b32 s3, {sid}, 9\ns_min_u32 s3, s3, {l1}-{l0}-512\ns_sub_u32 s40, s40, {pc}-{l0}\ns_subb_u32 s41, s41, 0")
        a("s_add_u32 s40, s40, s3\ns_addc_u32 s41, s41, 0")
        for k in range(8): a(f"s_load_dword s42, s[40:41], {64*k}")

    def wo_touch(self, k):
        a = self
        a(f"s_lshl_b32 s3, s{sIDX}, 2\ns_add_u32 s3, s3, s53\ns_add_u32 s3, s3, {96*k}\ns_min_u32 s3, s3, 323\ns_lshl_b32 s3, s3, 9\ns_mul_i32 s11, s58, {144*1152}\ns_add_u32 s3, s3, s11")
        a(f"s_add_u32 s40, s{rWO}, s3\ns_addc_u32 s41, s{rWO+1}, 0")
        for k in range(4): a(f"s_load_dwordx2 s[42:43], s[40:41], {128*k+60}")

    def sp2_setup(self):
        a, o = self, self.o
        if not o["sp2"]: return
        assert o["spn2"] % 24 == 0
        a(f"s_lshl_b32 s38, s{sIDX}, 12\ns_add_u32 s38, s38, s10\ns_lshl_b32 s3, s53, 9\ns_add_u32 s38, s38, s3\ns_add_u32 s38, s38, 60")
        self.sp_row = 1152 - o["spn2"]
    def sp2_step(self, i):
        a, o = self, self.o
        if not o["sp2"]: return
        n = int((i + 1) * o["sp2"]) - int(i * o["sp2"])
        for _ in range(n):
            r = self.sp_row
            if r + 24 > 1152: return
            t = r // 96
            a(f"s_bfe_u32 s3, s{100 + t // 8}, {(4 << 16) | (4 * (t % 8))}\ns_mul_i32 s3, s3, {96*4096}\ns_add_u32 s3, s3, s38\ns_add_u32 s3, s3, {(r % 96) * 4096}")
            a(f"s_add_u32 s40, s{rW2}, s3\ns_addc_u32 s41, s{rW2+1}, 0")
            for k in range(4): a(f"s_load_dwordx2 s[42:43], s[40:41], {128*k}")
            self.sp_row += 24

    gP = 18
    gL, gW, gZ, gO, gY = 10, 11, 13, 15, 56
    def g2_loader_setup(self):
        a = self
        vL, vW, vZ, vO, vY = self.gL, self.gW, self.gZ, self.gO, self.gY
        self.g2_ids()
        a(f"v_lshlrev_b32 v{vL}, 4, v0\nv_lshrrev_b32 v1, 4, v0\nv_bfe_u32 v2, v0, 1, 3\nv_and_b32 v3, 1, v0")
        for i in range(2):
            a(f"v_add_u32 v4, {4*i}, v1\nv_xor_b32 v5, v2, v4\nv_lshlrev_b32 v4, 12, v4\nv_lshl_add_u32 v4, v5, 5, v4")
            a(f"v_lshl_add_u32 v{vW+i}, v3, 4, v4\nv_subrev_u32 v{vW+i}, {1024*i}, v{vW+i}")
        a(f"s_cmp_ge_u32 s53, 2\ns_cselect_b32 s3, {OOB}, 0")
        for i in range(3):
            a(f"v_add_u32 v4, {64*i}, v0")
            a.divmod_const(5, 6, 4, 24, 7)
            a(f"v_bfe_u32 v7, v5, 1, 1\nv_lshlrev_b32 v7, 2, v7\nv_xor_b32 v6, v6, v7")
            a(f"v_mul_u32_u24 v5, 1152, v5\nv_lshl_add_u32 v{vO+i}, v6, 4, v5\nv_subrev_u32 v{vO+i}, {1024*i}, v{vO+i}")
            a(f"v_or_b32 v{vY+i}, s3, v{vO+i}")
        a(f"s_mul_i32 s8, s58, 144\ns_add_u32 s8, s8, s53\ns_mul_i32 s8, s8, 9216\ns_mul_i32 s3, s59, 3072\ns_add_u32 s8, s8, s3\ns_add_u32 s8, s8, {U}")
        a(f"s_mul_i32 s9, s58, 1152\ns_lshl_b32 s3, s53, 3\ns_add_u32 s9, s9, s3\ns_lshl_b32 s9, s9, 12\ns_lshl_b32 s3, s60, 8\ns_add_u32 s9, s9, s3")
        a(f"s_mul_i32 s61, s53, {G2_PITCH}\ns_mul_i32 s62, s53, 3072\ns_lshl_b32 s63, s53, 11")
        for h in range(2):
            a(f"s_lshl_b32 s3, s53, 1\ns_add_u32 s3, s3, {h}\ns_cmp_ge_u32 s3, 3\ns_cselect_b32 s48, 3072, 0\ns_lshl_b32 s3, s3, 10\ns_add_u32 s3, s3, s48\ns_add_u32 s3, s3, {SH_SCR}")
            a(f"v_add_u32 v{60+h}, s3, v{vL}")
        a.gelu_consts(64, 66)
        a(f"v_mul_u32_u24 v62, 9216, v1\nv_and_b32 v63, 15, v0\nv_lshl_add_u32 v62, v63, 4, v62")
        a(f"s_mul_i32 s96, s55, 3\ns_add_u32 s96, s96, s53\ns_mul_i32 s96, s96, {4*9216}\ns_mul_i32 s3, s54, 2304\ns_add_u32 s96, s96, s3\ns_add_u32 s96, s96, {U + 2048}")
        a(f"s_mul_i32 s3, s58, 3\ns_add_u32 s3, s3, s59\ns_lshl_b32 s3, s3, 4\ns_add_u32 s3, s3, s60\ns_lshl_b32 s3, s3, 9\ns_add_u32 s3, s3, {FLB}")
        a(f"s_add_u32 s98, s{rWS}, s3\ns_addc_u32 s99, s{rWS+1}, 0\ns_lshl_b32 s3, s53, 7\ns_load_dword s30, s[98:99], s3 glc")
        a("v_min_u32 v68, 2, v1\nv_lshlrev_b32 v68, 12, v68\nv_lshl_add_u32 v68, v63, 7, v68")
        a(f"s_lshl_b32 s97, s{sIDX}, 2\ns_add_u32 s97, s97, s53\ns_mul_i32 s97, s97, 3\ns_add_u32 s97, s97, {self.o['w2r']}")
        a(f"s_mul_i32 s10, s58, {1152*4096}\ns_and_b32 s3, s{sXCD}, 1\ns_lshl_b32 s3, s3, 11\ns_add_u32 s10, s10, s3")

    def g2_w_load(self, n, issued):
        a = self
        if n % 3 == 0:
            a(f"s_bfe_u32 s57, s{100 + n // 24}, {(4 << 16) | (4 * ((n // 3) % 8))}\ns_mul_i32 s57, s57, {96*4096}\ns_add_u32 s57, s57, s9")
        a(f"s_add_u32 m0, s63, {G2_W[(n >> 1) % 3] + (n & 1) * G2_WS}\ns_nop 0")
        for i in range(2):
            a(f"buffer_load_dwordx4 v{self.gW+i}, {srd(rW2)}, s57 offen offset:{1024*i} lds")
            issued.append(100 + (n >> 1))
        a(f"s_add_u32 s57, s57, {32*4096}")

    def w2_touch(self):
        for x in self.ord_row(3, "s97"): self(x)
        self(f"s_lshl_b32 s3, s3, 12\ns_add_u32 s3, s3, s10\nbuffer_load_dword v69, v68, {srd(rW2)}, s3 offen\ns_add_u32 s97, s97, 288")

    def g2_prefill(self, issued):
        if self.o["w2a"]:
            self.w2_touch(); issued.append(99)
        if self.o["w2e"]:
            for n in range(self.o["w2p"]): self.g2_w_load(n, issued)

    def g2_loader(self):
        a = self
        NSTEP, NST = 36, 20
        vL, vO, vY = self.gL, self.gO, self.gY
        issued = []
        def a_load(n):
            if n % 3 == 0:
                a(f"s_bfe_u32 s56, s{100 + n // 24}, {(4 << 16) | (4 * ((n // 3) % 8))}\ns_mul_i32 s56, s56, {12*9216}\ns_add_u32 s56, s56, s8")
            a(f"s_add_u32 m0, s61, {G2_U[(n >> 1) % 3] + (n & 1) * G2_US}\ns_nop 0")
            for i in range(3):
                a(f"buffer_load_dwordx4 v{vL}, {srd(rWS)}, s56 offen offset:{1024*i} sc1 lds")
                issued.append(100 + (n >> 1))
            a(f"s_add_u32 s56, s56, {4*9216}")
        def wo_load(e, tag, which=(0, 1, 2)):
            a(f"s_add_u32 m0, s62, {WO_AT[e]}\ns_add_u32 s3, s36, {32*1152*e}")
            for i in which:
                a(f"buffer_load_dwordx4 v{(vY if e == 4 else vO)+i}, {srd(rWO)}, s3 offen offset:{1024*i} lds")
                issued.append(tag)
        def o_load(ph, tag):
            a(f"s_add_u32 s3, s58, {ph+1}\ns_and_b32 s3, s3, 3\ns_mul_i32 s3, s3, {2*9216}\ns_add_u32 m0, s54, {4*OI_P*ph}\ns_add_u32 s3, s3, s37")
            for i in range(3):
                if i == 2: a("s_mov_b64 exec, 0xffff")
                a(f"buffer_load_dwordx4 v{vL}, {srd(rWS)}, s3 offen offset:{1024*i} sc1 lds")
                issued.append(tag)
            a("s_mov_b64 exec, -1")
        o = self.o
        a("s_setprio 3\ns_barrier")
        a(f"s_cmp_eq_u32 s{sWAVE}, 7\ns_cbranch_scc1 L_nosh")
        for h in range(2):
            a(f"ds_read_b128 v[{24+4*h}:{27+4*h}], v{60+h}\nds_read_b128 v[{32+4*h}:{35+4*h}], v{60+h} offset:3072")
        a("s_waitcnt lgkmcnt(0)")
        for i in range(4):
            a(f"v_pk_add_f32 v[{24+2*i}:{25+2*i}], v[{24+2*i}:{25+2*i}], v[{32+2*i}:{33+2*i}]")
        for g0 in a.gelu([24, 26, 28, 30], 64, 66, 44, [32, 33, 34, 35]):
            a(f"buffer_store_dwordx4 v[32:35], v62, {srd(rWS)}, s96 offen sc1")
        a(f"L_nosh:\ns_setprio {o.get('ldp', 0)}")
        a("s_waitcnt vmcnt(0)")
        a(f"s_and_b32 s3, s{sXCD}, 1\ns_lshl_b32 s3, s3, 7\ns_add_u32 s12, s98, s3\ns_addc_u32 s13, s99, 0\ns_xor_b32 s3, s3, 128\ns_add_u32 s14, s98, s3\ns_addc_u32 s15, s99, 0")
        p1 = [(16, 4, 0), (28, 4, 256)]
        r1 = [16, 17, 18, 19, 28, 29, 30, 31]
        a("s_barrier")
        a.spoll_issue(12, p1)
        a.stamp(7)
        if not o["w2e"]:
            for n in range(o["w2p"]): self.g2_w_load(n, issued)
        if o["w2c"]: self.w2_touch(); issued.append(99)
        a.spoll_check(12, p1, r1)
        a.stamp(8)
        od = o["odl"]
        q = []
        for n in range(NSTEP):
            q.append(("a", n, (n >> 1) - 2 if n >= 6 else -1))
            if n >= o["w2p"]: q.append(("w", n, (n >> 1) - 2 if n >= 6 else -1))
        def pump(i, budget):
            for x in list(q):
                c = 3 if x[0] == "a" else 2
                must = (x[1] >> 1) <= i + 1
                if x[2] > i or (budget < c and not must): continue
                if any(y[0] == x[0] and y[1] < x[1] for y in q): continue
                q.remove(x); budget -= c
                a_load(x[1]) if x[0] == "a" else self.g2_w_load(x[1], issued)
        bud = o["g2b"]
        pump(-1, bud[0])
        self.sp2_setup()
        a(f"s_lshr_b32 s52, s60, 1\ns_lshl_b32 s52, s52, 2\ns_add_u32 s52, s52, s58\ns_lshl_b32 s52, s52, 7\ns_add_u32 s52, s52, {FLO}")
        a(f"s_add_u32 s50, s{rWS}, s52\ns_addc_u32 s51, s{rWS+1}, 0")
        op = [(64, 2, 0)]
        a(f"s_mul_i32 s36, s58, 144\ns_lshl_b32 s3, s53, 3\ns_add_u32 s36, s36, s3\ns_mul_i32 s36, s36, 1152\ns_mul_i32 s3, s59, 384\ns_add_u32 s36, s36, s3")
        a(f"s_lshl_b32 s37, s60, 1\ns_lshr_b32 s3, s53, 1\ns_add_u32 s37, s37, s3\ns_lshl_b32 s37, s37, 3\ns_and_b32 s3, s53, 1\ns_add_u32 s37, s37, s3\ns_mul_i32 s37, s37, 9216")
        a(f"s_mul_i32 s3, s58, 2304\ns_add_u32 s37, s37, s3\ns_add_u32 s37, s37, {OT}\ns_mul_i32 s54, s53, {OI_P}\ns_add_u32 s54, s54, {OI}")
        assert od == 17
        for i in range(NST):
            last = max(k for k, x in enumerate(issued) if x == 100 + i)
            nn = len(issued) - 1 - last
            assert nn < 63
            nxt = i + 2
            p3 = [(64 + 2 * k, 2, 128 * k + 16) for k in range(4)]
            chk = {3: (14, p1, None), 4: (14, p1, r1), 9: (98, p3, None), 10: (98, p3, list(range(64, 72)))}
            if self.o["att"] and "o" not in o["dbg"]: chk.update({od - 1: (50, op, None), od: (50, op, [64, 65])})
            if i in chk:
                lb = a.label("nopo")
                a(f"s_cmp_lg_u32 s{sWAVE}, 7\ns_cbranch_scc1 {lb}")
                if chk[i][2] is None: a.spoll_issue(chk[i][0], chk[i][1])
                else: a.spoll_check(*chk[i])
                a(f"{lb}:")
            a(f"s_waitcnt vmcnt({nn})\ns_barrier")
            a.tr0()
            pump(i, bud[min(i + 1, len(bud) - 1)])
            if 0 <= i - o["woe"] < 6: wo_load(3 + (i - o["woe"]) // 3, 116, ((i - o["woe"]) % 3,))
            if i == 16: wo_load(0, 117); wo_load(1, 118)
            if i == 17:
                o_load(0, 118); wo_load(2, 118)
                for ph in range(1, 1 + o["oe"]): o_load(ph, 119)
            if i == 18:
                for ph in range(1 + o["oe"], 4): o_load(ph, 119)
            a.tr1(32 + i)
            wot = {6: 0, 7: 1, 8: 2, 11: 3}
            if o["spo"] and i in wot: self.wo_touch(wot[i])
            elif o["spc"] and i == 12:
                a(f"s_lshl_b32 s11, s{sIDX}, 2\ns_add_u32 s11, s11, s53")
                self.code_touch("L_g2_tail", "L_aux", 96, "s11")
            elif i not in (3, 9, od - 1): self.sp2_step(i)
        assert not q
        a.stamp(10)
        if o.get("trace"):
            a(f"s_lshl_b32 s3, s2, 2\ns_add_u32 s3, s3, s53\ns_lshl_b32 s3, s3, 8\ns_add_u32 s3, s3, {0x1600000}\nv_lshlrev_b32 v1, 2, v0\nbuffer_store_dword v200, v1, {srd(rWS)}, s3 offen")
        a("s_branch L_fin")

    def att(self):
        a = self
        a("L_att:")
        if self.o["att"]:
            import gen_att
            gen_att.emit(self)

    def build(self):
        a = self
        a.launch(KNAME, 256, 512, LDS_BYTES)
        a.kd(KNAME, 256)
        self.entry()
        self.mlp_compute()
        self.mlp_aux()
        self.att()
        a("L_fin:")
        if self.o["stamps"]: a("s_waitcnt vmcnt(0)")
        a.stamp(15)
        self.dump_stamps(4)
        a("L_end:\ns_endpgm\n.p2align 6\n.type order_table,@object\norder_table:")
        for x in range(8):
            w = sum(t << (4 * k) for k, t in enumerate(xcd_order(x) if self.o["perm"] else [(6 * (x & 1) + k) % 12 for k in (0, 1, 2, 3, 6, 7, 8, 9, 4, 5, 10, 11)]))
            a(f".long {w & 0xffffffff}, {w >> 32}")
        a(".size order_table, 64\nL_code_end:")
        return a.text(single=True)


if __name__ == "__main__":
    import json
    opt = json.loads(sys.argv[2]) if len(sys.argv) > 2 else {}
    open(sys.argv[1], "w").write(Gen(**opt).build())
```

```python
from gen import *
import re

A_SLOT, A_NS, A_W = 30720, 4, 16384
IMG_P = 472
PARK = 122880
WPH = PARK + 20480
JUNK7 = WPH + 4096
ZERO = JUNK7 + 2048
JUNK = ZERO + 128
TAB = LN_SCR
KVB = 15360
assert JUNK + 8 <= LN_SCR

cA, cA4, cB0, cB1 = 224, 225, 226, 227
vD = 228
aV, aT4, aK, aKA, aKB, aP, aR, aL, aB, aO, aF, aPK, vT, aS2 = 232, 233, 234, 235, 236, 237, 239, 241, 243, 247, 249, 250, 251, 252
aG = 253
sTB, sTG, sHP = 96, 97, 98


def setup(a):
    o = a.o
    vG, vN, vOOB = 70, 71, 72
    a(f"s_sub_u32 s{sTB}, s{sIDX}, 24\ns_and_b32 s{sTG}, s{sWAVE}, 3\ns_lshr_b32 s{sHP}, s{sWAVE}, 2")
    a(f"v_lshrrev_b32 v{vG}, 4, v0\nv_and_b32 v{vN}, 15, v0\nv_mov_b32 v{vOOB}, {OOB}")
    a(f"s_cmp_eq_u32 s{sHP}, {0}\ns_cbranch_scc1 L_att_ph")
    for i in range(4):
        a(f"v_add_u32 v73, {64*i}, v0")
        a.divmod_const(74, 75, 73, 27, 76)
        a.divmod_const(77, 78, 75, 9, 76)
        a(f"v_mul_u32_u24 v74, 3456, v74\nv_mul_u32_u24 v77, 1152, v77\nv_lshlrev_b32 v78, 4, v78\nv_add3_u32 v74, v74, v77, v78\nv_subrev_u32 v{vD+i}, {1024*i}, v74")
    a(f"s_mul_i32 s28, s{sXCD}, 144\ns_mul_i32 s3, s{sTG}, {8*3456}\ns_add_u32 s28, s28, s3\ns_mul_i32 s99, s{sTG}, 3456\ns_add_u32 s99, s99, {A_W}")
    a("s_branch L_att_pd\nL_att_ph:")
    a(f"v_lshrrev_b32 v73, 5, v0\nv_and_b32 v74, 31, v0\nv_xor_b32 v74, v74, v73\nv_mul_u32_u24 v75, 9216, v73\nv_lshl_add_u32 v{vD}, v74, 4, v75")
    for i in range(1, 4): a(f"v_add_u32 v{vD+i}, {i*(2*9216-1024)}, v{vD}")
    a(f"s_lshl_b32 s28, s{sTB}, 2\ns_add_u32 s28, s28, s{sTG}\ns_mul_i32 s28, s28, {8*9216}\ns_add_u32 s28, s28, {HT}\ns_lshl_b32 s99, s{sTG}, 12")
    a("L_att_pd:")
    a(f"v_lshrrev_b32 v74, 2, v0\nv_lshlrev_b32 v74, 1, v74\nv_and_b32 v75, 3, v0")
    a(f"s_mul_i32 s38, s{sHP}, 72\ns_add_u32 s3, s38, {A_W}\nv_mul_u32_u24 v76, 432, v74\nv_add_u32 v76, s3, v76")
    a(f"v_lshl_add_u32 v{cA}, v75, 3, v76\nv_min_u32 v77, 2, v75\nv_mul_u32_u24 v77, 144, v77\nv_add3_u32 v{cA4}, v76, v77, 64")
    a(f"v_lshrrev_b32 v77, 1, v75\nv_xor_b32 v78, v74, v77\nv_lshlrev_b32 v78, 4, v78\nv_lshl_add_u32 v78, v77, 9, v78")
    a(f"v_and_b32 v77, 1, v75\nv_lshl_add_u32 v78, v77, 3, v78\ns_lshl_b32 s3, s{sTG}, 12\nv_add_u32 v{cB0}, s3, v78\nv_xor_b32 v{cB1}, 16, v{cB0}")
    a(f"v_lshlrev_b32 v{aS2}, 2, v{vN}\nv_mov_b32 v74, 0\nv_add_u32 v75, {ZERO}, v{aS2}\nds_write_b32 v75, v74\nds_write_b32 v75, v74 offset:64")


def late_setup(g):
    o = g.o
    out = []
    def a(t):
        t = re.sub(r"v7(\d)\b", lambda m: f"v{5+int(m.group(1))}", t)
        t = re.sub(r"s3\b", "s41", t)
        ls = t.split("\n")
        k = 0
        while k < len(ls):
            if ls[k].startswith("s_bitcmp"):
                out.append("\n".join(ls[k:k+3])); k += 3
            else:
                out.append(ls[k]); k += 1
    vG, vN, vOOB = 70, 71, 72
    a(f"v_lshrrev_b32 v{vG}, 4, v0\nv_and_b32 v{vN}, 15, v0\nv_mov_b32 v{vOOB}, {OOB}\nv_lshrrev_b32 v73, 5, v0\nv_and_b32 v75, 3, v0")
    a(f"s_lshl_b32 s3, s{sHP}, 11\ns_add_u32 s3, s3, {WPH}\nv_lshl_add_u32 v76, v75, 1, s3\nv_bfe_u32 v77, v0, 2, 2\nv_mul_u32_u24 v77, 18, v77")
    a(f"s_and_b32 s38, s{sTG}, 1\ns_lshl_b32 s38, s38, 1\ns_lshr_b32 s39, s{sTG}, 1\ns_lshl_b32 s3, s39, 4\ns_add_u32 s3, s3, s38\nv_lshl_add_u32 v78, v{vG}, 2, s3")
    a(f"v_sub_u32 v77, v78, v77\nv_cmp_gt_u32 vcc, 18, v77\nv_mul_u32_u24 v78, 36, v78\nv_add_u32 v78, v78, v76\nv_mov_b32 v79, {ZERO}\nv_cndmask_b32 v{aG}, v79, v78, vcc")
    a(f"s_lshl_b32 s39, s39, 1\ns_add_u32 s39, s39, 5\nv_lshrrev_b32 v74, 2, v0\nv_cmp_eq_u32 vcc, s39, v74\ns_mul_i32 s38, s38, 36\ns_add_u32 s38, s38, {32*36}\nv_add_u32 v78, s38, v76\nv_cndmask_b32 v{aG+1}, v79, v78, vcc")
    a(f"s_mul_i32 s3, s{sHP}, 10240\ns_add_u32 s3, s3, {PARK}\nv_lshl_add_u32 v{aPK}, v0, 4, s3\ns_lshl_b32 s3, s{sTG}, 2\nv_add_u32 v15, s3, v{aPK}")
    n_first = len(out)
    a(f"v_lshlrev_b32 v74, 1, v74\ns_mul_i32 s38, s{sHP}, 72")
    a(f"v_lshlrev_b32 v{vT}, 12, v{vG}\nv_lshl_add_u32 v{vT}, v{vN}, 7, v{vT}")
    a(f"s_lshl_b32 s63, s{sTB}, 2\ns_add_u32 s63, s63, s{sTG}\ns_lshl_b32 s63, s63, 2")
    a(f"s_lshr_b32 s42, s{sXCD}, 1\ns_mul_i32 s42, s42, {1152*4096}\ns_and_b32 s3, s{sXCD}, 1\ns_lshl_b32 s3, s3, 11\ns_add_u32 s42, s42, s3")
    a(f"v_lshlrev_b32 v{aF}, 9, v0")
    a(f"s_mul_i32 s3, s{sTG}, {64*IMG_P}\nv_mul_u32_u24 v76, {IMG_P}, v{vN}\nv_add_u32 v76, s3, v76")
    a(f"s_add_u32 s3, s38, 320\nv_lshl_add_u32 v{aV}, v{vG}, 3, s3\nv_add_u32 v{aV}, v{aV}, v76")
    a(f"s_add_u32 s3, s3, 64\nv_cmp_eq_u32 vcc, 3, v{vG}\nv_mov_b32 v77, s3\nv_mov_b32 v78, 464\nv_cndmask_b32 v77, v77, v78, vcc\nv_add_u32 v{aT4}, v77, v76")
    a(f"v_and_b32 v79, 1, v{vG}\nv_mul_u32_u24 v77, 80, v79\nv_mul_u32_u24 v78, {16*IMG_P}, v73\ns_mul_i32 s3, s{sHP}, 160\nv_add3_u32 v{aK}, v76, v77, v78\nv_add_u32 v{aK}, s3, v{aK}")
    a(f"v_and_b32 v76, 14, v74\nv_add_u32 v76, v76, v73\nv_mul_u32_u24 v76, {2*IMG_P}, v76")
    a(f"s_lshr_b32 s39, s{sWAVE}, 1\ns_mul_i32 s3, s39, 80\nv_lshl_add_u32 v{aKA}, v75, 3, s3\nv_add_u32 v{aKA}, v{aKA}, v76")
    a(f"s_add_u32 s38, s38, 320\ns_and_b32 s3, s39, 1\ns_mul_i32 s3, s3, 40\ns_add_u32 s3, s3, s38\nv_lshl_add_u32 v77, v75, 3, s3\ns_add_u32 s38, s38, 32")
    a(f"v_cmp_eq_u32 vcc, 0, v75\nv_mov_b32 v78, 464\nv_mov_b32 v{aKB}, s38\nv_cndmask_b32 v78, v78, v{aKB}, vcc")
    a(f"s_bitcmp0_b32 s{sWAVE}, 0\ns_cselect_b64 vcc, -1, 0\ns_cselect_b32 s38, 16, 8\nv_cndmask_b32 v77, v78, v77, vcc\nv_add_u32 v{aKB}, v77, v76")
    a(f"v_cmp_gt_u32 vcc, s38, v{vN}\nv_mul_u32_u24 v76, s38, v{vG}\nv_add_lshl_u32 v76, v76, v{vN}, 4\ns_lshl_b32 s40, s38, 6")
    a(f"v_cndmask_b32 v{aP}, v{vOOB}, v76, vcc\nv_cmp_gt_u32 vcc, 2, v{vG}\ns_lshl_b32 s30, s{sXCD}, 3\ns_add_u32 s30, s30, s{sTB}\nv_cndmask_b32 v{aP+1}, v{vOOB}, v{aP}, vcc")
    a(f"s_mul_i32 s30, s30, {KVB}\ns_mul_i32 s3, s39, 3840\ns_add_u32 s30, s30, s3\ns_add_u32 s30, s30, {KVP}")
    a(f"s_lshl_b32 s36, s{sXCD}, 12\ns_add_u32 s36, s36, {FLKV}\ns_lshl_b32 s3, s39, 7\ns_add_u32 s36, s36, s3")
    a(f"s_lshl_b32 s31, s{sTB}, 1\ns_and_b32 s3, s{sWAVE}, 1\ns_add_u32 s31, s31, s3\ns_lshl_b32 s31, s31, 2\ns_add_u32 s31, s31, s36\ns_lshl_b32 s3, s{sTB}, 9\ns_add_u32 s36, s36, s3")
    a(f"s_and_b32 s3, s{sWAVE}, 1\ns_mul_i32 s3, s3, 120\nv_add_u32 v76, s3, v0\ns_mul_i32 s38, s39, 1920\ns_add_u32 s38, s38, {TAB}")
    for i in range(2):
        if i: a("v_add_u32 v76, 64, v76")
        a(f"v_cmp_gt_u32 vcc, 160, v76\nv_lshrrev_b32 v77, 4, v76\nv_and_b32 v78, 15, v76\nv_lshrrev_b32 v74, 3, v76\nv_subrev_u32 v74, 20, v74\nv_and_or_b32 v75, v76, 7, 16")
        a(f"v_cndmask_b32 v77, v74, v77, vcc\nv_cndmask_b32 v78, v75, v78, vcc")
        a(f"v_mul_u32_u24 v78, 80, v78\nv_lshlrev_b32 v77, 3, v77\nv_add3_u32 v{aL+i}, v78, v77, s38\nv_lshlrev_b32 v{aR+i}, 4, v76")
    a(f"v_cmp_gt_u32 vcc, 56, v0\nv_mov_b32 v77, {JUNK}\ns_nop 0\nv_cndmask_b32 v{aR+1}, v{vOOB}, v{aR+1}, vcc\nv_cndmask_b32 v{aL+1}, v77, v{aL+1}, vcc")
    a(f"v_lshrrev_b32 v76, 3, v{vN}\nv_and_b32 v77, 7, v0\nv_cmp_eq_u32 vcc, v76, v79")
    a(f"s_mul_i32 s3, s{sHP}, 3840\ns_add_u32 s3, s3, {TAB}\nv_mul_u32_u24 v74, 1920, v76\nv_mul_u32_u24 v75, 40, v73\nv_add3_u32 v74, v74, v75, s3")
    a(f"v_lshlrev_b32 v75, 1, v76\nv_sub_u32 v75, v77, v75\nv_mov_b32 v{aO}, {ZERO}")
    for t in range(4):
        if t < 3:
            a(f"v_add_u32 v78, {8*t+20}, v75\nv_add_u32 v{aB+t}, {8*t}, v75\nv_min_u32 v78, v78, v{aB+t}\nv_min_u32 v78, 20, v78\nv_mul_u32_u24 v78, 80, v78\nv_add_u32 v78, v78, v74")
        else:
            a("v_add_u32 v78, 1600, v74")
        a(f"v_cndmask_b32 v{aB+t}, v{aO}, v78, vcc")
    a(f"v_mul_u32_u24 v76, 18, v76\nv_add_lshl_u32 v76, v76, v77, 4\nv_lshl_add_u32 v78, v79, 1, v73\nv_cmp_gt_u32 vcc, 2, v77")
    a(f"s_mul_i32 s3, s{sWAVE}, 4608\nv_mul_u32_u24 v78, 576, v78\nv_add3_u32 v{aO}, v78, v76, s3")
    a(f"v_mov_b32 v78, {40960}\nv_cndmask_b32 v{aO+1}, v78, v{aO}, vcc")
    a(f"s_lshl_b32 s37, s{sTB}, 2\ns_add_u32 s37, s37, s{sTG}\ns_mul_i32 s37, s37, {8*9216}\ns_mul_i32 s3, s{sXCD}, 1152\ns_add_u32 s37, s37, s3")
    a(f"s_mul_i32 s3, s{sHP}, 576\ns_add_u32 s37, s37, s3\ns_add_u32 s37, s37, {OT}")
    return out, n_first


def early(a):
    a(f"s_and_b32 s3, s{sWAVE}, 3\ns_cmp_lg_u32 s3, 1\ns_cbranch_scc1 L_att_g0\ns_lshr_b32 s49, s{sWAVE}, 2")
    a(f"s_lshl_b32 s3, s49, 11\ns_add_u32 m0, s3, {WPH}\ns_lshl_b32 s48, s{sXCD}, 1\ns_add_u32 s48, s48, s49\ns_mul_i32 s48, s48, 1296")
    a(f"buffer_load_dwordx4 v63, {srd(rWPHI)}, s48 offen lds\nbuffer_load_dwordx4 v63, {srd(rWPHI)}, s48 offen offset:1024 lds")
    a("L_att_g0:")


def mix(a, base, ins, every, start=0):
    ins = list(ins)
    for i, x in enumerate(base):
        a(x)
        if ins and i >= start and (i - start) % every == 0:
            a(ins.pop(0))
    for x in ins: a(x)


def emit(a):
    o = a.o
    ACC = 24
    P, Q = 136, 180
    bA, bA4, bB0, bB1 = 1, 2, 3, 4
    vS = 16
    a(f"s_cmp_eq_u32 s{sWAVE}, 0\ns_cbranch_scc0 L_att_s0")
    a.bar_pub()
    a("L_att_s0:")
    a(f"s_add_u32 s3, s{sXCD}, 24\ns_sub_u32 s48, s{sIDX}, 24")
    a.A_addr("s48", "s3")
    setup(a)
    iW, iH = [], []
    class Both:
        def append(self, x): iW.append(x); iH.append(x)
    issued = Both()
    def w_dma(st):
        r = [f"s_add_u32 m0, s99, {(st % A_NS)*A_SLOT}", "s_nop 0"]
        for i in range(4):
            if i == 3: r.append("s_mov_b64 exec, 0xffffff")
            r.append(f"buffer_load_dwordx4 v{vD+i}, {srd(rWQKV)}, s28 offen offset:{1024*i} lds")
            iW.append(st)
        return r + ["s_mov_b64 exec, -1", f"s_add_u32 s28, s28, {32*3456}"]
    def h_dma(st):
        r = [f"s_add_u32 m0, s99, {(st % A_NS)*A_SLOT}", "s_nop 0"]
        for i in range(4):
            r.append(f"buffer_load_dwordx4 v{vD+i}, {srd(rWS)}, s28 offen offset:{1024*i} sc1 lds")
            iH.append(st)
        return r + ["s_add_u32 s28, s28, 0x200"]
    def emit_l(r):
        for x in r: a(x)
    def only(hp, r):
        lb = a.label("on")
        a(f"s_cmp_lg_u32 s{sHP}, {hp}\ns_cbranch_scc1 {lb}"); emit_l(r); a(f"{lb}:")
    def vm(st):
        return min(len(l) - 1 - max(i for i, x in enumerate(l) if x == st) for l in (iW, iH))
    def w2_touch(slot):
        r = []
        for r0 in o["at"].get(slot, ()):
            if r0 < 0:
                r += wo_touch(); continue
            assert r0 % 4 == 0 and r0 + 128 <= 1152
            r += [f"s_add_u32 s43, s63, {r0}"] + a.ord_row(3, "s43") + ["s_lshl_b32 s3, s3, 12", "s_add_u32 s3, s3, s42", f"buffer_load_dword v255, v{vT}, {srd(rW2)}, s3 offen"]
            issued.append(-1)
        return r
    def both(x):
        for r0 in o["at"].get("B" + x, ()):
            emit_l([f"s_lshl_b32 s43, s{sHP}, 7", "s_add_u32 s43, s43, s63", f"s_add_u32 s43, s43, {r0}"] + a.ord_row(3, "s43") +
                   ["s_lshl_b32 s3, s3, 12", "s_add_u32 s3, s3, s42", f"buffer_load_dword v255, v{vT}, {srd(rW2)}, s3 offen"])
        if "O" + x in o["at"]: only(0, w2_touch("O" + x))
        if "Y" + x in o["at"]: only(1, w2_touch("Y" + x))
    def wo_touch():
        issued.append(-1)
        return (f"s_mul_i32 s3, s63, 1312\ns_lshr_b32 s49, s{sXCD}, 1\ns_mul_i32 s49, s49, {144*1152}\ns_add_u32 s3, s3, s49\n"
                f"v_min_u32 v10, 40, v0\nv_lshlrev_b32 v10, 7, v10\nv_add_u32 v10, s3, v10\nbuffer_load_dword v255, v10, {srd(rWO)}, 0 offen").split("\n")
    a(f"s_cmp_eq_u32 s{sWAVE}, 3\ns_cbranch_scc0 L_att_s7")
    a.spoll_issue(50, a.A_PARTS)
    a("L_att_s7:")
    a(f"s_cmp_eq_u32 s{sWAVE}, 0\ns_cbranch_scc1 L_att_s1")
    a.bar_pub()
    a("L_att_s1:")
    early(a)
    if o.get("atw"):
        a(f"s_lshl_b32 s52, s{sTB}, 3\ns_add_u32 s52, s52, s{sWAVE}")
        for k, R in enumerate(o["atw"]):
            a.touch_pattern(80, R, 9216)
            a.touch_w1(80, "s52", R, 224 * o["w1a"] + 64 * sum(o["atw"][:k]), 255)
    NPRE = o.get("apre", 2)
    HR = 0
    only(1 - HR, [x for st in range(NPRE) for x in w_dma(st)])
    fill, nf = late_setup(a)
    npre = o.get("apf", 60)
    emit_l(fill[:npre]); del fill[:npre]; nf -= npre
    for x, y in ((bA, cA), (bA4, cA4), (bB0, cB0), (bB1, cB1)): a(f"v_mov_b32 v{x}, v{y}")
    a(f"s_cmp_lg_u32 s{sWAVE}, 3\ns_cbranch_scc1 L_att_np")
    a.spoll_check(50, a.A_PARTS, a.A_REGS)
    a("L_att_np:")
    a("s_barrier")
    a.stamp(3)
    only(HR, h_dma(0) + h_dma(1))
    a(f"s_lshl_b32 s3, s{sTB}, 2\ns_add_u32 s3, s3, s{sTG}\ns_lshl_b32 s3, s3, 8\ns_add_u32 s3, s3, {S2}")
    for t in range(4):
        a(f"buffer_load_dword v{vS+2*t}, v{aS2}, {srd(rWS)}, s3 offen offset:{64*t} sc1")
        issued.append(-1)

    TOFF = [0, 32, 144, 176, None, 288, 320]
    def reads(st):
        r = []
        def rb(tt):
            return [f"ds_read_b64_tr_b16 v[{st+28+4*tt+2*rho}:{st+29+4*tt+2*rho}], v{bB1 if rho else bB0} offset:{1024*tt}" for rho in range(2)]
        r += rb(0)
        for T in range(7):
            for rho in range(2):
                if T == 4:
                    r.append(f"ds_read_b64_tr_b16 v[{st+4*T+2*rho}:{st+4*T+2*rho+1}], v{bA4} offset:{432*rho}")
                else:
                    r.append(f"ds_read_b64_tr_b16 v[{st+4*T+2*rho}:{st+4*T+2*rho+1}], v{bA} offset:{432*rho+TOFF[T]}")
        for tt in range(1, 4): r += rb(tt)
        return r
    def mfmas(st, first=False):
        m = []
        for tt in range(4):
            for T in (range(6, -1, -1) if (o.get("snake") and tt & 1) else range(7)):
                d = ACC + 28 * tt + 4 * T
                m.append(f"v_mfma_f32_16x16x32_bf16 v[{d}:{d+3}], v[{st+4*T}:{st+4*T+3}], v[{st+28+4*tt}:{st+31+4*tt}], {'0' if first else f'v[{d}:{d+3}]'}")
        return m
    def advance(st):
        off = (st % A_NS) * A_SLOT
        return [f"v_add_u32 v{x}, {off}, v{y}" for x, y in ((bA, cA), (bA4, cA4), (bB0, cB0), (bB1, cB1))]
    a(f"s_waitcnt vmcnt({vm(0)})\ns_barrier")
    a.stamp(4)
    for r in reads(P): a(r)
    for r in advance(1): a(r)
    NS_ = 18
    nh, nw = [2], [NPRE]
    LA = o.get("ala", 2)
    def more(f, cnt, upto):
        r = []
        while cnt[0] <= min(upto, NS_ - 1):
            r += f(cnt[0]); cnt[0] += 1
        return r
    only(HR, more(h_dma, nh, 2))
    if NPRE < 3: only(1 - HR, more(w_dma, nw, 2))
    if o.get("aprio"):
        a(f"s_cmp_lg_u32 s{sHP}, {o['aprio'] - 1}\ns_cbranch_scc1 L_att_pr\ns_setprio 1\nL_att_pr:")
    tails = []
    PQ, PKk, PT, PV = 136, 152, 168, 4
    def conv(tt):
        r = ACC + 28 * tt
        pv = PV + 6 * (tt & 1)
        l = [f"v_cvt_pk_bf16_f32 v{PKk+4*tt+i}, v{r+8+2*i}, v{r+9+2*i}" for i in range(4)]
        l += [f"v_cvt_pk_bf16_f32 v{PT+2*tt+i}, v{r+16+2*i}, v{r+17+2*i}" for i in range(2)]
        l += [f"v_cvt_pk_bf16_f32 v{PQ+4*tt+i}, v{r+2*i}, v{r+1+2*i}" for i in range(4)]
        l += [f"v_pk_mul_f32 v[{r+16+2*i}:{r+17+2*i}], v[{r+16+2*i}:{r+17+2*i}], v[{vS+2*tt}:{vS+2*tt+1}] op_sel_hi:[1,0]" for i in range(6)]
        l += [f"v_cvt_pk_bf16_f32 v{pv+i}, v{r+16+2*i}, v{r+17+2*i}" for i in range(6)]
        l += [f"v_cndmask_b32 v{pv}, v{pv}, v3, vcc", f"v_cndmask_b32 v{pv+1}, v{pv+1}, v3, vcc"]
        l += [f"ds_write_b64 v{aV}, v[{pv+2}:{pv+3}] offset:{16*IMG_P*tt}", f"ds_write_b64 v{aV}, v[{pv+4}:{pv+5}] offset:{16*IMG_P*tt+32}"]
        l += [f"s_mov_b32 exec_lo, 0\nds_write_b64 v{aT4}, v[{pv}:{pv+1}] offset:{16*IMG_P*tt}\ns_mov_b32 exec_lo, -1"]
        return l
    vm1 = lambda l, st: len(l) - 1 - max(i for i, x in enumerate(l) if x == st)
    def gemm(role):
        fl, nf_ = list(fill), nf
        lst, cnt, f = (iH, nh, h_dma) if role == 0 else (iW, nw, w_dma)
        for n in range(NS_ - 1):
            st, nx = (P, Q)[n & 1], (P, Q)[(n + 1) & 1]
            a(f"s_waitcnt vmcnt({vm1(lst, n + 1)}) lgkmcnt(6)\ns_barrier")
            ds = reads(nx)
            if n + 2 < NS_: ds += advance(n + 2)
            dm = more(f, cnt, n + 3)
            dm += w2_touch(f"{'oy'[role]}{n}")
            if role == 0 and n in o.get("acode", ()):
                pc = a.label("pc")
                k = o["acode"].index(n)
                dm += [f"s_getpc_b64 s[48:49]", f"{pc}:", f"s_lshl_b32 s3, s{sTG}, 13", f"s_add_u32 s3, s3, L_att_a-{pc}+65536+{2048*k}*0", f"s_min_u32 s3, s3, L_code_end-{pc}+65536-8192",
                       "s_add_u32 s48, s48, s3", "s_addc_u32 s49, s49, 0", "s_sub_u32 s48, s48, 65536", "s_subb_u32 s49, s49, 0",
                       f"s_lshl_b32 s3, s{sTB}, 3", "v_and_b32 v23, 7, v0", "v_add_lshl_u32 v23, v23, s3, 7", "global_load_dword v255, v23, s[48:49]"]
                issued.append(-1)
            G0 = 3
            ex = []
            if G0 + 1 <= n <= G0 + 10:
                ex += ["v_lshl_or_b32 v21, v19, 16, v17", f"ds_write_b32 v15, v21 offset:{1024*(n-G0-1)}"]
            if G0 <= n <= G0 + 9:
                k_ = n - G0
                assert nf_ <= 0
                ex += [f"ds_read_u16 v17, v{aG + k_ // 5} offset:{8*(k_%5)}", f"ds_read_u16 v19, v{aG + k_ // 5} offset:{8*(k_%5)+36}"]
            nfl = o.get("anf", 10)
            ex += fl[:nfl]; del fl[:nfl]; nf_ -= nfl
            def side():
                per = (len(ex) + 2) // 3 if o.get("amix", 0) else 0
                nb = 0
                for x in dm:
                    a(x)
                    if x.startswith("buffer_load_dwordx4") and nb < 3:
                        emit_l(ex[:per]); del ex[:per]; nb += 1
                emit_l(ex)
            if role == 1: side()
            for i_, m_ in enumerate(mfmas(st, n == 0)):
                if i_ == 7: a("s_waitcnt lgkmcnt(7)")
                a(m_)
                if ds: a(ds.pop(0))
            if role == 0: side()
        assert not fl
    a(f"L_att_a:\ns_cmp_eq_u32 s{sHP}, 1\ns_cbranch_scc1 L_att_y")
    w0 = list(iW)
    gemm(0)
    a("s_branch L_att_z\nL_att_y:")
    iW[:] = w0
    gemm(1)
    a("L_att_z:")
    a("s_waitcnt lgkmcnt(0)\ns_barrier")
    both("L")
    st = Q
    a("s_mov_b32 vcc_lo, 0\ns_mov_b32 vcc_hi, 0xffff0000\nv_mov_b32 v3, 0x3f803f80")
    m = mfmas(st)
    for x in m[:15]: a(x)
    c0 = conv(0)
    mix(a, m[15:], ["\n".join(c0[2*i:2*i+2]) for i in range(12)], 1)
    for x in c0[24:]: a(x)
    if o.get("trace"):
        a(f"s_sub_u32 s3, s2, 192\ns_lshl_b32 s3, s3, 3\ns_add_u32 s3, s3, s{sWAVE}\ns_lshl_b32 s3, s3, 8\ns_add_u32 s3, s3, {0x1700000}\nv_lshlrev_b32 v1, 2, v0\nbuffer_store_dword v23, v1, {srd(rWS)}, s3 offen")
    a.stamp(5)
    if o["stamps"]: a("s_waitcnt lgkmcnt(0)")
    if o["ab1"] == 0: only(1, ["s_barrier"])
    A0, A1, A3 = 180, 200, 24
    a(f"v_xor_b32 v1, 128, v{aPK}\nv_xor_b32 v2, 256, v{aPK}")
    rd = [f"ds_read_b128 v[{A0+4*u}:{A0+4*u+3}], v{aPK} offset:{1024*u}" for u in range(5)]
    rd += [f"ds_read_b128 v[{A1+4*u}:{A1+4*u+3}], v1 offset:{1024*u}" for u in range(5)]
    rd += [f"ds_read_b128 v[{A3+4*u}:{A3+4*u+3}], v{aPK} offset:{5120+1024*u}" for u in range(5)]
    for x in rd: a(x)
    for x in conv(1): a(x)
    PA = [44, 64]
    E1, E2 = 84, 102
    def fmf(src, p, d0):
        l = []
        for part, (A_, b_) in enumerate(((A0, src + 8 * p), (A1, src + 8 * p + 4), (A3, PT + 4 * p))):
            for u in range(5):
                d = d0 + 4 * u
                l.append(f"v_mfma_f32_16x16x32_bf16 v[{d}:{d+3}], v[{A_+4*u}:{A_+4*u+3}], v[{b_}:{b_+3}], {'0' if part == 0 else f'v[{d}:{d+3}]'}")
        return l
    a("s_waitcnt lgkmcnt(3)")
    c23 = conv(2) + conv(3)
    mix(a, c23, fmf(PKk, 0, PA[0]), 3)
    vL = [120, 122]
    a(f"s_mov_b32 vcc_lo, -1\ns_mov_b32 vcc_hi, 0\ns_mov_b32 s3, {fhex(LOG2E)}\nv_cndmask_b32 v{vL[0]}, v{vS+2}, v{vS}, vcc\nv_cndmask_b32 v{vL[1]}, v{vS+6}, v{vS+4}, vcc")
    a(f"v_mul_f32 v{vL[0]}, s3, v{vL[0]}\nv_mul_f32 v{vL[1]}, s3, v{vL[1]}")
    def soft(p, X, Y, nxt=()):
        d = PA[p]
        L = vL[p]
        a(f"v_max_f32 v4, v{d}, v{d+1}\nv_min_f32 v6, v{d}, v{d+1}")
        for i in range(1, 9):
            a(f"v_max3_f32 v4, v4, v{d+2*i}, v{d+2*i+1}\nv_min3_f32 v6, v6, v{d+2*i}, v{d+2*i+1}")
        a(f"v_mul_f32 v4, v{L}, v4\nv_mul_f32 v6, v{L}, v6")
        for i in range(9):
            a(f"v_pk_fma_f32 v[{E1+2*i}:{E1+2*i+1}], v[{d+2*i}:{d+2*i+1}], v[{L}:{L+1}], v[4:5] op_sel_hi:[1,0,0] neg_lo:[0,0,1] neg_hi:[0,0,1]")
        for i in range(9):
            a(f"v_pk_fma_f32 v[{E2+2*i}:{E2+2*i+1}], v[{d+2*i}:{d+2*i+1}], v[{L}:{L+1}], v[6:7] op_sel_hi:[1,0,0] neg_lo:[1,0,0] neg_hi:[1,0,0]")
        mix(a, [f"v_exp_f32 v{E1+i}, v{E1+i}" for i in range(36)], nxt, 2)
        a(f"v_pk_add_f32 v[4:5], v[{E1}:{E1+1}], v[{E1+2}:{E1+3}]\nv_pk_add_f32 v[6:7], v[{E2}:{E2+1}], v[{E2+2}:{E2+3}]")
        for i in range(2, 9):
            a(f"v_pk_add_f32 v[4:5], v[4:5], v[{E1+2*i}:{E1+2*i+1}]\nv_pk_add_f32 v[6:7], v[6:7], v[{E2+2*i}:{E2+2*i+1}]")
        a("v_add_f32 v4, v4, v5\nv_add_f32 v6, v6, v7\nv_rcp_f32 v4, v4\nv_rcp_f32 v6, v6")
        for E, c in ((E1, 4), (E2, 6)):
            for i in range(9):
                a(f"v_pk_mul_f32 v[{E+2*i}:{E+2*i+1}], v[{E+2*i}:{E+2*i+1}], v[{c}:{c+1}] op_sel_hi:[1,0]")
        for i in range(9): a(f"v_cvt_pk_bf16_f32 v{X+i}, v{E1+2*i}, v{E1+2*i+1}")
        for i in range(9): a(f"v_cvt_pk_bf16_f32 v{Y+i}, v{E2+2*i}, v{E2+2*i+1}")
    XO, YO = 124, 14
    def kwr(p):
        for h, R in enumerate((XO, YO)):
            for i in range(4):
                a(f"ds_write_b64 v{aK}, v[{R+2*i}:{R+2*i+1}] offset:{32*IMG_P*p+40*h+8*i}")
            a(f"ds_write_b32 v{aK}, v{R+8} offset:{32*IMG_P*p+40*h+32}")
    if o["ab1"] == 1: only(1, w2_touch("Y1") + ["s_barrier"])
    a.align8()
    soft(0, XO, YO, fmf(PKk, 1, PA[1]))
    for u in range(5): a(f"ds_read_b128 v[{A3+4*u}:{A3+4*u+3}], v2 offset:{5120+1024*u}")
    kwr(0)
    both("2")
    if o["ab1"] == 2: only(1, ["s_barrier"])
    a.align8()
    soft(1, XO, YO, ["s_waitcnt lgkmcnt(0)"] + fmf(PQ, 0, PA[0]))
    kwr(1)
    a.stamp(6)
    a(f"v_add_u32 v1, {128*IMG_P}, v{aKA}\nv_add_u32 v2, {128*IMG_P}, v{aKB}")
    KA = 152
    FR = [64, 84, 100]
    a("s_waitcnt lgkmcnt(0)\ns_barrier\ns_setprio 1")
    def kvr(ks):
        st = FR[ks % 3]
        ra, rb_ = (aKA, aKB) if ks < 4 else (1, 2)
        off = (ks & 3) * 32 * IMG_P
        r = [f"ds_read_b64_tr_b16 v[{st+12+2*rho}:{st+13+2*rho}], v{rb_} offset:{off+rho*IMG_P}" for rho in range(2)]
        for mt in range(3):
            r += [f"ds_read_b64_tr_b16 v[{st+4*mt+2*rho}:{st+4*mt+2*rho+1}], v{ra} offset:{off+rho*IMG_P+32*mt}" for rho in range(2)]
        return r
    for x in kvr(0) + kvr(1): a(x)
    for ks in range(8):
        a(f"s_waitcnt lgkmcnt({8 if ks + 1 < 8 else 0})")
        st = FR[ks % 3]
        m = [f"v_mfma_f32_16x16x32_bf16 v[{KA+4*mt}:{KA+4*mt+3}], v[{st+4*mt}:{st+4*mt+3}], v[{st+12}:{st+15}], {'0' if ks == 0 else f'v[{KA+4*mt}:{KA+4*mt+3}]'}" for mt in range(3)]
        r = kvr(ks + 2) if ks + 2 < 8 else []
        for mt in range(3):
            a(m[mt])
            for x in r[3*mt:3*mt+3]: a(x)
    a(f"s_and_b32 s3, s{sWAVE}, 1\ns_mul_i32 s3, s3, 2560\ns_add_u32 s3, s3, s30\ns_nop 4")
    for mt in range(3):
        a(f"buffer_store_dwordx4 v[{KA+4*mt}:{KA+4*mt+3}], v{aP+(mt>>1)}, {srd(rWS)}, s3 offen sc1\ns_add_u32 s3, s3, s40")
    a.stamp(7)
    QR = [124, 14, 152, 164]
    def signal():
        a("s_waitcnt vmcnt(0)")
        a.set_flags("s31", aF, 8, 8)
    def swaps(X, Y):
        a(f"v_mov_b32 v{X+9}, 0\nv_mov_b32 v{Y+9}, 0")
        for i in range(9): a(f"v_permlane32_swap_b32 v{X+i}, v{Y+i}")
    signal()
    a("s_setprio 0")
    only(0, w2_touch("O1") + ["s_barrier"])
    a.align8()
    soft(0, QR[0], QR[1], fmf(PQ, 1, PA[1]))
    RD = [180, 24]
    def gather():
        a.save_stamps()
        a(f"s_add_u32 s50, s{rWS}, s36\ns_addc_u32 s51, s{rWS+1}, 0")
        a.spoll_issue(50, [(64, 16, 0)])
        swaps(QR[0], QR[1])
        if o["ab3"]: only(1, ["s_barrier"])
        a.spoll_check(50, [(64, 16, 0)], list(range(64, 80)))
        a.restore_stamps()
        a(f"s_mul_i32 s3, s{sTB}, {KVB}\ns_sub_u32 s3, s30, s3")
        for t in range(8):
            for i in range(2):
                a(f"buffer_load_dwordx4 v[{RD[i]+4*t}:{RD[i]+4*t+3}], v{aR+i}, {srd(rWS)}, s3 offen sc1")
            a(f"s_add_u32 s3, s3, {KVB}")
    gather()
    if o["ab3"] == 2: a("s_setprio 1")
    a.align8()
    soft(1, QR[2], QR[3]); swaps(QR[2], QR[3])
    a.stamp(8)
    a(f"s_mul_i32 s3, s{sWAVE}, 4608\nv_lshl_add_u32 v1, v0, 4, s3")
    for t in range(1, 8):
        a(f"s_waitcnt vmcnt({14-2*t})")
        for i in range(2):
            for h in range(2):
                a(f"v_pk_add_f32 v[{RD[i]+2*h}:{RD[i]+2*h+1}], v[{RD[i]+2*h}:{RD[i]+2*h+1}], v[{RD[i]+4*t+2*h}:{RD[i]+4*t+2*h+1}]")
    for i in range(2):
        a(f"v_cvt_pk_bf16_f32 v{RD[i]}, v{RD[i]}, v{RD[i]+1}\nv_cvt_pk_bf16_f32 v{RD[i]+1}, v{RD[i]+2}, v{RD[i]+3}")
        a(f"ds_write_b64 v{aL+i}, v[{RD[i]}:{RD[i]+1}]")
    a("s_waitcnt lgkmcnt(0)\ns_barrier")
    if o["ab3"] == 2: a("s_setprio 0")
    a.stamp(9)
    both("3")
    a(f"s_mov_b32 s48, {fhex(1e-6)}")
    BF = [88, 100, 112, 136]
    for t in (3, 0, 1, 2):
        b = BF[t]
        a(f"ds_read2_b64 v[{b}:{b+3}], v{aB+t} offset0:0 offset1:1\nds_read2_b64 v[{b+4}:{b+7}], v{aB+t} offset0:2 offset1:3\nds_read_b32 v{b+8}, v{aB+t} offset:32\nv_mov_b32 v{b+9}, 0")
    for i in range(5):
        a(f"v_add_u32 v2, {64*i}, v0\nv_mul_u32_u24 v3, 1821, v2\nv_lshrrev_b32 v3, 16, v3\nv_mul_u32_u24 v3, 8640, v3\nv_lshl_add_u32 v{204+i}, v2, 4, v3")
    a("s_waitcnt lgkmcnt(0)")
    DD = [24, 40, 56, 72]
    OO = [180, 192]
    def omf(tts):
        l = []
        for c in range(3):
            for tt in tts:
                q = QR[tt]
                for t in (3, 0, 1, 2):
                    d, b = DD[tt] + 4 * t, BF[t]
                    if c < 2:
                        l.append(f"v_mfma_f32_16x16x32_bf16 v[{d}:{d+3}], v[{q+4*c}:{q+4*c+3}], v[{b+4*c}:{b+4*c+3}], {'0' if c == 0 else f'v[{d}:{d+3}]'}")
                    else:
                        l.append(f"v_mfma_f32_16x16x16_bf16 v[{d}:{d+3}], v[{q+8}:{q+9}], v[{b+8}:{b+9}], v[{d}:{d+3}]")
        return l
    def ofin(p):
        l = []
        for tt in (2 * p, 2 * p + 1):
            d = DD[tt]
            l += [f"v_add_f32 v{d+12+r}, s48, v{d+12+r}" for r in range(4)]
            l += [f"v_rcp_f32 v{d+12+r}, v{d+12+r}" for r in range(4)]
        for tt in (2 * p, 2 * p + 1):
            d = DD[tt]
            l += [f"v_pk_mul_f32 v[{d+4*t+2*h}:{d+4*t+2*h+1}], v[{d+4*t+2*h}:{d+4*t+2*h+1}], v[{d+12+2*h}:{d+13+2*h}]" for t in range(3) for h in range(2)]
            l += [f"v_cvt_pk_bf16_f32 v{OO[p]+4*t+2*(tt&1)+h}, v{d+4*t+2*h}, v{d+4*t+2*h+1}" for t in range(3) for h in range(2)]
        for t in range(3):
            r = OO[p] + 4 * t
            l += [f"v_permlane16_swap_b32 v{r}, v{r+2}", f"v_permlane16_swap_b32 v{r+1}, v{r+3}"]
        for t in range(3):
            r = OO[p] + 4 * t
            l.append(f"ds_write_b128 v{aO+(t>>1)}, v[{r}:{r+3}] offset:{128*t+4*576*p}")
        return l
    for x in omf((0, 1)): a(x)
    m = omf((2, 3))
    a(m[0])
    mix(a, ofin(0), m[1:], 2)
    a("s_nop 3")
    for x in ofin(1): a(x)
    for i in range(5): a(f"ds_read_b128 v[{24+4*i}:{27+4*i}], v1 offset:{1024*i}")
    for i in range(5):
        if i == 4: a("s_mov_b32 exec_hi, 0")
        a(f"s_waitcnt lgkmcnt({4-i})\nbuffer_store_dwordx4 v[{24+4*i}:{27+4*i}], v{204+i}, {srd(rWS)}, s37 offen sc1")
    a("s_mov_b32 exec_hi, -1")
    if o["ab3"]: only(0, ["s_barrier"])
    a.stamp(11)
    a(f"s_lshl_b32 s3, s{sTB}, 1\ns_lshr_b32 s48, s{sTG}, 1\ns_add_u32 s3, s3, s48\ns_lshl_b32 s3, s3, 2\ns_lshr_b32 s48, s{sXCD}, 1\ns_add_u32 s3, s3, s48\ns_lshl_b32 s3, s3, 7")
    a(f"s_and_b32 s48, s{sXCD}, 1\ns_lshl_b32 s48, s48, 1\ns_add_u32 s48, s48, s{sHP}\ns_lshl_b32 s48, s48, 1\ns_and_b32 s49, s{sTG}, 1\ns_add_u32 s48, s48, s49\ns_lshl_b32 s48, s48, 2\ns_add_u32 s3, s3, s48\ns_add_u32 s3, s3, {FLO}")
    a("s_waitcnt vmcnt(0)")
    a.set_flag("s3", 4)
    a.stamp(10)
```

```python
import sys
sys.path.insert(0, "work")
from asmlib import *

KNAME = "parallel_sum__linear_kernel_hedgehog__mixer_token_mlp__prompt_kernel"
S, D, F, H, DH = 2048, 576, 4608, 32, 18

EPOCH = 0
FLA, FLB, FLKV, FLO, FLX = 0x80000, 0xA0000, 0xC000, 0x8000, 0xC0000
STAMP = 0x20000
S2 = 0x60000
HT = 0x100000
U = 0x400000
OT = 0xA00000
KVP = 0xD00000
EX = 0xE00000
EX1, FL1 = 0x1800000, 0xE0000

sWAVE, sXCD, sIDX, sTAG = 4, 5, 6, 7
rX, rWQKV, rWPHI, rWO, rW1, rB1, rW2, rB2, rOUT, rWS = 8, 12, 16, 20, 24, 28, 32, 36, 40, 44
sST = 64
def srd(r): return f"s[{r}:{r+3}]"

G1_SLOT, G1_NS, G1_W = 21504, 7, 9216
G1_R = 6
def g1_slot(pos): return ((pos + G1_R + 3) % G1_NS) * G1_SLOT
LN_SCR, LN_PITCH = 153600, 1216
LN_S2 = LN_SCR + 8 * LN_PITCH
G2_US, G2_WS, G2_PITCH = 12544, 8192, 3136
G2_U = [0, 25088, 122880]
G2_W = [61440, 61440 + 16384, 61440 + 32768]
SH_SCR = 147968
OI, OI_P = 50176, 2432
WO_AT = [0, 12544, 25088, 147968, 110592]
TO_SCR = 122880
LDS_BYTES = 163840
OOB = 0x7FFF0000

LOG2E = 1.4426950408889634
CNT = 160256

def slow_tile(ft):
    a_ = (192 * ft) & 1023
    return 192 < a_ < 512
def xcd_perm(x):
    return sorted(range(6), key=lambda e: slow_tile(6 * x + e))
def xcd_order(x):
    own = [6 * (x & 1) + e for e in xcd_perm(x)]
    oth = [6 * ((x & 1) ^ 1) + e for e in xcd_perm(x ^ 1)]
    return own[:4] + oth[:4] + own[4:] + oth[4:]
for _r in range(1152): assert (_r * 683) >> 16 == _r // 96


class Gen(Asm):
    def __init__(self, **opt):
        super().__init__()
        self.o = dict(stamps=False, att=True, pf_code=True, spin=1 << 16, prefill=3, la1=4, probe=0, clk=False, dbg='',
                      sp=0, latin=3, latc=1, un1=2, w2a=0, w2c=0, w2p=4, w2e=1, aw2=(0, 0, 0, 1, 1, 1), aw2r=288, awq=0, rot=7, w1a=1, w1c=0, spn=600, w2r=0, sp2=0, spn2=120, perm=0, spo=0, spc=1, odl=17, g2b=(12, 7, 11), aw5=1, tout=1, dot=1, woe=8, oe=3, awo=1, lat0=3, h1=1, wqa=1, ab1=1, ab3=0, lk1=3, sig1=12, g1b=(9, 7, 7, 7, 7, 7.5), w2t=(), xat=1, pb=0, pb0=8, pbr=0, pbn=1, w1nt=0, w2g=0, wqc=1, wot=0, sgt=(4, 5), at=dict(o14=[0], o15=[128], o16=[256], Y1=[576], B2=[704], B3=[896]))
        self.o.update(opt)
        self.nstamp = {}

    def stamp(self, i):
        if self.o["stamps"]:
            self(f"{'s_memtime' if self.o['clk'] else 's_memrealtime'} s[{sST+2*i}:{sST+2*i+1}]")

    def dump_stamps(self, vtmp):
        if not self.o["stamps"]:
            return
        a = self
        a("s_waitcnt lgkmcnt(0)")
        a(f"s_lshl_b32 s3, s2, 3\ns_add_u32 s3, s3, s{sWAVE}\ns_lshl_b32 s3, s3, 6\ns_add_u32 s3, s3, {STAMP}")
        a(f"v_mov_b32 v{vtmp+4}, 0")
        for q in range(4):
            for i in range(4):
                a(f"v_mov_b32 v{vtmp+i}, s{sST+2*(4*q+i)}")
            a(f"buffer_store_dwordx4 v[{vtmp}:{vtmp+3}], v{vtmp+4}, {srd(rWS)}, s3 offen offset:{16*q}")
            a("s_nop 1")

    def align8(self):
        self(".p2align 3")

    def wave_sum(self, v, sdst):
        a = self
        for m in ("row_shr:1", "row_shr:2", "row_shr:4", "row_shr:8"):
            a(f"s_nop 1\nv_add_f32_dpp v{v}, v{v}, v{v} {m} row_mask:0xf bank_mask:0xf bound_ctrl:1")
        a(f"s_nop 1\nv_add_f32_dpp v{v}, v{v}, v{v} row_bcast:15 row_mask:0xa bank_mask:0xf")
        a(f"s_nop 1\nv_add_f32_dpp v{v}, v{v}, v{v} row_bcast:31 row_mask:0xc bank_mask:0xf")
        a(f"s_nop 0\nv_readlane_b32 s{sdst}, v{v}, 63\ns_nop 1")

    def divmod_const(self, vq, vr, vx, c, vt):
        m = (1 << 20) // c + 1
        for x in range(2048):
            assert (x * m) >> 20 == x // c
        assert 2047 * m < (1 << 32) and m < (1 << 24)
        self(f"v_mul_u32_u24 v{vq}, {m}, v{vx}\nv_lshrrev_b32 v{vq}, 20, v{vq}")
        self(f"v_mul_u32_u24 v{vt}, {c}, v{vq}\nv_sub_u32 v{vr}, v{vx}, v{vt}")

    def tr0(self):
        if self.o.get("trace"): self("s_memtime s[92:93]")
    def tr1(self, i):
        if self.o.get("trace"): self(f"s_waitcnt lgkmcnt(0)\nv_writelane_b32 v200, s92, {i}")
    def save_stamps(self):
        if self.o["stamps"]:
            self("s_waitcnt lgkmcnt(0)")
            for i in range(16): self(f"v_writelane_b32 v9, s{sST+2*i}, {i}")
    def restore_stamps(self):
        if self.o["stamps"]:
            for i in range(16): self(f"v_readlane_b32 s{sST+2*i}, v9, {i}")

    def spoll_issue(self, sbase, parts, glc=" glc"):
        for d, w, off in parts:
            dst = f"s{d}" if w == 1 else f"s[{d}:{d+w-1}]"
            self(f"s_load_dword{'' if w == 1 else 'x'+str(w)} {dst}, s[{sbase}:{sbase+1}], {off}{glc}")

    def spoll_check(self, sbase, parts, regs):
        a = self
        lp, done = a.label("poll"), a.label("polld")
        a(f"s_mov_b32 s48, {self.o['spin']}")
        a(f"{lp}:\ns_waitcnt lgkmcnt(0)")
        pairs = [r for r in regs if r % 2 == 0 and r + 1 in regs]
        single = [r for r in regs if r not in pairs and r - 1 not in pairs]
        r0 = pairs[0]
        a(f"s_xor_b32 s49, s{r0}, s{sTAG}\ns_xor_b32 s3, s{r0+1}, s{sTAG}\ns_or_b32 s49, s49, s3")
        for r in single:
            a(f"s_xor_b32 s3, s{r}, s{sTAG}\ns_or_b32 s49, s49, s3")
        for r in pairs[1:]:
            a(f"s_cmp_lg_u64 s[{r}:{r+1}], s[{r0}:{r0+1}]\ns_cselect_b32 s49, 1, s49")
        a(f"s_cmp_eq_u32 s49, 0\ns_cbranch_scc1 {done}")
        a(f"s_sub_u32 s48, s48, 1\ns_cmp_eq_u32 s48, 0\ns_cbranch_scc1 {done}")
        self.spoll_issue(sbase, parts)
        a(f"s_branch {lp}\n{done}:")

    def spoll(self, soff, parts, regs, first_plain=False):
        self(f"s_add_u32 s50, s{rWS}, {soff}\ns_addc_u32 s51, s{rWS+1}, 0")
        self.spoll_issue(50, parts, "" if first_plain else " glc")
        self.spoll_check(50, parts, regs)

    def set_flag(self, soff, vt):
        a = self
        a(f"v_mov_b32 v{vt}, s{sTAG}\ns_mov_b64 exec, 1")
        a(f"buffer_store_dword v{vt}, off, {srd(rWS)}, {soff} sc1")
        a("s_mov_b64 exec, -1")

    def set_flags(self, soff, vaddr, vt, nl):
        a = self
        a(f"v_mov_b32 v{vt}, s{sTAG}\ns_mov_b32 exec_lo, {hex((1 << nl) - 1)}\ns_mov_b32 exec_hi, 0")
        a(f"buffer_store_dword v{vt}, v{vaddr}, {srd(rWS)}, {soff} offen sc1")
        a("s_mov_b64 exec, -1")

    def interleave(self, mf, ds, per_gap=2, start=0):
        ds = list(ds)
        if "m" in self.o["dbg"]: mf = mf[:1]
        if "d" in self.o["dbg"]: ds = [x for x in ds if not x.startswith("ds_")]
        for i, m in enumerate(mf):
            self(m)
            if i >= start:
                for _ in range(per_gap):
                    if ds:
                        self(ds.pop(0))
        for d in ds:
            self(d)

    def sched(self, mf, prev, ds, extra=(), waits=(0,), bar=None, tail_busy=1):
        a = self
        ds, extra = list(ds), list(extra)
        if "d" in self.o["dbg"]: ds = []
        n = len(mf)
        waits = sorted(set(waits))
        npre = [(1 if i in waits or (bar and bar[0] == i and bar[1]) else 0) + (1 if bar and bar[0] == i else 0) for i in range(n)] + [tail_busy]
        first = bar[0] if bar else 0
        cnt = [0] * n
        free = [g for g in range(first, n) if npre[g + 1] < 2]
        k = len(ds)
        for g in free[:k]: cnt[g] = 1
        k -= min(k, len(free))
        for g in sorted(range(first, n), key=lambda g: (cnt[g] * 2 + npre[g + 1], g)):
            if k: cnt[g] += 1; k -= 1
        assert k == 0
        new = 0
        for i, (t, need) in enumerate(mf):
            if bar and bar[0] == i and bar[1]:
                a("s_waitcnt lgkmcnt(0)")
            elif i in waits:
                nxt = [w for w in waits if w > i]
                end = nxt[0] if nxt else n
                idx = max(prev.index(x) for k_ in range(i, end) for x in mf[k_][1])
                a(f"s_waitcnt lgkmcnt({min(14, len(prev) - 1 - idx + new)})")
            if bar and bar[0] == i: a("s_barrier")
            if not ("m" in self.o["dbg"] and i): a(t)
            for _ in range(cnt[i]):
                a(ds.pop(0)[0]); new += 1
            room = 3 - 2 * cnt[i] - npre[i + 1]
            while extra and room > 0:
                a(extra.pop(0)); room -= 1
        for e in extra: a(e)

    def linear(self, mf, place, pre, order, look=3, soft=(), tail_busy=1):
        a = self
        order = list(order)
        known = -1
        waits = {}
        for i, (t, need, acc, kind) in enumerate(mf):
            if "s_waitcnt lgkmcnt(0)" in pre.get(i, []): known = len(order) - 1
            if max(order.index(x) for x in need) > known:
                idx = max(order.index(x) for k in range(i, min(i + look, len(mf))) for x in mf[k][1] if x in order)
                waits[i] = min(14, len(order) - 1 - idx)
                known = len(order) - 1 - waits[i]
            order += [id_ for x, id_ in place.get(i, []) if id_]
        soft = list(soft)
        cnt = [0]
        last = {}
        def em(t):
            a(t); cnt[0] += len(t.split("\n"))
        for i, (t, need, acc, kind) in enumerate(mf):
            for x in pre.get(i, []): em(x)
            if i in waits: em(f"s_waitcnt lgkmcnt({waits[i]})")
            if acc in last and last[acc][1] != kind and cnt[0] - last[acc][0] < 6:
                em(f"s_nop {5 - (cnt[0] - last[acc][0])}")
            em(t); last[acc] = (cnt[0], kind)
            room = 3 - len(pre.get(i + 1, [])) - (1 if i + 1 in waits else 0) - (tail_busy if i + 1 == len(mf) else 0)
            for x, id_ in place.get(i, []):
                em(x); room -= 2 if id_ else 1
            while soft and soft[0][0] <= i and (room > 0 or soft[0][1] <= i):
                em(soft.pop(0)[2]); room -= 1
        assert not soft

    def gelu(self, regs, cA, cB, tmp, out, group=4):
        a = self
        for g0 in range(0, len(regs), group):
            rs = regs[g0:g0 + group]
            T = lambda i: f"v[{tmp+2*i}:{tmp+2*i+1}]"
            R = lambda r: f"v[{r}:{r+1}]"
            for i, r in enumerate(rs): a(f"v_pk_mul_f32 {T(i)}, {R(r)}, {R(r)}")
            for i, r in enumerate(rs): a(f"v_pk_fma_f32 {T(i)}, {T(i)}, {R(cA)}, {R(cB)}")
            for i, r in enumerate(rs): a(f"v_pk_mul_f32 {T(i)}, {T(i)}, {R(r)}")
            for i, r in enumerate(rs): a(f"v_exp_f32 v{tmp+2*i}, v{tmp+2*i}\nv_exp_f32 v{tmp+2*i+1}, v{tmp+2*i+1}")
            for i, r in enumerate(rs): a(f"v_pk_add_f32 {T(i)}, {T(i)}, 1.0 op_sel_hi:[1,0]")
            for i, r in enumerate(rs): a(f"v_rcp_f32 v{tmp+2*i}, v{tmp+2*i}\nv_rcp_f32 v{tmp+2*i+1}, v{tmp+2*i+1}")
            for i, r in enumerate(rs): a(f"v_pk_mul_f32 {T(i)}, {T(i)}, {R(r)}")
            for i, r in enumerate(rs): a(f"v_cvt_pk_bf16_f32 v{out[g0+i]}, v{tmp+2*i}, v{tmp+2*i+1}")
            yield g0

    def gelu_consts(self, cA, cB):
        c = 0.7978845608028654
        for i in range(2):
            self(f"v_mov_b32 v{cA+i}, {fhex(-2*c*0.044715*LOG2E)}\nv_mov_b32 v{cB+i}, {fhex(-2*c*LOG2E)}")

    def entry(self):
        a = self
        a.kernel(KNAME)
        if self.o["stamps"]:
            for i in range(1, 16): a(f"s_mov_b32 s{sST+2*i}, 0")
        a.stamp(0)
        a.load_ptr("x", rX); a.load_ptr("ws", rWS)
        a("s_cmp_ge_u32 s2, 256\ns_cbranch_scc1 L_end")
        a(f"v_readfirstlane_b32 s{sWAVE}, v0\ns_lshr_b32 s{sIDX}, s2, 3\nv_and_b32 v0, 63, v0")
        if self.o["pf_code"]:
            NL = 18
            a(f"s_cmp_lg_u32 s{sWAVE}, 0\ns_cbranch_scc1 L_nopf\ns_getpc_b64 s[50:51]\nL_pc0:")
            a(f"s_mul_i32 s48, s{sIDX}, {128*NL}\ns_min_u32 s48, s48, L_code_end-L_pc0-{128*(31+NL)+4}\nv_min_u32 v254, {31+NL}, v0\nv_lshrrev_b32 v253, 5, v0")
            a("v_lshlrev_b32 v254, 7, v254\nv_mad_u32_u24 v254, v253, s48, v254\nglobal_load_dword v255, v254, s[50:51]\nL_nopf:")
        a(f"s_lshr_b32 s{sWAVE}, s{sWAVE}, 6\ns_and_b32 s{sXCD}, s2, 7")
        a(f"s_lshl_b32 s53, s{sXCD}, 5\ns_add_u32 s53, s53, s{sIDX}\ns_lshl_b32 s3, s53, 3\ns_add_u32 s3, s3, s{sWAVE}\ns_mul_i32 s3, s3, 1152")
        a.srd_finish("x", rX)
        a("v_lshlrev_b32 v1, 3, v0\nv_lshlrev_b32 v7, 1, v0")
        a("s_waitcnt lgkmcnt(0)")
        a(f"buffer_load_dwordx2 v[2:3], v1, {srd(rX)}, s3 offen")
        a(f"buffer_load_dwordx2 v[4:5], v1, {srd(rX)}, s3 offen offset:512")
        a(f"buffer_load_ushort v6, v7, {srd(rX)}, s3 offen offset:1024")
        rest = (("w1", rW1), ("wqkv", rWQKV), ("wphi", rWPHI), ("wo", rWO), ("b1", rB1), ("w2", rW2), ("b2", rB2), ("out", rOUT))
        for n, r in rest: a.load_ptr(n, r)
        for n, r in (("ws", rWS),) + rest: a.srd_finish(n, r)
        a("s_waitcnt lgkmcnt(0)")
        a(f"s_load_dword s{sTAG}, s[{rWS}:{rWS+1}], {EPOCH}")
        a(f"s_getpc_b64 s[50:51]\nL_pc1:\ns_lshl_b32 s3, s{sXCD}, 3\ns_add_u32 s3, s3, order_table-L_pc1\ns_load_dwordx2 s[100:101], s[50:51], s3")
        a(f"s_mul_i32 s3, s{sWAVE}, {LN_PITCH}\ns_add_u32 s3, s3, {LN_SCR}")
        a("v_add_u32 v8, s3, v1\nv_add_u32 v9, s3, v7")
        a(f"s_lshl_b32 s3, s{sWAVE}, 2\ns_add_u32 s3, s3, {LN_S2}\nv_mov_b32 v25, s3\nv_mov_b32 v24, {fhex(1e-5)}\nv_mov_b32 v26, {fhex(-1.0/D)}\nv_mov_b32 v27, {fhex(1.0/D)}")
        a("v_bfe_u32 v60, v0, 2, 2\nv_lshrrev_b32 v61, 4, v0\nv_and_b32 v62, 3, v0")
        a(f"v_mul_u32_u24 v60, {LN_PITCH}, v60\nv_lshlrev_b32 v61, 5, v61\nv_lshlrev_b32 v62, 3, v62")
        a(f"v_add3_u32 v60, v60, v61, v62\nv_add_u32 v60, {LN_SCR}, v60")
        a(f"v_and_b32 v61, 7, v0\nv_lshlrev_b32 v61, 2, v61\nv_add_u32 v62, {LN_S2}, v61\nv_lshlrev_b32 v63, 4, v0\nv_lshlrev_b32 v64, 9, v0")
        a(f"s_mul_i32 s56, s53, 9216\ns_add_u32 s56, s56, {HT}\ns_add_u32 s57, s56, 4096\ns_add_u32 s58, s56, 8192\ns_lshl_b32 s59, s53, 5\ns_add_u32 s59, s59, {S2}")
        a(f"s_lshr_b32 s60, s{sIDX}, 3\ns_lshl_b32 s60, s60, 7\ns_and_b32 s48, s{sIDX}, 7\ns_lshl_b32 s48, s48, 2\ns_add_u32 s60, s60, s48\ns_lshl_b32 s48, s{sXCD}, 14\ns_add_u32 s60, s60, s48\ns_add_u32 s60, s60, {FLA}")
        self.early_prefetch()
        self.ln_compute()
        a(f"s_cmp_lg_u32 s{sWAVE}, 0\ns_cbranch_scc1 L_ln_done")
        self.ln_publish()
        a("L_ln_done:")
        a.stamp(2)
        a(f"s_cmp_ge_u32 s{sIDX}, 24\ns_cbranch_scc1 L_att")
        a(f"s_cmp_ge_u32 s{sWAVE}, 4\ns_cbranch_scc1 L_aux")

    def ln_compute(self):
        a = self
        a.stamp(1)
        for i in range(4):
            a(f"v_lshlrev_b32 v{10+2*i}, 16, v{2+i}\nv_and_b32 v{11+2*i}, 0xffff0000, v{2+i}")
        a("v_lshlrev_b32 v18, 16, v6")
        a("v_pk_add_f32 v[20:21], v[10:11], v[12:13]\nv_pk_add_f32 v[22:23], v[14:15], v[16:17]")
        a("v_pk_add_f32 v[20:21], v[20:21], v[22:23]\nv_add_f32 v20, v20, v18\nv_add_f32 v20, v20, v21")
        a.wave_sum(20, 48)
        a("v_mul_f32 v20, s48, v26")
        for i in range(4):
            a(f"v_pk_add_f32 v[{10+2*i}:{11+2*i}], v[{10+2*i}:{11+2*i}], v[20:21] op_sel_hi:[1,0]")
        a("v_add_f32 v18, v18, v20")
        a("v_pk_mul_f32 v[20:21], v[10:11], v[10:11]\nv_pk_mul_f32 v[22:23], v[12:13], v[12:13]")
        a("v_pk_fma_f32 v[20:21], v[14:15], v[14:15], v[20:21]\nv_pk_fma_f32 v[22:23], v[16:17], v[16:17], v[22:23]")
        a("v_pk_add_f32 v[20:21], v[20:21], v[22:23]\nv_fmac_f32 v20, v18, v18\nv_add_f32 v20, v20, v21")
        a.wave_sum(20, 48)
        a("v_mul_f32 v20, s48, v27\nv_add_f32 v21, v20, v24\nv_rsq_f32 v21, v21\ns_nop 0\nv_mul_f32 v22, v21, v21\nv_fma_f32 v22, v22, v20, v24")
        a("v_rsq_f32 v23, v22\ns_nop 0\nv_mul_f32 v20, v21, v23\nv_mul_f32 v22, v22, v23")
        for i in range(4):
            a(f"v_pk_mul_f32 v[{10+2*i}:{11+2*i}], v[{10+2*i}:{11+2*i}], v[20:21] op_sel_hi:[1,0]")
        a("v_mul_f32 v18, v18, v20")
        for i in range(4):
            a(f"v_cvt_pk_bf16_f32 v{2+i}, v{10+2*i}, v{11+2*i}")
        a("v_cvt_pk_bf16_f32 v6, v18, v18")
        a("ds_write_b64 v8, v[2:3]\nds_write_b64 v8, v[4:5] offset:512\nds_write_b16 v9, v6 offset:1024\nds_write_b32 v25, v22")
        a("s_waitcnt lgkmcnt(0)")
        a("s_barrier")
        self.make_tag()

    def ln_publish(self):
        a = self
        for b in range(9):
            a(f"ds_read_b64_tr_b16 v[{12+4*b}:{13+4*b}], v60 offset:{128*b}")
            a(f"ds_read_b64_tr_b16 v[{14+4*b}:{15+4*b}], v60 offset:{128*b+4*LN_PITCH}")
            if b >= 4:
                a("s_waitcnt lgkmcnt(8)")
                a(f"buffer_store_dwordx4 v[{12+4*(b-4)}:{15+4*(b-4)}], v63, {srd(rWS)}, s{56+(b-4)//4} offen offset:{1024*((b-4)%4)} sc1")
        a("ds_read_b32 v5, v62")
        a("s_waitcnt lgkmcnt(0)")
        for b in range(5, 9):
            a(f"buffer_store_dwordx4 v[{12+4*b}:{15+4*b}], v63, {srd(rWS)}, s{56+b//4} offen offset:{1024*(b%4)} sc1")
        a("s_mov_b64 exec, 0xff")
        a(f"buffer_store_dword v5, v61, {srd(rWS)}, s59 offen sc1")
        a("s_mov_b64 exec, -1")
        a.stamp(14)
        a("s_waitcnt vmcnt(0)")
        a.set_flags("s60", 64, 2, 32)

    def make_tag(self):
        self(f"s_mul_i32 s{sTAG}, s{sTAG}, 0x9E3779B1\ns_add_u32 s{sTAG}, s{sTAG}, 0x7F4A7C15")

    def bar_pub(self):
        self("s_barrier")

    def touch_pattern(self, vdst, R, stride, seg3=False):
        a = self
        a.divmod_const(vdst, vdst + 1, 0, 9, vdst + 2)
        a(f"v_min_u32 v{vdst}, {R-1}, v{vdst}\nv_mul_u32_u24 v{vdst}, {stride}, v{vdst}")
        if not seg3:
            a(f"v_lshl_add_u32 v{vdst}, v{vdst+1}, 7, v{vdst}")
        else:
            a.divmod_const(vdst + 2, vdst + 3, vdst + 1, 3, vdst + 4)
            a(f"v_mul_u32_u24 v{vdst+2}, 1152, v{vdst+2}\nv_mul_u32_u24 v{vdst+3}, 70, v{vdst+3}\nv_and_b32 v{vdst+3}, 0xfc, v{vdst+3}")
            a(f"v_add3_u32 v{vdst}, v{vdst}, v{vdst+2}, v{vdst+3}")

    def touch_w1(self, vpat, sid, R, row0, dst=None):
        a = self
        a(f"s_mul_i32 s3, {sid}, {R}\ns_add_u32 s3, s3, {row0}\ns_and_b32 s48, s{sXCD}, {self.o['rot']}\ns_lshl_b32 s48, s48, 8\ns_add_u32 s3, s3, s48\ns_and_b32 s3, s3, 2047")
        a(f"s_min_u32 s3, s3, {2048-R}\ns_mul_i32 s3, s3, 9216\ns_mul_i32 s48, s{sXCD}, 1152\ns_add_u32 s3, s3, s48")
        a(f"buffer_load_dword v{dst or vpat+5}, v{vpat}, {srd(rW1)}, s3 offen")

    def touch_wqkv(self, vpat, sid, R, row0, dst=None):
        a = self
        a(f"s_mul_i32 s3, {sid}, {R}\ns_add_u32 s3, s3, {row0}\ns_min_u32 s3, s3, {576-R}\ns_mul_i32 s3, s3, 3456\ns_mul_i32 s48, s{sXCD}, 144\ns_add_u32 s3, s3, s48")
        a(f"buffer_load_dword v{dst or vpat+5}, v{vpat}, {srd(rWQKV)}, s3 offen")

    def wq_pattern(self):
        a = self
        a.divmod_const(80, 81, 0, 6, 82)
        a("v_min_u32 v80, 8, v80\nv_mul_u32_u24 v80, 3456, v80\nv_lshrrev_b32 v82, 1, v81\nv_mul_u32_u24 v82, 1152, v82\nv_and_b32 v81, 1, v81\nv_mul_u32_u24 v81, 140, v81\nv_add3_u32 v80, v80, v81, v82")

    def early_prefetch(self):
        a = self
        o = self.o
        n = o["w1a"] + o["wqa"]
        if not n:
            a("s_waitcnt vmcnt(0)"); return
        a(f"s_cmp_eq_u32 s{sWAVE}, 7\ns_cbranch_scc1 L_t0\ns_waitcnt vmcnt(0)\ns_branch L_t0c\nL_t0:")
        if o["wqa"]:
            self.wq_pattern()
            for k in range(o["wqa"]):
                self.touch_wqkv(80, f"s{sIDX}", 9, 288 * k, 255)
        if o["w1a"]:
            self.touch_pattern(248, 7, 9216)
            for k in range(o["w1a"]):
                self.touch_w1(248, f"s{sIDX}", 7, 224 * k, 255)
        a(f"s_waitcnt vmcnt({n})\nL_t0c:")

    A_PARTS = [(64 + 8 * i, 8, 128 * i) for i in range(4)]
    A_REGS = list(range(64, 96))
    def A_addr(self, sg, rep=f"s{sIDX}"):
        self(f"s_lshl_b32 s52, {sg}, 5\ns_add_u32 s52, s52, {rep}\ns_lshl_b32 s52, s52, 9\ns_add_u32 s52, s52, {FLA}\ns_add_u32 s50, s{rWS}, s52\ns_addc_u32 s51, s{rWS+1}, 0")
    def wait_A_group(self, sg, rep=f"s{sIDX}"):
        self.A_addr(sg, rep)
        self.spoll_issue(50, self.A_PARTS)
        self.spoll_check(50, self.A_PARTS, self.A_REGS)

    def g1_ids(self):
        self(f"s_and_b32 s54, s{sIDX}, 3\ns_and_b32 s3, s{sIDX}, 28\ns_and_b32 s55, s{sIDX}, 16\ns_add_u32 s3, s3, s55\ns_lshr_b64 s[48:49], s[100:101], s3\ns_and_b32 s55, s48, 15")
        self(f"s_lshr_b32 s3, s{sXCD}, 1\ns_mul_i32 s3, s3, 12\ns_add_u32 s55, s55, s3")

    def ord_row(self, dst, src, t0=48):
        return [f"s_mul_i32 s{dst}, {src}, 683", f"s_lshr_b32 s{dst}, s{dst}, 16", f"s_lshl_b32 s{t0}, s{dst}, 2", f"s_lshr_b64 s[{t0}:{t0+1}], s[100:101], s{t0}",
                f"s_and_b32 s{t0}, s{t0}, 15", f"s_sub_i32 s{dst}, s{t0}, s{dst}", f"s_mul_i32 s{dst}, s{dst}, 96", f"s_add_i32 s{dst}, s{dst}, {src}"]

    def g2_ids(self):
        a = self
        a(f"s_lshr_b32 s58, s{sXCD}, 1\ns_mul_i32 s60, s{sIDX}, 43\ns_lshr_b32 s60, s60, 7\ns_mul_i32 s3, s60, 3\ns_sub_u32 s59, s{sIDX}, s3")
        a(f"s_and_b32 s3, s{sXCD}, 1\ns_lshl_b32 s3, s3, 3\ns_add_u32 s60, s60, s3")

    def mlp_compute(self):
        a = self
        OWN, P = 16, 128
        self.bar_pub()
        self.g1_ids()
        a("v_lshrrev_b32 v9, 4, v0\nv_lshlrev_b32 v10, 3, v9\ns_mul_i32 s3, s55, 192")
        for t in range(6):
            a(f"buffer_load_dwordx2 v[{P+2*t}:{P+2*t+1}], v10, {srd(rB1)}, s3 offen offset:{32*t}")
        a("v_bfe_u32 v6, v0, 2, 2\nv_lshl_add_u32 v7, v9, 3, v6\nv_mul_u32_u24 v7, 384, v7\nv_and_b32 v8, 3, v0\nv_lshl_add_u32 v7, v8, 3, v7")
        a(f"v_add_u32 v7, {G1_W + g1_slot(0)}, v7\nv_bfe_u32 v6, v0, 3, 2")
        for k in range(4):
            a(f"v_xor_b32 v8, {k}, v6\nv_lshl_add_u32 v{1+k}, v8, 5, v7")
        a(f"v_mul_u32_u24 v5, 2304, v9\nv_and_b32 v8, 15, v0\nv_lshl_add_u32 v5, v8, 4, v5\nv_add_u32 v5, {g1_slot(0)}, v5")
        self.precompute_tail()
        a(f"s_mul_i32 s3, s{sWAVE}, 6144\ns_add_u32 s3, s3, {EX1}\ns_mul_i32 s13, s2, 27648\ns_add_u32 s13, s13, s3\ns_xor_b32 s48, s2, 32\ns_mul_i32 s12, s48, 27648\ns_add_u32 s12, s12, s3")
        a(f"s_lshl_b32 s14, s48, 7\ns_lshl_b32 s3, s{sWAVE}, 2\ns_add_u32 s14, s14, s3\ns_add_u32 s14, s14, {FL1}")
        a(f"s_lshl_b32 s3, s2, 7\ns_add_u32 s3, s3, {FL1}\ns_add_u32 s16, s{rWS}, s3\ns_addc_u32 s17, s{rWS+1}, 0\ns_load_dword s20, s[16:17], 0 glc")
        a(f"s_mul_i32 s3, s{sWAVE}, {4*9216-512}\ns_add_u32 s18, s96, s3\ns_add_u32 s18, s18, 2048\nv_lshlrev_b32 v{self.vL16}, 4, v0\nv_mov_b32 v{self.vTAG}, s{sTAG}")
        if self.o["xat"] < 0:
            XR = self.XR
            for p in range(3):
                a(f"buffer_load_dwordx4 v[{XR+4*p}:{XR+4*p+3}], v{self.vOUT}, {srd(rX)}, s62 offen offset:{64*p}")
            a(f"buffer_load_ushort v{XR+12}, v{self.vB2}, {srd(rB2)}, s61 offen")
        a(f"v_mov_b32 v220, {CNT}\nv_mov_b32 v221, 0\nds_write_b32 v220, v221")
        for i in range(72, 128): a(f"v_mov_b32 v{i}, 0")
        a("s_barrier")
        a.stamp(3)
        a("s_waitcnt vmcnt(0) lgkmcnt(0)")
        for t in range(6):
            for h in range(2):
                a(f"v_lshlrev_b32 v{OWN+4*t+2*h}, 16, v{P+2*t+h}\nv_and_b32 v{OWN+4*t+2*h+1}, 0xffff0000, v{P+2*t+h}")
        for i in range(24):
            a(f"v_mov_b32 v{OWN+24+i}, v{OWN+i}")
        for w in range(4):
            if w < 3:
                a(f"s_cmp_lg_u32 s{sWAVE}, {w}\ns_cbranch_scc1 L_g1_w{w+1}")
            self.g1_loop(w)
            if w < 3:
                a(f"s_branch L_g1_done\nL_g1_w{w+1}:")
        a("L_g1_done:")
        a.stamp(5)
        self.g1_epilogue()
        self.g2_compute()

    vOUT, vUST, vB2, vFB, vL16, vTAG = 15, 14, 12, 11, 209, 13
    cU, cW, cO, cP = 200, 201, 205, 208
    cGA, cGB = 210, 212
    XR = 228
    def precompute_tail(self):
        a = self
        self.g2_ids()
        a(f"s_and_b32 s3, s{sWAVE}, 1\ns_lshl_b32 s3, s3, 2\ns_add_u32 s3, s3, s58\ns_lshl_b32 s3, s3, 4\ns_lshl_b32 s48, s60, 7\ns_add_u32 s61, s3, s48")
        a(f"s_lshr_b32 s3, s{sWAVE}, 1\ns_lshl_b32 s48, s59, 1\ns_add_u32 s3, s3, s48\ns_mul_i32 s3, s3, 192\ns_mul_i32 s62, s61, 1152\ns_add_u32 s62, s62, s3")
        a("s_lshl_b32 s61, s61, 1")
        a(f"v_and_b32 v220, 15, v0\nv_lshrrev_b32 v221, 4, v0\nv_bfe_u32 v222, v0, 2, 2\nv_and_b32 v223, 3, v0")
        a(f"v_mul_u32_u24 v{self.vOUT}, 1152, v220\nv_lshl_add_u32 v{self.vOUT}, v221, 4, v{self.vOUT}\nv_lshlrev_b32 v{self.vB2}, 1, v220")
        a(f"v_mul_u32_u24 v{self.vUST}, 9216, v221\nv_lshl_add_u32 v{self.vUST}, v220, 4, v{self.vUST}")
        a(f"s_mul_i32 s96, s55, {12*9216}\ns_mul_i32 s3, s54, 2304\ns_add_u32 s96, s96, s3\ns_lshl_b32 s3, s{sWAVE}, 9\ns_add_u32 s96, s96, s3\ns_add_u32 s96, s96, {U}")
        a(f"s_add_u32 s97, s96, {4*9216}\ns_add_u32 s98, s96, {8*9216}")
        a(f"s_mul_i32 s53, s58, {48*512}\ns_and_b32 s3, s{sXCD}, 1\ns_lshl_b32 s3, s3, 7\ns_add_u32 s53, s53, s3\ns_and_b32 s3, s{sIDX}, 28\ns_add_u32 s53, s53, s3\ns_add_u32 s53, s53, {FLB}")
        a(f"v_sub_u32 v224, s54, v221\nv_lshl_add_u32 v225, v224, 4, v220\nv_lshlrev_b32 v225, 9, v225\nv_lshl_add_u32 v225, v221, 8, v225")
        a(f"v_cmp_gt_u32 vcc, 3, v224\nv_mov_b32 v226, {OOB}\ns_nop 0\nv_cndmask_b32 v{self.vFB}, v226, v225, vcc")
        a(f"s_mul_i32 s56, s60, 3\ns_add_u32 s56, s56, s59")
        a(f"s_lshl_b32 s3, s56, 4\ns_add_u32 s3, s3, s{sWAVE}\ns_lshl_b32 s3, s3, 7\ns_add_u32 s99, s3, {FLX}\ns_lshl_b32 s3, s58, 9\ns_add_u32 s52, s3, s99")
        a(f"s_add_u32 s50, s{rWS}, s52\ns_addc_u32 s51, s{rWS+1}, 0\ns_load_dword s52, s[50:51], 0 glc")
        a.gelu_consts(self.cGA, self.cGB)
        cU, cW, cO = self.cU, self.cW, self.cO
        a(f"v_mul_u32_u24 v{cU}, {G2_PITCH}, v221\nv_lshl_add_u32 v{cU}, v222, 7, v{cU}\nv_lshl_add_u32 v{cU}, v223, 4, v{cU}")
        a(f"s_lshr_b32 s3, s{sWAVE}, 1\ns_mul_i32 s3, s3, 1536\nv_add_u32 v{cU}, s3, v{cU}")
        a("v_lshl_add_u32 v224, v221, 2, v222")
        a(f"v_lshlrev_b32 v225, 8, v224\nv_lshl_add_u32 v225, v223, 3, v225\nv_add_u32 v225, {G2_W[0]}, v225\nv_and_b32 v226, 7, v224")
        for j in range(4):
            a(f"s_add_u32 s3, s58, {j}\ns_and_b32 s3, s3, 3\ns_and_b32 s48, s{sWAVE}, 1\ns_lshl_b32 s48, s48, 2\ns_add_u32 s3, s3, s48")
            a(f"v_xor_b32 v227, s3, v226\nv_lshl_add_u32 v{cW+j}, v227, 5, v225")
        a(f"s_and_b32 s3, s{sWAVE}, 1\ns_mul_i32 s3, s3, {2*OI_P}\ns_add_u32 s3, s3, {OI}\nv_lshrrev_b32 v225, 1, v223\nv_mul_u32_u24 v225, {OI_P}, v225\nv_lshl_add_u32 v225, v224, 4, v225")
        a(f"v_and_b32 v226, 1, v223\nv_lshlrev_b32 v226, 3, v226\nv_add3_u32 v{self.cP}, v225, v226, s3")
        a("v_mul_u32_u24 v225, 384, v224\nv_lshl_add_u32 v225, v223, 4, v225\nv_bfe_u32 v226, v224, 1, 1")
        for p in range(3):
            a(f"s_lshr_b32 s3, s{sWAVE}, 1\ns_mul_i32 s3, s3, 3\ns_add_u32 s3, s3, {p}")
            a(f"v_xor_b32 v227, s3, v226\nv_lshl_add_u32 v{cO+p}, v227, 6, v225")

    def g1_loop(self, w):
        a = self
        OWN, FOR = 16, 72
        AS = (128, 152)
        BS = (176, 188)
        AD = (1, 6)
        pair = ((0, 1, None, 2)[w], (0, 1, 2, None)[w])
        if pair[1] is not None:
            for i in range(8): a(f"v_mov_b32 v{OWN+48+i}, v{OWN+8*pair[1]+i}")
        def ra(tag, st, h, ad, off=0):
            return [(f"ds_read_b64_tr_b16 v[{st+4*t+2*rho}:{st+4*t+2*rho+1}], v{ad+((6*h+t)&3)} offset:{off+((6*h+t)>>2)*128+rho*1536}", f"{tag}A{t}{rho}")
                    for t in range(6) for rho in range(2)]
        def rb(tag, st, ad, off=0, sh=True):
            r = [(f"ds_read_b128 v[{st+4*j}:{st+4*j+3}], v{ad+4} offset:{off+512*w+256*j}", f"{tag}B{j}") for j in range(2)]
            return r + ([(f"ds_read_b128 v[{st+8}:{st+11}], v{ad+4} offset:{off+2048}", f"{tag}B2")] if sh else [])
        def mm(ta, tb, sa, sb, h):
            acc = (FOR, OWN)[h]
            m = []
            for t in range(6):
                for j in range(3):
                    if j == 2 and pair[h] != t >> 1: continue
                    d = acc + 24 * j + 4 * t if j < 2 else acc + 48 + 4 * (t & 1)
                    m.append((f"v_mfma_f32_16x16x32_bf16 v[{d}:{d+3}], v[{sa+4*t}:{sa+4*t+3}], v[{sb+4*j}:{sb+4*j+3}], v[{d}:{d+3}]", [f"{ta}A{t}1", f"{tb}B{j}"], d, 32))
            return m
        def spread(place, g0, n, items):
            items = list(items)
            extra = max(0, len(items) - n)
            g = g0
            while items:
                place.setdefault(g, []).append(items.pop(0))
                if extra: place[g].append(items.pop(0)); extra -= 1
                g += 1
        def fillers(place, gaps, items):
            for g, x in zip(gaps, items): place.setdefault(g, []).append((x, None))
            assert len(gaps) >= len(items)
        mf, place, pre, soft = [], {}, {}, []
        for u in range(2):
            g0 = len(mf)
            mf += mm(f"p{u}", f"b{u}", AS[0], BS[u], 0) + mm(f"q{u}", f"b{u}", AS[1], BS[u], 1)
            n = len(mf) - g0
            spread(place, g0, 12, ra(f"q{u}", AS[1], 1, AD[u]))
            pre[g0 + 12] = ["s_barrier"]
            spread(place, g0 + 12, n - 12, rb(f"b{u+1}", BS[u ^ 1], AD[u ^ 1]) + ra(f"p{u+1}", AS[0], 0, AD[u ^ 1]))
            soft += [(g0, g0 + 11, f"v_add_u32 v{AD[u^1]+k}, s19, v{AD[u]+k}") for k in (4, 0, 1, 2, 3)]
            ex = ["s_add_u32 s56, s56, 1", f"s_cmp_eq_u32 s56, {G1_NS}", "s_cselect_b32 s56, 0, s56", f"s_cselect_b32 s19, {(-(G1_NS-1)*G1_SLOT) & 0xffffffff}, s15"]
            if u: ex += ["s_sub_u32 s57, s57, 1", "s_cmp_lg_u32 s57, 0"]
            soft += [(g0, g0 + n - 1, x) for x in ex]
        first = rb("b0", BS[0], AD[0]) + ra("p0", AS[0], 0, AD[0])
        assert (32 - G1_R) % 2 == 0 and g1_slot(1) > g1_slot(0)
        a(f"s_mov_b32 s15, {G1_SLOT}\ns_mov_b32 s19, {G1_SLOT}\ns_mov_b32 s56, {g1_slot(1)//G1_SLOT}\ns_mov_b32 s57, {(32 - G1_R)//2}")
        a("s_barrier")
        a.stamp(4)
        if self.o["stamps"]: a("s_waitcnt lgkmcnt(0)")
        for r in first: a(r[0])
        lp = a.label("g1")
        a(f"{lp}:")
        a.linear(mf, place, pre, [x[1] for x in first], look=self.o["lk1"], soft=soft, tail_busy=2)
        a(f"s_cbranch_scc1 {lp}")
        assert g1_slot(32 - G1_R) == 0
        mf, place, pre = [], {}, {}
        starts = []
        for q in range(2 * G1_R):
            h = q // G1_R
            g0 = len(mf); starts.append(g0)
            mf += mm(f"p{q}", f"b{q}", AS[q & 1], BS[q & 1], h)
            n = len(mf) - g0
            if q + 1 < 2 * G1_R:
                h1, p1 = (q + 1) // G1_R, (q + 1) % G1_R
                ad, off = AD[p1 // 3], (p1 % 3) * G1_SLOT
                if h1 == 0: pre[g0] = ["s_barrier"]
                b_, a_ = rb(f"b{q+1}", BS[(q + 1) & 1], ad, off, pair[h1] is not None), ra(f"p{q+1}", AS[(q + 1) & 1], h1, ad, off)
                spread(place, g0, n, b_[:1] + a_[:2] + b_[1:] + a_[2:])
        soft = [(0, starts[2] - 1, f"v_add_u32 v{AD[1]+k}, {3*G1_SLOT}, v{AD[0]+k}") for k in range(5)]
        XR = self.XR
        xl = [f"buffer_load_dwordx4 v[{XR+4*p}:{XR+4*p+3}], v{self.vOUT}, {srd(rX)}, s62 offen offset:{64*p}" for p in range(3)]
        xl.append(f"buffer_load_ushort v{XR+12}, v{self.vB2}, {srd(rB2)}, s61 offen")
        if self.o["xat"] >= 0:
            for k_, x in enumerate(xl): place.setdefault(starts[self.o["xat"]] + 3 + 8 * k_, []).append((x, None))
        g = starts[G1_R] + 4
        for n_ in range(7 if pair[0] is not None else 6):
            r0 = FOR + 8 * n_
            for i in range(4):
                place.setdefault(g, []).append((f"v_cvt_pk_bf16_f32 v{r0+i}, v{r0+2*i}, v{r0+2*i+1}", None))
                if i & 1: g += 1
            off = 1024 * n_ if n_ < 6 else 24576 + 1024 * pair[0] - 6144 * w
            place.setdefault(g, []).append((f"s_add_u32 s3, s12, {off}\nbuffer_store_dwordx4 v[{r0}:{r0+3}], v{self.vL16}, {srd(rWS)}, s3 offen sc1", None))
            g += 1
        sig = f"s_waitcnt vmcnt(0)\ns_mov_b64 exec, 1\nbuffer_store_dword v{self.vTAG}, off, {srd(rWS)}, s14 sc1\ns_mov_b64 exec, -1"
        k = len(mf) - self.o["sig1"]
        if k < len(mf): pre.setdefault(k, []).append(sig)
        a.linear(mf, place, pre, [x[1] for x in first], look=self.o["lk1"], soft=soft)
        if k >= len(mf): a(sig)

    def g1_epilogue(self):
        a = self
        OWN, IN, OUT, T, XR = 16, 128, 72, 100, self.XR
        parts = [(20, 4, 0)]
        a.spoll_issue(16, parts)
        a(f"s_min_u32 s24, s{sWAVE}, 2\ns_lshl_b32 s24, s24, 10\ns_mul_i32 s25, s{sWAVE}, 6144\ns_sub_u32 s24, s24, s25\ns_add_u32 s24, s24, s13\ns_add_u32 s24, s24, 24576\ns_add_u32 s25, s13, 4096")
        a("s_mov_b32 s26, 0x3f80\ns_mov_b32 s27, 0x3f800000")
        a.spoll_check(16, parts, [20, 21, 22, 23])
        a.stamp(8)
        for n in range(7):
            so, off = (("s13", 1024 * n) if n < 4 else ("s25", 1024 * (n - 4))) if n < 6 else ("s24", 0)
            a(f"buffer_load_dwordx4 v[{IN+4*n}:{IN+4*n+3}], v{self.vL16}, {srd(rWS)}, {so} offen offset:{off} sc1")
        a("s_barrier")
        a.align8()
        for n in range(7):
            if n == 6: a(f"s_cmp_eq_u32 s{sWAVE}, 3\ns_cbranch_scc1 L_g1_e")
            a("s_waitcnt vmcnt(6)\ns_nop 0")
            for i in range(4):
                a(f"v_dot2c_f32_bf16 v{OWN+8*n+2*i}, s26, v{IN+4*n+i}\nv_dot2c_f32_bf16 v{OWN+8*n+2*i+1}, s27, v{IN+4*n+i}")
            for _ in a.gelu([OWN + 8 * n + 2 * i for i in range(4)], self.cGA, self.cGB, T, [OUT + 4 * n + i for i in range(4)]):
                j, p = n // 3, n % 3
                so, off = (f"s{96+p}", 256 * j) if n < 6 else ("s18", 0)
                a(f"buffer_store_dwordx4 v[{OUT+4*n}:{OUT+4*n+3}], v{self.vUST}, {srd(rWS)}, {so} offen offset:{off} sc1")
        a("L_g1_e:\ns_barrier")
        a.stamp(6)

    def g2_compute(self):
        a = self
        XR = self.XR
        ACC = 16
        P, Q = 176, 216
        bU, bU2, bW, bO, bO2, bP = 1, 2, 3, 112, 115, 118
        tW, tR, tG = 7, 122, 12
        a(f"v_mov_b32 v{bU}, v{self.cU}\nv_add_u32 v{bU2}, {G2_U[2]}, v{self.cU}\nv_mov_b32 v{bP}, v{self.cP}")
        for j in range(4): a(f"v_mov_b32 v{bW+j}, v{self.cW+j}")
        for p in range(3): a(f"v_mov_b32 v{bO+p}, v{self.cO+p}\nv_add_u32 v{bO2+p}, {WO_AT[4]}, v{self.cO+p}")
        a("s_waitcnt vmcnt(6)")
        a(f"v_lshlrev_b32 v{XR+12}, 16, v{XR+12}")
        for i in range(12):
            a(f"v_lshlrev_b32 v{ACC+2*i}, 16, v{XR+i}\nv_and_b32 v{ACC+2*i+1}, 0xffff0000, v{XR+i}")
        for i in range(12):
            a(f"v_pk_add_f32 v[{ACC+2*i}:{ACC+2*i+1}], v[{ACC+2*i}:{ACC+2*i+1}], v[{XR+12}:{XR+13}] op_sel_hi:[1,0]")
        for i in range(24, 96):
            a(f"v_mov_b32 v{ACC+i}, 0")
        a(f"v_mov_b32 v119, {CNT}\nv_mov_b32 v120, 1\ns_mov_b64 exec, 1\ns_waitcnt vmcnt(0) lgkmcnt(0)\nds_add_rtn_u32 v120, v119, v120\ns_waitcnt lgkmcnt(0)")
        a("v_readfirstlane_b32 s3, v120\ns_mov_b64 exec, -1\ns_cmp_lg_u32 s3, 3\ns_cbranch_scc1 L_noflagB")
        a.set_flags("s53", self.vFB, 121, 32)
        if self.o["sgt"]:
            a(f"v_lshrrev_b32 v119, 4, v0\nv_lshlrev_b32 v119, 12, v119\nv_and_b32 v120, 15, v0\nv_lshl_add_u32 v119, v120, 7, v119")
            a(f"s_mul_i32 s24, s58, {1152*4096}\ns_and_b32 s3, s{sXCD}, 1\ns_lshl_b32 s3, s3, 11\ns_add_u32 s24, s24, s3\ns_lshl_b32 s3, s{sIDX}, 14\ns_add_u32 s24, s24, s3")
            for t in self.o["sgt"]:
                a(f"s_bfe_u32 s3, s{100 + t // 8}, {(4 << 16) | (4 * (t % 8))}\ns_mul_i32 s3, s3, {96*4096}\ns_add_u32 s3, s3, s24\nbuffer_load_dword v125, v119, {srd(rW2)}, s3 offen")
        a("L_noflagB:")
        a.stamp(7)
        a(f"s_mul_i32 s56, s60, 3\ns_add_u32 s56, s56, s59\ns_lshl_b32 s56, s56, 2")
        a(f"v_lshlrev_b32 v8, 4, v0\ns_mul_i32 s63, s{sWAVE}, 3072\ns_add_u32 s63, s63, {EX}\nv_mov_b32 v9, s{sTAG}")
        for j in range(1, 4):
            a(f"s_add_u32 s3, s58, {j}\ns_and_b32 s3, s3, 3\ns_lshl_b32 s48, s3, 9\ns_add_u32 s48, s48, s99\ns_add_u32 s{52+j}, s48, {4*(j-1)}")
            a(f"s_add_u32 s3, s3, s56\ns_mul_i32 s3, s3, 36864\ns_add_u32 s3, s3, s63\ns_add_u32 s{95+j}, s3, {(j-1)*12288}")
        a(f"s_add_u32 s48, s56, s58\ns_mul_i32 s48, s48, 36864\ns_add_u32 s63, s63, s48")
        a(f"s_mul_i32 s3, s{sWAVE}, 3328\ns_add_u32 s3, s3, {TO_SCR}\nv_and_b32 v{tW}, 15, v0\nv_mul_u32_u24 v{tW}, 208, v{tW}\nv_lshrrev_b32 v127, 4, v0\nv_lshlrev_b32 v127, 4, v127\nv_add3_u32 v{tW}, v{tW}, v127, s3")
        for i in range(3):
            a(f"v_add_u32 v133, {64*i}, v0")
            a.divmod_const(134, 135, 133, 12, 136)
            a(f"v_lshlrev_b32 v135, 4, v135\nv_mul_u32_u24 v136, 208, v134\nv_add3_u32 v{tR+i}, v135, v136, s3\nv_mul_u32_u24 v136, 1152, v134\nv_add_u32 v{tG+i}, v135, v136")

        sets = (P, Q)
        def reads(n, tag=""):
            st, sl, k = sets[n & 1], (n >> 1) % 3, n & 1
            ou = (G2_U[sl] if sl < 2 else 0) + k * G2_US
            ow = G2_W[sl] - G2_W[0] + k * G2_WS
            rb = lambda j: [(f"ds_read_b64_tr_b16 v[{st+24+4*j+2*rho}:{st+25+4*j+2*rho}], v{bW+j} offset:{ow+rho*4096}", f"{tag}B{j}{rho}") for rho in range(2)]
            r = rb(0)
            r += [(f"ds_read_b128 v[{st+4*m}:{st+4*m+3}], v{bU if sl < 2 else bU2} offset:{ou+(m>>1)*512+(m&1)*64}", f"{tag}A{m}1") for m in range(6)]
            return r + rb(1) + rb(2) + rb(3)
        def mfmas(n, tag=""):
            st = sets[n & 1]
            m = []
            for j in range(4):
                for t in range(6):
                    d = ACC + 24 * j + 4 * t
                    m.append((f"v_mfma_f32_16x16x32_bf16 v[{d}:{d+3}], v[{st+4*t}:{st+4*t+3}], v[{st+24+4*j}:{st+27+4*j}], v[{d}:{d+3}]", [f"{tag}A{t}1", f"{tag}B{j}1"]))
            return m
        def step(n, extra=()):
            prev = [x[1] for x in reads(n)]
            if n & 1:
                a.sched(mfmas(n), prev, reads(n + 1), extra, waits=(0, 3), bar=(3, True), tail_busy=2 if extra else 1)
            else:
                a.sched(mfmas(n), prev, reads(n + 1), extra, waits=(0, 6, 12))
        a("s_barrier")
        a.stamp(9)
        if self.o["stamps"]: a("s_waitcnt lgkmcnt(0)")
        for r in reads(0): a(r[0])
        a("s_mov_b32 s57, 5")
        lp = a.label("g2")
        a.align8()
        a(f"{lp}:")
        for n in range(6): step(n, ("s_sub_u32 s57, s57, 1", "s_cmp_lg_u32 s57, 0") if n == 5 else ())
        a(f"s_cbranch_scc1 {lp}")
        a("L_g2_tail:")
        step(30); step(31)
        AR = {0: [P + 4 * t for t in range(6)], 1: [Q + 4 * t for t in range(6)], 2: [Q + 24 + 4 * t for t in range(4)] + [164, 168],
              3: [126 + 4 * t for t in range(6)], 4: [150 + 2 * t for t in range(6)]}
        BR = {0: P + 24, 1: P + 28, 2: P + 32, 3: P + 36, 4: 162}
        def ra(e):
            base, off = (bO, WO_AT[e]) if e < 3 else (bO2, WO_AT[e] - WO_AT[4])
            return [(f"ds_read_b64_tr_b16 v[{AR[e][t]+2*rho}:{AR[e][t]+2*rho+1}], v{base+(t>>1)} offset:{off+rho*6144+(t&1)*8}", f"a{e}{t}{rho}")
                    for t in range(6) for rho in range(2 if e < 4 else 1)]
        def rb(ph, e):
            return [(f"ds_read_b64_tr_b16 v[{BR[e]+2*rho}:{BR[e]+2*rho+1}], v{bP} offset:{ph*4*OI_P+e*512+rho*256}", f"b{ph}{e}{rho}") for rho in range(2 if e < 4 else 1)]
        mf, place, pre = [], {}, {}
        def put(g, items):
            for k, x in enumerate(items): place.setdefault(g + k, []).append(x)
        for n in range(32, 36):
            mf += [(t, need, t.split(",")[0], 32) for t, need in mfmas(n, str(n))]
        mf = [(t, need, acc.split()[1], kind) for t, need, acc, kind in mf]
        early = ra(3) + ra(4)
        put(0, reads(33, "33")); put(14, early[:7])
        pre[24 + 3] = ["s_waitcnt lgkmcnt(0)", "s_barrier"]
        put(24 + 3, reads(34, "34")); put(24 + 17, early[7:14])
        put(48, reads(35, "35")); put(48 + 14, early[14:])
        put(72, ra(0))
        pre[72 + 15] = ["s_barrier"]
        put(72 + 15, rb(0, 3) + rb(0, 4) + rb(0, 0) + rb(0, 1) + rb(0, 2))
        EO = (3, 4, 0, 1, 2)
        JO = (1, 2, 3, 0)
        for ph, j in enumerate(JO):
            g0 = 96 + 30 * ph
            for e in EO:
                for t in range(6):
                    d = ACC + 24 * j + 4 * t
                    if e < 4:
                        mf.append((f"v_mfma_f32_16x16x32_bf16 v[{d}:{d+3}], v[{AR[e][t]}:{AR[e][t]+3}], v[{BR[e]}:{BR[e]+3}], v[{d}:{d+3}]", [f"a{e}{t}1", f"b{ph}{e}1"], f"v[{d}:{d+3}]", 32))
                    else:
                        mf.append((f"v_mfma_f32_16x16x16_bf16 v[{d}:{d+3}], v[{AR[e][t]}:{AR[e][t]+1}], v[{BR[e]}:{BR[e]+1}], v[{d}:{d+3}]", [f"a{e}{t}0", f"b{ph}{e}0"], f"v[{d}:{d+3}]", 16))
            if ph == 0:
                put(g0, ra(1) + ra(2))
                pre[g0 + 24] = ["s_barrier"]
                put(g0 + 24, rb(1, 3) + rb(1, 4) + rb(1, 0)); put(g0 + 30, rb(1, 1) + rb(1, 2))
            elif ph < 3:
                for k, e in enumerate(EO): put(g0 + 6 * (k + 1), rb(ph + 1, e))
            if ph > 0:
                jp = JO[ph - 1]
                r0 = ACC + 24 * jp
                g = g0 + 4
                for i in range(12):
                    while len(place.get(g, [])) >= 2: g += 1
                    place.setdefault(g, []).append((f"v_cvt_pk_bf16_f32 v{r0+i}, v{r0+2*i}, v{r0+2*i+1}", None))
                    if i % 4 == 3:
                        g += 1
                        while place.get(g): g += 1
                        place[g] = [(f"buffer_store_dwordx4 v[{r0+i-3}:{r0+i}], v8, {srd(rWS)}, s{95+jp} offen offset:{1024*(i//4)} sc1", None)]
                        g += 1
                assert g < g0 + 30
        a.linear(mf, place, pre, [x[1] for x in reads(32, "32")])
        a.stamp(10)
        parts = [(56, 4, 0)]
        a.spoll_issue(50, parts)
        a("s_mov_b64 exec, 1")
        for j in range(1, 4):
            a(f"s_waitcnt vmcnt({(6, 4, 2)[j-1]})\nbuffer_store_dword v9, off, {srd(rWS)}, s{52+j} sc1")
        a("s_mov_b64 exec, -1")
        a.stamp(11)
        IN = P
        a(f"s_mov_b32 s48, {self.o['spin']}\ns_mov_b32 s49, 0\nL_x_poll:\ns_waitcnt lgkmcnt(0)")
        for j in range(3):
            a(f"s_bitcmp1_b32 s49, {j}\ns_cbranch_scc1 L_x_no{j}\ns_cmp_lg_u32 s{56+j}, s{sTAG}\ns_cbranch_scc1 L_x_no{j}\ns_add_u32 s3, s63, {12288*j}")
            for p in range(3):
                r = IN + 12 * j + 4 * p
                a(f"buffer_load_dwordx4 v[{r}:{r+3}], v8, {srd(rWS)}, s3 offen offset:{1024*p} sc1")
            a(f"s_bitset1_b32 s49, {j}\ns_mov_b32 s60, {j}\nL_x_no{j}:")
        a("s_cmp_eq_u32 s49, 7\ns_cbranch_scc1 L_x_all\ns_sub_u32 s48, s48, 1\ns_cmp_eq_u32 s48, 0\ns_cbranch_scc1 L_x_all")
        a.spoll_issue(50, parts)
        a("s_branch L_x_poll\nL_x_all:")
        a.stamp(12)
        if self.o["dot"]: a("s_mov_b32 s56, 0x3f80\ns_mov_b32 s57, 0x3f800000")
        a("s_cmp_eq_u32 s60, 2\ns_cbranch_scc1 L_x_l2\ns_waitcnt vmcnt(0)\nL_x_l2:\ns_waitcnt vmcnt(3)")
        for j in range(3):
            if j == 2: a("s_waitcnt vmcnt(0)")
            for i in range(12):
                if self.o["dot"]:
                    a(f"v_dot2c_f32_bf16 v{ACC+2*i}, s56, v{IN+12*j+i}\nv_dot2c_f32_bf16 v{ACC+2*i+1}, s57, v{IN+12*j+i}")
                    continue
                t = 40 + 2 * (i % 4)
                a(f"v_lshlrev_b32 v{t}, 16, v{IN+12*j+i}\nv_and_b32 v{t+1}, 0xffff0000, v{IN+12*j+i}")
                a(f"v_pk_add_f32 v[{ACC+2*i}:{ACC+2*i+1}], v[{ACC+2*i}:{ACC+2*i+1}], v[{t}:{t+1}]")
        of = self.o.get('outf', 'sc1')
        for i in range(12):
            a(f"v_cvt_pk_bf16_f32 v{Q+i}, v{ACC+2*i}, v{ACC+2*i+1}")
            if self.o["tout"] and i % 4 == 3: a(f"ds_write_b128 v{tW}, v[{Q+i-3}:{Q+i}] offset:{16*(i-3)}")
        if self.o["tout"]:
            for p in range(3): a(f"ds_read_b128 v[{Q+12+4*p}:{Q+15+4*p}], v{tR+p}")
            for p in range(3):
                a(f"s_waitcnt lgkmcnt({0 if self.o['stamps'] else 2-p})\nbuffer_store_dwordx4 v[{Q+12+4*p}:{Q+15+4*p}], v{tG+p}, {srd(rOUT)}, s62 offen {of}")
        else:
            for p in range(3):
                a(f"buffer_store_dwordx4 v[{Q+4*p}:{Q+4*p+3}], v{self.vOUT}, {srd(rOUT)}, s62 offen offset:{64*p} {of}")
        a.stamp(13)
        a("s_branch L_fin")

    def latin_seq(self, l):
        Dl = self.o["latin"]
        l0 = self.o["lat0"]
        return sorted(range(32), key=lambda s_: max(s_ - Dl - 0.5, min(s_, l0 - 0.5)) if (Dl and s_ % 4 == l) else s_)

    def mlp_aux(self):
        a = self
        o = self.o
        a("L_aux:")
        self.g1_ids()
        a(f"s_sub_u32 s53, s{sWAVE}, 4")
        self.g2_loader_setup()
        seqs = [self.latin_seq(l) for l in range(4)]
        la = o["la1"]
        assert la <= 5
        sch = {}
        nxt = {"H": 0, "W": o["prefill"]}
        for i in range(-1, 32):
            bud = o["g1b"][min(i + 1, len(o["g1b"]) - 1)] + (min(max(bud, 0), 3.9) if i >= 0 else 0)
            sch[i] = []
            while True:
                k = "H" if nxt["H"] <= nxt["W"] else "W"
                p = nxt[k]
                c = 3 if k == "H" else 4
                if p > min(31, max(i, 0) + la) or (bud < c and p > i + 1): break
                sch[i].append((k, p)); nxt[k] += 1; bud -= c
        hmax = lambda i: max(p for ii in range(-1, i + 1) for k, p in sch[ii] if k == "H")
        need = lambda i: max(max(sq[:hmax(i) + 1]) for sq in seqs) // 4
        last_i = max(i for i in sch if sch[i])
        assert need(-1) == 0
        a(f"s_cmp_eq_u32 s{sWAVE}, 7\ns_cbranch_scc1 L_aux7")
        vH, vW = 40, 46
        a("s_lshl_b32 s3, s53, 8\nv_add_u32 v1, s3, v0\ns_and_b32 s48, s55, 1\ns_xor_b32 s49, s48, 1\ns_mul_i32 s49, s49, 12")
        for i in range(4):
            a(f"v_add_u32 v2, {64*i}, v1")
            a.divmod_const(3, 4, 2, 24, 5)
            a("v_and_b32 v5, 2, v3\nv_xor_b32 v4, v4, v5\nv_bfe_u32 v5, v3, 3, 1\nv_lshlrev_b32 v5, 2, v5\nv_xor_b32 v4, v4, v5")
            a("v_add_u32 v4, s49, v4\nv_subrev_u32 v5, 24, v4\nv_min_u32 v4, v4, v5")
            a(f"v_mul_u32_u24 v3, 9216, v3\nv_lshl_add_u32 v{vW+i}, v4, 4, v3\nv_subrev_u32 v{vW+i}, {1024*i}, v{vW+i}")
        a(f"s_mul_i32 s12, s55, 192\ns_mul_i32 s3, s48, {32*9216-192}\ns_add_u32 s12, s12, s3\ns_lshl_b32 s14, s53, 12\ns_add_u32 s14, s14, {G1_W}")
        a(f"s_mul_i32 s13, s54, 2304\ns_mul_i32 s3, s48, {4*9216}\ns_add_u32 s13, s13, s3\ns_add_u32 s13, s13, {HT}\ns_mul_i32 s15, s53, 3072\ns_and_b32 s28, s{sXCD}, {o['rot']}\ns_lshl_b32 s28, s28, 2")
        TB = [16, 17, 18, 19, 36, 37]
        if o["latin"]:
            a(f"s_lshr_b32 s3, s{sIDX}, 3\ns_add_u32 s3, s3, s54\ns_and_b32 s3, s3, 3\ns_mov_b32 s31, s3")
            for l in range(4):
                words = [sum(seqs[l][n] << (5 * (n % 6)) for n in range(6 * k, min(32, 6 * k + 6))) for k in range(6)]
                if l: a(f"s_cmp_eq_u32 s3, {l}")
                for k in range(6):
                    a(f"s_mov_b32 s{TB[k]}, {words[k]}" if l == 0 else f"s_cselect_b32 s{TB[k]}, {words[k]}, s{TB[k]}")
        def stage_of(pos):
            if o["latin"]:
                a(f"s_bfe_u32 s3, s{TB[pos//6]}, {(5 << 16) | (5 * (pos % 6))}\ns_add_u32 s3, s3, s28")
            else:
                a(f"s_add_u32 s3, s28, {pos}")
            a("s_and_b32 s3, s3, 31")
        issued = []
        def w1_load(st):
            stage_of(st)
            if o["w1nt"] == 2: a("s_and_b32 s48, s3, 3")
            a(f"s_mul_i32 s3, s3, {64*9216}\ns_add_u32 m0, s14, {g1_slot(st)}\ns_add_u32 s3, s3, s12")
            if o["w1nt"] == 2:
                l0, l1 = a.label("nt"), a.label("nt")
                a(f"s_cmp_lg_u32 s48, s31\ns_cbranch_scc1 {l0}")
                for i in range(4): a(f"buffer_load_dwordx4 v{vW+i}, {srd(rW1)}, s3 offen offset:{1024*i} lds")
                a(f"s_branch {l1}\n{l0}:")
            for i in range(4):
                a(f"buffer_load_dwordx4 v{vW+i}, {srd(rW1)}, s3 offen offset:{1024*i} {'nt' if o['w1nt'] else ''} lds")
                issued.append(st)
            if o["w1nt"] == 2: a(f"{l1}:")
        def h_load(st):
            stage_of(st)
            a(f"s_mul_i32 s3, s3, {8*9216}\ns_add_u32 m0, s15, {g1_slot(st)}\ns_add_u32 s3, s3, s13")
            for i in range(3):
                a(f"buffer_load_dwordx4 v{vH+i}, {srd(rWS)}, s3 offen offset:{1024*i} sc1 lds")
                issued.append(st)
        def wait_stage(st):
            last = max(i for i, x in enumerate(issued) if x == st)
            n = len(issued) - 1 - last
            assert n < 63
            a(f"s_waitcnt vmcnt({n})")
        a("s_mul_i32 s3, s53, 192\nv_add_u32 v1, s3, v0")
        for i in range(3):
            a(f"v_add_u32 v2, {64*i}, v1")
            a.divmod_const(3, 4, 2, 144, 5)
            a(f"v_mul_u32_u24 v3, 9216, v3\nv_lshl_add_u32 v{vH+i}, v4, 4, v3\nv_subrev_u32 v{vH+i}, {1024*i}, v{vH+i}")
        self.sp_setup()
        self.bar_pub()
        assert o["prefill"] <= 6
        for st in range(o["prefill"]): w1_load(st)
        a("s_barrier")
        a.stamp(3)
        for i in range(-1, 32):
            if i >= 0:
                wait_stage(i)
                a("s_barrier")
                a.tr0()
            for k, p in sch[i]: (h_load if k == "H" else w1_load)(p)
            if i >= 0:
                a.tr1(i)
                self.sp_step(i)
            if i - last_i in o["w2t"]: self.w2_touch(); issued.append(99)
        a("s_branch L_aux_g1done")
        a("L_aux7:")
        a(f"s_and_b32 s29, s{sXCD}, {o['rot']}")
        self.A_addr("s29"); self.spoll_issue(50, self.A_PARTS)
        if o["w1c"]: self.touch_pattern(248, 7, 9216)
        if o["wqc"]: self.wq_pattern()
        self.bar_pub()
        if o["wqc"]:
            for k in range(o["wqc"]): self.touch_wqkv(80, f"s{sIDX}", 9, 288 * o["wqa"] + 216 * k, 255)
        for k in range(o["w1c"]):
            self.touch_w1(248, f"s{sIDX}", 7, 224 * o["w1a"] + 168 * k)
        self.spoll_check(50, self.A_PARTS, self.A_REGS)
        a("s_barrier")
        if o["pb"]:
            a(f"s_lshr_b32 s3, s{sIDX}, 3\ns_add_u32 s3, s3, s54\ns_and_b32 s3, s3, 3")
            for l in range(4):
                iv = [i for i in range(o["pb0"], 32) if any(k == "W" and seqs[l][p] % 4 == l for k, p in sch[i])][:o["pb"]]
                assert len(iv) == o["pb"], iv
                m_ = sum(1 << i for i in iv)
                a(f"s_mov_b32 s12, {m_}" if l == 0 else f"s_cmp_eq_u32 s3, {l}\ns_cselect_b32 s12, {m_}, s12")
            a(f"v_lshrrev_b32 v70, 4, v0\nv_lshlrev_b32 v70, 12, v70\nv_lshl_add_u32 v70, v63, 7, v70\ns_lshl_b32 s13, s{sIDX}, 14\ns_add_u32 s13, s13, s10\ns_mov_b32 s14, {4*o['pbr']}")
        g_ok, g_fly, t_fly = 0, None, 0
        for i in range(32):
            while g_ok < need(i) or (g_fly is not None and i - t_fly >= 2):
                if g_fly is None:
                    a("s_add_u32 s29, s29, 1\ns_and_b32 s29, s29, 7")
                    self.A_addr("s29"); self.spoll_issue(50, self.A_PARTS)
                self.spoll_check(50, self.A_PARTS, self.A_REGS)
                g_ok += 1; g_fly = None
            if g_fly is None and g_ok < 7:
                a("s_add_u32 s29, s29, 1\ns_and_b32 s29, s29, 7")
                self.A_addr("s29"); self.spoll_issue(50, self.A_PARTS)
                g_fly, t_fly = g_ok + 1, i
            a("s_barrier")
            if o["pb"] and i >= o["pb0"] and i <= last_i:
                lb = a.label("pb")
                a(f"s_bitcmp0_b32 s12, {i}\ns_cbranch_scc1 {lb}\ns_lshr_b64 s[16:17], s[100:101], s14\ns_and_b32 s3, s16, 15\ns_mul_i32 s3, s3, {96*4096}\ns_add_u32 s3, s3, s13")
                for k in range(o["pbn"]):
                    if k: a(f"s_lshr_b64 s[16:17], s[100:101], s14\ns_and_b32 s3, s16, 15\ns_mul_i32 s3, s3, {96*4096}\ns_add_u32 s3, s3, s13")
                    a(f"buffer_load_dword v69, v70, {srd(rW2)}, s3 offen\ns_add_u32 s14, s14, 4")
                a(f"{lb}:")
            if o["spc"] and i == 20: self.code_touch("L_g1_done", "L_g2_tail", 24, f"s{sIDX}")
            if o["spc"] and i == 22: self.code_touch("L_aux7", "L_att", 24, f"s{sIDX}")
            if i - last_i in o["w2t"]: self.w2_touch()
            if i - last_i == o["wot"]:
                a(f"v_min_u32 v70, 53, v0\nv_lshlrev_b32 v70, 7, v70\ns_mul_i32 s3, s58, 24\ns_add_u32 s3, s3, s{sIDX}\ns_mul_i32 s3, s3, 6912\nbuffer_load_dword v69, v70, {srd(rWO)}, s3 offen")
        assert g_ok == 7 and g_fly is None
        a(f"s_cmp_lg_u32 s2, 0\ns_cbranch_scc1 L_noepoch\ns_mov_b32 s3, {EPOCH}")
        a.set_flag("s3", 20)
        a("L_noepoch:")
        a("L_aux_g1done:")
        a.stamp(5)
        self.g2_loader()

    def sp_setup(self):
        a, o = self, self.o
        if not o["sp"]: return
        r0 = 2048 - o["spn"]
        a(f"s_and_b32 s38, s{sXCD}, {o['rot']}\ns_lshl_b32 s38, s38, 8\ns_add_u32 s38, s38, s{sIDX}\ns_add_u32 s38, s38, {r0}")
        a(f"s_mul_i32 s39, s{sXCD}, 1152\ns_mul_i32 s3, s53, 384\ns_add_u32 s39, s39, s3\ns_add_u32 s39, s39, 60")
        self.sp_row = r0
    def sp_step(self, i):
        a, o = self, self.o
        if not o["sp"]: return
        n = int((i + 1) * o["sp"]) - int(i * o["sp"])
        for _ in range(n):
            if self.sp_row >= 2048: return
            a(f"s_and_b32 s3, s38, 2047\ns_mul_i32 s3, s3, 9216\ns_add_u32 s3, s3, s39\ns_add_u32 s40, s{rW1}, s3\ns_addc_u32 s41, s{rW1+1}, 0\ns_add_u32 s38, s38, 24")
            for k in range(3): a(f"s_load_dwordx2 s[42:43], s[40:41], {128*k}")
            self.sp_row += 24

    def code_touch(self, l0, l1, nid, sid):
        a = self
        pc = a.label("pc")
        a(f"s_getpc_b64 s[40:41]\n{pc}:\ns_lshl_b32 s3, {sid}, 9\ns_min_u32 s3, s3, {l1}-{l0}-512\ns_sub_u32 s40, s40, {pc}-{l0}\ns_subb_u32 s41, s41, 0")
        a("s_add_u32 s40, s40, s3\ns_addc_u32 s41, s41, 0")
        for k in range(8): a(f"s_load_dword s42, s[40:41], {64*k}")

    def wo_touch(self, k):
        a = self
        a(f"s_lshl_b32 s3, s{sIDX}, 2\ns_add_u32 s3, s3, s53\ns_add_u32 s3, s3, {96*k}\ns_min_u32 s3, s3, 323\ns_lshl_b32 s3, s3, 9\ns_mul_i32 s11, s58, {144*1152}\ns_add_u32 s3, s3, s11")
        a(f"s_add_u32 s40, s{rWO}, s3\ns_addc_u32 s41, s{rWO+1}, 0")
        for k in range(4): a(f"s_load_dwordx2 s[42:43], s[40:41], {128*k+60}")

    def sp2_setup(self):
        a, o = self, self.o
        if not o["sp2"]: return
        assert o["spn2"] % 24 == 0
        a(f"s_lshl_b32 s38, s{sIDX}, 12\ns_add_u32 s38, s38, s10\ns_lshl_b32 s3, s53, 9\ns_add_u32 s38, s38, s3\ns_add_u32 s38, s38, 60")
        self.sp_row = 1152 - o["spn2"]
    def sp2_step(self, i):
        a, o = self, self.o
        if not o["sp2"]: return
        n = int((i + 1) * o["sp2"]) - int(i * o["sp2"])
        for _ in range(n):
            r = self.sp_row
            if r + 24 > 1152: return
            t = r // 96
            a(f"s_bfe_u32 s3, s{100 + t // 8}, {(4 << 16) | (4 * (t % 8))}\ns_mul_i32 s3, s3, {96*4096}\ns_add_u32 s3, s3, s38\ns_add_u32 s3, s3, {(r % 96) * 4096}")
            a(f"s_add_u32 s40, s{rW2}, s3\ns_addc_u32 s41, s{rW2+1}, 0")
            for k in range(4): a(f"s_load_dwordx2 s[42:43], s[40:41], {128*k}")
            self.sp_row += 24

    gP = 18
    gL, gW, gZ, gO, gY = 10, 11, 13, 15, 56
    def g2_loader_setup(self):
        a = self
        vL, vW, vZ, vO, vY = self.gL, self.gW, self.gZ, self.gO, self.gY
        self.g2_ids()
        a(f"v_lshlrev_b32 v{vL}, 4, v0\nv_lshrrev_b32 v1, 4, v0\nv_bfe_u32 v2, v0, 1, 3\nv_and_b32 v3, 1, v0")
        for i in range(2):
            a(f"v_add_u32 v4, {4*i}, v1\nv_xor_b32 v5, v2, v4\nv_lshlrev_b32 v4, 12, v4\nv_lshl_add_u32 v4, v5, 5, v4")
            a(f"v_lshl_add_u32 v{vW+i}, v3, 4, v4\nv_subrev_u32 v{vW+i}, {1024*i}, v{vW+i}")
        a(f"s_cmp_ge_u32 s53, 2\ns_cselect_b32 s3, {OOB}, 0")
        for i in range(3):
            a(f"v_add_u32 v4, {64*i}, v0")
            a.divmod_const(5, 6, 4, 24, 7)
            a(f"v_bfe_u32 v7, v5, 1, 1\nv_lshlrev_b32 v7, 2, v7\nv_xor_b32 v6, v6, v7")
            a(f"v_mul_u32_u24 v5, 1152, v5\nv_lshl_add_u32 v{vO+i}, v6, 4, v5\nv_subrev_u32 v{vO+i}, {1024*i}, v{vO+i}")
            a(f"v_or_b32 v{vY+i}, s3, v{vO+i}")
        a(f"s_mul_i32 s8, s58, 144\ns_add_u32 s8, s8, s53\ns_mul_i32 s8, s8, 9216\ns_mul_i32 s3, s59, 3072\ns_add_u32 s8, s8, s3\ns_add_u32 s8, s8, {U}")
        a(f"s_mul_i32 s9, s58, 1152\ns_lshl_b32 s3, s53, 3\ns_add_u32 s9, s9, s3\ns_lshl_b32 s9, s9, 12\ns_lshl_b32 s3, s60, 8\ns_add_u32 s9, s9, s3")
        a(f"s_mul_i32 s61, s53, {G2_PITCH}\ns_mul_i32 s62, s53, 3072\ns_lshl_b32 s63, s53, 11")
        a("v_and_b32 v63, 15, v0")
        a(f"s_mul_i32 s3, s58, 3\ns_add_u32 s3, s3, s59\ns_lshl_b32 s3, s3, 4\ns_add_u32 s3, s3, s60\ns_lshl_b32 s3, s3, 9\ns_add_u32 s3, s3, {FLB}")
        a(f"s_add_u32 s98, s{rWS}, s3\ns_addc_u32 s99, s{rWS+1}, 0\ns_lshl_b32 s3, s53, 7\ns_load_dword s30, s[98:99], s3 glc")
        a("v_min_u32 v68, 2, v1\nv_lshlrev_b32 v68, 12, v68\nv_lshl_add_u32 v68, v63, 7, v68")
        a(f"s_lshl_b32 s97, s{sIDX}, 2\ns_add_u32 s97, s97, s53\ns_mul_i32 s97, s97, 3\ns_add_u32 s97, s97, {self.o['w2r']}")
        a(f"s_mul_i32 s10, s58, {1152*4096}\ns_and_b32 s3, s{sXCD}, 1\ns_lshl_b32 s3, s3, 11\ns_add_u32 s10, s10, s3")

    def g2_w_load(self, n, issued):
        a = self
        if n % 3 == 0:
            a(f"s_bfe_u32 s57, s{100 + n // 24}, {(4 << 16) | (4 * ((n // 3) % 8))}\ns_mul_i32 s57, s57, {96*4096}\ns_add_u32 s57, s57, s9")
        a(f"s_add_u32 m0, s63, {G2_W[(n >> 1) % 3] + (n & 1) * G2_WS}\ns_nop 0")
        for i in range(2):
            a(f"buffer_load_dwordx4 v{self.gW+i}, {srd(rW2)}, s57 offen offset:{1024*i} lds")
            issued.append(100 + (n >> 1))
        a(f"s_add_u32 s57, s57, {32*4096}")

    def w2_touch(self):
        for x in self.ord_row(3, "s97"): self(x)
        self(f"s_lshl_b32 s3, s3, 12\ns_add_u32 s3, s3, s10\nbuffer_load_dword v69, v68, {srd(rW2)}, s3 offen\ns_add_u32 s97, s97, 288")

    def g2_loader(self):
        a = self
        NSTEP, NST = 36, 20
        vL, vO, vY = self.gL, self.gO, self.gY
        issued = []
        def a_load(n):
            if n % 3 == 0:
                a(f"s_bfe_u32 s56, s{100 + n // 24}, {(4 << 16) | (4 * ((n // 3) % 8))}\ns_mul_i32 s56, s56, {12*9216}\ns_add_u32 s56, s56, s8")
            a(f"s_add_u32 m0, s61, {G2_U[(n >> 1) % 3] + (n & 1) * G2_US}\ns_nop 0")
            for i in range(3):
                a(f"buffer_load_dwordx4 v{vL}, {srd(rWS)}, s56 offen offset:{1024*i} sc1 lds")
                issued.append(100 + (n >> 1))
            a(f"s_add_u32 s56, s56, {4*9216}")
        def wo_load(e, tag, which=(0, 1, 2)):
            a(f"s_add_u32 m0, s62, {WO_AT[e]}\ns_add_u32 s3, s36, {32*1152*e}")
            for i in which:
                a(f"buffer_load_dwordx4 v{(vY if e == 4 else vO)+i}, {srd(rWO)}, s3 offen offset:{1024*i} lds")
                issued.append(tag)
        def o_load(ph, tag):
            a(f"s_add_u32 s3, s58, {ph+1}\ns_and_b32 s3, s3, 3\ns_mul_i32 s3, s3, {2*9216}\ns_add_u32 m0, s54, {4*OI_P*ph}\ns_add_u32 s3, s3, s37")
            for i in range(3):
                if i == 2: a("s_mov_b64 exec, 0xffff")
                a(f"buffer_load_dwordx4 v{vL}, {srd(rWS)}, s3 offen offset:{1024*i} sc1 lds")
                issued.append(tag)
            a("s_mov_b64 exec, -1")
        o = self.o
        if o["spo"] == 3:
            for k in (2, 3, 0, 1): self.wo_touch(k)
        a("s_barrier")
        if o["w2g"]: self.w2_touch(); issued.append(99)
        if o["w2e"]:
            for n in range(o["w2p"]): self.g2_w_load(n, issued)
        if o["spo"] == 2:
            for k in (2, 3, 0, 1): self.wo_touch(k)
        a(f"s_and_b32 s3, s{sXCD}, 1\ns_lshl_b32 s3, s3, 7\ns_add_u32 s12, s98, s3\ns_addc_u32 s13, s99, 0\ns_xor_b32 s3, s3, 128\ns_add_u32 s14, s98, s3\ns_addc_u32 s15, s99, 0")
        p1 = [(16, 4, 0), (28, 4, 256)]
        r1 = [16, 17, 18, 19, 28, 29, 30, 31]
        a("s_barrier")
        a.spoll_issue(12, p1)
        a.stamp(7)
        if not o["w2e"]:
            for n in range(o["w2p"]): self.g2_w_load(n, issued)
        if o["w2c"]: self.w2_touch(); issued.append(99)
        a.spoll_check(12, p1, r1)
        a.stamp(8)
        od = o["odl"]
        q = []
        for n in range(NSTEP):
            q.append(("a", n, (n >> 1) - 2 if n >= 6 else -1))
            if n >= o["w2p"]: q.append(("w", n, (n >> 1) - 2 if n >= 6 else -1))
        def pump(i, budget):
            for x in list(q):
                c = 3 if x[0] == "a" else 2
                must = (x[1] >> 1) <= i + 1
                if x[2] > i or (budget < c and not must): continue
                if any(y[0] == x[0] and y[1] < x[1] for y in q): continue
                q.remove(x); budget -= c
                a_load(x[1]) if x[0] == "a" else self.g2_w_load(x[1], issued)
        bud = o["g2b"]
        pump(-1, bud[0])
        self.sp2_setup()
        a(f"s_lshl_b32 s52, s60, 2\ns_add_u32 s52, s52, s58\ns_lshl_b32 s52, s52, 7\ns_add_u32 s52, s52, {FLO}")
        a(f"s_add_u32 s50, s{rWS}, s52\ns_addc_u32 s51, s{rWS+1}, 0")
        op = [(64, 8, 0)]
        a(f"s_mul_i32 s36, s58, 144\ns_lshl_b32 s3, s53, 3\ns_add_u32 s36, s36, s3\ns_mul_i32 s36, s36, 1152\ns_mul_i32 s3, s59, 384\ns_add_u32 s36, s36, s3")
        a(f"s_lshl_b32 s37, s60, 1\ns_lshr_b32 s3, s53, 1\ns_add_u32 s37, s37, s3\ns_lshl_b32 s37, s37, 3\ns_and_b32 s3, s53, 1\ns_add_u32 s37, s37, s3\ns_mul_i32 s37, s37, 9216")
        a(f"s_mul_i32 s3, s58, 2304\ns_add_u32 s37, s37, s3\ns_add_u32 s37, s37, {OT}\ns_mul_i32 s54, s53, {OI_P}\ns_add_u32 s54, s54, {OI}")
        assert od == 17
        for i in range(NST):
            last = max(k for k, x in enumerate(issued) if x == 100 + i)
            nn = len(issued) - 1 - last
            assert nn < 63
            nxt = i + 2
            p3 = [(64 + 2 * k, 2, 128 * k + 16) for k in range(4)]
            chk = {3: (14, p1, None), 4: (14, p1, r1), 9: (98, p3, None), 10: (98, p3, list(range(64, 72)))}
            if self.o["att"] and "o" not in o["dbg"]: chk.update({od - 1: (50, op, None), od: (50, op, list(range(64, 72)))})
            if i in chk:
                lb = a.label("nopo")
                a(f"s_cmp_lg_u32 s{sWAVE}, 7\ns_cbranch_scc1 {lb}")
                if chk[i][2] is None: a.spoll_issue(chk[i][0], chk[i][1])
                else: a.spoll_check(*chk[i])
                a(f"{lb}:")
            a(f"s_waitcnt vmcnt({nn})\ns_barrier")
            a.tr0()
            pump(i, bud[min(i + 1, len(bud) - 1)])
            if 0 <= i - o["woe"] < 6: wo_load(3 + (i - o["woe"]) // 3, 116, ((i - o["woe"]) % 3,))
            if i == 16: wo_load(0, 117); wo_load(1, 118)
            if i == 17:
                o_load(0, 118); wo_load(2, 118)
                for ph in range(1, 1 + o["oe"]): o_load(ph, 119)
            if i == 18:
                for ph in range(1 + o["oe"], 4): o_load(ph, 119)
            a.tr1(32 + i)
            wot = {6: 0, 7: 1, 8: 2, 11: 3}
            if o["spo"] == 1 and i in wot: self.wo_touch(wot[i])
            elif o["spc"] and i == 12:
                a(f"s_lshl_b32 s11, s{sIDX}, 2\ns_add_u32 s11, s11, s53")
                self.code_touch("L_g2_tail", "L_aux", 96, "s11")
            elif i not in (3, 9, od - 1): self.sp2_step(i)
        assert not q
        a.stamp(10)
        if o.get("trace"):
            a(f"s_lshl_b32 s3, s2, 2\ns_add_u32 s3, s3, s53\ns_lshl_b32 s3, s3, 8\ns_add_u32 s3, s3, {0x1600000}\nv_lshlrev_b32 v1, 2, v0\nbuffer_store_dword v200, v1, {srd(rWS)}, s3 offen")
        a("s_branch L_fin")

    def att(self):
        a = self
        a("L_att:")
        if self.o["att"]:
            import gen_att
            gen_att.emit(self)

    def build(self):
        a = self
        a.launch(KNAME, 256, 512, LDS_BYTES)
        a.kd(KNAME, 256)
        self.entry()
        self.mlp_compute()
        self.mlp_aux()
        self.att()
        a("L_fin:")
        if self.o["stamps"]: a("s_waitcnt vmcnt(0)")
        a.stamp(15)
        self.dump_stamps(4)
        a("L_end:\ns_endpgm\n.p2align 6\n.type order_table,@object\norder_table:")
        for x in range(8):
            w = sum(t << (4 * k) for k, t in enumerate(xcd_order(x) if self.o["perm"] else [(6 * (x & 1) + k) % 12 for k in (0, 1, 2, 3, 6, 7, 8, 9, 4, 5, 10, 11)]))
            a(f".long {w & 0xffffffff}, {w >> 32}")
        a(".size order_table, 64\nL_code_end:")
        return a.text(single=True)


if __name__ == "__main__":
    import json
    opt = json.loads(sys.argv[2]) if len(sys.argv) > 2 else {}
    open(sys.argv[1], "w").write(Gen(**opt).build())
```

```python
from gen_v7 import *
import re

A_SLOT, A_NS, A_W = 30720, 4, 16384
IMG_P = 472
PARK = 122880
WPH = PARK + 20480
JUNK7 = WPH + 4096
ZERO = JUNK7 + 2048
JUNK = ZERO + 128
TAB = LN_SCR
KVB = 15360
assert JUNK + 8 <= LN_SCR

cA, cA4, cB0, cB1 = 224, 225, 226, 227
vD = 228
aV, aT4, aK, aKA, aKB, aP, aR, aL, aB, aO, aF, aPK, vT, aS2 = 232, 233, 234, 235, 236, 237, 239, 241, 243, 247, 249, 250, 251, 252
aG = 253
sTB, sTG, sHP = 96, 97, 98


def setup(a):
    o = a.o
    vG, vN, vOOB = 70, 71, 72
    a(f"s_sub_u32 s{sTB}, s{sIDX}, 24\ns_and_b32 s{sTG}, s{sWAVE}, 3\ns_lshr_b32 s{sHP}, s{sWAVE}, 2")
    a(f"v_lshrrev_b32 v{vG}, 4, v0\nv_and_b32 v{vN}, 15, v0\nv_mov_b32 v{vOOB}, {OOB}")
    a(f"s_cmp_eq_u32 s{sHP}, {0}\ns_cbranch_scc1 L_att_ph")
    for i in range(4):
        a(f"v_add_u32 v73, {64*i}, v0")
        a.divmod_const(74, 75, 73, 27, 76)
        a.divmod_const(77, 78, 75, 9, 76)
        a(f"v_mul_u32_u24 v74, 3456, v74\nv_mul_u32_u24 v77, 1152, v77\nv_lshlrev_b32 v78, 4, v78\nv_add3_u32 v74, v74, v77, v78\nv_subrev_u32 v{vD+i}, {1024*i}, v74")
    a(f"s_mul_i32 s28, s{sXCD}, 144\ns_mul_i32 s3, s{sTG}, {8*3456}\ns_add_u32 s28, s28, s3\ns_mul_i32 s99, s{sTG}, 3456\ns_add_u32 s99, s99, {A_W}")
    a("s_branch L_att_pd\nL_att_ph:")
    a(f"v_lshrrev_b32 v73, 5, v0\nv_and_b32 v74, 31, v0\nv_xor_b32 v74, v74, v73\nv_mul_u32_u24 v75, 9216, v73\nv_lshl_add_u32 v{vD}, v74, 4, v75")
    for i in range(1, 4): a(f"v_add_u32 v{vD+i}, {i*(2*9216-1024)}, v{vD}")
    a(f"s_lshl_b32 s28, s{sTB}, 2\ns_add_u32 s28, s28, s{sTG}\ns_mul_i32 s28, s28, {8*9216}\ns_add_u32 s28, s28, {HT}\ns_lshl_b32 s99, s{sTG}, 12")
    a("L_att_pd:")
    a(f"v_lshrrev_b32 v74, 2, v0\nv_lshlrev_b32 v74, 1, v74\nv_and_b32 v75, 3, v0")
    a(f"s_mul_i32 s38, s{sHP}, 72\ns_add_u32 s3, s38, {A_W}\nv_mul_u32_u24 v76, 432, v74\nv_add_u32 v76, s3, v76")
    a(f"v_lshl_add_u32 v{cA}, v75, 3, v76\nv_min_u32 v77, 2, v75\nv_mul_u32_u24 v77, 144, v77\nv_add3_u32 v{cA4}, v76, v77, 64")
    a(f"v_lshrrev_b32 v77, 1, v75\nv_xor_b32 v78, v74, v77\nv_lshlrev_b32 v78, 4, v78\nv_lshl_add_u32 v78, v77, 9, v78")
    a(f"v_and_b32 v77, 1, v75\nv_lshl_add_u32 v78, v77, 3, v78\ns_lshl_b32 s3, s{sTG}, 12\nv_add_u32 v{cB0}, s3, v78\nv_xor_b32 v{cB1}, 16, v{cB0}")
    a(f"v_lshlrev_b32 v{aS2}, 2, v{vN}\nv_mov_b32 v74, 0\nv_add_u32 v75, {ZERO}, v{aS2}\nds_write_b32 v75, v74\nds_write_b32 v75, v74 offset:64")


def late_setup(g):
    o = g.o
    out = []
    def a(t):
        t = re.sub(r"v7(\d)\b", lambda m: f"v{5+int(m.group(1))}", t)
        t = re.sub(r"s3\b", "s41", t)
        ls = t.split("\n")
        k = 0
        while k < len(ls):
            if ls[k].startswith("s_bitcmp"):
                out.append("\n".join(ls[k:k+3])); k += 3
            else:
                out.append(ls[k]); k += 1
    vG, vN, vOOB = 70, 71, 72
    a(f"v_lshrrev_b32 v{vG}, 4, v0\nv_and_b32 v{vN}, 15, v0\nv_mov_b32 v{vOOB}, {OOB}\nv_lshrrev_b32 v73, 5, v0\nv_and_b32 v75, 3, v0")
    a(f"s_lshl_b32 s3, s{sHP}, 11\ns_add_u32 s3, s3, {WPH}\nv_lshl_add_u32 v76, v75, 1, s3\nv_bfe_u32 v77, v0, 2, 2\nv_mul_u32_u24 v77, 18, v77")
    a(f"s_and_b32 s38, s{sTG}, 1\ns_lshl_b32 s38, s38, 1\ns_lshr_b32 s39, s{sTG}, 1\ns_lshl_b32 s3, s39, 4\ns_add_u32 s3, s3, s38\nv_lshl_add_u32 v78, v{vG}, 2, s3")
    a(f"v_sub_u32 v77, v78, v77\nv_cmp_gt_u32 vcc, 18, v77\nv_mul_u32_u24 v78, 36, v78\nv_add_u32 v78, v78, v76\nv_mov_b32 v79, {ZERO}\nv_cndmask_b32 v{aG}, v79, v78, vcc")
    a(f"s_lshl_b32 s39, s39, 1\ns_add_u32 s39, s39, 5\nv_lshrrev_b32 v74, 2, v0\nv_cmp_eq_u32 vcc, s39, v74\ns_mul_i32 s38, s38, 36\ns_add_u32 s38, s38, {32*36}\nv_add_u32 v78, s38, v76\nv_cndmask_b32 v{aG+1}, v79, v78, vcc")
    a(f"s_mul_i32 s3, s{sHP}, 10240\ns_add_u32 s3, s3, {PARK}\nv_lshl_add_u32 v{aPK}, v0, 4, s3\ns_lshl_b32 s3, s{sTG}, 2\nv_add_u32 v15, s3, v{aPK}")
    n_first = len(out)
    a(f"v_lshlrev_b32 v74, 1, v74\ns_mul_i32 s38, s{sHP}, 72")
    a(f"v_lshlrev_b32 v{vT}, 12, v{vG}\nv_lshl_add_u32 v{vT}, v{vN}, 7, v{vT}")
    a(f"s_lshl_b32 s63, s{sTB}, 2\ns_add_u32 s63, s63, s{sTG}\ns_lshl_b32 s63, s63, 2")
    a(f"s_lshr_b32 s42, s{sXCD}, 1\ns_mul_i32 s42, s42, {1152*4096}\ns_and_b32 s3, s{sXCD}, 1\ns_lshl_b32 s3, s3, 11\ns_add_u32 s42, s42, s3")
    a(f"v_lshlrev_b32 v{aF}, 9, v0")
    a(f"s_mul_i32 s3, s{sTG}, {64*IMG_P}\nv_mul_u32_u24 v76, {IMG_P}, v{vN}\nv_add_u32 v76, s3, v76")
    a(f"s_add_u32 s3, s38, 320\nv_lshl_add_u32 v{aV}, v{vG}, 3, s3\nv_add_u32 v{aV}, v{aV}, v76")
    a(f"s_add_u32 s3, s3, 64\nv_cmp_eq_u32 vcc, 3, v{vG}\nv_mov_b32 v77, s3\nv_mov_b32 v78, 464\nv_cndmask_b32 v77, v77, v78, vcc\nv_add_u32 v{aT4}, v77, v76")
    a(f"v_and_b32 v79, 1, v{vG}\nv_mul_u32_u24 v77, 80, v79\nv_mul_u32_u24 v78, {16*IMG_P}, v73\ns_mul_i32 s3, s{sHP}, 160\nv_add3_u32 v{aK}, v76, v77, v78\nv_add_u32 v{aK}, s3, v{aK}")
    a(f"v_and_b32 v76, 14, v74\nv_add_u32 v76, v76, v73\nv_mul_u32_u24 v76, {2*IMG_P}, v76")
    a(f"s_lshr_b32 s39, s{sWAVE}, 1\ns_mul_i32 s3, s39, 80\nv_lshl_add_u32 v{aKA}, v75, 3, s3\nv_add_u32 v{aKA}, v{aKA}, v76")
    a(f"s_add_u32 s38, s38, 320\ns_and_b32 s3, s39, 1\ns_mul_i32 s3, s3, 40\ns_add_u32 s3, s3, s38\nv_lshl_add_u32 v77, v75, 3, s3\ns_add_u32 s38, s38, 32")
    a(f"v_cmp_eq_u32 vcc, 0, v75\nv_mov_b32 v78, 464\nv_mov_b32 v{aKB}, s38\nv_cndmask_b32 v78, v78, v{aKB}, vcc")
    a(f"s_bitcmp0_b32 s{sWAVE}, 0\ns_cselect_b64 vcc, -1, 0\ns_cselect_b32 s38, 16, 8\nv_cndmask_b32 v77, v78, v77, vcc\nv_add_u32 v{aKB}, v77, v76")
    a(f"v_cmp_gt_u32 vcc, s38, v{vN}\nv_mul_u32_u24 v76, s38, v{vG}\nv_add_lshl_u32 v76, v76, v{vN}, 4\ns_lshl_b32 s40, s38, 6")
    a(f"v_cndmask_b32 v{aP}, v{vOOB}, v76, vcc\nv_cmp_gt_u32 vcc, 2, v{vG}\ns_lshl_b32 s30, s{sXCD}, 3\ns_add_u32 s30, s30, s{sTB}\nv_cndmask_b32 v{aP+1}, v{vOOB}, v{aP}, vcc")
    a(f"s_mul_i32 s30, s30, {KVB}\ns_mul_i32 s3, s39, 3840\ns_add_u32 s30, s30, s3\ns_add_u32 s30, s30, {KVP}")
    a(f"s_lshl_b32 s36, s{sXCD}, 12\ns_add_u32 s36, s36, {FLKV}\ns_lshl_b32 s3, s39, 7\ns_add_u32 s36, s36, s3")
    a(f"s_lshl_b32 s31, s{sTB}, 1\ns_and_b32 s3, s{sWAVE}, 1\ns_add_u32 s31, s31, s3\ns_lshl_b32 s31, s31, 2\ns_add_u32 s31, s31, s36\ns_lshl_b32 s3, s{sTB}, 9\ns_add_u32 s36, s36, s3")
    a(f"s_and_b32 s3, s{sWAVE}, 1\ns_mul_i32 s3, s3, 120\nv_add_u32 v76, s3, v0\ns_mul_i32 s38, s39, 1920\ns_add_u32 s38, s38, {TAB}")
    for i in range(2):
        if i: a("v_add_u32 v76, 64, v76")
        a(f"v_cmp_gt_u32 vcc, 160, v76\nv_lshrrev_b32 v77, 4, v76\nv_and_b32 v78, 15, v76\nv_lshrrev_b32 v74, 3, v76\nv_subrev_u32 v74, 20, v74\nv_and_or_b32 v75, v76, 7, 16")
        a(f"v_cndmask_b32 v77, v74, v77, vcc\nv_cndmask_b32 v78, v75, v78, vcc")
        a(f"v_mul_u32_u24 v78, 80, v78\nv_lshlrev_b32 v77, 3, v77\nv_add3_u32 v{aL+i}, v78, v77, s38\nv_lshlrev_b32 v{aR+i}, 4, v76")
    a(f"v_cmp_gt_u32 vcc, 56, v0\nv_mov_b32 v77, {JUNK}\ns_nop 0\nv_cndmask_b32 v{aR+1}, v{vOOB}, v{aR+1}, vcc\nv_cndmask_b32 v{aL+1}, v77, v{aL+1}, vcc")
    a(f"v_lshrrev_b32 v76, 3, v{vN}\nv_and_b32 v77, 7, v0\nv_cmp_eq_u32 vcc, v76, v79")
    a(f"s_mul_i32 s3, s{sHP}, 3840\ns_add_u32 s3, s3, {TAB}\nv_mul_u32_u24 v74, 1920, v76\nv_mul_u32_u24 v75, 40, v73\nv_add3_u32 v74, v74, v75, s3")
    a(f"v_lshlrev_b32 v75, 1, v76\nv_sub_u32 v75, v77, v75\nv_mov_b32 v{aO}, {ZERO}")
    for t in range(4):
        if t < 3:
            a(f"v_add_u32 v78, {8*t+20}, v75\nv_add_u32 v{aB+t}, {8*t}, v75\nv_min_u32 v78, v78, v{aB+t}\nv_min_u32 v78, 20, v78\nv_mul_u32_u24 v78, 80, v78\nv_add_u32 v78, v78, v74")
        else:
            a("v_add_u32 v78, 1600, v74")
        a(f"v_cndmask_b32 v{aB+t}, v{aO}, v78, vcc")
    a(f"v_mul_u32_u24 v76, 18, v76\nv_add_lshl_u32 v76, v76, v77, 4\nv_lshl_add_u32 v78, v79, 1, v73\nv_cmp_gt_u32 vcc, 2, v77")
    a(f"s_mul_i32 s3, s{sWAVE}, 4608\nv_mul_u32_u24 v78, 576, v78\nv_add3_u32 v{aO}, v78, v76, s3")
    a(f"v_mov_b32 v78, {40960}\nv_cndmask_b32 v{aO+1}, v78, v{aO}, vcc")
    a(f"s_lshl_b32 s37, s{sTB}, 2\ns_add_u32 s37, s37, s{sTG}\ns_mul_i32 s37, s37, {8*9216}\ns_mul_i32 s3, s{sXCD}, 1152\ns_add_u32 s37, s37, s3")
    a(f"s_mul_i32 s3, s{sHP}, 576\ns_add_u32 s37, s37, s3\ns_add_u32 s37, s37, {OT}")
    return out, n_first


def early(a):
    a(f"s_and_b32 s3, s{sWAVE}, 3\ns_cmp_lg_u32 s3, 1\ns_cbranch_scc1 L_att_g0\ns_lshr_b32 s49, s{sWAVE}, 2")
    a(f"s_lshl_b32 s3, s49, 11\ns_add_u32 m0, s3, {WPH}\ns_lshl_b32 s48, s{sXCD}, 1\ns_add_u32 s48, s48, s49\ns_mul_i32 s48, s48, 1296")
    a(f"buffer_load_dwordx4 v63, {srd(rWPHI)}, s48 offen lds\nbuffer_load_dwordx4 v63, {srd(rWPHI)}, s48 offen offset:1024 lds")
    a("L_att_g0:")


def mix(a, base, ins, every, start=0):
    ins = list(ins)
    for i, x in enumerate(base):
        a(x)
        if ins and i >= start and (i - start) % every == 0:
            a(ins.pop(0))
    for x in ins: a(x)


def emit(a):
    o = a.o
    ACC = 24
    P, Q = 136, 180
    bA, bA4, bB0, bB1 = 1, 2, 3, 4
    vS = 16
    a(f"s_cmp_eq_u32 s{sWAVE}, 0\ns_cbranch_scc0 L_att_s0")
    a.bar_pub()
    a("L_att_s0:")
    a(f"s_add_u32 s3, s{sXCD}, 24\ns_sub_u32 s48, s{sIDX}, 24")
    a.A_addr("s48", "s3")
    setup(a)
    iW, iH = [], []
    class Both:
        def append(self, x): iW.append(x); iH.append(x)
    issued = Both()
    def w_dma(st):
        r = [f"s_add_u32 m0, s99, {(st % A_NS)*A_SLOT}", "s_nop 0"]
        for i in range(4):
            if i == 3: r.append("s_mov_b64 exec, 0xffffff")
            r.append(f"buffer_load_dwordx4 v{vD+i}, {srd(rWQKV)}, s28 offen offset:{1024*i} lds")
            iW.append(st)
        return r + ["s_mov_b64 exec, -1", f"s_add_u32 s28, s28, {32*3456}"]
    def h_dma(st):
        r = [f"s_add_u32 m0, s99, {(st % A_NS)*A_SLOT}", "s_nop 0"]
        for i in range(4):
            r.append(f"buffer_load_dwordx4 v{vD+i}, {srd(rWS)}, s28 offen offset:{1024*i} sc1 lds")
            iH.append(st)
        return r + ["s_add_u32 s28, s28, 0x200"]
    def emit_l(r):
        for x in r: a(x)
    def only(hp, r):
        lb = a.label("on")
        a(f"s_cmp_lg_u32 s{sHP}, {hp}\ns_cbranch_scc1 {lb}"); emit_l(r); a(f"{lb}:")
    def vm(st):
        return min(len(l) - 1 - max(i for i, x in enumerate(l) if x == st) for l in (iW, iH))
    def w2_touch(slot):
        r = []
        for r0 in o["at"].get(slot, ()):
            if r0 < 0:
                r += wo_touch(); continue
            assert r0 % 4 == 0 and r0 + 128 <= 1152
            r += [f"s_add_u32 s43, s63, {r0}"] + a.ord_row(3, "s43") + ["s_lshl_b32 s3, s3, 12", "s_add_u32 s3, s3, s42", f"buffer_load_dword v255, v{vT}, {srd(rW2)}, s3 offen"]
            issued.append(-1)
        return r
    def both(x):
        for r0 in o["at"].get("B" + x, ()):
            emit_l([f"s_lshl_b32 s43, s{sHP}, 7", "s_add_u32 s43, s43, s63", f"s_add_u32 s43, s43, {r0}"] + a.ord_row(3, "s43") +
                   ["s_lshl_b32 s3, s3, 12", "s_add_u32 s3, s3, s42", f"buffer_load_dword v255, v{vT}, {srd(rW2)}, s3 offen"])
        if "O" + x in o["at"]: only(0, w2_touch("O" + x))
        if "Y" + x in o["at"]: only(1, w2_touch("Y" + x))
    def wo_touch():
        issued.append(-1)
        return (f"s_mul_i32 s3, s63, 1312\ns_lshr_b32 s49, s{sXCD}, 1\ns_mul_i32 s49, s49, {144*1152}\ns_add_u32 s3, s3, s49\n"
                f"v_min_u32 v10, 40, v0\nv_lshlrev_b32 v10, 7, v10\nv_add_u32 v10, s3, v10\nbuffer_load_dword v255, v10, {srd(rWO)}, 0 offen").split("\n")
    a(f"s_cmp_eq_u32 s{sWAVE}, 3\ns_cbranch_scc0 L_att_s7")
    a.spoll_issue(50, a.A_PARTS)
    a("L_att_s7:")
    a(f"s_cmp_eq_u32 s{sWAVE}, 0\ns_cbranch_scc1 L_att_s1")
    a.bar_pub()
    a("L_att_s1:")
    early(a)
    if o.get("atw"):
        a(f"s_lshl_b32 s52, s{sTB}, 3\ns_add_u32 s52, s52, s{sWAVE}")
        for k, R in enumerate(o["atw"]):
            a.touch_pattern(80, R, 9216)
            a.touch_w1(80, "s52", R, 224 * o["w1a"] + 64 * sum(o["atw"][:k]), 255)
    NPRE = o.get("apre", 2)
    HR = 0
    only(1 - HR, [x for st in range(NPRE) for x in w_dma(st)])
    fill, nf = late_setup(a)
    npre = o.get("apf", 60)
    emit_l(fill[:npre]); del fill[:npre]; nf -= npre
    for x, y in ((bA, cA), (bA4, cA4), (bB0, cB0), (bB1, cB1)): a(f"v_mov_b32 v{x}, v{y}")
    a(f"s_cmp_lg_u32 s{sWAVE}, 3\ns_cbranch_scc1 L_att_np")
    a.spoll_check(50, a.A_PARTS, a.A_REGS)
    a("L_att_np:")
    a("s_barrier")
    a.stamp(3)
    only(HR, h_dma(0) + h_dma(1))
    a(f"s_lshl_b32 s3, s{sTB}, 2\ns_add_u32 s3, s3, s{sTG}\ns_lshl_b32 s3, s3, 8\ns_add_u32 s3, s3, {S2}")
    for t in range(4):
        a(f"buffer_load_dword v{vS+2*t}, v{aS2}, {srd(rWS)}, s3 offen offset:{64*t} sc1")
        issued.append(-1)

    TOFF = [0, 32, 144, 176, None, 288, 320]
    def reads(st):
        r = []
        def rb(tt):
            return [f"ds_read_b64_tr_b16 v[{st+28+4*tt+2*rho}:{st+29+4*tt+2*rho}], v{bB1 if rho else bB0} offset:{1024*tt}" for rho in range(2)]
        r += rb(0)
        for T in range(7):
            for rho in range(2):
                if T == 4:
                    r.append(f"ds_read_b64_tr_b16 v[{st+4*T+2*rho}:{st+4*T+2*rho+1}], v{bA4} offset:{432*rho}")
                else:
                    r.append(f"ds_read_b64_tr_b16 v[{st+4*T+2*rho}:{st+4*T+2*rho+1}], v{bA} offset:{432*rho+TOFF[T]}")
        for tt in range(1, 4): r += rb(tt)
        return r
    def mfmas(st, first=False):
        m = []
        for tt in range(4):
            for T in range(7):
                d = ACC + 28 * tt + 4 * T
                m.append(f"v_mfma_f32_16x16x32_bf16 v[{d}:{d+3}], v[{st+4*T}:{st+4*T+3}], v[{st+28+4*tt}:{st+31+4*tt}], {'0' if first else f'v[{d}:{d+3}]'}")
        return m
    def advance(st):
        off = (st % A_NS) * A_SLOT
        return [f"v_add_u32 v{x}, {off}, v{y}" for x, y in ((bA, cA), (bA4, cA4), (bB0, cB0), (bB1, cB1))]
    a(f"s_waitcnt vmcnt({vm(0)})\ns_barrier")
    a.stamp(4)
    for r in reads(P): a(r)
    for r in advance(1): a(r)
    NS_ = 18
    nh, nw = [2], [NPRE]
    LA = o.get("ala", 2)
    def more(f, cnt, upto):
        r = []
        while cnt[0] <= min(upto, NS_ - 1):
            r += f(cnt[0]); cnt[0] += 1
        return r
    only(HR, more(h_dma, nh, 2))
    if NPRE < 3: only(1 - HR, more(w_dma, nw, 2))
    if o.get("aprio"):
        a(f"s_cmp_lg_u32 s{sHP}, {o['aprio'] - 1}\ns_cbranch_scc1 L_att_pr\ns_setprio 1\nL_att_pr:")
    tails = []
    PQ, PKk, PT, PV = 136, 152, 168, 4
    def conv(tt):
        r = ACC + 28 * tt
        pv = PV + 6 * (tt & 1)
        l = [f"v_cvt_pk_bf16_f32 v{PKk+4*tt+i}, v{r+8+2*i}, v{r+9+2*i}" for i in range(4)]
        l += [f"v_cvt_pk_bf16_f32 v{PT+2*tt+i}, v{r+16+2*i}, v{r+17+2*i}" for i in range(2)]
        l += [f"v_cvt_pk_bf16_f32 v{PQ+4*tt+i}, v{r+2*i}, v{r+1+2*i}" for i in range(4)]
        l += [f"v_pk_mul_f32 v[{r+16+2*i}:{r+17+2*i}], v[{r+16+2*i}:{r+17+2*i}], v[{vS+2*tt}:{vS+2*tt+1}] op_sel_hi:[1,0]" for i in range(6)]
        l += [f"v_cvt_pk_bf16_f32 v{pv+i}, v{r+16+2*i}, v{r+17+2*i}" for i in range(6)]
        l += [f"v_cndmask_b32 v{pv}, v{pv}, v3, vcc", f"v_cndmask_b32 v{pv+1}, v{pv+1}, v3, vcc"]
        l += [f"ds_write_b64 v{aV}, v[{pv+2}:{pv+3}] offset:{16*IMG_P*tt}", f"ds_write_b64 v{aV}, v[{pv+4}:{pv+5}] offset:{16*IMG_P*tt+32}"]
        l += [f"s_mov_b32 exec_lo, 0\nds_write_b64 v{aT4}, v[{pv}:{pv+1}] offset:{16*IMG_P*tt}\ns_mov_b32 exec_lo, -1"]
        return l
    vm1 = lambda l, st: len(l) - 1 - max(i for i, x in enumerate(l) if x == st)
    def gemm(role):
        fl, nf_ = list(fill), nf
        lst, cnt, f = (iH, nh, h_dma) if role == 0 else (iW, nw, w_dma)
        for n in range(NS_ - 1):
            st, nx = (P, Q)[n & 1], (P, Q)[(n + 1) & 1]
            a(f"s_waitcnt vmcnt({vm1(lst, n + 1)}) lgkmcnt(6)\ns_barrier")
            ds = reads(nx)
            if n + 2 < NS_: ds += advance(n + 2)
            dm = more(f, cnt, n + 3)
            dm += w2_touch(f"{'oy'[role]}{n}")
            if role == 0 and n in o.get("acode", ()):
                pc = a.label("pc")
                k = o["acode"].index(n)
                dm += [f"s_getpc_b64 s[48:49]", f"{pc}:", f"s_lshl_b32 s3, s{sTG}, 13", f"s_add_u32 s3, s3, L_att_a-{pc}+65536+{2048*k}*0", f"s_min_u32 s3, s3, L_code_end-{pc}+65536-8192",
                       "s_add_u32 s48, s48, s3", "s_addc_u32 s49, s49, 0", "s_sub_u32 s48, s48, 65536", "s_subb_u32 s49, s49, 0",
                       f"s_lshl_b32 s3, s{sTB}, 3", "v_and_b32 v23, 7, v0", "v_add_lshl_u32 v23, v23, s3, 7", "global_load_dword v255, v23, s[48:49]"]
                issued.append(-1)
            G0 = 3
            ex = []
            if G0 + 1 <= n <= G0 + 10:
                ex += ["v_lshl_or_b32 v21, v19, 16, v17", f"ds_write_b32 v15, v21 offset:{1024*(n-G0-1)}"]
            if G0 <= n <= G0 + 9:
                k_ = n - G0
                assert nf_ <= 0
                ex += [f"ds_read_u16 v17, v{aG + k_ // 5} offset:{8*(k_%5)}", f"ds_read_u16 v19, v{aG + k_ // 5} offset:{8*(k_%5)+36}"]
            nfl = o.get("anf", 10)
            ex += fl[:nfl]; del fl[:nfl]; nf_ -= nfl
            def side():
                per = (len(ex) + 2) // 3 if o.get("amix", 0) else 0
                nb = 0
                for x in dm:
                    a(x)
                    if x.startswith("buffer_load_dwordx4") and nb < 3:
                        emit_l(ex[:per]); del ex[:per]; nb += 1
                emit_l(ex)
            if role == 1: side()
            for i_, m_ in enumerate(mfmas(st, n == 0)):
                if i_ == 7: a("s_waitcnt lgkmcnt(7)")
                a(m_)
                if ds: a(ds.pop(0))
            if role == 0: side()
        assert not fl
    a(f"L_att_a:\ns_cmp_eq_u32 s{sHP}, 1\ns_cbranch_scc1 L_att_y")
    w0 = list(iW)
    gemm(0)
    a("s_branch L_att_z\nL_att_y:")
    iW[:] = w0
    gemm(1)
    a("L_att_z:")
    a("s_waitcnt lgkmcnt(0)\ns_barrier")
    both("L")
    st = Q
    a("s_mov_b32 vcc_lo, 0\ns_mov_b32 vcc_hi, 0xffff0000\nv_mov_b32 v3, 0x3f803f80")
    m = mfmas(st)
    for x in m[:15]: a(x)
    c0 = conv(0)
    mix(a, m[15:], ["\n".join(c0[2*i:2*i+2]) for i in range(12)], 1)
    for x in c0[24:]: a(x)
    if o.get("trace"):
        a(f"s_sub_u32 s3, s2, 192\ns_lshl_b32 s3, s3, 3\ns_add_u32 s3, s3, s{sWAVE}\ns_lshl_b32 s3, s3, 8\ns_add_u32 s3, s3, {0x1700000}\nv_lshlrev_b32 v1, 2, v0\nbuffer_store_dword v23, v1, {srd(rWS)}, s3 offen")
    a.stamp(5)
    if o["stamps"]: a("s_waitcnt lgkmcnt(0)")
    if o["ab1"] == 0: only(1, ["s_barrier"])
    A0, A1, A3 = 180, 200, 24
    a(f"v_xor_b32 v1, 128, v{aPK}\nv_xor_b32 v2, 256, v{aPK}")
    rd = [f"ds_read_b128 v[{A0+4*u}:{A0+4*u+3}], v{aPK} offset:{1024*u}" for u in range(5)]
    rd += [f"ds_read_b128 v[{A1+4*u}:{A1+4*u+3}], v1 offset:{1024*u}" for u in range(5)]
    rd += [f"ds_read_b128 v[{A3+4*u}:{A3+4*u+3}], v{aPK} offset:{5120+1024*u}" for u in range(5)]
    for x in rd: a(x)
    for x in conv(1): a(x)
    PA = [44, 64]
    E1, E2 = 84, 102
    def fmf(src, p, d0):
        l = []
        for part, (A_, b_) in enumerate(((A0, src + 8 * p), (A1, src + 8 * p + 4), (A3, PT + 4 * p))):
            for u in range(5):
                d = d0 + 4 * u
                l.append(f"v_mfma_f32_16x16x32_bf16 v[{d}:{d+3}], v[{A_+4*u}:{A_+4*u+3}], v[{b_}:{b_+3}], {'0' if part == 0 else f'v[{d}:{d+3}]'}")
        return l
    a("s_waitcnt lgkmcnt(3)")
    c23 = conv(2) + conv(3)
    mix(a, c23, fmf(PKk, 0, PA[0]), 3)
    vL = [120, 122]
    a(f"s_mov_b32 vcc_lo, -1\ns_mov_b32 vcc_hi, 0\ns_mov_b32 s3, {fhex(LOG2E)}\nv_cndmask_b32 v{vL[0]}, v{vS+2}, v{vS}, vcc\nv_cndmask_b32 v{vL[1]}, v{vS+6}, v{vS+4}, vcc")
    a(f"v_mul_f32 v{vL[0]}, s3, v{vL[0]}\nv_mul_f32 v{vL[1]}, s3, v{vL[1]}")
    def soft(p, X, Y, nxt=()):
        d = PA[p]
        L = vL[p]
        a(f"v_max_f32 v4, v{d}, v{d+1}\nv_min_f32 v6, v{d}, v{d+1}")
        for i in range(1, 9):
            a(f"v_max3_f32 v4, v4, v{d+2*i}, v{d+2*i+1}\nv_min3_f32 v6, v6, v{d+2*i}, v{d+2*i+1}")
        a(f"v_mul_f32 v4, v{L}, v4\nv_mul_f32 v6, v{L}, v6")
        for i in range(9):
            a(f"v_pk_fma_f32 v[{E1+2*i}:{E1+2*i+1}], v[{d+2*i}:{d+2*i+1}], v[{L}:{L+1}], v[4:5] op_sel_hi:[1,0,0] neg_lo:[0,0,1] neg_hi:[0,0,1]")
        for i in range(9):
            a(f"v_pk_fma_f32 v[{E2+2*i}:{E2+2*i+1}], v[{d+2*i}:{d+2*i+1}], v[{L}:{L+1}], v[6:7] op_sel_hi:[1,0,0] neg_lo:[1,0,0] neg_hi:[1,0,0]")
        mix(a, [f"v_exp_f32 v{E1+i}, v{E1+i}" for i in range(36)], nxt, 2)
        a(f"v_pk_add_f32 v[4:5], v[{E1}:{E1+1}], v[{E1+2}:{E1+3}]\nv_pk_add_f32 v[6:7], v[{E2}:{E2+1}], v[{E2+2}:{E2+3}]")
        for i in range(2, 9):
            a(f"v_pk_add_f32 v[4:5], v[4:5], v[{E1+2*i}:{E1+2*i+1}]\nv_pk_add_f32 v[6:7], v[6:7], v[{E2+2*i}:{E2+2*i+1}]")
        a("v_add_f32 v4, v4, v5\nv_add_f32 v6, v6, v7\nv_rcp_f32 v4, v4\nv_rcp_f32 v6, v6")
        for E, c in ((E1, 4), (E2, 6)):
            for i in range(9):
                a(f"v_pk_mul_f32 v[{E+2*i}:{E+2*i+1}], v[{E+2*i}:{E+2*i+1}], v[{c}:{c+1}] op_sel_hi:[1,0]")
        for i in range(9): a(f"v_cvt_pk_bf16_f32 v{X+i}, v{E1+2*i}, v{E1+2*i+1}")
        for i in range(9): a(f"v_cvt_pk_bf16_f32 v{Y+i}, v{E2+2*i}, v{E2+2*i+1}")
    XO, YO = 124, 14
    def kwr(p):
        for h, R in enumerate((XO, YO)):
            for i in range(4):
                a(f"ds_write_b64 v{aK}, v[{R+2*i}:{R+2*i+1}] offset:{32*IMG_P*p+40*h+8*i}")
            a(f"ds_write_b32 v{aK}, v{R+8} offset:{32*IMG_P*p+40*h+32}")
    if o["ab1"] == 1: only(1, w2_touch("Y1") + ["s_barrier"])
    a.align8()
    soft(0, XO, YO, fmf(PKk, 1, PA[1]))
    for u in range(5): a(f"ds_read_b128 v[{A3+4*u}:{A3+4*u+3}], v2 offset:{5120+1024*u}")
    kwr(0)
    both("2")
    if o["ab1"] == 2: only(1, ["s_barrier"])
    a.align8()
    soft(1, XO, YO, ["s_waitcnt lgkmcnt(0)"] + fmf(PQ, 0, PA[0]))
    kwr(1)
    a.stamp(6)
    a(f"v_add_u32 v1, {128*IMG_P}, v{aKA}\nv_add_u32 v2, {128*IMG_P}, v{aKB}")
    KA = 152
    FR = [64, 84, 100]
    a("s_waitcnt lgkmcnt(0)\ns_barrier\ns_setprio 1")
    def kvr(ks):
        st = FR[ks % 3]
        ra, rb_ = (aKA, aKB) if ks < 4 else (1, 2)
        off = (ks & 3) * 32 * IMG_P
        r = [f"ds_read_b64_tr_b16 v[{st+12+2*rho}:{st+13+2*rho}], v{rb_} offset:{off+rho*IMG_P}" for rho in range(2)]
        for mt in range(3):
            r += [f"ds_read_b64_tr_b16 v[{st+4*mt+2*rho}:{st+4*mt+2*rho+1}], v{ra} offset:{off+rho*IMG_P+32*mt}" for rho in range(2)]
        return r
    for x in kvr(0) + kvr(1): a(x)
    for ks in range(8):
        a(f"s_waitcnt lgkmcnt({8 if ks + 1 < 8 else 0})")
        st = FR[ks % 3]
        m = [f"v_mfma_f32_16x16x32_bf16 v[{KA+4*mt}:{KA+4*mt+3}], v[{st+4*mt}:{st+4*mt+3}], v[{st+12}:{st+15}], {'0' if ks == 0 else f'v[{KA+4*mt}:{KA+4*mt+3}]'}" for mt in range(3)]
        r = kvr(ks + 2) if ks + 2 < 8 else []
        for mt in range(3):
            a(m[mt])
            for x in r[3*mt:3*mt+3]: a(x)
    a(f"s_and_b32 s3, s{sWAVE}, 1\ns_mul_i32 s3, s3, 2560\ns_add_u32 s3, s3, s30\ns_nop 4")
    for mt in range(3):
        a(f"buffer_store_dwordx4 v[{KA+4*mt}:{KA+4*mt+3}], v{aP+(mt>>1)}, {srd(rWS)}, s3 offen sc1\ns_add_u32 s3, s3, s40")
    a.stamp(7)
    QR = [124, 14, 152, 164]
    def signal():
        a("s_waitcnt vmcnt(0)")
        a.set_flags("s31", aF, 8, 8)
    def swaps(X, Y):
        a(f"v_mov_b32 v{X+9}, 0\nv_mov_b32 v{Y+9}, 0")
        for i in range(9): a(f"v_permlane32_swap_b32 v{X+i}, v{Y+i}")
    signal()
    a("s_setprio 0")
    only(0, w2_touch("O1") + ["s_barrier"])
    a.align8()
    soft(0, QR[0], QR[1], fmf(PQ, 1, PA[1]))
    RD = [180, 24]
    def gather():
        a.save_stamps()
        a(f"s_add_u32 s50, s{rWS}, s36\ns_addc_u32 s51, s{rWS+1}, 0")
        a.spoll_issue(50, [(64, 16, 0)])
        swaps(QR[0], QR[1])
        if o["ab3"]: only(1, ["s_barrier"])
        a.spoll_check(50, [(64, 16, 0)], list(range(64, 80)))
        a.restore_stamps()
        a(f"s_mul_i32 s3, s{sTB}, {KVB}\ns_sub_u32 s3, s30, s3")
        for t in range(8):
            for i in range(2):
                a(f"buffer_load_dwordx4 v[{RD[i]+4*t}:{RD[i]+4*t+3}], v{aR+i}, {srd(rWS)}, s3 offen sc1")
            a(f"s_add_u32 s3, s3, {KVB}")
    gather()
    if o["ab3"] == 2: a("s_setprio 1")
    a.align8()
    soft(1, QR[2], QR[3]); swaps(QR[2], QR[3])
    a.stamp(8)
    a(f"s_mul_i32 s3, s{sWAVE}, 4608\nv_lshl_add_u32 v1, v0, 4, s3")
    for t in range(1, 8):
        a(f"s_waitcnt vmcnt({14-2*t})")
        for i in range(2):
            for h in range(2):
                a(f"v_pk_add_f32 v[{RD[i]+2*h}:{RD[i]+2*h+1}], v[{RD[i]+2*h}:{RD[i]+2*h+1}], v[{RD[i]+4*t+2*h}:{RD[i]+4*t+2*h+1}]")
    for i in range(2):
        a(f"v_cvt_pk_bf16_f32 v{RD[i]}, v{RD[i]}, v{RD[i]+1}\nv_cvt_pk_bf16_f32 v{RD[i]+1}, v{RD[i]+2}, v{RD[i]+3}")
        a(f"ds_write_b64 v{aL+i}, v[{RD[i]}:{RD[i]+1}]")
    a("s_waitcnt lgkmcnt(0)\ns_barrier")
    if o["ab3"] == 2: a("s_setprio 0")
    a.stamp(9)
    both("3")
    a(f"s_mov_b32 s48, {fhex(1e-6)}")
    BF = [88, 100, 112, 136]
    for t in (3, 0, 1, 2):
        b = BF[t]
        a(f"ds_read2_b64 v[{b}:{b+3}], v{aB+t} offset0:0 offset1:1\nds_read2_b64 v[{b+4}:{b+7}], v{aB+t} offset0:2 offset1:3\nds_read_b32 v{b+8}, v{aB+t} offset:32\nv_mov_b32 v{b+9}, 0")
    for i in range(5):
        a(f"v_add_u32 v2, {64*i}, v0\nv_mul_u32_u24 v3, 1821, v2\nv_lshrrev_b32 v3, 16, v3\nv_mul_u32_u24 v3, 8640, v3\nv_lshl_add_u32 v{204+i}, v2, 4, v3")
    a("s_waitcnt lgkmcnt(0)")
    DD = [24, 40, 56, 72]
    OO = [180, 192]
    def omf(tts):
        l = []
        for c in range(3):
            for tt in tts:
                q = QR[tt]
                for t in (3, 0, 1, 2):
                    d, b = DD[tt] + 4 * t, BF[t]
                    if c < 2:
                        l.append(f"v_mfma_f32_16x16x32_bf16 v[{d}:{d+3}], v[{q+4*c}:{q+4*c+3}], v[{b+4*c}:{b+4*c+3}], {'0' if c == 0 else f'v[{d}:{d+3}]'}")
                    else:
                        l.append(f"v_mfma_f32_16x16x16_bf16 v[{d}:{d+3}], v[{q+8}:{q+9}], v[{b+8}:{b+9}], v[{d}:{d+3}]")
        return l
    def ofin(p):
        l = []
        for tt in (2 * p, 2 * p + 1):
            d = DD[tt]
            l += [f"v_add_f32 v{d+12+r}, s48, v{d+12+r}" for r in range(4)]
            l += [f"v_rcp_f32 v{d+12+r}, v{d+12+r}" for r in range(4)]
        for tt in (2 * p, 2 * p + 1):
            d = DD[tt]
            l += [f"v_pk_mul_f32 v[{d+4*t+2*h}:{d+4*t+2*h+1}], v[{d+4*t+2*h}:{d+4*t+2*h+1}], v[{d+12+2*h}:{d+13+2*h}]" for t in range(3) for h in range(2)]
            l += [f"v_cvt_pk_bf16_f32 v{OO[p]+4*t+2*(tt&1)+h}, v{d+4*t+2*h}, v{d+4*t+2*h+1}" for t in range(3) for h in range(2)]
        for t in range(3):
            r = OO[p] + 4 * t
            l += [f"v_permlane16_swap_b32 v{r}, v{r+2}", f"v_permlane16_swap_b32 v{r+1}, v{r+3}"]
        for t in range(3):
            r = OO[p] + 4 * t
            l.append(f"ds_write_b128 v{aO+(t>>1)}, v[{r}:{r+3}] offset:{128*t+4*576*p}")
        return l
    for x in omf((0, 1)): a(x)
    m = omf((2, 3))
    a(m[0])
    mix(a, ofin(0), m[1:], 2)
    a("s_nop 3")
    for x in ofin(1): a(x)
    for i in range(5): a(f"ds_read_b128 v[{24+4*i}:{27+4*i}], v1 offset:{1024*i}")
    for i in range(5):
        if i == 4: a("s_mov_b32 exec_hi, 0")
        a(f"s_waitcnt lgkmcnt({4-i})\nbuffer_store_dwordx4 v[{24+4*i}:{27+4*i}], v{204+i}, {srd(rWS)}, s37 offen sc1")
    a("s_mov_b32 exec_hi, -1")
    if o["ab3"]: only(0, ["s_barrier"])
    a.stamp(11)
    a(f"s_lshl_b32 s3, s{sTB}, 1\ns_lshr_b32 s48, s{sTG}, 1\ns_add_u32 s3, s3, s48\ns_lshl_b32 s3, s3, 2\ns_lshr_b32 s48, s{sXCD}, 1\ns_add_u32 s3, s3, s48\ns_lshl_b32 s3, s3, 7")
    a(f"s_and_b32 s48, s{sXCD}, 1\ns_lshl_b32 s48, s48, 1\ns_add_u32 s48, s48, s{sHP}\ns_lshl_b32 s48, s48, 1\ns_and_b32 s49, s{sTG}, 1\ns_add_u32 s48, s48, s49\ns_lshl_b32 s48, s48, 2\ns_add_u32 s3, s3, s48\ns_add_u32 s3, s3, {FLO}")
    a("s_waitcnt vmcnt(0)")
    a.set_flag("s3", 4)
    a.stamp(10)
```

```python
import sys
sys.path.insert(0, "work")
from asmlib import *

KNAME = "parallel_sum__linear_kernel_hedgehog__mixer_token_mlp__prompt_kernel"
S, D, F, H, DH = 2048, 576, 4608, 32, 18

EPOCH = 0
FLA, FLB, FLKV, FLO, FLX = 0x80000, 0xA0000, 0xC000, 0x8000, 0xC0000
STAMP = 0x20000
S2 = 0x60000
HT = 0x100000
U = 0x400000
OT = 0xA00000
KVP = 0xD00000
EX = 0xE00000

sWAVE, sXCD, sIDX, sTAG = 4, 5, 6, 7
rX, rWQKV, rWPHI, rWO, rW1, rB1, rW2, rB2, rOUT, rWS = 8, 12, 16, 20, 24, 28, 32, 36, 40, 44
sST = 64
def srd(r): return f"s[{r}:{r+3}]"

G1_SLOT, G1_NS, G1_W = 30720, 5, 18432
LN_SCR, LN_PITCH = 153600, 1216
LN_S2 = LN_SCR + 8 * LN_PITCH
G2_US, G2_WS, G2_PITCH = 12544, 8192, 3136
G2_U = [0, 25088, 122880]
G2_W = [61440, 61440 + 16384, 61440 + 32768]
SH_SCR = 147968
OI, OI_P = 50176, 2432
WO_AT = [0, 12544, 25088, 147968, 110592]
TO_SCR = 122880
LDS_BYTES = 163840
OOB = 0x7FFF0000

LOG2E = 1.4426950408889634
CNT = 160256

def slow_tile(ft):
    a_ = (192 * ft) & 1023
    return 192 < a_ < 512
def xcd_perm(x):
    return sorted(range(6), key=lambda e: slow_tile(6 * x + e))
def xcd_order(x):
    own = [6 * (x & 1) + e for e in xcd_perm(x)]
    oth = [6 * ((x & 1) ^ 1) + e for e in xcd_perm(x ^ 1)]
    return own[:4] + oth[:4] + own[4:] + oth[4:]
for _r in range(1152): assert (_r * 683) >> 16 == _r // 96


class Gen(Asm):
    def __init__(self, **opt):
        super().__init__()
        self.o = dict(stamps=False, att=True, pf_code=True, spin=1 << 16, prefill=2, la1=2, probe=0, clk=False, dbg='',
                      sp=1, latin=3, latc=1, un1=2, w2a=0, w2c=0, w2p=4, w2e=1, aw2=(1, 0, 1, 1), aw2r=128, awq=0, rot=7, w1a=1, w1c=0, spn=600, w2r=512, sp2=0, spn2=120, perm=1, spo=0, spc=1, odl=17, g2b=(12, 7, 11), aw5=1, tout=1, dot=1, woe=8, oe=3, awo=1, lat0=3, h1=1, wqa=1, ab1=1, ab3=0, atw=0, at=dict(o14=[0], o15=[128], o16=[256], YL=[384], Y1=[512], B2=[640], B3=[896], Y3=[-1]))
        self.o.update(opt)
        self.nstamp = {}

    def stamp(self, i):
        if self.o["stamps"]:
            self(f"{'s_memtime' if self.o['clk'] else 's_memrealtime'} s[{sST+2*i}:{sST+2*i+1}]")

    def dump_stamps(self, vtmp):
        if not self.o["stamps"]:
            return
        a = self
        a("s_waitcnt lgkmcnt(0)")
        a(f"s_lshl_b32 s3, s2, 3\ns_add_u32 s3, s3, s{sWAVE}\ns_lshl_b32 s3, s3, 6\ns_add_u32 s3, s3, {STAMP}")
        a(f"v_mov_b32 v{vtmp+4}, 0")
        for q in range(4):
            for i in range(4):
                a(f"v_mov_b32 v{vtmp+i}, s{sST+2*(4*q+i)}")
            a(f"buffer_store_dwordx4 v[{vtmp}:{vtmp+3}], v{vtmp+4}, {srd(rWS)}, s3 offen offset:{16*q}")
            a("s_nop 1")

    def align8(self):
        self(".p2align 3")

    def wave_sum(self, v, sdst):
        a = self
        for m in ("row_shr:1", "row_shr:2", "row_shr:4", "row_shr:8"):
            a(f"s_nop 1\nv_add_f32_dpp v{v}, v{v}, v{v} {m} row_mask:0xf bank_mask:0xf bound_ctrl:1")
        a(f"s_nop 1\nv_add_f32_dpp v{v}, v{v}, v{v} row_bcast:15 row_mask:0xa bank_mask:0xf")
        a(f"s_nop 1\nv_add_f32_dpp v{v}, v{v}, v{v} row_bcast:31 row_mask:0xc bank_mask:0xf")
        a(f"s_nop 0\nv_readlane_b32 s{sdst}, v{v}, 63\ns_nop 1")

    def divmod_const(self, vq, vr, vx, c, vt):
        m = (1 << 20) // c + 1
        for x in range(2048):
            assert (x * m) >> 20 == x // c
        assert 2047 * m < (1 << 32) and m < (1 << 24)
        self(f"v_mul_u32_u24 v{vq}, {m}, v{vx}\nv_lshrrev_b32 v{vq}, 20, v{vq}")
        self(f"v_mul_u32_u24 v{vt}, {c}, v{vq}\nv_sub_u32 v{vr}, v{vx}, v{vt}")

    def tr0(self):
        if self.o.get("trace"): self("s_memtime s[92:93]")
    def tr1(self, i):
        if self.o.get("trace"): self(f"s_waitcnt lgkmcnt(0)\nv_writelane_b32 v200, s92, {i}")
    def save_stamps(self):
        if self.o["stamps"]:
            self("s_waitcnt lgkmcnt(0)")
            for i in range(16): self(f"v_writelane_b32 v9, s{sST+2*i}, {i}")
    def restore_stamps(self):
        if self.o["stamps"]:
            for i in range(16): self(f"v_readlane_b32 s{sST+2*i}, v9, {i}")

    def spoll_issue(self, sbase, parts, glc=" glc"):
        for d, w, off in parts:
            dst = f"s{d}" if w == 1 else f"s[{d}:{d+w-1}]"
            self(f"s_load_dword{'' if w == 1 else 'x'+str(w)} {dst}, s[{sbase}:{sbase+1}], {off}{glc}")

    def spoll_check(self, sbase, parts, regs):
        a = self
        lp, done = a.label("poll"), a.label("polld")
        a(f"s_mov_b32 s48, {self.o['spin']}")
        a(f"{lp}:\ns_waitcnt lgkmcnt(0)")
        pairs = [r for r in regs if r % 2 == 0 and r + 1 in regs]
        single = [r for r in regs if r not in pairs and r - 1 not in pairs]
        r0 = pairs[0]
        a(f"s_xor_b32 s49, s{r0}, s{sTAG}\ns_xor_b32 s3, s{r0+1}, s{sTAG}\ns_or_b32 s49, s49, s3")
        for r in single:
            a(f"s_xor_b32 s3, s{r}, s{sTAG}\ns_or_b32 s49, s49, s3")
        for r in pairs[1:]:
            a(f"s_cmp_lg_u64 s[{r}:{r+1}], s[{r0}:{r0+1}]\ns_cselect_b32 s49, 1, s49")
        a(f"s_cmp_eq_u32 s49, 0\ns_cbranch_scc1 {done}")
        a(f"s_sub_u32 s48, s48, 1\ns_cmp_eq_u32 s48, 0\ns_cbranch_scc1 {done}")
        self.spoll_issue(sbase, parts)
        a(f"s_branch {lp}\n{done}:")

    def spoll(self, soff, parts, regs, first_plain=False):
        self(f"s_add_u32 s50, s{rWS}, {soff}\ns_addc_u32 s51, s{rWS+1}, 0")
        self.spoll_issue(50, parts, "" if first_plain else " glc")
        self.spoll_check(50, parts, regs)

    def set_flag(self, soff, vt):
        a = self
        a(f"v_mov_b32 v{vt}, s{sTAG}\ns_mov_b64 exec, 1")
        a(f"buffer_store_dword v{vt}, off, {srd(rWS)}, {soff} sc1")
        a("s_mov_b64 exec, -1")

    def set_flags(self, soff, vaddr, vt, nl):
        a = self
        a(f"v_mov_b32 v{vt}, s{sTAG}\ns_mov_b32 exec_lo, {hex((1 << nl) - 1)}\ns_mov_b32 exec_hi, 0")
        a(f"buffer_store_dword v{vt}, v{vaddr}, {srd(rWS)}, {soff} offen sc1")
        a("s_mov_b64 exec, -1")

    def interleave(self, mf, ds, per_gap=2, start=0):
        ds = list(ds)
        if "m" in self.o["dbg"]: mf = mf[:1]
        if "d" in self.o["dbg"]: ds = [x for x in ds if not x.startswith("ds_")]
        for i, m in enumerate(mf):
            self(m)
            if i >= start:
                for _ in range(per_gap):
                    if ds:
                        self(ds.pop(0))
        for d in ds:
            self(d)

    def sched(self, mf, prev, ds, extra=(), waits=(0,), bar=None, tail_busy=1):
        a = self
        ds, extra = list(ds), list(extra)
        if "d" in self.o["dbg"]: ds = []
        n = len(mf)
        waits = sorted(set(waits))
        npre = [(1 if i in waits or (bar and bar[0] == i and bar[1]) else 0) + (1 if bar and bar[0] == i else 0) for i in range(n)] + [tail_busy]
        first = bar[0] if bar else 0
        cnt = [0] * n
        free = [g for g in range(first, n) if npre[g + 1] < 2]
        k = len(ds)
        for g in free[:k]: cnt[g] = 1
        k -= min(k, len(free))
        for g in sorted(range(first, n), key=lambda g: (cnt[g] * 2 + npre[g + 1], g)):
            if k: cnt[g] += 1; k -= 1
        assert k == 0
        new = 0
        for i, (t, need) in enumerate(mf):
            if bar and bar[0] == i and bar[1]:
                a("s_waitcnt lgkmcnt(0)")
            elif i in waits:
                nxt = [w for w in waits if w > i]
                end = nxt[0] if nxt else n
                idx = max(prev.index(x) for k_ in range(i, end) for x in mf[k_][1])
                a(f"s_waitcnt lgkmcnt({min(14, len(prev) - 1 - idx + new)})")
            if bar and bar[0] == i: a("s_barrier")
            if not ("m" in self.o["dbg"] and i): a(t)
            for _ in range(cnt[i]):
                a(ds.pop(0)[0]); new += 1
            room = 3 - 2 * cnt[i] - npre[i + 1]
            while extra and room > 0:
                a(extra.pop(0)); room -= 1
        for e in extra: a(e)

    def linear(self, mf, place, pre, order, look=3, soft=(), tail_busy=1):
        a = self
        order = list(order)
        known = -1
        waits = {}
        for i, (t, need, acc, kind) in enumerate(mf):
            if "s_waitcnt lgkmcnt(0)" in pre.get(i, []): known = len(order) - 1
            if max(order.index(x) for x in need) > known:
                idx = max(order.index(x) for k in range(i, min(i + look, len(mf))) for x in mf[k][1] if x in order)
                waits[i] = min(14, len(order) - 1 - idx)
                known = len(order) - 1 - waits[i]
            order += [id_ for x, id_ in place.get(i, []) if id_]
        soft = list(soft)
        cnt = [0]
        last = {}
        def em(t):
            a(t); cnt[0] += len(t.split("\n"))
        for i, (t, need, acc, kind) in enumerate(mf):
            for x in pre.get(i, []): em(x)
            if i in waits: em(f"s_waitcnt lgkmcnt({waits[i]})")
            if acc in last and last[acc][1] != kind and cnt[0] - last[acc][0] < 6:
                em(f"s_nop {5 - (cnt[0] - last[acc][0])}")
            em(t); last[acc] = (cnt[0], kind)
            room = 3 - len(pre.get(i + 1, [])) - (1 if i + 1 in waits else 0) - (tail_busy if i + 1 == len(mf) else 0)
            for x, id_ in place.get(i, []):
                em(x); room -= 2 if id_ else 1
            while soft and soft[0][0] <= i and (room > 0 or soft[0][1] <= i):
                em(soft.pop(0)[2]); room -= 1
        assert not soft

    def gelu(self, regs, cA, cB, tmp, out, group=4):
        a = self
        for g0 in range(0, len(regs), group):
            rs = regs[g0:g0 + group]
            T = lambda i: f"v[{tmp+2*i}:{tmp+2*i+1}]"
            R = lambda r: f"v[{r}:{r+1}]"
            for i, r in enumerate(rs): a(f"v_pk_mul_f32 {T(i)}, {R(r)}, {R(r)}")
            for i, r in enumerate(rs): a(f"v_pk_fma_f32 {T(i)}, {T(i)}, {R(cA)}, {R(cB)}")
            for i, r in enumerate(rs): a(f"v_pk_mul_f32 {T(i)}, {T(i)}, {R(r)}")
            for i, r in enumerate(rs): a(f"v_exp_f32 v{tmp+2*i}, v{tmp+2*i}\nv_exp_f32 v{tmp+2*i+1}, v{tmp+2*i+1}")
            for i, r in enumerate(rs): a(f"v_pk_add_f32 {T(i)}, {T(i)}, 1.0 op_sel_hi:[1,0]")
            for i, r in enumerate(rs): a(f"v_rcp_f32 v{tmp+2*i}, v{tmp+2*i}\nv_rcp_f32 v{tmp+2*i+1}, v{tmp+2*i+1}")
            for i, r in enumerate(rs): a(f"v_pk_mul_f32 {T(i)}, {T(i)}, {R(r)}")
            for i, r in enumerate(rs): a(f"v_cvt_pk_bf16_f32 v{out[g0+i]}, v{tmp+2*i}, v{tmp+2*i+1}")
            yield g0

    def gelu_consts(self, cA, cB):
        c = 0.7978845608028654
        for i in range(2):
            self(f"v_mov_b32 v{cA+i}, {fhex(-2*c*0.044715*LOG2E)}\nv_mov_b32 v{cB+i}, {fhex(-2*c*LOG2E)}")

    def entry(self):
        a = self
        a.kernel(KNAME)
        if self.o["stamps"]:
            for i in range(1, 16): a(f"s_mov_b32 s{sST+2*i}, 0")
        a.stamp(0)
        a.load_ptr("x", rX); a.load_ptr("ws", rWS)
        a("s_cmp_ge_u32 s2, 256\ns_cbranch_scc1 L_end")
        a(f"v_readfirstlane_b32 s{sWAVE}, v0\ns_lshr_b32 s{sIDX}, s2, 3\nv_and_b32 v0, 63, v0")
        if self.o["pf_code"]:
            NL = 17
            a(f"s_cmp_lg_u32 s{sWAVE}, 0\ns_cbranch_scc1 L_nopf\ns_getpc_b64 s[50:51]\nL_pc0:")
            a(f"s_mul_i32 s48, s{sIDX}, {128*NL}\ns_min_u32 s48, s48, L_code_end-L_pc0-{128*(31+NL)+4}\nv_min_u32 v254, {31+NL}, v0\nv_lshrrev_b32 v253, 5, v0")
            a("v_lshlrev_b32 v254, 7, v254\nv_mad_u32_u24 v254, v253, s48, v254\nglobal_load_dword v255, v254, s[50:51]\nL_nopf:")
        a(f"s_lshr_b32 s{sWAVE}, s{sWAVE}, 6\ns_and_b32 s{sXCD}, s2, 7")
        a(f"s_lshl_b32 s53, s{sXCD}, 5\ns_add_u32 s53, s53, s{sIDX}\ns_lshl_b32 s3, s53, 3\ns_add_u32 s3, s3, s{sWAVE}\ns_mul_i32 s3, s3, 1152")
        a.srd_finish("x", rX)
        a("v_lshlrev_b32 v1, 3, v0\nv_lshlrev_b32 v7, 1, v0")
        a("s_waitcnt lgkmcnt(0)")
        a(f"buffer_load_dwordx2 v[2:3], v1, {srd(rX)}, s3 offen")
        a(f"buffer_load_dwordx2 v[4:5], v1, {srd(rX)}, s3 offen offset:512")
        a(f"buffer_load_ushort v6, v7, {srd(rX)}, s3 offen offset:1024")
        rest = (("w1", rW1), ("wqkv", rWQKV), ("wphi", rWPHI), ("wo", rWO), ("b1", rB1), ("w2", rW2), ("b2", rB2), ("out", rOUT))
        for n, r in rest: a.load_ptr(n, r)
        for n, r in (("ws", rWS),) + rest: a.srd_finish(n, r)
        a("s_waitcnt lgkmcnt(0)")
        a(f"s_load_dword s{sTAG}, s[{rWS}:{rWS+1}], {EPOCH}")
        a(f"s_getpc_b64 s[50:51]\nL_pc1:\ns_lshl_b32 s3, s{sXCD}, 3\ns_add_u32 s3, s3, order_table-L_pc1\ns_load_dwordx2 s[100:101], s[50:51], s3")
        a(f"s_mul_i32 s3, s{sWAVE}, {LN_PITCH}\ns_add_u32 s3, s3, {LN_SCR}")
        a("v_add_u32 v8, s3, v1\nv_add_u32 v9, s3, v7")
        a(f"s_lshl_b32 s3, s{sWAVE}, 2\ns_add_u32 s3, s3, {LN_S2}\nv_mov_b32 v25, s3\nv_mov_b32 v24, {fhex(1e-5)}\nv_mov_b32 v26, {fhex(-1.0/D)}\nv_mov_b32 v27, {fhex(1.0/D)}")
        a("v_bfe_u32 v60, v0, 2, 2\nv_lshrrev_b32 v61, 4, v0\nv_and_b32 v62, 3, v0")
        a(f"v_mul_u32_u24 v60, {LN_PITCH}, v60\nv_lshlrev_b32 v61, 5, v61\nv_lshlrev_b32 v62, 3, v62")
        a(f"v_add3_u32 v60, v60, v61, v62\nv_add_u32 v60, {LN_SCR}, v60")
        a(f"v_and_b32 v61, 7, v0\nv_lshlrev_b32 v61, 2, v61\nv_add_u32 v62, {LN_S2}, v61\nv_lshlrev_b32 v63, 4, v0\nv_lshlrev_b32 v64, 9, v0")
        a(f"s_mul_i32 s56, s53, 9216\ns_add_u32 s56, s56, {HT}\ns_add_u32 s57, s56, 4096\ns_add_u32 s58, s56, 8192\ns_lshl_b32 s59, s53, 5\ns_add_u32 s59, s59, {S2}")
        a(f"s_lshr_b32 s60, s{sIDX}, 3\ns_lshl_b32 s60, s60, 7\ns_and_b32 s48, s{sIDX}, 7\ns_lshl_b32 s48, s48, 2\ns_add_u32 s60, s60, s48\ns_lshl_b32 s48, s{sXCD}, 14\ns_add_u32 s60, s60, s48\ns_add_u32 s60, s60, {FLA}")
        self.early_prefetch()
        self.ln_compute()
        a(f"s_cmp_lg_u32 s{sWAVE}, 0\ns_cbranch_scc1 L_ln_done")
        self.ln_publish()
        a("L_ln_done:")
        a.stamp(2)
        a(f"s_cmp_ge_u32 s{sIDX}, 24\ns_cbranch_scc1 L_att")
        a(f"s_cmp_ge_u32 s{sWAVE}, 4\ns_cbranch_scc1 L_aux")

    def ln_compute(self):
        a = self
        a.stamp(1)
        for i in range(4):
            a(f"v_lshlrev_b32 v{10+2*i}, 16, v{2+i}\nv_and_b32 v{11+2*i}, 0xffff0000, v{2+i}")
        a("v_lshlrev_b32 v18, 16, v6")
        a("v_pk_add_f32 v[20:21], v[10:11], v[12:13]\nv_pk_add_f32 v[22:23], v[14:15], v[16:17]")
        a("v_pk_add_f32 v[20:21], v[20:21], v[22:23]\nv_add_f32 v20, v20, v18\nv_add_f32 v20, v20, v21")
        a.wave_sum(20, 48)
        a("v_mul_f32 v20, s48, v26")
        for i in range(4):
            a(f"v_pk_add_f32 v[{10+2*i}:{11+2*i}], v[{10+2*i}:{11+2*i}], v[20:21] op_sel_hi:[1,0]")
        a("v_add_f32 v18, v18, v20")
        a("v_pk_mul_f32 v[20:21], v[10:11], v[10:11]\nv_pk_mul_f32 v[22:23], v[12:13], v[12:13]")
        a("v_pk_fma_f32 v[20:21], v[14:15], v[14:15], v[20:21]\nv_pk_fma_f32 v[22:23], v[16:17], v[16:17], v[22:23]")
        a("v_pk_add_f32 v[20:21], v[20:21], v[22:23]\nv_fmac_f32 v20, v18, v18\nv_add_f32 v20, v20, v21")
        a.wave_sum(20, 48)
        a("v_mul_f32 v20, s48, v27\nv_add_f32 v21, v20, v24\nv_rsq_f32 v21, v21\ns_nop 0\nv_mul_f32 v22, v21, v21\nv_fma_f32 v22, v22, v20, v24")
        a("v_rsq_f32 v23, v22\ns_nop 0\nv_mul_f32 v20, v21, v23\nv_mul_f32 v22, v22, v23")
        for i in range(4):
            a(f"v_pk_mul_f32 v[{10+2*i}:{11+2*i}], v[{10+2*i}:{11+2*i}], v[20:21] op_sel_hi:[1,0]")
        a("v_mul_f32 v18, v18, v20")
        for i in range(4):
            a(f"v_cvt_pk_bf16_f32 v{2+i}, v{10+2*i}, v{11+2*i}")
        a("v_cvt_pk_bf16_f32 v6, v18, v18")
        a("ds_write_b64 v8, v[2:3]\nds_write_b64 v8, v[4:5] offset:512\nds_write_b16 v9, v6 offset:1024\nds_write_b32 v25, v22")
        a("s_waitcnt lgkmcnt(0)")
        a("s_barrier")
        self.make_tag()

    def ln_publish(self):
        a = self
        for b in range(9):
            a(f"ds_read_b64_tr_b16 v[{12+4*b}:{13+4*b}], v60 offset:{128*b}")
            a(f"ds_read_b64_tr_b16 v[{14+4*b}:{15+4*b}], v60 offset:{128*b+4*LN_PITCH}")
            if b >= 4:
                a("s_waitcnt lgkmcnt(8)")
                a(f"buffer_store_dwordx4 v[{12+4*(b-4)}:{15+4*(b-4)}], v63, {srd(rWS)}, s{56+(b-4)//4} offen offset:{1024*((b-4)%4)} sc1")
        a("ds_read_b32 v5, v62")
        a("s_waitcnt lgkmcnt(0)")
        for b in range(5, 9):
            a(f"buffer_store_dwordx4 v[{12+4*b}:{15+4*b}], v63, {srd(rWS)}, s{56+b//4} offen offset:{1024*(b%4)} sc1")
        a("s_mov_b64 exec, 0xff")
        a(f"buffer_store_dword v5, v61, {srd(rWS)}, s59 offen sc1")
        a("s_mov_b64 exec, -1")
        a.stamp(14)
        a("s_waitcnt vmcnt(0)")
        a.set_flags("s60", 64, 2, 32)

    def make_tag(self):
        self(f"s_mul_i32 s{sTAG}, s{sTAG}, 0x9E3779B1\ns_add_u32 s{sTAG}, s{sTAG}, 0x7F4A7C15")

    def bar_pub(self):
        self("s_barrier")

    def touch_pattern(self, vdst, R, stride, seg3=False):
        a = self
        a.divmod_const(vdst, vdst + 1, 0, 9, vdst + 2)
        a(f"v_min_u32 v{vdst}, {R-1}, v{vdst}\nv_mul_u32_u24 v{vdst}, {stride}, v{vdst}")
        if not seg3:
            a(f"v_lshl_add_u32 v{vdst}, v{vdst+1}, 7, v{vdst}")
        else:
            a.divmod_const(vdst + 2, vdst + 3, vdst + 1, 3, vdst + 4)
            a(f"v_mul_u32_u24 v{vdst+2}, 1152, v{vdst+2}\nv_mul_u32_u24 v{vdst+3}, 70, v{vdst+3}\nv_and_b32 v{vdst+3}, 0xfc, v{vdst+3}")
            a(f"v_add3_u32 v{vdst}, v{vdst}, v{vdst+2}, v{vdst+3}")

    def touch_w1(self, vpat, sid, R, row0, dst=None):
        a = self
        a(f"s_mul_i32 s3, {sid}, {R}\ns_add_u32 s3, s3, {row0}\ns_and_b32 s48, s{sXCD}, {self.o['rot']}\ns_lshl_b32 s48, s48, 8\ns_add_u32 s3, s3, s48\ns_and_b32 s3, s3, 2047")
        a(f"s_min_u32 s3, s3, {2048-R}\ns_mul_i32 s3, s3, 9216\ns_mul_i32 s48, s{sXCD}, 1152\ns_add_u32 s3, s3, s48")
        a(f"buffer_load_dword v{dst or vpat+5}, v{vpat}, {srd(rW1)}, s3 offen")

    def touch_wqkv(self, vpat, sid, R, row0, dst=None):
        a = self
        a(f"s_mul_i32 s3, {sid}, {R}\ns_add_u32 s3, s3, {row0}\ns_min_u32 s3, s3, {576-R}\ns_mul_i32 s3, s3, 3456\ns_mul_i32 s48, s{sXCD}, 144\ns_add_u32 s3, s3, s48")
        a(f"buffer_load_dword v{dst or vpat+5}, v{vpat}, {srd(rWQKV)}, s3 offen")

    def early_prefetch(self):
        a = self
        o = self.o
        n = o["w1a"] + o["wqa"]
        if not n:
            a("s_waitcnt vmcnt(0)"); return
        a(f"s_cmp_eq_u32 s{sWAVE}, 7\ns_cbranch_scc1 L_t0\ns_waitcnt vmcnt(0)\ns_branch L_t0c\nL_t0:")
        if o["wqa"]:
            a.divmod_const(80, 81, 0, 6, 82)
            a("v_min_u32 v80, 8, v80\nv_mul_u32_u24 v80, 3456, v80\nv_lshrrev_b32 v82, 1, v81\nv_mul_u32_u24 v82, 1152, v82\nv_and_b32 v81, 1, v81\nv_mul_u32_u24 v81, 140, v81\nv_add3_u32 v80, v80, v81, v82")
            for k in range(o["wqa"]):
                self.touch_wqkv(80, f"s{sIDX}", 9, 288 * k, 255)
        if o["w1a"]:
            self.touch_pattern(248, 7, 9216)
            for k in range(o["w1a"]):
                self.touch_w1(248, f"s{sIDX}", 7, 224 * k, 255)
        a(f"s_waitcnt vmcnt({n})\nL_t0c:")

    A_PARTS = [(64 + 8 * i, 8, 128 * i) for i in range(4)]
    A_REGS = list(range(64, 96))
    def A_addr(self, sg, rep=f"s{sIDX}"):
        self(f"s_lshl_b32 s52, {sg}, 5\ns_add_u32 s52, s52, {rep}\ns_lshl_b32 s52, s52, 9\ns_add_u32 s52, s52, {FLA}\ns_add_u32 s50, s{rWS}, s52\ns_addc_u32 s51, s{rWS+1}, 0")
    def wait_A_group(self, sg, rep=f"s{sIDX}"):
        self.A_addr(sg, rep)
        self.spoll_issue(50, self.A_PARTS)
        self.spoll_check(50, self.A_PARTS, self.A_REGS)

    def g1_ids(self):
        self(f"s_and_b32 s54, s{sIDX}, 3\ns_and_b32 s3, s{sIDX}, 28\ns_and_b32 s55, s{sIDX}, 16\ns_add_u32 s3, s3, s55\ns_lshr_b64 s[48:49], s[100:101], s3\ns_and_b32 s55, s48, 15")
        self(f"s_lshr_b32 s3, s{sXCD}, 1\ns_mul_i32 s3, s3, 12\ns_add_u32 s55, s55, s3")

    def ord_row(self, dst, src, t0=48):
        return [f"s_mul_i32 s{dst}, {src}, 683", f"s_lshr_b32 s{dst}, s{dst}, 16", f"s_lshl_b32 s{t0}, s{dst}, 2", f"s_lshr_b64 s[{t0}:{t0+1}], s[100:101], s{t0}",
                f"s_and_b32 s{t0}, s{t0}, 15", f"s_sub_i32 s{dst}, s{t0}, s{dst}", f"s_mul_i32 s{dst}, s{dst}, 96", f"s_add_i32 s{dst}, s{dst}, {src}"]

    def g2_ids(self):
        a = self
        a(f"s_lshr_b32 s58, s{sXCD}, 1\ns_mul_i32 s60, s{sIDX}, 43\ns_lshr_b32 s60, s60, 7\ns_mul_i32 s3, s60, 3\ns_sub_u32 s59, s{sIDX}, s3")
        a(f"s_and_b32 s3, s{sXCD}, 1\ns_lshl_b32 s3, s3, 3\ns_add_u32 s60, s60, s3")

    def mlp_compute(self):
        a = self
        ACC, SH = 16, 64
        P, Q = 80, 120
        b = ((1, 2, 3), (4, 8, 9))
        c = (5, 6, 7)
        self.bar_pub()
        self.g1_ids()
        a("v_lshrrev_b32 v9, 4, v0\nv_lshlrev_b32 v10, 3, v9\ns_mul_i32 s3, s55, 192")
        for t in range(6):
            a(f"buffer_load_dwordx2 v[{P+2*t}:{P+2*t+1}], v10, {srd(rB1)}, s3 offen offset:{32*t}")
        a("v_bfe_u32 v11, v0, 2, 2\nv_lshl_add_u32 v11, v9, 3, v11\nv_mul_u32_u24 v11, 192, v11")
        a("v_and_b32 v12, 3, v0\nv_lshl_add_u32 v11, v12, 3, v11")
        a(f"v_add_u32 v11, {G1_W}, v11\nv_and_b32 v12, 1, v9\nv_lshlrev_b32 v12, 5, v12")
        a(f"v_add_u32 v{c[0]}, v11, v12\nv_sub_u32 v{c[1]}, v11, v12\nv_add_u32 v{c[1]}, 32, v{c[1]}")
        a(f"v_mul_u32_u24 v11, 2304, v9\nv_and_b32 v12, 15, v0\nv_lshl_add_u32 v11, v12, 4, v11")
        a(f"v_mov_b32 v{c[2]}, v11")
        self.precompute_tail()
        a(f"v_mov_b32 v190, {CNT}\nv_mov_b32 v191, 0\nds_write_b32 v190, v191")
        a("s_barrier")
        a.stamp(3)
        a("s_waitcnt vmcnt(0) lgkmcnt(0)")
        for t in range(6):
            for h in range(2):
                a(f"v_lshlrev_b32 v{ACC+4*t+2*h}, 16, v{P+2*t+h}\nv_and_b32 v{ACC+4*t+2*h+1}, 0xffff0000, v{P+2*t+h}")
        for i in range(24):
            a(f"v_mov_b32 v{ACC+24+i}, v{ACC+i}")
        for w in range(4):
            if w < 3:
                a(f"s_cmp_lg_u32 s{sWAVE}, {w}\ns_cbranch_scc1 L_g1_w{w+1}")
            self.g1_loop(w, ACC, SH, P, Q, b, c)
            if w < 3:
                a(f"s_branch L_g1_done\nL_g1_w{w+1}:")
        a("L_g1_done:")
        a.stamp(5)
        self.g1_epilogue(ACC, SH, P, Q)
        self.g2_compute()

    vOUT, vSHW, vUST, vB2, vFB = 15, 13, 14, 12, 11
    cU, cW, cO, cP = 176, 177, 181, 184
    cGA, cGB = 76, 78
    def precompute_tail(self):
        a = self
        self.g2_ids()
        a(f"s_mul_i32 s3, s{sWAVE}, 3072\ns_add_u32 s3, s3, {SH_SCR}\nv_lshl_add_u32 v{self.vSHW}, v0, 4, s3")
        a(f"s_and_b32 s3, s{sWAVE}, 1\ns_lshl_b32 s3, s3, 2\ns_add_u32 s3, s3, s58\ns_lshl_b32 s3, s3, 4\ns_lshl_b32 s48, s60, 7\ns_add_u32 s61, s3, s48")
        a(f"s_lshr_b32 s3, s{sWAVE}, 1\ns_lshl_b32 s48, s59, 1\ns_add_u32 s3, s3, s48\ns_mul_i32 s3, s3, 192\ns_mul_i32 s62, s61, 1152\ns_add_u32 s62, s62, s3")
        a("s_lshl_b32 s61, s61, 1")
        a(f"v_and_b32 v190, 15, v0\nv_lshrrev_b32 v191, 4, v0\nv_bfe_u32 v192, v0, 2, 2\nv_and_b32 v193, 3, v0")
        a(f"v_mul_u32_u24 v{self.vOUT}, 1152, v190\nv_lshl_add_u32 v{self.vOUT}, v191, 4, v{self.vOUT}\nv_lshlrev_b32 v{self.vB2}, 1, v190")
        a(f"v_mul_u32_u24 v{self.vUST}, 9216, v191\nv_lshl_add_u32 v{self.vUST}, v190, 4, v{self.vUST}")
        a(f"s_mul_i32 s96, s55, {12*9216}\ns_mul_i32 s3, s54, 2304\ns_add_u32 s96, s96, s3\ns_lshl_b32 s3, s{sWAVE}, 9\ns_add_u32 s96, s96, s3\ns_add_u32 s96, s96, {U}")
        a(f"s_add_u32 s97, s96, {4*9216}\ns_add_u32 s98, s96, {8*9216}")
        a(f"s_mul_i32 s53, s58, {48*512}\ns_and_b32 s3, s{sXCD}, 1\ns_lshl_b32 s3, s3, 7\ns_add_u32 s53, s53, s3\ns_and_b32 s3, s{sIDX}, 28\ns_add_u32 s53, s53, s3\ns_add_u32 s53, s53, {FLB}")
        a(f"v_sub_u32 v194, s54, v191\nv_lshl_add_u32 v195, v194, 4, v190\nv_lshlrev_b32 v195, 9, v195\nv_lshl_add_u32 v195, v191, 8, v195")
        a(f"v_cmp_gt_u32 vcc, 3, v194\nv_mov_b32 v196, {OOB}\ns_nop 0\nv_cndmask_b32 v{self.vFB}, v196, v195, vcc")
        a(f"s_mul_i32 s56, s60, 3\ns_add_u32 s56, s56, s59")
        a(f"s_lshl_b32 s3, s56, 4\ns_add_u32 s3, s3, s{sWAVE}\ns_lshl_b32 s3, s3, 7\ns_add_u32 s99, s3, {FLX}\ns_lshl_b32 s3, s58, 9\ns_add_u32 s52, s3, s99")
        a(f"s_add_u32 s50, s{rWS}, s52\ns_addc_u32 s51, s{rWS+1}, 0\ns_load_dword s52, s[50:51], 0 glc")
        a.gelu_consts(self.cGA, self.cGB)
        cU, cW, cO = self.cU, self.cW, self.cO
        a(f"v_mul_u32_u24 v{cU}, {G2_PITCH}, v191\nv_lshl_add_u32 v{cU}, v192, 7, v{cU}\nv_lshl_add_u32 v{cU}, v193, 4, v{cU}")
        a(f"s_lshr_b32 s3, s{sWAVE}, 1\ns_mul_i32 s3, s3, 1536\nv_add_u32 v{cU}, s3, v{cU}")
        a("v_lshl_add_u32 v194, v191, 2, v192")
        a(f"v_lshlrev_b32 v195, 8, v194\nv_lshl_add_u32 v195, v193, 3, v195\nv_add_u32 v195, {G2_W[0]}, v195\nv_and_b32 v196, 7, v194")
        for j in range(4):
            a(f"s_add_u32 s3, s58, {j}\ns_and_b32 s3, s3, 3\ns_and_b32 s48, s{sWAVE}, 1\ns_lshl_b32 s48, s48, 2\ns_add_u32 s3, s3, s48")
            a(f"v_xor_b32 v197, s3, v196\nv_lshl_add_u32 v{cW+j}, v197, 5, v195")
        a(f"s_and_b32 s3, s{sWAVE}, 1\ns_mul_i32 s3, s3, {2*OI_P}\ns_add_u32 s3, s3, {OI}\nv_lshrrev_b32 v195, 1, v193\nv_mul_u32_u24 v195, {OI_P}, v195\nv_lshl_add_u32 v195, v194, 4, v195")
        a(f"v_and_b32 v196, 1, v193\nv_lshlrev_b32 v196, 3, v196\nv_add3_u32 v{self.cP}, v195, v196, s3")
        a("v_mul_u32_u24 v195, 384, v194\nv_lshl_add_u32 v195, v193, 4, v195\nv_bfe_u32 v196, v194, 1, 1")
        for p in range(3):
            a(f"s_lshr_b32 s3, s{sWAVE}, 1\ns_mul_i32 s3, s3, 3\ns_add_u32 s3, s3, {p}")
            a(f"v_xor_b32 v197, s3, v196\nv_lshl_add_u32 v{cO+p}, v197, 6, v195")

    def g1_loop(self, w, ACC, SH, P, Q, b, c):
        a = self
        t0, ks = 3 * (w >> 1), w & 1
        for i in range(12):
            a(f"v_mov_b32 v{SH+i}, v{ACC+4*t0+i}" if ks == 0 else f"v_mov_b32 v{SH+i}, 0")
        def reads(st, k, bb):
            bA0, bA1, bB = bb
            rb = lambda j: (f"ds_read_b128 v[{st+24+4*j}:{st+27+4*j}], v{bB} offset:{k*9216+256*j+512*w}", f"B{j}")
            ra = lambda t, rho: (f"ds_read_b64_tr_b16 v[{st+4*t+2*rho}:{st+4*t+2*rho+1}], v{bA1 if t & 1 else bA0} offset:{k*6144+rho*768+(t>>1)*64}", f"A{t}{rho}")
            r = [rb(0), ra(0, 0), ra(0, 1), rb(1)]
            for t in range(1, 6): r += [ra(t, 0), ra(t, 1)]
            if k == ks:
                r.append((f"ds_read_b128 v[{st+32}:{st+35}], v{bB} offset:{k*9216+2048}", "S"))
            return r
        ids = lambda k: [x[1] for x in reads(P, k, b[0])]
        def mfmas(st, k):
            m = []
            for t in range(6):
                for j in range(2):
                    d = ACC + 24 * j + 4 * t
                    m.append((f"v_mfma_f32_16x16x32_bf16 v[{d}:{d+3}], v[{st+4*t}:{st+4*t+3}], v[{st+24+4*j}:{st+27+4*j}], v[{d}:{d+3}]", [f"A{t}1", f"B{j}"]))
            if k == ks:
                for i in range(3):
                    d = SH + 4 * i
                    m.append((f"v_mfma_f32_16x16x32_bf16 v[{d}:{d+3}], v[{st+4*(t0+i)}:{st+4*(t0+i)+3}], v[{st+32}:{st+35}], v[{d}:{d+3}]", ["S"]))
            return m
        W = tuple(self.o.get("w1w", (0, 2, 6, 10)))
        sadv = [f"s_add_u32 s56, s56, {G1_SLOT}", f"s_cmp_eq_u32 s56, {G1_SLOT*G1_NS}", "s_cselect_b32 s56, 0, s56"]
        def stage(par, last=False, tail=()):
            cur, nx = b[par], b[par ^ 1]
            vadv = [f"v_add_u32 v{x}, s56, v{y}" for x, y in zip(nx, c)]
            a.sched(mfmas(P, 0), ids(0), reads(Q, 1, cur), extra=() if last else vadv, waits=W, tail_busy=2)
            if not last:
                a.sched(mfmas(Q, 1), ids(1), reads(P, 0, nx), extra=sadv + list(tail), waits=W, bar=(0, False), tail_busy=2 if tail else 1)
            else:
                m = mfmas(Q, 1)
                a("s_waitcnt lgkmcnt(0)")
                for x in m[12:] + m[:12]: a(x[0])
        for x, y in zip(b[0], c):
            a(f"v_mov_b32 v{x}, v{y}")
        UN = self.o["un1"]
        assert UN % 2 == 0
        nl = 31 // UN
        a(f"s_mov_b32 s56, {G1_SLOT}\ns_mov_b32 s57, {nl}")
        a("s_barrier")
        a.stamp(4)
        if self.o["stamps"]: a("s_waitcnt lgkmcnt(0)")
        for r in reads(P, 0, b[0]): a(r[0])
        lp = a.label("g1")
        a(f"{lp}:")
        for u in range(UN):
            stage(u & 1, tail=("s_sub_u32 s57, s57, 1", "s_cmp_lg_u32 s57, 0") if u == UN - 1 else ())
        a(f"s_cbranch_scc1 {lp}")
        XR = 160
        xl = [f"buffer_load_dwordx4 v[{XR+4*p}:{XR+4*p+3}], v{self.vOUT}, {srd(rX)}, s62 offen offset:{64*p}" for p in range(3)]
        xl.append(f"buffer_load_ushort v{XR+12}, v{self.vB2}, {srd(rB2)}, s61 offen")
        for u in range(31 - nl * UN): stage(u & 1, tail=xl if u == 30 - nl * UN else ())
        stage(1, last=True)

    def g1_epilogue(self, ACC, SH, P, Q):
        a = self
        XR = 160
        for i in range(3):
            a(f"ds_write_b128 v{self.vSHW}, v[{SH+4*i}:{SH+4*i+3}] offset:{1024*i}")
        a("s_waitcnt lgkmcnt(0)\ns_barrier")
        regs = [ACC + 2 * i for i in range(24)]
        out = [P + i for i in range(24)]
        a.align8()
        for g0 in a.gelu(regs, self.cGA, self.cGB, Q, out):
            n = g0 // 4
            j, p = n // 3, n % 3
            a(f"buffer_store_dwordx4 v[{P+g0}:{P+g0+3}], v{self.vUST}, {srd(rWS)}, s{96+p} offen offset:{256*j} sc1")
        a("s_barrier")
        a.stamp(6)

    def g2_compute(self):
        a = self
        XR = 160
        ACC = 16
        P, Q = 176, 216
        bU, bU2, bW, bO, bO2, bP = 1, 2, 3, 112, 115, 118
        tW, tR, tG = 7, 122, 12
        a(f"v_mov_b32 v{bU}, v{self.cU}\nv_add_u32 v{bU2}, {G2_U[2]}, v{self.cU}\nv_mov_b32 v{bP}, v{self.cP}")
        for j in range(4): a(f"v_mov_b32 v{bW+j}, v{self.cW+j}")
        for p in range(3): a(f"v_mov_b32 v{bO+p}, v{self.cO+p}\nv_add_u32 v{bO2+p}, {WO_AT[4]}, v{self.cO+p}")
        a("s_waitcnt vmcnt(6)")
        a(f"v_lshlrev_b32 v{XR+12}, 16, v{XR+12}")
        for i in range(12):
            a(f"v_lshlrev_b32 v{ACC+2*i}, 16, v{XR+i}\nv_and_b32 v{ACC+2*i+1}, 0xffff0000, v{XR+i}")
        for i in range(12):
            a(f"v_pk_add_f32 v[{ACC+2*i}:{ACC+2*i+1}], v[{ACC+2*i}:{ACC+2*i+1}], v[{XR+12}:{XR+13}] op_sel_hi:[1,0]")
        for i in range(24, 96):
            a(f"v_mov_b32 v{ACC+i}, 0")
        a(f"v_mov_b32 v119, {CNT}\nv_mov_b32 v120, 1\ns_mov_b64 exec, 1\ns_waitcnt vmcnt(0) lgkmcnt(0)\nds_add_rtn_u32 v120, v119, v120\ns_waitcnt lgkmcnt(0)")
        a("v_readfirstlane_b32 s3, v120\ns_mov_b64 exec, -1\ns_cmp_lg_u32 s3, 3\ns_cbranch_scc1 L_noflagB")
        a.set_flags("s53", self.vFB, 121, 32)
        a("L_noflagB:")
        a.stamp(7)
        a(f"s_mul_i32 s56, s60, 3\ns_add_u32 s56, s56, s59\ns_lshl_b32 s56, s56, 2")
        a(f"v_lshlrev_b32 v8, 4, v0\ns_mul_i32 s63, s{sWAVE}, 3072\ns_add_u32 s63, s63, {EX}\nv_mov_b32 v9, s{sTAG}")
        for j in range(1, 4):
            a(f"s_add_u32 s3, s58, {j}\ns_and_b32 s3, s3, 3\ns_lshl_b32 s48, s3, 9\ns_add_u32 s48, s48, s99\ns_add_u32 s{52+j}, s48, {4*(j-1)}")
            a(f"s_add_u32 s3, s3, s56\ns_mul_i32 s3, s3, 36864\ns_add_u32 s3, s3, s63\ns_add_u32 s{95+j}, s3, {(j-1)*12288}")
        a(f"s_add_u32 s48, s56, s58\ns_mul_i32 s48, s48, 36864\ns_add_u32 s63, s63, s48")
        a(f"s_mul_i32 s3, s{sWAVE}, 3328\ns_add_u32 s3, s3, {TO_SCR}\nv_and_b32 v{tW}, 15, v0\nv_mul_u32_u24 v{tW}, 208, v{tW}\nv_lshrrev_b32 v127, 4, v0\nv_lshlrev_b32 v127, 4, v127\nv_add3_u32 v{tW}, v{tW}, v127, s3")
        for i in range(3):
            a(f"v_add_u32 v133, {64*i}, v0")
            a.divmod_const(134, 135, 133, 12, 136)
            a(f"v_lshlrev_b32 v135, 4, v135\nv_mul_u32_u24 v136, 208, v134\nv_add3_u32 v{tR+i}, v135, v136, s3\nv_mul_u32_u24 v136, 1152, v134\nv_add_u32 v{tG+i}, v135, v136")

        sets = (P, Q)
        def reads(n, tag=""):
            st, sl, k = sets[n & 1], (n >> 1) % 3, n & 1
            ou = (G2_U[sl] if sl < 2 else 0) + k * G2_US
            ow = G2_W[sl] - G2_W[0] + k * G2_WS
            rb = lambda j: [(f"ds_read_b64_tr_b16 v[{st+24+4*j+2*rho}:{st+25+4*j+2*rho}], v{bW+j} offset:{ow+rho*4096}", f"{tag}B{j}{rho}") for rho in range(2)]
            r = rb(0)
            r += [(f"ds_read_b128 v[{st+4*m}:{st+4*m+3}], v{bU if sl < 2 else bU2} offset:{ou+(m>>1)*512+(m&1)*64}", f"{tag}A{m}1") for m in range(6)]
            return r + rb(1) + rb(2) + rb(3)
        def mfmas(n, tag=""):
            st = sets[n & 1]
            m = []
            for j in range(4):
                for t in range(6):
                    d = ACC + 24 * j + 4 * t
                    m.append((f"v_mfma_f32_16x16x32_bf16 v[{d}:{d+3}], v[{st+4*t}:{st+4*t+3}], v[{st+24+4*j}:{st+27+4*j}], v[{d}:{d+3}]", [f"{tag}A{t}1", f"{tag}B{j}1"]))
            return m
        def step(n, extra=()):
            prev = [x[1] for x in reads(n)]
            if n & 1:
                a.sched(mfmas(n), prev, reads(n + 1), extra, waits=(0, 3), bar=(3, True), tail_busy=2 if extra else 1)
            else:
                a.sched(mfmas(n), prev, reads(n + 1), extra, waits=(0, 6, 12))
        a("s_barrier")
        a.stamp(9)
        if self.o["stamps"]: a("s_waitcnt lgkmcnt(0)")
        for r in reads(0): a(r[0])
        a("s_mov_b32 s57, 5")
        lp = a.label("g2")
        a.align8()
        a(f"{lp}:")
        for n in range(6): step(n, ("s_sub_u32 s57, s57, 1", "s_cmp_lg_u32 s57, 0") if n == 5 else ())
        a(f"s_cbranch_scc1 {lp}")
        a("L_g2_tail:")
        step(30); step(31)
        AR = {0: [P + 4 * t for t in range(6)], 1: [Q + 4 * t for t in range(6)], 2: [Q + 24 + 4 * t for t in range(4)] + [164, 168],
              3: [126 + 4 * t for t in range(6)], 4: [150 + 2 * t for t in range(6)]}
        BR = {0: P + 24, 1: P + 28, 2: P + 32, 3: P + 36, 4: 162}
        def ra(e):
            base, off = (bO, WO_AT[e]) if e < 3 else (bO2, WO_AT[e] - WO_AT[4])
            return [(f"ds_read_b64_tr_b16 v[{AR[e][t]+2*rho}:{AR[e][t]+2*rho+1}], v{base+(t>>1)} offset:{off+rho*6144+(t&1)*8}", f"a{e}{t}{rho}")
                    for t in range(6) for rho in range(2 if e < 4 else 1)]
        def rb(ph, e):
            return [(f"ds_read_b64_tr_b16 v[{BR[e]+2*rho}:{BR[e]+2*rho+1}], v{bP} offset:{ph*4*OI_P+e*512+rho*256}", f"b{ph}{e}{rho}") for rho in range(2 if e < 4 else 1)]
        mf, place, pre = [], {}, {}
        def put(g, items):
            for k, x in enumerate(items): place.setdefault(g + k, []).append(x)
        for n in range(32, 36):
            mf += [(t, need, t.split(",")[0], 32) for t, need in mfmas(n, str(n))]
        mf = [(t, need, acc.split()[1], kind) for t, need, acc, kind in mf]
        early = ra(3) + ra(4)
        put(0, reads(33, "33")); put(14, early[:7])
        pre[24 + 3] = ["s_waitcnt lgkmcnt(0)", "s_barrier"]
        put(24 + 3, reads(34, "34")); put(24 + 17, early[7:14])
        put(48, reads(35, "35")); put(48 + 14, early[14:])
        put(72, ra(0))
        pre[72 + 15] = ["s_barrier"]
        put(72 + 15, rb(0, 3) + rb(0, 4) + rb(0, 0) + rb(0, 1) + rb(0, 2))
        EO = (3, 4, 0, 1, 2)
        JO = (1, 2, 3, 0)
        for ph, j in enumerate(JO):
            g0 = 96 + 30 * ph
            for e in EO:
                for t in range(6):
                    d = ACC + 24 * j + 4 * t
                    if e < 4:
                        mf.append((f"v_mfma_f32_16x16x32_bf16 v[{d}:{d+3}], v[{AR[e][t]}:{AR[e][t]+3}], v[{BR[e]}:{BR[e]+3}], v[{d}:{d+3}]", [f"a{e}{t}1", f"b{ph}{e}1"], f"v[{d}:{d+3}]", 32))
                    else:
                        mf.append((f"v_mfma_f32_16x16x16_bf16 v[{d}:{d+3}], v[{AR[e][t]}:{AR[e][t]+1}], v[{BR[e]}:{BR[e]+1}], v[{d}:{d+3}]", [f"a{e}{t}0", f"b{ph}{e}0"], f"v[{d}:{d+3}]", 16))
            if ph == 0:
                put(g0, ra(1) + ra(2))
                pre[g0 + 24] = ["s_barrier"]
                put(g0 + 24, rb(1, 3) + rb(1, 4) + rb(1, 0)); put(g0 + 30, rb(1, 1) + rb(1, 2))
            elif ph < 3:
                for k, e in enumerate(EO): put(g0 + 6 * (k + 1), rb(ph + 1, e))
            if ph > 0:
                jp = JO[ph - 1]
                r0 = ACC + 24 * jp
                g = g0 + 4
                for i in range(12):
                    while len(place.get(g, [])) >= 2: g += 1
                    place.setdefault(g, []).append((f"v_cvt_pk_bf16_f32 v{r0+i}, v{r0+2*i}, v{r0+2*i+1}", None))
                    if i % 4 == 3:
                        g += 1
                        while place.get(g): g += 1
                        place[g] = [(f"buffer_store_dwordx4 v[{r0+i-3}:{r0+i}], v8, {srd(rWS)}, s{95+jp} offen offset:{1024*(i//4)} sc1", None)]
                        g += 1
                assert g < g0 + 30
        a.linear(mf, place, pre, [x[1] for x in reads(32, "32")])
        a.stamp(10)
        parts = [(56, 4, 0)]
        a.spoll_issue(50, parts)
        a("s_mov_b64 exec, 1")
        for j in range(1, 4):
            a(f"s_waitcnt vmcnt({(6, 4, 2)[j-1]})\nbuffer_store_dword v9, off, {srd(rWS)}, s{52+j} sc1")
        a("s_mov_b64 exec, -1")
        a.stamp(11)
        IN = P
        a(f"s_mov_b32 s48, {self.o['spin']}\ns_mov_b32 s49, 0\nL_x_poll:\ns_waitcnt lgkmcnt(0)")
        for j in range(3):
            a(f"s_bitcmp1_b32 s49, {j}\ns_cbranch_scc1 L_x_no{j}\ns_cmp_lg_u32 s{56+j}, s{sTAG}\ns_cbranch_scc1 L_x_no{j}\ns_add_u32 s3, s63, {12288*j}")
            for p in range(3):
                r = IN + 12 * j + 4 * p
                a(f"buffer_load_dwordx4 v[{r}:{r+3}], v8, {srd(rWS)}, s3 offen offset:{1024*p} sc1")
            a(f"s_bitset1_b32 s49, {j}\ns_mov_b32 s60, {j}\nL_x_no{j}:")
        a("s_cmp_eq_u32 s49, 7\ns_cbranch_scc1 L_x_all\ns_sub_u32 s48, s48, 1\ns_cmp_eq_u32 s48, 0\ns_cbranch_scc1 L_x_all")
        a.spoll_issue(50, parts)
        a("s_branch L_x_poll\nL_x_all:")
        a.stamp(12)
        if self.o["dot"]: a("s_mov_b32 s56, 0x3f80\ns_mov_b32 s57, 0x3f800000")
        a("s_cmp_eq_u32 s60, 2\ns_cbranch_scc1 L_x_l2\ns_waitcnt vmcnt(0)\nL_x_l2:\ns_waitcnt vmcnt(3)")
        for j in range(3):
            if j == 2: a("s_waitcnt vmcnt(0)")
            for i in range(12):
                if self.o["dot"]:
                    a(f"v_dot2c_f32_bf16 v{ACC+2*i}, s56, v{IN+12*j+i}\nv_dot2c_f32_bf16 v{ACC+2*i+1}, s57, v{IN+12*j+i}")
                    continue
                t = 40 + 2 * (i % 4)
                a(f"v_lshlrev_b32 v{t}, 16, v{IN+12*j+i}\nv_and_b32 v{t+1}, 0xffff0000, v{IN+12*j+i}")
                a(f"v_pk_add_f32 v[{ACC+2*i}:{ACC+2*i+1}], v[{ACC+2*i}:{ACC+2*i+1}], v[{t}:{t+1}]")
        of = self.o.get('outf', 'sc1')
        for i in range(12):
            a(f"v_cvt_pk_bf16_f32 v{Q+i}, v{ACC+2*i}, v{ACC+2*i+1}")
            if self.o["tout"] and i % 4 == 3: a(f"ds_write_b128 v{tW}, v[{Q+i-3}:{Q+i}] offset:{16*(i-3)}")
        if self.o["tout"]:
            for p in range(3): a(f"ds_read_b128 v[{Q+12+4*p}:{Q+15+4*p}], v{tR+p}")
            for p in range(3):
                a(f"s_waitcnt lgkmcnt({0 if self.o['stamps'] else 2-p})\nbuffer_store_dwordx4 v[{Q+12+4*p}:{Q+15+4*p}], v{tG+p}, {srd(rOUT)}, s62 offen {of}")
        else:
            for p in range(3):
                a(f"buffer_store_dwordx4 v[{Q+4*p}:{Q+4*p+3}], v{self.vOUT}, {srd(rOUT)}, s62 offen offset:{64*p} {of}")
        a.stamp(13)
        a("s_branch L_fin")

    def latin_seq(self, l):
        Dl = self.o["latin"]
        l0 = self.o["lat0"]
        return sorted(range(32), key=lambda s_: max(s_ - Dl - 0.5, min(s_, l0 - 0.5)) if (Dl and s_ % self.o.get('latp', 6) == l) else s_)

    def mlp_aux(self):
        a = self
        o = self.o
        a("L_aux:")
        self.g1_ids()
        a(f"s_sub_u32 s53, s{sWAVE}, 4")
        self.g2_loader_setup()
        seqs = [self.latin_seq(l) for l in range(6)]
        la = o["la1"]
        need = lambda pos: max(max(sq[:min(pos, 31) + 1]) for sq in seqs) // 4
        g_first = need(1)
        assert g_first <= 1
        a(f"s_cmp_eq_u32 s{sWAVE}, 7\ns_cbranch_scc1 L_aux7")
        vH, vW = 40, 46
        a("s_lshl_b32 s3, s53, 8\nv_add_u32 v1, s3, v0")
        for i in range(4):
            a(f"v_add_u32 v2, {64*i}, v1")
            if "L" in o["dbg"]:
                a.divmod_const(3, 4, 2, 24, 5); a("v_lshlrev_b32 v3, 1, v3")
            else:
                a.divmod_const(3, 4, 2, 12, 5)
            a(f"v_bfe_u32 v5, v3, 3, 1\nv_lshlrev_b32 v5, 1, v5\nv_xor_b32 v4, v4, v5")
            a(f"v_mul_u32_u24 v3, 9216, v3\nv_lshl_add_u32 v{vW+i}, v4, 4, v3\nv_subrev_u32 v{vW+i}, {1024*i}, v{vW+i}")
        a(f"s_mul_i32 s12, s55, 192\ns_lshl_b32 s14, s53, 12\ns_add_u32 s14, s14, {G1_W}")
        a(f"s_mul_i32 s13, s54, 2304\ns_add_u32 s13, s13, {HT}\ns_mul_i32 s15, s53, 6144\ns_and_b32 s28, s{sXCD}, {o['rot']}\ns_lshl_b32 s28, s28, 2")
        if "L" in o["dbg"]: a("s_and_b32 s3, s55, 1\ns_mul_i32 s3, s3, 9024\ns_add_u32 s12, s12, s3")
        TB = [16, 17, 18, 19, 36, 37]
        if o["latin"]:
            a(f"s_lshr_b32 s3, s{sIDX}, 2\ns_mul_i32 s48, s54, {o['latc']}\ns_add_u32 s3, s3, s48")
            for _ in range(2): a("s_cmp_ge_u32 s3, 6\ns_cselect_b32 s48, 6, 0\ns_sub_u32 s3, s3, s48")
            if o.get("latp") == 4: a(f"s_lshr_b32 s3, s{sIDX}, 3\ns_add_u32 s3, s3, s54\ns_and_b32 s3, s3, 3")
            for l in range(6):
                words = [sum(seqs[l][n] << (5 * (n % 6)) for n in range(6 * k, min(32, 6 * k + 6))) for k in range(6)]
                if l: a(f"s_cmp_eq_u32 s3, {l}")
                for k in range(6):
                    a(f"s_mov_b32 s{TB[k]}, {words[k]}" if l == 0 else f"s_cselect_b32 s{TB[k]}, {words[k]}, s{TB[k]}")
        def stage_of(pos):
            if o["latin"]:
                a(f"s_bfe_u32 s3, s{TB[pos//6]}, {(5 << 16) | (5 * (pos % 6))}\ns_add_u32 s3, s3, s28")
            else:
                a(f"s_add_u32 s3, s28, {pos}")
            a("s_and_b32 s3, s3, 31")
        issued = []
        def w1_load(st):
            stage_of(0 if "W" in o["dbg"] else st)
            a(f"s_mul_i32 s3, s3, {64*9216}\ns_add_u32 m0, s14, {(st % G1_NS)*G1_SLOT}\ns_add_u32 s3, s3, s12")
            for i in range(4):
                if "w" in o["dbg"] and i > 0: continue
                a(f"buffer_load_dwordx4 v{vW+i}, {srd(rW1)}, s3 offen offset:{1024*i} lds")
                issued.append(st)
        def h_load(st):
            stage_of(0 if "H" in o["dbg"] else st)
            a(f"s_mul_i32 s3, s3, {8*9216}\ns_add_u32 s3, s3, s13")
            for i in range(6):
                if "h" in o["dbg"] and i > 0: continue
                if "K" in o["dbg"] and i > 2: continue
                if i % 4 == 0:
                    a(f"s_add_u32 m0, s15, {(st % G1_NS)*G1_SLOT + 1024*i}\ns_nop 0")
                a(f"buffer_load_dwordx4 v{vH+i}, {srd(rWS)}, s3 offen offset:{1024*(i%4)} sc1 lds")
                issued.append(st)
        def wait_stage(st):
            last = max(i for i, x in enumerate(issued) if x == st)
            n = len(issued) - 1 - last
            assert n < 63
            a(f"s_waitcnt vmcnt({n})")
        a(f"s_mul_i32 s3, s53, {192 if 'K' in o['dbg'] else 384}\nv_add_u32 v1, s3, v0")
        if "K" in o["dbg"]: a(f"s_and_b32 s3, s55, 1\ns_mul_i32 s3, s3, {4*9216}\ns_add_u32 s13, s13, s3")
        for i in range(6):
            a(f"v_add_u32 v2, {64*i}, v1")
            a.divmod_const(3, 4, 2, 144, 5)
            a(f"v_mul_u32_u24 v3, 9216, v3\nv_lshl_add_u32 v{vH+i}, v4, 4, v3\nv_subrev_u32 v{vH+i}, {1024*(i%4)}, v{vH+i}")
        self.sp_setup()
        self.bar_pub()
        assert o["prefill"] <= 5
        for st in range(o["prefill"]): w1_load(st)
        if g_first == 1:
            a(f"s_cmp_lg_u32 s{sWAVE}, 6\ns_cbranch_scc1 L_nog1\ns_and_b32 s29, s{sXCD}, {o['rot']}\ns_add_u32 s29, s29, 1\ns_and_b32 s29, s29, 7")
            self.wait_A_group("s29")
            a("L_nog1:")
        a("s_barrier")
        a.stamp(3)
        assert la <= 3
        done = [0]
        def issue(upto):
            while done[0] <= min(upto, 31):
                st = done[0]
                h_load(st)
                if st >= o["prefill"]: w1_load(st)
                done[0] += 1
        issue(o["h1"] if o["prefill"] >= 2 else 0)
        for i in range(32):
            wait_stage(i)
            a("s_barrier")
            a.tr0()
            issue(i + la)
            a.tr1(i)
            self.sp_step(i)
            if i == 30: self.g2_prefill(issued)
        a("s_branch L_aux_g1done")
        a("L_aux7:")
        a(f"s_and_b32 s29, s{sXCD}, {o['rot']}")
        self.A_addr("s29"); self.spoll_issue(50, self.A_PARTS)
        self.touch_pattern(248, 7, 9216)
        self.bar_pub()
        for k in range(o["w1c"]):
            self.touch_w1(248, f"s{sIDX}", 7, 224 * o["w1a"] + 168 * k)
        self.spoll_check(50, self.A_PARTS, self.A_REGS)
        a("s_barrier")
        a(f"s_add_u32 s29, s29, {g_first}")
        g_ok, g_fly, t_fly = g_first, None, 0
        for i in range(32):
            while g_ok < need(i + la) or (g_fly is not None and i - t_fly >= 2):
                if g_fly is None:
                    a("s_add_u32 s29, s29, 1\ns_and_b32 s29, s29, 7")
                    self.A_addr("s29"); self.spoll_issue(50, self.A_PARTS)
                self.spoll_check(50, self.A_PARTS, self.A_REGS)
                g_ok += 1; g_fly = None
            if g_fly is None and g_ok < 7:
                a("s_add_u32 s29, s29, 1\ns_and_b32 s29, s29, 7")
                self.A_addr("s29"); self.spoll_issue(50, self.A_PARTS)
                g_fly, t_fly = g_ok + 1, i
            a("s_barrier")
            if o["spc"] and i == 24: self.code_touch("L_g1_done", "L_g2_tail", 24, f"s{sIDX}")
            if o["spc"] and i == 26: self.code_touch("L_aux7", "L_att", 24, f"s{sIDX}")
            if i == 30: self.g2_prefill([])
        assert g_ok == 7 and g_fly is None
        a(f"s_cmp_lg_u32 s2, 0\ns_cbranch_scc1 L_noepoch\ns_mov_b32 s3, {EPOCH}")
        a.set_flag("s3", 20)
        a("L_noepoch:")
        a("L_aux_g1done:")
        a.stamp(5)
        self.g2_loader()

    def sp_setup(self):
        a, o = self, self.o
        if not o["sp"]: return
        r0 = 2048 - o["spn"]
        a(f"s_and_b32 s38, s{sXCD}, {o['rot']}\ns_lshl_b32 s38, s38, 8\ns_add_u32 s38, s38, s{sIDX}\ns_add_u32 s38, s38, {r0}")
        a(f"s_mul_i32 s39, s{sXCD}, 1152\ns_mul_i32 s3, s53, 384\ns_add_u32 s39, s39, s3\ns_add_u32 s39, s39, 60")
        self.sp_row = r0
    def sp_step(self, i):
        a, o = self, self.o
        if not o["sp"]: return
        n = int((i + 1) * o["sp"]) - int(i * o["sp"])
        for _ in range(n):
            if self.sp_row >= 2048: return
            a(f"s_and_b32 s3, s38, 2047\ns_mul_i32 s3, s3, 9216\ns_add_u32 s3, s3, s39\ns_add_u32 s40, s{rW1}, s3\ns_addc_u32 s41, s{rW1+1}, 0\ns_add_u32 s38, s38, 24")
            for k in range(3): a(f"s_load_dwordx2 s[42:43], s[40:41], {128*k}")
            self.sp_row += 24

    def code_touch(self, l0, l1, nid, sid):
        a = self
        pc = a.label("pc")
        a(f"s_getpc_b64 s[40:41]\n{pc}:\ns_lshl_b32 s3, {sid}, 9\ns_min_u32 s3, s3, {l1}-{l0}-512\ns_sub_u32 s40, s40, {pc}-{l0}\ns_subb_u32 s41, s41, 0")
        a("s_add_u32 s40, s40, s3\ns_addc_u32 s41, s41, 0")
        for k in range(8): a(f"s_load_dword s42, s[40:41], {64*k}")

    def wo_touch(self, k):
        a = self
        a(f"s_lshl_b32 s3, s{sIDX}, 2\ns_add_u32 s3, s3, s53\ns_add_u32 s3, s3, {96*k}\ns_min_u32 s3, s3, 323\ns_lshl_b32 s3, s3, 9\ns_mul_i32 s11, s58, {144*1152}\ns_add_u32 s3, s3, s11")
        a(f"s_add_u32 s40, s{rWO}, s3\ns_addc_u32 s41, s{rWO+1}, 0")
        for k in range(4): a(f"s_load_dwordx2 s[42:43], s[40:41], {128*k+60}")

    def sp2_setup(self):
        a, o = self, self.o
        if not o["sp2"]: return
        assert o["spn2"] % 24 == 0
        a(f"s_lshl_b32 s38, s{sIDX}, 12\ns_add_u32 s38, s38, s10\ns_lshl_b32 s3, s53, 9\ns_add_u32 s38, s38, s3\ns_add_u32 s38, s38, 60")
        self.sp_row = 1152 - o["spn2"]
    def sp2_step(self, i):
        a, o = self, self.o
        if not o["sp2"]: return
        n = int((i + 1) * o["sp2"]) - int(i * o["sp2"])
        for _ in range(n):
            r = self.sp_row
            if r + 24 > 1152: return
            t = r // 96
            a(f"s_bfe_u32 s3, s{100 + t // 8}, {(4 << 16) | (4 * (t % 8))}\ns_mul_i32 s3, s3, {96*4096}\ns_add_u32 s3, s3, s38\ns_add_u32 s3, s3, {(r % 96) * 4096}")
            a(f"s_add_u32 s40, s{rW2}, s3\ns_addc_u32 s41, s{rW2+1}, 0")
            for k in range(4): a(f"s_load_dwordx2 s[42:43], s[40:41], {128*k}")
            self.sp_row += 24

    gP = 18
    gL, gW, gZ, gO, gY = 10, 11, 13, 15, 56
    def g2_loader_setup(self):
        a = self
        vL, vW, vZ, vO, vY = self.gL, self.gW, self.gZ, self.gO, self.gY
        self.g2_ids()
        a(f"v_lshlrev_b32 v{vL}, 4, v0\nv_lshrrev_b32 v1, 4, v0\nv_bfe_u32 v2, v0, 1, 3\nv_and_b32 v3, 1, v0")
        for i in range(2):
            a(f"v_add_u32 v4, {4*i}, v1\nv_xor_b32 v5, v2, v4\nv_lshlrev_b32 v4, 12, v4\nv_lshl_add_u32 v4, v5, 5, v4")
            a(f"v_lshl_add_u32 v{vW+i}, v3, 4, v4\nv_subrev_u32 v{vW+i}, {1024*i}, v{vW+i}")
        a(f"s_cmp_ge_u32 s53, 2\ns_cselect_b32 s3, {OOB}, 0")
        for i in range(3):
            a(f"v_add_u32 v4, {64*i}, v0")
            a.divmod_const(5, 6, 4, 24, 7)
            a(f"v_bfe_u32 v7, v5, 1, 1\nv_lshlrev_b32 v7, 2, v7\nv_xor_b32 v6, v6, v7")
            a(f"v_mul_u32_u24 v5, 1152, v5\nv_lshl_add_u32 v{vO+i}, v6, 4, v5\nv_subrev_u32 v{vO+i}, {1024*i}, v{vO+i}")
            a(f"v_or_b32 v{vY+i}, s3, v{vO+i}")
        a(f"s_mul_i32 s8, s58, 144\ns_add_u32 s8, s8, s53\ns_mul_i32 s8, s8, 9216\ns_mul_i32 s3, s59, 3072\ns_add_u32 s8, s8, s3\ns_add_u32 s8, s8, {U}")
        a(f"s_mul_i32 s9, s58, 1152\ns_lshl_b32 s3, s53, 3\ns_add_u32 s9, s9, s3\ns_lshl_b32 s9, s9, 12\ns_lshl_b32 s3, s60, 8\ns_add_u32 s9, s9, s3")
        a(f"s_mul_i32 s61, s53, {G2_PITCH}\ns_mul_i32 s62, s53, 3072\ns_lshl_b32 s63, s53, 11")
        for h in range(2):
            a(f"s_lshl_b32 s3, s53, 1\ns_add_u32 s3, s3, {h}\ns_cmp_ge_u32 s3, 3\ns_cselect_b32 s48, 3072, 0\ns_lshl_b32 s3, s3, 10\ns_add_u32 s3, s3, s48\ns_add_u32 s3, s3, {SH_SCR}")
            a(f"v_add_u32 v{60+h}, s3, v{vL}")
        a.gelu_consts(64, 66)
        a(f"v_mul_u32_u24 v62, 9216, v1\nv_and_b32 v63, 15, v0\nv_lshl_add_u32 v62, v63, 4, v62")
        a(f"s_mul_i32 s96, s55, 3\ns_add_u32 s96, s96, s53\ns_mul_i32 s96, s96, {4*9216}\ns_mul_i32 s3, s54, 2304\ns_add_u32 s96, s96, s3\ns_add_u32 s96, s96, {U + 2048}")
        a(f"s_mul_i32 s3, s58, 3\ns_add_u32 s3, s3, s59\ns_lshl_b32 s3, s3, 4\ns_add_u32 s3, s3, s60\ns_lshl_b32 s3, s3, 9\ns_add_u32 s3, s3, {FLB}")
        a(f"s_add_u32 s98, s{rWS}, s3\ns_addc_u32 s99, s{rWS+1}, 0\ns_lshl_b32 s3, s53, 7\ns_load_dword s30, s[98:99], s3 glc")
        a("v_min_u32 v68, 2, v1\nv_lshlrev_b32 v68, 12, v68\nv_lshl_add_u32 v68, v63, 7, v68")
        a(f"s_lshl_b32 s97, s{sIDX}, 2\ns_add_u32 s97, s97, s53\ns_mul_i32 s97, s97, 3\ns_add_u32 s97, s97, {self.o['w2r']}")
        a(f"s_mul_i32 s10, s58, {1152*4096}\ns_and_b32 s3, s{sXCD}, 1\ns_lshl_b32 s3, s3, 11\ns_add_u32 s10, s10, s3")

    def g2_w_load(self, n, issued):
        a = self
        if n % 3 == 0:
            a(f"s_bfe_u32 s57, s{100 + n // 24}, {(4 << 16) | (4 * ((n // 3) % 8))}\ns_mul_i32 s57, s57, {96*4096}\ns_add_u32 s57, s57, s9")
        a(f"s_add_u32 m0, s63, {G2_W[(n >> 1) % 3] + (n & 1) * G2_WS}\ns_nop 0")
        for i in range(2):
            a(f"buffer_load_dwordx4 v{self.gW+i}, {srd(rW2)}, s57 offen offset:{1024*i} lds")
            issued.append(100 + (n >> 1))
        a(f"s_add_u32 s57, s57, {32*4096}")

    def w2_touch(self):
        for x in self.ord_row(3, "s97"): self(x)
        self(f"s_lshl_b32 s3, s3, 12\ns_add_u32 s3, s3, s10\nbuffer_load_dword v69, v68, {srd(rW2)}, s3 offen\ns_add_u32 s97, s97, 288")

    def g2_prefill(self, issued):
        if self.o["w2a"]:
            self.w2_touch(); issued.append(99)
        if self.o["w2e"]:
            for n in range(self.o["w2p"]): self.g2_w_load(n, issued)

    def g2_loader(self):
        a = self
        NSTEP, NST = 36, 20
        vL, vO, vY = self.gL, self.gO, self.gY
        issued = []
        def a_load(n):
            if n % 3 == 0:
                a(f"s_bfe_u32 s56, s{100 + n // 24}, {(4 << 16) | (4 * ((n // 3) % 8))}\ns_mul_i32 s56, s56, {12*9216}\ns_add_u32 s56, s56, s8")
            a(f"s_add_u32 m0, s61, {G2_U[(n >> 1) % 3] + (n & 1) * G2_US}\ns_nop 0")
            for i in range(3):
                a(f"buffer_load_dwordx4 v{vL}, {srd(rWS)}, s56 offen offset:{1024*i} sc1 lds")
                issued.append(100 + (n >> 1))
            a(f"s_add_u32 s56, s56, {4*9216}")
        def wo_load(e, tag, which=(0, 1, 2)):
            a(f"s_add_u32 m0, s62, {WO_AT[e]}\ns_add_u32 s3, s36, {32*1152*e}")
            for i in which:
                a(f"buffer_load_dwordx4 v{(vY if e == 4 else vO)+i}, {srd(rWO)}, s3 offen offset:{1024*i} lds")
                issued.append(tag)
        def o_load(ph, tag):
            a(f"s_add_u32 s3, s58, {ph+1}\ns_and_b32 s3, s3, 3\ns_mul_i32 s3, s3, {2*9216}\ns_add_u32 m0, s54, {4*OI_P*ph}\ns_add_u32 s3, s3, s37")
            for i in range(3):
                if i == 2: a("s_mov_b64 exec, 0xffff")
                a(f"buffer_load_dwordx4 v{vL}, {srd(rWS)}, s3 offen offset:{1024*i} sc1 lds")
                issued.append(tag)
            a("s_mov_b64 exec, -1")
        o = self.o
        a("s_setprio 3\ns_barrier")
        a(f"s_cmp_eq_u32 s{sWAVE}, 7\ns_cbranch_scc1 L_nosh")
        for h in range(2):
            a(f"ds_read_b128 v[{24+4*h}:{27+4*h}], v{60+h}\nds_read_b128 v[{32+4*h}:{35+4*h}], v{60+h} offset:3072")
        a("s_waitcnt lgkmcnt(0)")
        for i in range(4):
            a(f"v_pk_add_f32 v[{24+2*i}:{25+2*i}], v[{24+2*i}:{25+2*i}], v[{32+2*i}:{33+2*i}]")
        for g0 in a.gelu([24, 26, 28, 30], 64, 66, 44, [32, 33, 34, 35]):
            a(f"buffer_store_dwordx4 v[32:35], v62, {srd(rWS)}, s96 offen sc1")
        a(f"L_nosh:\ns_setprio {o.get('ldp', 0)}")
        a("s_waitcnt vmcnt(0)")
        a(f"s_and_b32 s3, s{sXCD}, 1\ns_lshl_b32 s3, s3, 7\ns_add_u32 s12, s98, s3\ns_addc_u32 s13, s99, 0\ns_xor_b32 s3, s3, 128\ns_add_u32 s14, s98, s3\ns_addc_u32 s15, s99, 0")
        p1 = [(16, 4, 0), (28, 4, 256)]
        r1 = [16, 17, 18, 19, 28, 29, 30, 31]
        a("s_barrier")
        a.spoll_issue(12, p1)
        a.stamp(7)
        if not o["w2e"]:
            for n in range(o["w2p"]): self.g2_w_load(n, issued)
        if o["w2c"]: self.w2_touch(); issued.append(99)
        a.spoll_check(12, p1, r1)
        a.stamp(8)
        od = o["odl"]
        q = []
        for n in range(NSTEP):
            q.append(("a", n, (n >> 1) - 2 if n >= 6 else -1))
            if n >= o["w2p"]: q.append(("w", n, (n >> 1) - 2 if n >= 6 else -1))
        def pump(i, budget):
            for x in list(q):
                c = 3 if x[0] == "a" else 2
                must = (x[1] >> 1) <= i + 1
                if x[2] > i or (budget < c and not must): continue
                if any(y[0] == x[0] and y[1] < x[1] for y in q): continue
                q.remove(x); budget -= c
                a_load(x[1]) if x[0] == "a" else self.g2_w_load(x[1], issued)
        bud = o["g2b"]
        pump(-1, bud[0])
        self.sp2_setup()
        a(f"s_lshl_b32 s52, s60, 2\ns_add_u32 s52, s52, s58\ns_lshl_b32 s52, s52, 7\ns_add_u32 s52, s52, {FLO}")
        a(f"s_add_u32 s50, s{rWS}, s52\ns_addc_u32 s51, s{rWS+1}, 0")
        op = [(64, 8, 0)]
        a(f"s_mul_i32 s36, s58, 144\ns_lshl_b32 s3, s53, 3\ns_add_u32 s36, s36, s3\ns_mul_i32 s36, s36, 1152\ns_mul_i32 s3, s59, 384\ns_add_u32 s36, s36, s3")
        a(f"s_lshl_b32 s37, s60, 1\ns_lshr_b32 s3, s53, 1\ns_add_u32 s37, s37, s3\ns_lshl_b32 s37, s37, 3\ns_and_b32 s3, s53, 1\ns_add_u32 s37, s37, s3\ns_mul_i32 s37, s37, 9216")
        a(f"s_mul_i32 s3, s58, 2304\ns_add_u32 s37, s37, s3\ns_add_u32 s37, s37, {OT}\ns_mul_i32 s54, s53, {OI_P}\ns_add_u32 s54, s54, {OI}")
        assert od == 17
        for i in range(NST):
            last = max(k for k, x in enumerate(issued) if x == 100 + i)
            nn = len(issued) - 1 - last
            assert nn < 63
            nxt = i + 2
            p3 = [(64 + 2 * k, 2, 128 * k + 16) for k in range(4)]
            chk = {3: (14, p1, None), 4: (14, p1, r1), 9: (98, p3, None), 10: (98, p3, list(range(64, 72)))}
            if self.o["att"] and "o" not in o["dbg"]: chk.update({od - 1: (50, op, None), od: (50, op, list(range(64, 72)))})
            if i in chk:
                lb = a.label("nopo")
                a(f"s_cmp_lg_u32 s{sWAVE}, 7\ns_cbranch_scc1 {lb}")
                if chk[i][2] is None: a.spoll_issue(chk[i][0], chk[i][1])
                else: a.spoll_check(*chk[i])
                a(f"{lb}:")
            a(f"s_waitcnt vmcnt({nn})\ns_barrier")
            a.tr0()
            pump(i, bud[min(i + 1, len(bud) - 1)])
            if 0 <= i - o["woe"] < 6: wo_load(3 + (i - o["woe"]) // 3, 116, ((i - o["woe"]) % 3,))
            if i == 16: wo_load(0, 117); wo_load(1, 118)
            if i == 17:
                o_load(0, 118); wo_load(2, 118)
                for ph in range(1, 1 + o["oe"]): o_load(ph, 119)
            if i == 18:
                for ph in range(1 + o["oe"], 4): o_load(ph, 119)
            a.tr1(32 + i)
            wot = {6: 0, 7: 1, 8: 2, 11: 3}
            if o["spo"] and i in wot: self.wo_touch(wot[i])
            elif o["spc"] and i == 12:
                a(f"s_lshl_b32 s11, s{sIDX}, 2\ns_add_u32 s11, s11, s53")
                self.code_touch("L_g2_tail", "L_aux", 96, "s11")
            elif i not in (3, 9, od - 1): self.sp2_step(i)
        assert not q
        a.stamp(10)
        if o.get("trace"):
            a(f"s_lshl_b32 s3, s2, 2\ns_add_u32 s3, s3, s53\ns_lshl_b32 s3, s3, 8\ns_add_u32 s3, s3, {0x1600000}\nv_lshlrev_b32 v1, 2, v0\nbuffer_store_dword v200, v1, {srd(rWS)}, s3 offen")
        a("s_branch L_fin")

    def att(self):
        a = self
        a("L_att:")
        if self.o["att"]:
            import gen_att_v7 as gen_att
            gen_att.emit(self)

    def build(self):
        a = self
        a.launch(KNAME, 256, 512, LDS_BYTES)
        a.kd(KNAME, 256)
        self.entry()
        self.mlp_compute()
        self.mlp_aux()
        self.att()
        a("L_fin:")
        if self.o["stamps"]: a("s_waitcnt vmcnt(0)")
        a.stamp(15)
        self.dump_stamps(4)
        a("L_end:\ns_endpgm\n.p2align 6\n.type order_table,@object\norder_table:")
        for x in range(8):
            w = sum(t << (4 * k) for k, t in enumerate(xcd_order(x) if self.o["perm"] else [(6 * (x & 1) + k) % 12 for k in (0, 1, 2, 3, 6, 7, 8, 9, 4, 5, 10, 11)]))
            a(f".long {w & 0xffffffff}, {w >> 32}")
        a(".size order_table, 64\nL_code_end:")
        return a.text(single=True)


if __name__ == "__main__":
    import json
    opt = json.loads(sys.argv[2]) if len(sys.argv) > 2 else {}
    open(sys.argv[1], "w").write(Gen(**opt).build())
```

```python
import sys
sys.path.insert(0, "work")
from asmlib import *

KNAME = "parallel_sum__linear_kernel_hedgehog__mixer_token_mlp__prompt_kernel"
S, D, F, H, DH = 2048, 576, 4608, 32, 18

EPOCH = 0
FLA, FLB, FLKV, FLO, FLX = 0x80000, 0xA0000, 0xC000, 0x8000, 0xC0000
STAMP = 0x20000
S2 = 0x60000
HT = 0x100000
U = 0x400000
OT = 0xA00000
KVP = 0xD00000
EX = 0xE00000

sWAVE, sXCD, sIDX, sTAG = 4, 5, 6, 7
rX, rWQKV, rWPHI, rWO, rW1, rB1, rW2, rB2, rOUT, rWS = 8, 12, 16, 20, 24, 28, 32, 36, 40, 44
sST = 64
def srd(r): return f"s[{r}:{r+3}]"

G1_SLOT, G1_NS, G1_W = 30720, 5, 18432
LN_SCR, LN_PITCH = 153600, 1216
LN_S2 = LN_SCR + 8 * LN_PITCH
G2_US, G2_WS, G2_PITCH = 12544, 8192, 3136
G2_U = [0, 25088, 122880]
G2_W = [61440, 61440 + 16384, 61440 + 32768]
SH_SCR = 147968
OI, OI_P = 50176, 2432
WO_AT = [0, 12544, 25088, 147968, 110592]
TO_SCR = 122880
LDS_BYTES = 163840
OOB = 0x7FFF0000

LOG2E = 1.4426950408889634
CNT = 160256

def slow_tile(ft):
    a_ = (192 * ft) & 1023
    return 192 < a_ < 512
def xcd_perm(x):
    return sorted(range(6), key=lambda e: slow_tile(6 * x + e))
def xcd_order(x):
    own = [6 * (x & 1) + e for e in xcd_perm(x)]
    oth = [6 * ((x & 1) ^ 1) + e for e in xcd_perm(x ^ 1)]
    return own[:4] + oth[:4] + own[4:] + oth[4:]
for _r in range(1152): assert (_r * 683) >> 16 == _r // 96


class Gen(Asm):
    def __init__(self, **opt):
        super().__init__()
        self.o = dict(stamps=False, att=True, pf_code=True, spin=1 << 16, prefill=2, la1=2, probe=0, clk=False, dbg='',
                      sp=1, latin=3, latc=1, un1=2, w2a=0, w2c=0, w2p=4, w2e=1, aw2=(1, 0, 1, 1), aw2r=128, awq=0, rot=7, w1a=1, w1c=0, spn=600, w2r=512, sp2=0, spn2=120, perm=1, spo=0, spc=1, odl=17, g2b=(12, 10, 11), aw5=1, tout=1, dot=1, woe=8, oe=3, awo=1, lat0=3, h1=1, wqa=1, ab1=1, ab3=0, atw=0, snake=2, wot=0, at=dict(o14=[0], o15=[128], o16=[256], YL=[384], Y1=[512], B2=[640], B3=[896], Y3=[-1]))
        self.o.update(opt)
        self.nstamp = {}

    def stamp(self, i):
        if self.o["stamps"]:
            self(f"{'s_memtime' if self.o['clk'] else 's_memrealtime'} s[{sST+2*i}:{sST+2*i+1}]")

    def dump_stamps(self, vtmp):
        if not self.o["stamps"]:
            return
        a = self
        a("s_waitcnt lgkmcnt(0)")
        a(f"s_lshl_b32 s3, s2, 3\ns_add_u32 s3, s3, s{sWAVE}\ns_lshl_b32 s3, s3, 6\ns_add_u32 s3, s3, {STAMP}")
        a(f"v_mov_b32 v{vtmp+4}, 0")
        for q in range(4):
            for i in range(4):
                a(f"v_mov_b32 v{vtmp+i}, s{sST+2*(4*q+i)}")
            a(f"buffer_store_dwordx4 v[{vtmp}:{vtmp+3}], v{vtmp+4}, {srd(rWS)}, s3 offen offset:{16*q}")
            a("s_nop 1")

    def align8(self):
        self(".p2align 3")

    def wave_sum(self, v, sdst):
        a = self
        for m in ("row_shr:1", "row_shr:2", "row_shr:4", "row_shr:8"):
            a(f"s_nop 1\nv_add_f32_dpp v{v}, v{v}, v{v} {m} row_mask:0xf bank_mask:0xf bound_ctrl:1")
        a(f"s_nop 1\nv_add_f32_dpp v{v}, v{v}, v{v} row_bcast:15 row_mask:0xa bank_mask:0xf")
        a(f"s_nop 1\nv_add_f32_dpp v{v}, v{v}, v{v} row_bcast:31 row_mask:0xc bank_mask:0xf")
        a(f"s_nop 0\nv_readlane_b32 s{sdst}, v{v}, 63\ns_nop 1")

    def divmod_const(self, vq, vr, vx, c, vt):
        m = (1 << 20) // c + 1
        for x in range(2048):
            assert (x * m) >> 20 == x // c
        assert 2047 * m < (1 << 32) and m < (1 << 24)
        self(f"v_mul_u32_u24 v{vq}, {m}, v{vx}\nv_lshrrev_b32 v{vq}, 20, v{vq}")
        self(f"v_mul_u32_u24 v{vt}, {c}, v{vq}\nv_sub_u32 v{vr}, v{vx}, v{vt}")

    def tr0(self):
        if self.o.get("trace"): self("s_memtime s[92:93]")
    def tr1(self, i):
        if self.o.get("trace"): self(f"s_waitcnt lgkmcnt(0)\nv_writelane_b32 v200, s92, {i}")
    def save_stamps(self):
        if self.o["stamps"]:
            self("s_waitcnt lgkmcnt(0)")
            for i in range(16): self(f"v_writelane_b32 v9, s{sST+2*i}, {i}")
    def restore_stamps(self):
        if self.o["stamps"]:
            for i in range(16): self(f"v_readlane_b32 s{sST+2*i}, v9, {i}")

    def spoll_issue(self, sbase, parts, glc=" glc"):
        for d, w, off in parts:
            dst = f"s{d}" if w == 1 else f"s[{d}:{d+w-1}]"
            self(f"s_load_dword{'' if w == 1 else 'x'+str(w)} {dst}, s[{sbase}:{sbase+1}], {off}{glc}")

    def spoll_check(self, sbase, parts, regs):
        a = self
        lp, done = a.label("poll"), a.label("polld")
        a(f"s_mov_b32 s48, {self.o['spin']}")
        a(f"{lp}:\ns_waitcnt lgkmcnt(0)")
        pairs = [r for r in regs if r % 2 == 0 and r + 1 in regs]
        single = [r for r in regs if r not in pairs and r - 1 not in pairs]
        r0 = pairs[0]
        a(f"s_xor_b32 s49, s{r0}, s{sTAG}\ns_xor_b32 s3, s{r0+1}, s{sTAG}\ns_or_b32 s49, s49, s3")
        for r in single:
            a(f"s_xor_b32 s3, s{r}, s{sTAG}\ns_or_b32 s49, s49, s3")
        for r in pairs[1:]:
            a(f"s_cmp_lg_u64 s[{r}:{r+1}], s[{r0}:{r0+1}]\ns_cselect_b32 s49, 1, s49")
        a(f"s_cmp_eq_u32 s49, 0\ns_cbranch_scc1 {done}")
        a(f"s_sub_u32 s48, s48, 1\ns_cmp_eq_u32 s48, 0\ns_cbranch_scc1 {done}")
        self.spoll_issue(sbase, parts)
        a(f"s_branch {lp}\n{done}:")

    def spoll(self, soff, parts, regs, first_plain=False):
        self(f"s_add_u32 s50, s{rWS}, {soff}\ns_addc_u32 s51, s{rWS+1}, 0")
        self.spoll_issue(50, parts, "" if first_plain else " glc")
        self.spoll_check(50, parts, regs)

    def set_flag(self, soff, vt):
        a = self
        a(f"v_mov_b32 v{vt}, s{sTAG}\ns_mov_b64 exec, 1")
        a(f"buffer_store_dword v{vt}, off, {srd(rWS)}, {soff} sc1")
        a("s_mov_b64 exec, -1")

    def set_flags(self, soff, vaddr, vt, nl):
        a = self
        a(f"v_mov_b32 v{vt}, s{sTAG}\ns_mov_b32 exec_lo, {hex((1 << nl) - 1)}\ns_mov_b32 exec_hi, 0")
        a(f"buffer_store_dword v{vt}, v{vaddr}, {srd(rWS)}, {soff} offen sc1")
        a("s_mov_b64 exec, -1")

    def interleave(self, mf, ds, per_gap=2, start=0):
        ds = list(ds)
        if "m" in self.o["dbg"]: mf = mf[:1]
        if "d" in self.o["dbg"]: ds = [x for x in ds if not x.startswith("ds_")]
        for i, m in enumerate(mf):
            self(m)
            if i >= start:
                for _ in range(per_gap):
                    if ds:
                        self(ds.pop(0))
        for d in ds:
            self(d)

    def sched(self, mf, prev, ds, extra=(), waits=(0,), bar=None, tail_busy=1):
        a = self
        ds, extra = list(ds), list(extra)
        if "d" in self.o["dbg"]: ds = []
        n = len(mf)
        waits = sorted(set(waits))
        npre = [(1 if i in waits or (bar and bar[0] == i and bar[1]) else 0) + (1 if bar and bar[0] == i else 0) for i in range(n)] + [tail_busy]
        first = bar[0] if bar else 0
        cnt = [0] * n
        free = [g for g in range(first, n) if npre[g + 1] < 2]
        k = len(ds)
        for g in free[:k]: cnt[g] = 1
        k -= min(k, len(free))
        for g in sorted(range(first, n), key=lambda g: (cnt[g] * 2 + npre[g + 1], g)):
            if k: cnt[g] += 1; k -= 1
        assert k == 0
        new = 0
        for i, (t, need) in enumerate(mf):
            if bar and bar[0] == i and bar[1]:
                a("s_waitcnt lgkmcnt(0)")
            elif i in waits:
                nxt = [w for w in waits if w > i]
                end = nxt[0] if nxt else n
                idx = max(prev.index(x) for k_ in range(i, end) for x in mf[k_][1])
                a(f"s_waitcnt lgkmcnt({min(14, len(prev) - 1 - idx + new)})")
            if bar and bar[0] == i: a("s_barrier")
            if not ("m" in self.o["dbg"] and i): a(t)
            for _ in range(cnt[i]):
                a(ds.pop(0)[0]); new += 1
            room = 3 - 2 * cnt[i] - npre[i + 1]
            while extra and room > 0:
                a(extra.pop(0)); room -= 1
        for e in extra: a(e)

    def linear(self, mf, place, pre, order, look=3, soft=(), tail_busy=1):
        a = self
        order = list(order)
        known = -1
        waits = {}
        for i, (t, need, acc, kind) in enumerate(mf):
            if "s_waitcnt lgkmcnt(0)" in pre.get(i, []): known = len(order) - 1
            if max(order.index(x) for x in need) > known:
                idx = max(order.index(x) for k in range(i, min(i + look, len(mf))) for x in mf[k][1] if x in order)
                waits[i] = min(14, len(order) - 1 - idx)
                known = len(order) - 1 - waits[i]
            order += [id_ for x, id_ in place.get(i, []) if id_]
        soft = list(soft)
        cnt = [0]
        last = {}
        def em(t):
            a(t); cnt[0] += len(t.split("\n"))
        for i, (t, need, acc, kind) in enumerate(mf):
            for x in pre.get(i, []): em(x)
            if i in waits: em(f"s_waitcnt lgkmcnt({waits[i]})")
            if acc in last and last[acc][1] != kind and cnt[0] - last[acc][0] < 6:
                em(f"s_nop {5 - (cnt[0] - last[acc][0])}")
            em(t); last[acc] = (cnt[0], kind)
            room = 3 - len(pre.get(i + 1, [])) - (1 if i + 1 in waits else 0) - (tail_busy if i + 1 == len(mf) else 0)
            for x, id_ in place.get(i, []):
                em(x); room -= 2 if id_ else 1
            while soft and soft[0][0] <= i and (room > 0 or soft[0][1] <= i):
                em(soft.pop(0)[2]); room -= 1
        assert not soft

    def gelu(self, regs, cA, cB, tmp, out, group=4):
        a = self
        for g0 in range(0, len(regs), group):
            rs = regs[g0:g0 + group]
            T = lambda i: f"v[{tmp+2*i}:{tmp+2*i+1}]"
            R = lambda r: f"v[{r}:{r+1}]"
            for i, r in enumerate(rs): a(f"v_pk_mul_f32 {T(i)}, {R(r)}, {R(r)}")
            for i, r in enumerate(rs): a(f"v_pk_fma_f32 {T(i)}, {T(i)}, {R(cA)}, {R(cB)}")
            for i, r in enumerate(rs): a(f"v_pk_mul_f32 {T(i)}, {T(i)}, {R(r)}")
            for i, r in enumerate(rs): a(f"v_exp_f32 v{tmp+2*i}, v{tmp+2*i}\nv_exp_f32 v{tmp+2*i+1}, v{tmp+2*i+1}")
            for i, r in enumerate(rs): a(f"v_pk_add_f32 {T(i)}, {T(i)}, 1.0 op_sel_hi:[1,0]")
            for i, r in enumerate(rs): a(f"v_rcp_f32 v{tmp+2*i}, v{tmp+2*i}\nv_rcp_f32 v{tmp+2*i+1}, v{tmp+2*i+1}")
            for i, r in enumerate(rs): a(f"v_pk_mul_f32 {T(i)}, {T(i)}, {R(r)}")
            for i, r in enumerate(rs): a(f"v_cvt_pk_bf16_f32 v{out[g0+i]}, v{tmp+2*i}, v{tmp+2*i+1}")
            yield g0

    def gelu_consts(self, cA, cB):
        c = 0.7978845608028654
        for i in range(2):
            self(f"v_mov_b32 v{cA+i}, {fhex(-2*c*0.044715*LOG2E)}\nv_mov_b32 v{cB+i}, {fhex(-2*c*LOG2E)}")

    def entry(self):
        a = self
        a.kernel(KNAME)
        if self.o["stamps"]:
            for i in range(1, 16): a(f"s_mov_b32 s{sST+2*i}, 0")
        a.stamp(0)
        a.load_ptr("x", rX); a.load_ptr("ws", rWS)
        a("s_cmp_ge_u32 s2, 256\ns_cbranch_scc1 L_end")
        a(f"v_readfirstlane_b32 s{sWAVE}, v0\ns_lshr_b32 s{sIDX}, s2, 3\nv_and_b32 v0, 63, v0")
        if self.o["pf_code"]:
            NL = 17
            a(f"s_cmp_lg_u32 s{sWAVE}, 0\ns_cbranch_scc1 L_nopf\ns_getpc_b64 s[50:51]\nL_pc0:")
            a(f"s_mul_i32 s48, s{sIDX}, {128*NL}\ns_min_u32 s48, s48, L_code_end-L_pc0-{128*(31+NL)+4}\nv_min_u32 v254, {31+NL}, v0\nv_lshrrev_b32 v253, 5, v0")
            a("v_lshlrev_b32 v254, 7, v254\nv_mad_u32_u24 v254, v253, s48, v254\nglobal_load_dword v255, v254, s[50:51]\nL_nopf:")
        a(f"s_lshr_b32 s{sWAVE}, s{sWAVE}, 6\ns_and_b32 s{sXCD}, s2, 7")
        a(f"s_lshl_b32 s53, s{sXCD}, 5\ns_add_u32 s53, s53, s{sIDX}\ns_lshl_b32 s3, s53, 3\ns_add_u32 s3, s3, s{sWAVE}\ns_mul_i32 s3, s3, 1152")
        a.srd_finish("x", rX)
        a("v_lshlrev_b32 v1, 3, v0\nv_lshlrev_b32 v7, 1, v0")
        a("s_waitcnt lgkmcnt(0)")
        a(f"buffer_load_dwordx2 v[2:3], v1, {srd(rX)}, s3 offen")
        a(f"buffer_load_dwordx2 v[4:5], v1, {srd(rX)}, s3 offen offset:512")
        a(f"buffer_load_ushort v6, v7, {srd(rX)}, s3 offen offset:1024")
        rest = (("w1", rW1), ("wqkv", rWQKV), ("wphi", rWPHI), ("wo", rWO), ("b1", rB1), ("w2", rW2), ("b2", rB2), ("out", rOUT))
        for n, r in rest: a.load_ptr(n, r)
        for n, r in (("ws", rWS),) + rest: a.srd_finish(n, r)
        a("s_waitcnt lgkmcnt(0)")
        a(f"s_load_dword s{sTAG}, s[{rWS}:{rWS+1}], {EPOCH}")
        a(f"s_getpc_b64 s[50:51]\nL_pc1:\ns_lshl_b32 s3, s{sXCD}, 3\ns_add_u32 s3, s3, order_table-L_pc1\ns_load_dwordx2 s[100:101], s[50:51], s3")
        a(f"s_mul_i32 s3, s{sWAVE}, {LN_PITCH}\ns_add_u32 s3, s3, {LN_SCR}")
        a("v_add_u32 v8, s3, v1\nv_add_u32 v9, s3, v7")
        a(f"s_lshl_b32 s3, s{sWAVE}, 2\ns_add_u32 s3, s3, {LN_S2}\nv_mov_b32 v25, s3\nv_mov_b32 v24, {fhex(1e-5)}\nv_mov_b32 v26, {fhex(-1.0/D)}\nv_mov_b32 v27, {fhex(1.0/D)}")
        a("v_bfe_u32 v60, v0, 2, 2\nv_lshrrev_b32 v61, 4, v0\nv_and_b32 v62, 3, v0")
        a(f"v_mul_u32_u24 v60, {LN_PITCH}, v60\nv_lshlrev_b32 v61, 5, v61\nv_lshlrev_b32 v62, 3, v62")
        a(f"v_add3_u32 v60, v60, v61, v62\nv_add_u32 v60, {LN_SCR}, v60")
        a(f"v_and_b32 v61, 7, v0\nv_lshlrev_b32 v61, 2, v61\nv_add_u32 v62, {LN_S2}, v61\nv_lshlrev_b32 v63, 4, v0\nv_lshlrev_b32 v64, 9, v0")
        a(f"s_mul_i32 s56, s53, 9216\ns_add_u32 s56, s56, {HT}\ns_add_u32 s57, s56, 4096\ns_add_u32 s58, s56, 8192\ns_lshl_b32 s59, s53, 5\ns_add_u32 s59, s59, {S2}")
        a(f"s_lshr_b32 s60, s{sIDX}, 3\ns_lshl_b32 s60, s60, 7\ns_and_b32 s48, s{sIDX}, 7\ns_lshl_b32 s48, s48, 2\ns_add_u32 s60, s60, s48\ns_lshl_b32 s48, s{sXCD}, 14\ns_add_u32 s60, s60, s48\ns_add_u32 s60, s60, {FLA}")
        self.early_prefetch()
        self.ln_compute()
        a(f"s_cmp_lg_u32 s{sWAVE}, 0\ns_cbranch_scc1 L_ln_done")
        self.ln_publish()
        a("L_ln_done:")
        a.stamp(2)
        a(f"s_cmp_ge_u32 s{sIDX}, 24\ns_cbranch_scc1 L_att")
        a(f"s_cmp_ge_u32 s{sWAVE}, 4\ns_cbranch_scc1 L_aux")

    def ln_compute(self):
        a = self
        a.stamp(1)
        for i in range(4):
            a(f"v_lshlrev_b32 v{10+2*i}, 16, v{2+i}\nv_and_b32 v{11+2*i}, 0xffff0000, v{2+i}")
        a("v_lshlrev_b32 v18, 16, v6")
        a("v_pk_add_f32 v[20:21], v[10:11], v[12:13]\nv_pk_add_f32 v[22:23], v[14:15], v[16:17]")
        a("v_pk_add_f32 v[20:21], v[20:21], v[22:23]\nv_add_f32 v20, v20, v18\nv_add_f32 v20, v20, v21")
        a.wave_sum(20, 48)
        a("v_mul_f32 v20, s48, v26")
        for i in range(4):
            a(f"v_pk_add_f32 v[{10+2*i}:{11+2*i}], v[{10+2*i}:{11+2*i}], v[20:21] op_sel_hi:[1,0]")
        a("v_add_f32 v18, v18, v20")
        a("v_pk_mul_f32 v[20:21], v[10:11], v[10:11]\nv_pk_mul_f32 v[22:23], v[12:13], v[12:13]")
        a("v_pk_fma_f32 v[20:21], v[14:15], v[14:15], v[20:21]\nv_pk_fma_f32 v[22:23], v[16:17], v[16:17], v[22:23]")
        a("v_pk_add_f32 v[20:21], v[20:21], v[22:23]\nv_fmac_f32 v20, v18, v18\nv_add_f32 v20, v20, v21")
        a.wave_sum(20, 48)
        a("v_mul_f32 v20, s48, v27\nv_add_f32 v21, v20, v24\nv_rsq_f32 v21, v21\ns_nop 0\nv_mul_f32 v22, v21, v21\nv_fma_f32 v22, v22, v20, v24")
        a("v_rsq_f32 v23, v22\ns_nop 0\nv_mul_f32 v20, v21, v23\nv_mul_f32 v22, v22, v23")
        for i in range(4):
            a(f"v_pk_mul_f32 v[{10+2*i}:{11+2*i}], v[{10+2*i}:{11+2*i}], v[20:21] op_sel_hi:[1,0]")
        a("v_mul_f32 v18, v18, v20")
        for i in range(4):
            a(f"v_cvt_pk_bf16_f32 v{2+i}, v{10+2*i}, v{11+2*i}")
        a("v_cvt_pk_bf16_f32 v6, v18, v18")
        a("ds_write_b64 v8, v[2:3]\nds_write_b64 v8, v[4:5] offset:512\nds_write_b16 v9, v6 offset:1024\nds_write_b32 v25, v22")
        a("s_waitcnt lgkmcnt(0)")
        a("s_barrier")
        self.make_tag()

    def ln_publish(self):
        a = self
        for b in range(9):
            a(f"ds_read_b64_tr_b16 v[{12+4*b}:{13+4*b}], v60 offset:{128*b}")
            a(f"ds_read_b64_tr_b16 v[{14+4*b}:{15+4*b}], v60 offset:{128*b+4*LN_PITCH}")
            if b >= 4:
                a("s_waitcnt lgkmcnt(8)")
                a(f"buffer_store_dwordx4 v[{12+4*(b-4)}:{15+4*(b-4)}], v63, {srd(rWS)}, s{56+(b-4)//4} offen offset:{1024*((b-4)%4)} sc1")
        a("ds_read_b32 v5, v62")
        a("s_waitcnt lgkmcnt(0)")
        for b in range(5, 9):
            a(f"buffer_store_dwordx4 v[{12+4*b}:{15+4*b}], v63, {srd(rWS)}, s{56+b//4} offen offset:{1024*(b%4)} sc1")
        a("s_mov_b64 exec, 0xff")
        a(f"buffer_store_dword v5, v61, {srd(rWS)}, s59 offen sc1")
        a("s_mov_b64 exec, -1")
        a.stamp(14)
        a("s_waitcnt vmcnt(0)")
        a.set_flags("s60", 64, 2, 32)

    def make_tag(self):
        self(f"s_mul_i32 s{sTAG}, s{sTAG}, 0x9E3779B1\ns_add_u32 s{sTAG}, s{sTAG}, 0x7F4A7C15")

    def bar_pub(self):
        self("s_barrier")

    def touch_pattern(self, vdst, R, stride, seg3=False):
        a = self
        a.divmod_const(vdst, vdst + 1, 0, 9, vdst + 2)
        a(f"v_min_u32 v{vdst}, {R-1}, v{vdst}\nv_mul_u32_u24 v{vdst}, {stride}, v{vdst}")
        if not seg3:
            a(f"v_lshl_add_u32 v{vdst}, v{vdst+1}, 7, v{vdst}")
        else:
            a.divmod_const(vdst + 2, vdst + 3, vdst + 1, 3, vdst + 4)
            a(f"v_mul_u32_u24 v{vdst+2}, 1152, v{vdst+2}\nv_mul_u32_u24 v{vdst+3}, 70, v{vdst+3}\nv_and_b32 v{vdst+3}, 0xfc, v{vdst+3}")
            a(f"v_add3_u32 v{vdst}, v{vdst}, v{vdst+2}, v{vdst+3}")

    def touch_w1(self, vpat, sid, R, row0, dst=None):
        a = self
        a(f"s_mul_i32 s3, {sid}, {R}\ns_add_u32 s3, s3, {row0}\ns_and_b32 s48, s{sXCD}, {self.o['rot']}\ns_lshl_b32 s48, s48, 8\ns_add_u32 s3, s3, s48\ns_and_b32 s3, s3, 2047")
        a(f"s_min_u32 s3, s3, {2048-R}\ns_mul_i32 s3, s3, 9216\ns_mul_i32 s48, s{sXCD}, 1152\ns_add_u32 s3, s3, s48")
        a(f"buffer_load_dword v{dst or vpat+5}, v{vpat}, {srd(rW1)}, s3 offen")

    def touch_wqkv(self, vpat, sid, R, row0, dst=None):
        a = self
        a(f"s_mul_i32 s3, {sid}, {R}\ns_add_u32 s3, s3, {row0}\ns_min_u32 s3, s3, {576-R}\ns_mul_i32 s3, s3, 3456\ns_mul_i32 s48, s{sXCD}, 144\ns_add_u32 s3, s3, s48")
        a(f"buffer_load_dword v{dst or vpat+5}, v{vpat}, {srd(rWQKV)}, s3 offen")

    def early_prefetch(self):
        a = self
        o = self.o
        n = o["w1a"] + o["wqa"]
        if not n:
            a("s_waitcnt vmcnt(0)"); return
        a(f"s_cmp_eq_u32 s{sWAVE}, 7\ns_cbranch_scc1 L_t0\ns_waitcnt vmcnt(0)\ns_branch L_t0c\nL_t0:")
        if o["wqa"]:
            a.divmod_const(80, 81, 0, 6, 82)
            a("v_min_u32 v80, 8, v80\nv_mul_u32_u24 v80, 3456, v80\nv_lshrrev_b32 v82, 1, v81\nv_mul_u32_u24 v82, 1152, v82\nv_and_b32 v81, 1, v81\nv_mul_u32_u24 v81, 140, v81\nv_add3_u32 v80, v80, v81, v82")
            for k in range(o["wqa"]):
                self.touch_wqkv(80, f"s{sIDX}", 9, 288 * k, 255)
        if o["w1a"]:
            self.touch_pattern(248, 7, 9216)
            for k in range(o["w1a"]):
                self.touch_w1(248, f"s{sIDX}", 7, 224 * k, 255)
        a(f"s_waitcnt vmcnt({n})\nL_t0c:")

    A_PARTS = [(64 + 8 * i, 8, 128 * i) for i in range(4)]
    A_REGS = list(range(64, 96))
    def A_addr(self, sg, rep=f"s{sIDX}"):
        self(f"s_lshl_b32 s52, {sg}, 5\ns_add_u32 s52, s52, {rep}\ns_lshl_b32 s52, s52, 9\ns_add_u32 s52, s52, {FLA}\ns_add_u32 s50, s{rWS}, s52\ns_addc_u32 s51, s{rWS+1}, 0")
    def wait_A_group(self, sg, rep=f"s{sIDX}"):
        self.A_addr(sg, rep)
        self.spoll_issue(50, self.A_PARTS)
        self.spoll_check(50, self.A_PARTS, self.A_REGS)

    def g1_ids(self):
        self(f"s_and_b32 s54, s{sIDX}, 3\ns_and_b32 s3, s{sIDX}, 28\ns_and_b32 s55, s{sIDX}, 16\ns_add_u32 s3, s3, s55\ns_lshr_b64 s[48:49], s[100:101], s3\ns_and_b32 s55, s48, 15")
        self(f"s_lshr_b32 s3, s{sXCD}, 1\ns_mul_i32 s3, s3, 12\ns_add_u32 s55, s55, s3")

    def ord_row(self, dst, src, t0=48):
        return [f"s_mul_i32 s{dst}, {src}, 683", f"s_lshr_b32 s{dst}, s{dst}, 16", f"s_lshl_b32 s{t0}, s{dst}, 2", f"s_lshr_b64 s[{t0}:{t0+1}], s[100:101], s{t0}",
                f"s_and_b32 s{t0}, s{t0}, 15", f"s_sub_i32 s{dst}, s{t0}, s{dst}", f"s_mul_i32 s{dst}, s{dst}, 96", f"s_add_i32 s{dst}, s{dst}, {src}"]

    def g2_ids(self):
        a = self
        a(f"s_lshr_b32 s58, s{sXCD}, 1\ns_mul_i32 s60, s{sIDX}, 43\ns_lshr_b32 s60, s60, 7\ns_mul_i32 s3, s60, 3\ns_sub_u32 s59, s{sIDX}, s3")
        a(f"s_and_b32 s3, s{sXCD}, 1\ns_lshl_b32 s3, s3, 3\ns_add_u32 s60, s60, s3")

    def mlp_compute(self):
        a = self
        ACC, SH = 16, 64
        P, Q = 80, 120
        b = ((1, 2, 3), (4, 8, 9))
        c = (5, 6, 7)
        self.bar_pub()
        self.g1_ids()
        a("v_lshrrev_b32 v9, 4, v0\nv_lshlrev_b32 v10, 3, v9\ns_mul_i32 s3, s55, 192")
        for t in range(6):
            a(f"buffer_load_dwordx2 v[{P+2*t}:{P+2*t+1}], v10, {srd(rB1)}, s3 offen offset:{32*t}")
        a("v_bfe_u32 v11, v0, 2, 2\nv_lshl_add_u32 v11, v9, 3, v11\nv_mul_u32_u24 v11, 192, v11")
        a("v_and_b32 v12, 3, v0\nv_lshl_add_u32 v11, v12, 3, v11")
        a(f"v_add_u32 v11, {G1_W}, v11\nv_and_b32 v12, 1, v9\nv_lshlrev_b32 v12, 5, v12")
        a(f"v_add_u32 v{c[0]}, v11, v12\nv_sub_u32 v{c[1]}, v11, v12\nv_add_u32 v{c[1]}, 32, v{c[1]}")
        a(f"v_mul_u32_u24 v11, 2304, v9\nv_and_b32 v12, 15, v0\nv_lshl_add_u32 v11, v12, 4, v11")
        a(f"v_mov_b32 v{c[2]}, v11")
        self.precompute_tail()
        a(f"v_mov_b32 v190, {CNT}\nv_mov_b32 v191, 0\nds_write_b32 v190, v191")
        a("s_barrier")
        a.stamp(3)
        a("s_waitcnt vmcnt(0) lgkmcnt(0)")
        for t in range(6):
            for h in range(2):
                a(f"v_lshlrev_b32 v{ACC+4*t+2*h}, 16, v{P+2*t+h}\nv_and_b32 v{ACC+4*t+2*h+1}, 0xffff0000, v{P+2*t+h}")
        for i in range(24):
            a(f"v_mov_b32 v{ACC+24+i}, v{ACC+i}")
        for w in range(4):
            if w < 3:
                a(f"s_cmp_lg_u32 s{sWAVE}, {w}\ns_cbranch_scc1 L_g1_w{w+1}")
            self.g1_loop(w, ACC, SH, P, Q, b, c)
            if w < 3:
                a(f"s_branch L_g1_done\nL_g1_w{w+1}:")
        a("L_g1_done:")
        a.stamp(5)
        self.g1_epilogue(ACC, SH, P, Q)
        self.g2_compute()

    vOUT, vSHW, vUST, vB2, vFB = 15, 13, 14, 12, 11
    cU, cW, cO, cP = 176, 177, 181, 184
    cGA, cGB = 76, 78
    def precompute_tail(self):
        a = self
        self.g2_ids()
        a(f"s_mul_i32 s3, s{sWAVE}, 3072\ns_add_u32 s3, s3, {SH_SCR}\nv_lshl_add_u32 v{self.vSHW}, v0, 4, s3")
        a(f"s_and_b32 s3, s{sWAVE}, 1\ns_lshl_b32 s3, s3, 2\ns_add_u32 s3, s3, s58\ns_lshl_b32 s3, s3, 4\ns_lshl_b32 s48, s60, 7\ns_add_u32 s61, s3, s48")
        a(f"s_lshr_b32 s3, s{sWAVE}, 1\ns_lshl_b32 s48, s59, 1\ns_add_u32 s3, s3, s48\ns_mul_i32 s3, s3, 192\ns_mul_i32 s62, s61, 1152\ns_add_u32 s62, s62, s3")
        a("s_lshl_b32 s61, s61, 1")
        a(f"v_and_b32 v190, 15, v0\nv_lshrrev_b32 v191, 4, v0\nv_bfe_u32 v192, v0, 2, 2\nv_and_b32 v193, 3, v0")
        a(f"v_mul_u32_u24 v{self.vOUT}, 1152, v190\nv_lshl_add_u32 v{self.vOUT}, v191, 4, v{self.vOUT}\nv_lshlrev_b32 v{self.vB2}, 1, v190")
        a(f"v_mul_u32_u24 v{self.vUST}, 9216, v191\nv_lshl_add_u32 v{self.vUST}, v190, 4, v{self.vUST}")
        a(f"s_mul_i32 s96, s55, {12*9216}\ns_mul_i32 s3, s54, 2304\ns_add_u32 s96, s96, s3\ns_lshl_b32 s3, s{sWAVE}, 9\ns_add_u32 s96, s96, s3\ns_add_u32 s96, s96, {U}")
        a(f"s_add_u32 s97, s96, {4*9216}\ns_add_u32 s98, s96, {8*9216}")
        a(f"s_mul_i32 s53, s58, {48*512}\ns_and_b32 s3, s{sXCD}, 1\ns_lshl_b32 s3, s3, 7\ns_add_u32 s53, s53, s3\ns_and_b32 s3, s{sIDX}, 28\ns_add_u32 s53, s53, s3\ns_add_u32 s53, s53, {FLB}")
        a(f"v_sub_u32 v194, s54, v191\nv_lshl_add_u32 v195, v194, 4, v190\nv_lshlrev_b32 v195, 9, v195\nv_lshl_add_u32 v195, v191, 8, v195")
        a(f"v_cmp_gt_u32 vcc, 3, v194\nv_mov_b32 v196, {OOB}\ns_nop 0\nv_cndmask_b32 v{self.vFB}, v196, v195, vcc")
        a(f"s_mul_i32 s56, s60, 3\ns_add_u32 s56, s56, s59")
        a(f"s_lshl_b32 s3, s56, 4\ns_add_u32 s3, s3, s{sWAVE}\ns_lshl_b32 s3, s3, 7\ns_add_u32 s99, s3, {FLX}\ns_lshl_b32 s3, s58, 9\ns_add_u32 s52, s3, s99")
        a(f"s_add_u32 s50, s{rWS}, s52\ns_addc_u32 s51, s{rWS+1}, 0\ns_load_dword s52, s[50:51], 0 glc")
        a.gelu_consts(self.cGA, self.cGB)
        cU, cW, cO = self.cU, self.cW, self.cO
        a(f"v_mul_u32_u24 v{cU}, {G2_PITCH}, v191\nv_lshl_add_u32 v{cU}, v192, 7, v{cU}\nv_lshl_add_u32 v{cU}, v193, 4, v{cU}")
        a(f"s_lshr_b32 s3, s{sWAVE}, 1\ns_mul_i32 s3, s3, 1536\nv_add_u32 v{cU}, s3, v{cU}")
        a("v_lshl_add_u32 v194, v191, 2, v192")
        a(f"v_lshlrev_b32 v195, 8, v194\nv_lshl_add_u32 v195, v193, 3, v195\nv_add_u32 v195, {G2_W[0]}, v195\nv_and_b32 v196, 7, v194")
        for j in range(4):
            a(f"s_add_u32 s3, s58, {j}\ns_and_b32 s3, s3, 3\ns_and_b32 s48, s{sWAVE}, 1\ns_lshl_b32 s48, s48, 2\ns_add_u32 s3, s3, s48")
            a(f"v_xor_b32 v197, s3, v196\nv_lshl_add_u32 v{cW+j}, v197, 5, v195")
        a(f"s_and_b32 s3, s{sWAVE}, 1\ns_mul_i32 s3, s3, {2*OI_P}\ns_add_u32 s3, s3, {OI}\nv_lshrrev_b32 v195, 1, v193\nv_mul_u32_u24 v195, {OI_P}, v195\nv_lshl_add_u32 v195, v194, 4, v195")
        a(f"v_and_b32 v196, 1, v193\nv_lshlrev_b32 v196, 3, v196\nv_add3_u32 v{self.cP}, v195, v196, s3")
        a("v_mul_u32_u24 v195, 384, v194\nv_lshl_add_u32 v195, v193, 4, v195\nv_bfe_u32 v196, v194, 1, 1")
        for p in range(3):
            a(f"s_lshr_b32 s3, s{sWAVE}, 1\ns_mul_i32 s3, s3, 3\ns_add_u32 s3, s3, {p}")
            a(f"v_xor_b32 v197, s3, v196\nv_lshl_add_u32 v{cO+p}, v197, 6, v195")

    def g1_loop(self, w, ACC, SH, P, Q, b, c):
        a = self
        t0, ks = 3 * (w >> 1), w & 1
        for i in range(12):
            a(f"v_mov_b32 v{SH+i}, v{ACC+4*t0+i}" if ks == 0 else f"v_mov_b32 v{SH+i}, 0")
        def reads(st, k, bb):
            bA0, bA1, bB = bb
            rb = lambda j: (f"ds_read_b128 v[{st+24+4*j}:{st+27+4*j}], v{bB} offset:{k*9216+256*j+512*w}", f"B{j}")
            ra = lambda t, rho: (f"ds_read_b64_tr_b16 v[{st+4*t+2*rho}:{st+4*t+2*rho+1}], v{bA1 if t & 1 else bA0} offset:{k*6144+rho*768+(t>>1)*64}", f"A{t}{rho}")
            r = [rb(0), ra(0, 0), ra(0, 1), rb(1)]
            for t in range(1, 6): r += [ra(t, 0), ra(t, 1)]
            if k == ks:
                r.append((f"ds_read_b128 v[{st+32}:{st+35}], v{bB} offset:{k*9216+2048}", "S"))
            return r
        ids = lambda k: [x[1] for x in reads(P, k, b[0])]
        def mfmas(st, k):
            m = []
            for t in range(6):
                for j in ((1, 0) if (self.o["snake"] and t & 1) else (0, 1)):
                    d = ACC + 24 * j + 4 * t
                    m.append((f"v_mfma_f32_16x16x32_bf16 v[{d}:{d+3}], v[{st+4*t}:{st+4*t+3}], v[{st+24+4*j}:{st+27+4*j}], v[{d}:{d+3}]", [f"A{t}1", f"B{j}"]))
            if k == ks:
                for i in range(3):
                    d = SH + 4 * i
                    m.append((f"v_mfma_f32_16x16x32_bf16 v[{d}:{d+3}], v[{st+4*(t0+i)}:{st+4*(t0+i)+3}], v[{st+32}:{st+35}], v[{d}:{d+3}]", ["S"]))
            return m
        W = tuple(self.o.get("w1w", (0, 2, 6, 10)))
        sadv = [f"s_add_u32 s56, s56, {G1_SLOT}", f"s_cmp_eq_u32 s56, {G1_SLOT*G1_NS}", "s_cselect_b32 s56, 0, s56"]
        def stage(par, last=False, tail=()):
            cur, nx = b[par], b[par ^ 1]
            vadv = [f"v_add_u32 v{x}, s56, v{y}" for x, y in zip(nx, c)]
            a.sched(mfmas(P, 0), ids(0), reads(Q, 1, cur), extra=() if last else vadv, waits=W, tail_busy=2)
            if not last:
                a.sched(mfmas(Q, 1), ids(1), reads(P, 0, nx), extra=sadv + list(tail), waits=W, bar=(0, False), tail_busy=2 if tail else 1)
            else:
                m = mfmas(Q, 1)
                a("s_waitcnt lgkmcnt(0)")
                for x in m[12:] + m[:12]: a(x[0])
        for x, y in zip(b[0], c):
            a(f"v_mov_b32 v{x}, v{y}")
        UN = self.o["un1"]
        assert UN % 2 == 0
        nl = 31 // UN
        a(f"s_mov_b32 s56, {G1_SLOT}\ns_mov_b32 s57, {nl}")
        a("s_barrier")
        a.stamp(4)
        if self.o["stamps"]: a("s_waitcnt lgkmcnt(0)")
        for r in reads(P, 0, b[0]): a(r[0])
        lp = a.label("g1")
        a(f"{lp}:")
        for u in range(UN):
            stage(u & 1, tail=("s_sub_u32 s57, s57, 1", "s_cmp_lg_u32 s57, 0") if u == UN - 1 else ())
        a(f"s_cbranch_scc1 {lp}")
        XR = 160
        xl = [f"buffer_load_dwordx4 v[{XR+4*p}:{XR+4*p+3}], v{self.vOUT}, {srd(rX)}, s62 offen offset:{64*p}" for p in range(3)]
        xl.append(f"buffer_load_ushort v{XR+12}, v{self.vB2}, {srd(rB2)}, s61 offen")
        for u in range(31 - nl * UN): stage(u & 1, tail=xl if u == 30 - nl * UN else ())
        stage(1, last=True)

    def g1_epilogue(self, ACC, SH, P, Q):
        a = self
        XR = 160
        for i in range(3):
            a(f"ds_write_b128 v{self.vSHW}, v[{SH+4*i}:{SH+4*i+3}] offset:{1024*i}")
        a("s_waitcnt lgkmcnt(0)\ns_barrier")
        regs = [ACC + 2 * i for i in range(24)]
        out = [P + i for i in range(24)]
        a.align8()
        for g0 in a.gelu(regs, self.cGA, self.cGB, Q, out):
            n = g0 // 4
            j, p = n // 3, n % 3
            a(f"buffer_store_dwordx4 v[{P+g0}:{P+g0+3}], v{self.vUST}, {srd(rWS)}, s{96+p} offen offset:{256*j} sc1")
        a("s_barrier")
        a.stamp(6)

    def g2_compute(self):
        a = self
        XR = 160
        ACC = 16
        P, Q = 176, 216
        bU, bU2, bW, bO, bO2, bP = 1, 2, 3, 112, 115, 118
        tW, tR, tG = 7, 122, 12
        a(f"v_mov_b32 v{bU}, v{self.cU}\nv_add_u32 v{bU2}, {G2_U[2]}, v{self.cU}\nv_mov_b32 v{bP}, v{self.cP}")
        for j in range(4): a(f"v_mov_b32 v{bW+j}, v{self.cW+j}")
        for p in range(3): a(f"v_mov_b32 v{bO+p}, v{self.cO+p}\nv_add_u32 v{bO2+p}, {WO_AT[4]}, v{self.cO+p}")
        a("s_waitcnt vmcnt(6)")
        a(f"v_lshlrev_b32 v{XR+12}, 16, v{XR+12}")
        for i in range(12):
            a(f"v_lshlrev_b32 v{ACC+2*i}, 16, v{XR+i}\nv_and_b32 v{ACC+2*i+1}, 0xffff0000, v{XR+i}")
        for i in range(12):
            a(f"v_pk_add_f32 v[{ACC+2*i}:{ACC+2*i+1}], v[{ACC+2*i}:{ACC+2*i+1}], v[{XR+12}:{XR+13}] op_sel_hi:[1,0]")
        for i in range(24, 96):
            a(f"v_mov_b32 v{ACC+i}, 0")
        a(f"v_mov_b32 v119, {CNT}\nv_mov_b32 v120, 1\ns_mov_b64 exec, 1\ns_waitcnt vmcnt(0) lgkmcnt(0)\nds_add_rtn_u32 v120, v119, v120\ns_waitcnt lgkmcnt(0)")
        a("v_readfirstlane_b32 s3, v120\ns_mov_b64 exec, -1\ns_cmp_lg_u32 s3, 3\ns_cbranch_scc1 L_noflagB")
        a.set_flags("s53", self.vFB, 121, 32)
        a("L_noflagB:")
        a.stamp(7)
        a(f"s_mul_i32 s56, s60, 3\ns_add_u32 s56, s56, s59\ns_lshl_b32 s56, s56, 2")
        a(f"v_lshlrev_b32 v8, 4, v0\ns_mul_i32 s63, s{sWAVE}, 3072\ns_add_u32 s63, s63, {EX}\nv_mov_b32 v9, s{sTAG}")
        for j in range(1, 4):
            a(f"s_add_u32 s3, s58, {j}\ns_and_b32 s3, s3, 3\ns_lshl_b32 s48, s3, 9\ns_add_u32 s48, s48, s99\ns_add_u32 s{52+j}, s48, {4*(j-1)}")
            a(f"s_add_u32 s3, s3, s56\ns_mul_i32 s3, s3, 36864\ns_add_u32 s3, s3, s63\ns_add_u32 s{95+j}, s3, {(j-1)*12288}")
        a(f"s_add_u32 s48, s56, s58\ns_mul_i32 s48, s48, 36864\ns_add_u32 s63, s63, s48")
        a(f"s_mul_i32 s3, s{sWAVE}, 3328\ns_add_u32 s3, s3, {TO_SCR}\nv_and_b32 v{tW}, 15, v0\nv_mul_u32_u24 v{tW}, 208, v{tW}\nv_lshrrev_b32 v127, 4, v0\nv_lshlrev_b32 v127, 4, v127\nv_add3_u32 v{tW}, v{tW}, v127, s3")
        for i in range(3):
            a(f"v_add_u32 v133, {64*i}, v0")
            a.divmod_const(134, 135, 133, 12, 136)
            a(f"v_lshlrev_b32 v135, 4, v135\nv_mul_u32_u24 v136, 208, v134\nv_add3_u32 v{tR+i}, v135, v136, s3\nv_mul_u32_u24 v136, 1152, v134\nv_add_u32 v{tG+i}, v135, v136")

        sets = (P, Q)
        def reads(n, tag=""):
            st, sl, k = sets[n & 1], (n >> 1) % 3, n & 1
            ou = (G2_U[sl] if sl < 2 else 0) + k * G2_US
            ow = G2_W[sl] - G2_W[0] + k * G2_WS
            rb = lambda j: [(f"ds_read_b64_tr_b16 v[{st+24+4*j+2*rho}:{st+25+4*j+2*rho}], v{bW+j} offset:{ow+rho*4096}", f"{tag}B{j}{rho}") for rho in range(2)]
            r = rb(0)
            r += [(f"ds_read_b128 v[{st+4*m}:{st+4*m+3}], v{bU if sl < 2 else bU2} offset:{ou+(m>>1)*512+(m&1)*64}", f"{tag}A{m}1") for m in range(6)]
            if self.o["snake"] == 2: return r[:3] + rb(1) + r[3:] + rb(2) + rb(3)
            return r + rb(1) + rb(2) + rb(3)
        def mfmas(n, tag=""):
            st = sets[n & 1]
            m = []
            sn = self.o["snake"]
            if sn == 2: od_ = [(2 * h + (i ^ (t & 1)), t if h == 0 else 5 - t) for h in range(2) for t in range(6) for i in range(2)]
            else: od_ = [(j, 5 - t if (sn and j & 1) else t) for j in range(4) for t in range(6)]
            for j, t in od_:
                d = ACC + 24 * j + 4 * t
                m.append((f"v_mfma_f32_16x16x32_bf16 v[{d}:{d+3}], v[{st+4*t}:{st+4*t+3}], v[{st+24+4*j}:{st+27+4*j}], v[{d}:{d+3}]", [f"{tag}A{t}1", f"{tag}B{j}1"]))
            return m
        def step(n, extra=()):
            prev = [x[1] for x in reads(n)]
            if n & 1:
                a.sched(mfmas(n), prev, reads(n + 1), extra, waits=(0, 3), bar=(3, True), tail_busy=2 if extra else 1)
            else:
                a.sched(mfmas(n), prev, reads(n + 1), extra, waits=(0, 6, 12))
        a("s_barrier")
        a.stamp(9)
        if self.o["stamps"]: a("s_waitcnt lgkmcnt(0)")
        for r in reads(0): a(r[0])
        a("s_mov_b32 s57, 5")
        lp = a.label("g2")
        a.align8()
        a(f"{lp}:")
        for n in range(6): step(n, ("s_sub_u32 s57, s57, 1", "s_cmp_lg_u32 s57, 0") if n == 5 else ())
        a(f"s_cbranch_scc1 {lp}")
        a("L_g2_tail:")
        step(30); step(31)
        AR = {0: [P + 4 * t for t in range(6)], 1: [Q + 4 * t for t in range(6)], 2: [Q + 24 + 4 * t for t in range(4)] + [164, 168],
              3: [126 + 4 * t for t in range(6)], 4: [150 + 2 * t for t in range(6)]}
        BR = {0: P + 24, 1: P + 28, 2: P + 32, 3: P + 36, 4: 162}
        def ra(e):
            base, off = (bO, WO_AT[e]) if e < 3 else (bO2, WO_AT[e] - WO_AT[4])
            return [(f"ds_read_b64_tr_b16 v[{AR[e][t]+2*rho}:{AR[e][t]+2*rho+1}], v{base+(t>>1)} offset:{off+rho*6144+(t&1)*8}", f"a{e}{t}{rho}")
                    for t in range(6) for rho in range(2 if e < 4 else 1)]
        def rb(ph, e):
            return [(f"ds_read_b64_tr_b16 v[{BR[e]+2*rho}:{BR[e]+2*rho+1}], v{bP} offset:{ph*4*OI_P+e*512+rho*256}", f"b{ph}{e}{rho}") for rho in range(2 if e < 4 else 1)]
        mf, place, pre = [], {}, {}
        def put(g, items):
            for k, x in enumerate(items): place.setdefault(g + k, []).append(x)
        for n in range(32, 36):
            mf += [(t, need, t.split(",")[0], 32) for t, need in mfmas(n, str(n))]
        mf = [(t, need, acc.split()[1], kind) for t, need, acc, kind in mf]
        early = ra(3) + ra(4)
        put(0, reads(33, "33")); put(14, early[:7])
        pre[24 + 3] = ["s_waitcnt lgkmcnt(0)", "s_barrier"]
        put(24 + 3, reads(34, "34")); put(24 + 17, early[7:14])
        put(48, reads(35, "35")); put(48 + 14, early[14:])
        put(72, ra(0))
        pre[72 + 15] = ["s_barrier"]
        put(72 + 15, rb(0, 3) + rb(0, 4) + rb(0, 0) + rb(0, 1) + rb(0, 2))
        EO = (3, 4, 0, 1, 2)
        JO = (1, 2, 3, 0)
        for ph, j in enumerate(JO):
            g0 = 96 + 30 * ph
            for e in EO:
                for t in range(6):
                    d = ACC + 24 * j + 4 * t
                    if e < 4:
                        mf.append((f"v_mfma_f32_16x16x32_bf16 v[{d}:{d+3}], v[{AR[e][t]}:{AR[e][t]+3}], v[{BR[e]}:{BR[e]+3}], v[{d}:{d+3}]", [f"a{e}{t}1", f"b{ph}{e}1"], f"v[{d}:{d+3}]", 32))
                    else:
                        mf.append((f"v_mfma_f32_16x16x16_bf16 v[{d}:{d+3}], v[{AR[e][t]}:{AR[e][t]+1}], v[{BR[e]}:{BR[e]+1}], v[{d}:{d+3}]", [f"a{e}{t}0", f"b{ph}{e}0"], f"v[{d}:{d+3}]", 16))
            if ph == 0:
                put(g0, ra(1) + ra(2))
                pre[g0 + 24] = ["s_barrier"]
                put(g0 + 24, rb(1, 3) + rb(1, 4) + rb(1, 0)); put(g0 + 30, rb(1, 1) + rb(1, 2))
            elif ph < 3:
                for k, e in enumerate(EO): put(g0 + 6 * (k + 1), rb(ph + 1, e))
            if ph > 0:
                jp = JO[ph - 1]
                r0 = ACC + 24 * jp
                g = g0 + 4
                for i in range(12):
                    while len(place.get(g, [])) >= 2: g += 1
                    place.setdefault(g, []).append((f"v_cvt_pk_bf16_f32 v{r0+i}, v{r0+2*i}, v{r0+2*i+1}", None))
                    if i % 4 == 3:
                        g += 1
                        while place.get(g): g += 1
                        place[g] = [(f"buffer_store_dwordx4 v[{r0+i-3}:{r0+i}], v8, {srd(rWS)}, s{95+jp} offen offset:{1024*(i//4)} sc1", None)]
                        g += 1
                assert g < g0 + 30
        a.linear(mf, place, pre, [x[1] for x in reads(32, "32")])
        a.stamp(10)
        parts = [(56, 4, 0)]
        a.spoll_issue(50, parts)
        a("s_mov_b64 exec, 1")
        for j in range(1, 4):
            a(f"s_waitcnt vmcnt({(6, 4, 2)[j-1]})\nbuffer_store_dword v9, off, {srd(rWS)}, s{52+j} sc1")
        a("s_mov_b64 exec, -1")
        a.stamp(11)
        IN = P
        a(f"s_mov_b32 s48, {self.o['spin']}\ns_mov_b32 s49, 0\nL_x_poll:\ns_waitcnt lgkmcnt(0)")
        for j in range(3):
            a(f"s_bitcmp1_b32 s49, {j}\ns_cbranch_scc1 L_x_no{j}\ns_cmp_lg_u32 s{56+j}, s{sTAG}\ns_cbranch_scc1 L_x_no{j}\ns_add_u32 s3, s63, {12288*j}")
            for p in range(3):
                r = IN + 12 * j + 4 * p
                a(f"buffer_load_dwordx4 v[{r}:{r+3}], v8, {srd(rWS)}, s3 offen offset:{1024*p} sc1")
            a(f"s_bitset1_b32 s49, {j}\ns_mov_b32 s60, {j}\nL_x_no{j}:")
        a("s_cmp_eq_u32 s49, 7\ns_cbranch_scc1 L_x_all\ns_sub_u32 s48, s48, 1\ns_cmp_eq_u32 s48, 0\ns_cbranch_scc1 L_x_all")
        a.spoll_issue(50, parts)
        a("s_branch L_x_poll\nL_x_all:")
        a.stamp(12)
        if self.o["dot"]: a("s_mov_b32 s56, 0x3f80\ns_mov_b32 s57, 0x3f800000")
        a("s_cmp_eq_u32 s60, 2\ns_cbranch_scc1 L_x_l2\ns_waitcnt vmcnt(0)\nL_x_l2:\ns_waitcnt vmcnt(3)")
        for j in range(3):
            if j == 2: a("s_waitcnt vmcnt(0)")
            for i in range(12):
                if self.o["dot"]:
                    a(f"v_dot2c_f32_bf16 v{ACC+2*i}, s56, v{IN+12*j+i}\nv_dot2c_f32_bf16 v{ACC+2*i+1}, s57, v{IN+12*j+i}")
                    continue
                t = 40 + 2 * (i % 4)
                a(f"v_lshlrev_b32 v{t}, 16, v{IN+12*j+i}\nv_and_b32 v{t+1}, 0xffff0000, v{IN+12*j+i}")
                a(f"v_pk_add_f32 v[{ACC+2*i}:{ACC+2*i+1}], v[{ACC+2*i}:{ACC+2*i+1}], v[{t}:{t+1}]")
        of = self.o.get('outf', 'sc1')
        for i in range(12):
            a(f"v_cvt_pk_bf16_f32 v{Q+i}, v{ACC+2*i}, v{ACC+2*i+1}")
            if self.o["tout"] and i % 4 == 3: a(f"ds_write_b128 v{tW}, v[{Q+i-3}:{Q+i}] offset:{16*(i-3)}")
        if self.o["tout"]:
            for p in range(3): a(f"ds_read_b128 v[{Q+12+4*p}:{Q+15+4*p}], v{tR+p}")
            for p in range(3):
                a(f"s_waitcnt lgkmcnt({0 if self.o['stamps'] else 2-p})\nbuffer_store_dwordx4 v[{Q+12+4*p}:{Q+15+4*p}], v{tG+p}, {srd(rOUT)}, s62 offen {of}")
        else:
            for p in range(3):
                a(f"buffer_store_dwordx4 v[{Q+4*p}:{Q+4*p+3}], v{self.vOUT}, {srd(rOUT)}, s62 offen offset:{64*p} {of}")
        a.stamp(13)
        a("s_branch L_fin")

    def latin_seq(self, l):
        Dl = self.o["latin"]
        l0 = self.o["lat0"]
        return sorted(range(32), key=lambda s_: max(s_ - Dl - 0.5, min(s_, l0 - 0.5)) if (Dl and s_ % self.o.get('latp', 6) == l) else s_)

    def mlp_aux(self):
        a = self
        o = self.o
        a("L_aux:")
        self.g1_ids()
        a(f"s_sub_u32 s53, s{sWAVE}, 4")
        self.g2_loader_setup()
        seqs = [self.latin_seq(l) for l in range(6)]
        la = o["la1"]
        need = lambda pos: max(max(sq[:min(pos, 31) + 1]) for sq in seqs) // 4
        g_first = need(1)
        assert g_first <= 1
        a(f"s_cmp_eq_u32 s{sWAVE}, 7\ns_cbranch_scc1 L_aux7")
        vH, vW = 40, 46
        a("s_lshl_b32 s3, s53, 8\nv_add_u32 v1, s3, v0")
        for i in range(4):
            a(f"v_add_u32 v2, {64*i}, v1")
            if "L" in o["dbg"]:
                a.divmod_const(3, 4, 2, 24, 5); a("v_lshlrev_b32 v3, 1, v3")
            else:
                a.divmod_const(3, 4, 2, 12, 5)
            a(f"v_bfe_u32 v5, v3, 3, 1\nv_lshlrev_b32 v5, 1, v5\nv_xor_b32 v4, v4, v5")
            a(f"v_mul_u32_u24 v3, 9216, v3\nv_lshl_add_u32 v{vW+i}, v4, 4, v3\nv_subrev_u32 v{vW+i}, {1024*i}, v{vW+i}")
        a(f"s_mul_i32 s12, s55, 192\ns_lshl_b32 s14, s53, 12\ns_add_u32 s14, s14, {G1_W}")
        a(f"s_mul_i32 s13, s54, 2304\ns_add_u32 s13, s13, {HT}\ns_mul_i32 s15, s53, 6144\ns_and_b32 s28, s{sXCD}, {o['rot']}\ns_lshl_b32 s28, s28, 2")
        if "L" in o["dbg"]: a("s_and_b32 s3, s55, 1\ns_mul_i32 s3, s3, 9024\ns_add_u32 s12, s12, s3")
        TB = [16, 17, 18, 19, 36, 37]
        if o["latin"]:
            a(f"s_lshr_b32 s3, s{sIDX}, 2\ns_mul_i32 s48, s54, {o['latc']}\ns_add_u32 s3, s3, s48")
            for _ in range(2): a("s_cmp_ge_u32 s3, 6\ns_cselect_b32 s48, 6, 0\ns_sub_u32 s3, s3, s48")
            if o.get("latp") == 4: a(f"s_lshr_b32 s3, s{sIDX}, 3\ns_add_u32 s3, s3, s54\ns_and_b32 s3, s3, 3")
            for l in range(6):
                words = [sum(seqs[l][n] << (5 * (n % 6)) for n in range(6 * k, min(32, 6 * k + 6))) for k in range(6)]
                if l: a(f"s_cmp_eq_u32 s3, {l}")
                for k in range(6):
                    a(f"s_mov_b32 s{TB[k]}, {words[k]}" if l == 0 else f"s_cselect_b32 s{TB[k]}, {words[k]}, s{TB[k]}")
        def stage_of(pos):
            if o["latin"]:
                a(f"s_bfe_u32 s3, s{TB[pos//6]}, {(5 << 16) | (5 * (pos % 6))}\ns_add_u32 s3, s3, s28")
            else:
                a(f"s_add_u32 s3, s28, {pos}")
            a("s_and_b32 s3, s3, 31")
        issued = []
        def w1_load(st):
            stage_of(0 if "W" in o["dbg"] else st)
            a(f"s_mul_i32 s3, s3, {64*9216}\ns_add_u32 m0, s14, {(st % G1_NS)*G1_SLOT}\ns_add_u32 s3, s3, s12")
            for i in range(4):
                if "w" in o["dbg"] and i > 0: continue
                a(f"buffer_load_dwordx4 v{vW+i}, {srd(rW1)}, s3 offen offset:{1024*i} lds")
                issued.append(st)
        def h_load(st):
            stage_of(0 if "H" in o["dbg"] else st)
            a(f"s_mul_i32 s3, s3, {8*9216}\ns_add_u32 s3, s3, s13")
            for i in range(6):
                if "h" in o["dbg"] and i > 0: continue
                if "K" in o["dbg"] and i > 2: continue
                if i % 4 == 0:
                    a(f"s_add_u32 m0, s15, {(st % G1_NS)*G1_SLOT + 1024*i}\ns_nop 0")
                a(f"buffer_load_dwordx4 v{vH+i}, {srd(rWS)}, s3 offen offset:{1024*(i%4)} sc1 lds")
                issued.append(st)
        def wait_stage(st):
            last = max(i for i, x in enumerate(issued) if x == st)
            n = len(issued) - 1 - last
            assert n < 63
            a(f"s_waitcnt vmcnt({n})")
        a(f"s_mul_i32 s3, s53, {192 if 'K' in o['dbg'] else 384}\nv_add_u32 v1, s3, v0")
        if "K" in o["dbg"]: a(f"s_and_b32 s3, s55, 1\ns_mul_i32 s3, s3, {4*9216}\ns_add_u32 s13, s13, s3")
        for i in range(6):
            a(f"v_add_u32 v2, {64*i}, v1")
            a.divmod_const(3, 4, 2, 144, 5)
            a(f"v_mul_u32_u24 v3, 9216, v3\nv_lshl_add_u32 v{vH+i}, v4, 4, v3\nv_subrev_u32 v{vH+i}, {1024*(i%4)}, v{vH+i}")
        self.sp_setup()
        self.bar_pub()
        assert o["prefill"] <= 5
        for st in range(o["prefill"]): w1_load(st)
        if g_first == 1:
            a(f"s_cmp_lg_u32 s{sWAVE}, 6\ns_cbranch_scc1 L_nog1\ns_and_b32 s29, s{sXCD}, {o['rot']}\ns_add_u32 s29, s29, 1\ns_and_b32 s29, s29, 7")
            self.wait_A_group("s29")
            a("L_nog1:")
        a("s_barrier")
        a.stamp(3)
        assert la <= 3
        done = [0]
        def issue(upto):
            while done[0] <= min(upto, 31):
                st = done[0]
                h_load(st)
                if st >= o["prefill"]: w1_load(st)
                done[0] += 1
        issue(o["h1"] if o["prefill"] >= 2 else 0)
        for i in range(32):
            wait_stage(i)
            a("s_barrier")
            a.tr0()
            issue(i + la)
            a.tr1(i)
            self.sp_step(i)
            if i == 30: self.g2_prefill(issued)
        a("s_branch L_aux_g1done")
        a("L_aux7:")
        a(f"s_and_b32 s29, s{sXCD}, {o['rot']}")
        self.A_addr("s29"); self.spoll_issue(50, self.A_PARTS)
        self.touch_pattern(248, 7, 9216)
        self.bar_pub()
        for k in range(o["w1c"]):
            self.touch_w1(248, f"s{sIDX}", 7, 224 * o["w1a"] + 168 * k)
        self.spoll_check(50, self.A_PARTS, self.A_REGS)
        a("s_barrier")
        a(f"s_add_u32 s29, s29, {g_first}")
        g_ok, g_fly, t_fly = g_first, None, 0
        for i in range(32):
            while g_ok < need(i + la) or (g_fly is not None and i - t_fly >= 2):
                if g_fly is None:
                    a("s_add_u32 s29, s29, 1\ns_and_b32 s29, s29, 7")
                    self.A_addr("s29"); self.spoll_issue(50, self.A_PARTS)
                self.spoll_check(50, self.A_PARTS, self.A_REGS)
                g_ok += 1; g_fly = None
            if g_fly is None and g_ok < 7:
                a("s_add_u32 s29, s29, 1\ns_and_b32 s29, s29, 7")
                self.A_addr("s29"); self.spoll_issue(50, self.A_PARTS)
                g_fly, t_fly = g_ok + 1, i
            a("s_barrier")
            if o["spc"] and i == 24: self.code_touch("L_g1_done", "L_g2_tail", 24, f"s{sIDX}")
            if o["spc"] and i == 26: self.code_touch("L_aux7", "L_att", 24, f"s{sIDX}")
            if i == 30: self.g2_prefill([])
            if i == 30 and o["wot"]:
                a(f"v_min_u32 v70, 53, v0\nv_lshlrev_b32 v70, 7, v70\ns_mul_i32 s3, s58, 24\ns_add_u32 s3, s3, s{sIDX}\ns_mul_i32 s3, s3, 6912\nbuffer_load_dword v69, v70, {srd(rWO)}, s3 offen")
        assert g_ok == 7 and g_fly is None
        a(f"s_cmp_lg_u32 s2, 0\ns_cbranch_scc1 L_noepoch\ns_mov_b32 s3, {EPOCH}")
        a.set_flag("s3", 20)
        a("L_noepoch:")
        a("L_aux_g1done:")
        a.stamp(5)
        self.g2_loader()

    def sp_setup(self):
        a, o = self, self.o
        if not o["sp"]: return
        r0 = 2048 - o["spn"]
        a(f"s_and_b32 s38, s{sXCD}, {o['rot']}\ns_lshl_b32 s38, s38, 8\ns_add_u32 s38, s38, s{sIDX}\ns_add_u32 s38, s38, {r0}")
        a(f"s_mul_i32 s39, s{sXCD}, 1152\ns_mul_i32 s3, s53, 384\ns_add_u32 s39, s39, s3\ns_add_u32 s39, s39, 60")
        self.sp_row = r0
    def sp_step(self, i):
        a, o = self, self.o
        if not o["sp"]: return
        n = int((i + 1) * o["sp"]) - int(i * o["sp"])
        for _ in range(n):
            if self.sp_row >= 2048: return
            a(f"s_and_b32 s3, s38, 2047\ns_mul_i32 s3, s3, 9216\ns_add_u32 s3, s3, s39\ns_add_u32 s40, s{rW1}, s3\ns_addc_u32 s41, s{rW1+1}, 0\ns_add_u32 s38, s38, 24")
            for k in range(3): a(f"s_load_dwordx2 s[42:43], s[40:41], {128*k}")
            self.sp_row += 24

    def code_touch(self, l0, l1, nid, sid):
        a = self
        pc = a.label("pc")
        a(f"s_getpc_b64 s[40:41]\n{pc}:\ns_lshl_b32 s3, {sid}, 9\ns_min_u32 s3, s3, {l1}-{l0}-512\ns_sub_u32 s40, s40, {pc}-{l0}\ns_subb_u32 s41, s41, 0")
        a("s_add_u32 s40, s40, s3\ns_addc_u32 s41, s41, 0")
        for k in range(8): a(f"s_load_dword s42, s[40:41], {64*k}")

    def wo_touch(self, k):
        a = self
        a(f"s_lshl_b32 s3, s{sIDX}, 2\ns_add_u32 s3, s3, s53\ns_add_u32 s3, s3, {96*k}\ns_min_u32 s3, s3, 323\ns_lshl_b32 s3, s3, 9\ns_mul_i32 s11, s58, {144*1152}\ns_add_u32 s3, s3, s11")
        a(f"s_add_u32 s40, s{rWO}, s3\ns_addc_u32 s41, s{rWO+1}, 0")
        for k in range(4): a(f"s_load_dwordx2 s[42:43], s[40:41], {128*k+60}")

    def sp2_setup(self):
        a, o = self, self.o
        if not o["sp2"]: return
        assert o["spn2"] % 24 == 0
        a(f"s_lshl_b32 s38, s{sIDX}, 12\ns_add_u32 s38, s38, s10\ns_lshl_b32 s3, s53, 9\ns_add_u32 s38, s38, s3\ns_add_u32 s38, s38, 60")
        self.sp_row = 1152 - o["spn2"]
    def sp2_step(self, i):
        a, o = self, self.o
        if not o["sp2"]: return
        n = int((i + 1) * o["sp2"]) - int(i * o["sp2"])
        for _ in range(n):
            r = self.sp_row
            if r + 24 > 1152: return
            t = r // 96
            a(f"s_bfe_u32 s3, s{100 + t // 8}, {(4 << 16) | (4 * (t % 8))}\ns_mul_i32 s3, s3, {96*4096}\ns_add_u32 s3, s3, s38\ns_add_u32 s3, s3, {(r % 96) * 4096}")
            a(f"s_add_u32 s40, s{rW2}, s3\ns_addc_u32 s41, s{rW2+1}, 0")
            for k in range(4): a(f"s_load_dwordx2 s[42:43], s[40:41], {128*k}")
            self.sp_row += 24

    gP = 18
    gL, gW, gZ, gO, gY = 10, 11, 13, 15, 56
    def g2_loader_setup(self):
        a = self
        vL, vW, vZ, vO, vY = self.gL, self.gW, self.gZ, self.gO, self.gY
        self.g2_ids()
        a(f"v_lshlrev_b32 v{vL}, 4, v0\nv_lshrrev_b32 v1, 4, v0\nv_bfe_u32 v2, v0, 1, 3\nv_and_b32 v3, 1, v0")
        for i in range(2):
            a(f"v_add_u32 v4, {4*i}, v1\nv_xor_b32 v5, v2, v4\nv_lshlrev_b32 v4, 12, v4\nv_lshl_add_u32 v4, v5, 5, v4")
            a(f"v_lshl_add_u32 v{vW+i}, v3, 4, v4\nv_subrev_u32 v{vW+i}, {1024*i}, v{vW+i}")
        a(f"s_cmp_ge_u32 s53, 2\ns_cselect_b32 s3, {OOB}, 0")
        for i in range(3):
            a(f"v_add_u32 v4, {64*i}, v0")
            a.divmod_const(5, 6, 4, 24, 7)
            a(f"v_bfe_u32 v7, v5, 1, 1\nv_lshlrev_b32 v7, 2, v7\nv_xor_b32 v6, v6, v7")
            a(f"v_mul_u32_u24 v5, 1152, v5\nv_lshl_add_u32 v{vO+i}, v6, 4, v5\nv_subrev_u32 v{vO+i}, {1024*i}, v{vO+i}")
            a(f"v_or_b32 v{vY+i}, s3, v{vO+i}")
        a(f"s_mul_i32 s8, s58, 144\ns_add_u32 s8, s8, s53\ns_mul_i32 s8, s8, 9216\ns_mul_i32 s3, s59, 3072\ns_add_u32 s8, s8, s3\ns_add_u32 s8, s8, {U}")
        a(f"s_mul_i32 s9, s58, 1152\ns_lshl_b32 s3, s53, 3\ns_add_u32 s9, s9, s3\ns_lshl_b32 s9, s9, 12\ns_lshl_b32 s3, s60, 8\ns_add_u32 s9, s9, s3")
        a(f"s_mul_i32 s61, s53, {G2_PITCH}\ns_mul_i32 s62, s53, 3072\ns_lshl_b32 s63, s53, 11")
        for h in range(2):
            a(f"s_lshl_b32 s3, s53, 1\ns_add_u32 s3, s3, {h}\ns_cmp_ge_u32 s3, 3\ns_cselect_b32 s48, 3072, 0\ns_lshl_b32 s3, s3, 10\ns_add_u32 s3, s3, s48\ns_add_u32 s3, s3, {SH_SCR}")
            a(f"v_add_u32 v{60+h}, s3, v{vL}")
        a.gelu_consts(64, 66)
        a(f"v_mul_u32_u24 v62, 9216, v1\nv_and_b32 v63, 15, v0\nv_lshl_add_u32 v62, v63, 4, v62")
        a(f"s_mul_i32 s96, s55, 3\ns_add_u32 s96, s96, s53\ns_mul_i32 s96, s96, {4*9216}\ns_mul_i32 s3, s54, 2304\ns_add_u32 s96, s96, s3\ns_add_u32 s96, s96, {U + 2048}")
        a(f"s_mul_i32 s3, s58, 3\ns_add_u32 s3, s3, s59\ns_lshl_b32 s3, s3, 4\ns_add_u32 s3, s3, s60\ns_lshl_b32 s3, s3, 9\ns_add_u32 s3, s3, {FLB}")
        a(f"s_add_u32 s98, s{rWS}, s3\ns_addc_u32 s99, s{rWS+1}, 0\ns_lshl_b32 s3, s53, 7\ns_load_dword s30, s[98:99], s3 glc")
        a("v_min_u32 v68, 2, v1\nv_lshlrev_b32 v68, 12, v68\nv_lshl_add_u32 v68, v63, 7, v68")
        a(f"s_lshl_b32 s97, s{sIDX}, 2\ns_add_u32 s97, s97, s53\ns_mul_i32 s97, s97, 3\ns_add_u32 s97, s97, {self.o['w2r']}")
        a(f"s_mul_i32 s10, s58, {1152*4096}\ns_and_b32 s3, s{sXCD}, 1\ns_lshl_b32 s3, s3, 11\ns_add_u32 s10, s10, s3")

    def g2_w_load(self, n, issued):
        a = self
        if n % 3 == 0:
            a(f"s_bfe_u32 s57, s{100 + n // 24}, {(4 << 16) | (4 * ((n // 3) % 8))}\ns_mul_i32 s57, s57, {96*4096}\ns_add_u32 s57, s57, s9")
        a(f"s_add_u32 m0, s63, {G2_W[(n >> 1) % 3] + (n & 1) * G2_WS}\ns_nop 0")
        for i in range(2):
            a(f"buffer_load_dwordx4 v{self.gW+i}, {srd(rW2)}, s57 offen offset:{1024*i} lds")
            issued.append(100 + (n >> 1))
        a(f"s_add_u32 s57, s57, {32*4096}")

    def w2_touch(self):
        for x in self.ord_row(3, "s97"): self(x)
        self(f"s_lshl_b32 s3, s3, 12\ns_add_u32 s3, s3, s10\nbuffer_load_dword v69, v68, {srd(rW2)}, s3 offen\ns_add_u32 s97, s97, 288")

    def g2_prefill(self, issued):
        if self.o["w2a"]:
            self.w2_touch(); issued.append(99)
        if self.o["w2e"]:
            for n in range(self.o["w2p"]): self.g2_w_load(n, issued)

    def g2_loader(self):
        a = self
        NSTEP, NST = 36, 20
        vL, vO, vY = self.gL, self.gO, self.gY
        issued = []
        def a_load(n):
            if n % 3 == 0:
                a(f"s_bfe_u32 s56, s{100 + n // 24}, {(4 << 16) | (4 * ((n // 3) % 8))}\ns_mul_i32 s56, s56, {12*9216}\ns_add_u32 s56, s56, s8")
            a(f"s_add_u32 m0, s61, {G2_U[(n >> 1) % 3] + (n & 1) * G2_US}\ns_nop 0")
            for i in range(3):
                a(f"buffer_load_dwordx4 v{vL}, {srd(rWS)}, s56 offen offset:{1024*i} sc1 lds")
                issued.append(100 + (n >> 1))
            a(f"s_add_u32 s56, s56, {4*9216}")
        def wo_load(e, tag, which=(0, 1, 2)):
            a(f"s_add_u32 m0, s62, {WO_AT[e]}\ns_add_u32 s3, s36, {32*1152*e}")
            for i in which:
                a(f"buffer_load_dwordx4 v{(vY if e == 4 else vO)+i}, {srd(rWO)}, s3 offen offset:{1024*i} lds")
                issued.append(tag)
        def o_load(ph, tag):
            a(f"s_add_u32 s3, s58, {ph+1}\ns_and_b32 s3, s3, 3\ns_mul_i32 s3, s3, {2*9216}\ns_add_u32 m0, s54, {4*OI_P*ph}\ns_add_u32 s3, s3, s37")
            for i in range(3):
                if i == 2: a("s_mov_b64 exec, 0xffff")
                a(f"buffer_load_dwordx4 v{vL}, {srd(rWS)}, s3 offen offset:{1024*i} sc1 lds")
                issued.append(tag)
            a("s_mov_b64 exec, -1")
        o = self.o
        a("s_setprio 3\ns_barrier")
        a(f"s_cmp_eq_u32 s{sWAVE}, 7\ns_cbranch_scc1 L_nosh")
        for h in range(2):
            a(f"ds_read_b128 v[{24+4*h}:{27+4*h}], v{60+h}\nds_read_b128 v[{32+4*h}:{35+4*h}], v{60+h} offset:3072")
        a("s_waitcnt lgkmcnt(0)")
        for i in range(4):
            a(f"v_pk_add_f32 v[{24+2*i}:{25+2*i}], v[{24+2*i}:{25+2*i}], v[{32+2*i}:{33+2*i}]")
        for g0 in a.gelu([24, 26, 28, 30], 64, 66, 44, [32, 33, 34, 35]):
            a(f"buffer_store_dwordx4 v[32:35], v62, {srd(rWS)}, s96 offen sc1")
        a(f"L_nosh:\ns_setprio {o.get('ldp', 0)}")
        a("s_waitcnt vmcnt(0)")
        a(f"s_and_b32 s3, s{sXCD}, 1\ns_lshl_b32 s3, s3, 7\ns_add_u32 s12, s98, s3\ns_addc_u32 s13, s99, 0\ns_xor_b32 s3, s3, 128\ns_add_u32 s14, s98, s3\ns_addc_u32 s15, s99, 0")
        p1 = [(16, 4, 0), (28, 4, 256)]
        r1 = [16, 17, 18, 19, 28, 29, 30, 31]
        a("s_barrier")
        a.spoll_issue(12, p1)
        a.stamp(7)
        if not o["w2e"]:
            for n in range(o["w2p"]): self.g2_w_load(n, issued)
        if o["w2c"]: self.w2_touch(); issued.append(99)
        a.spoll_check(12, p1, r1)
        a.stamp(8)
        od = o["odl"]
        q = []
        for n in range(NSTEP):
            q.append(("a", n, (n >> 1) - 2 if n >= 6 else -1))
            if n >= o["w2p"]: q.append(("w", n, (n >> 1) - 2 if n >= 6 else -1))
        def pump(i, budget):
            for x in list(q):
                c = 3 if x[0] == "a" else 2
                must = (x[1] >> 1) <= i + 1
                if x[2] > i or (budget < c and not must): continue
                if any(y[0] == x[0] and y[1] < x[1] for y in q): continue
                q.remove(x); budget -= c
                a_load(x[1]) if x[0] == "a" else self.g2_w_load(x[1], issued)
        bud = o["g2b"]
        pump(-1, bud[0])
        self.sp2_setup()
        a(f"s_lshl_b32 s52, s60, 2\ns_add_u32 s52, s52, s58\ns_lshl_b32 s52, s52, 7\ns_add_u32 s52, s52, {FLO}")
        a(f"s_add_u32 s50, s{rWS}, s52\ns_addc_u32 s51, s{rWS+1}, 0")
        op = [(64, 8, 0)]
        a(f"s_mul_i32 s36, s58, 144\ns_lshl_b32 s3, s53, 3\ns_add_u32 s36, s36, s3\ns_mul_i32 s36, s36, 1152\ns_mul_i32 s3, s59, 384\ns_add_u32 s36, s36, s3")
        a(f"s_lshl_b32 s37, s60, 1\ns_lshr_b32 s3, s53, 1\ns_add_u32 s37, s37, s3\ns_lshl_b32 s37, s37, 3\ns_and_b32 s3, s53, 1\ns_add_u32 s37, s37, s3\ns_mul_i32 s37, s37, 9216")
        a(f"s_mul_i32 s3, s58, 2304\ns_add_u32 s37, s37, s3\ns_add_u32 s37, s37, {OT}\ns_mul_i32 s54, s53, {OI_P}\ns_add_u32 s54, s54, {OI}")
        assert od == 17
        for i in range(NST):
            last = max(k for k, x in enumerate(issued) if x == 100 + i)
            nn = len(issued) - 1 - last
            assert nn < 63
            nxt = i + 2
            p3 = [(64 + 2 * k, 2, 128 * k + 16) for k in range(4)]
            chk = {3: (14, p1, None), 4: (14, p1, r1), 9: (98, p3, None), 10: (98, p3, list(range(64, 72)))}
            if self.o["att"] and "o" not in o["dbg"]: chk.update({od - 1: (50, op, None), od: (50, op, list(range(64, 72)))})
            if i in chk:
                lb = a.label("nopo")
                a(f"s_cmp_lg_u32 s{sWAVE}, 7\ns_cbranch_scc1 {lb}")
                if chk[i][2] is None: a.spoll_issue(chk[i][0], chk[i][1])
                else: a.spoll_check(*chk[i])
                a(f"{lb}:")
            a(f"s_waitcnt vmcnt({nn})\ns_barrier")
            a.tr0()
            pump(i, bud[min(i + 1, len(bud) - 1)])
            if 0 <= i - o["woe"] < 6: wo_load(3 + (i - o["woe"]) // 3, 116, ((i - o["woe"]) % 3,))
            if i == 16: wo_load(0, 117); wo_load(1, 118)
            if i == 17:
                o_load(0, 118); wo_load(2, 118)
                for ph in range(1, 1 + o["oe"]): o_load(ph, 119)
            if i == 18:
                for ph in range(1 + o["oe"], 4): o_load(ph, 119)
            a.tr1(32 + i)
            wot = {6: 0, 7: 1, 8: 2, 11: 3}
            if o["spo"] and i in wot: self.wo_touch(wot[i])
            elif o["spc"] and i == 12:
                a(f"s_lshl_b32 s11, s{sIDX}, 2\ns_add_u32 s11, s11, s53")
                self.code_touch("L_g2_tail", "L_aux", 96, "s11")
            elif i not in (3, 9, od - 1): self.sp2_step(i)
        assert not q
        a.stamp(10)
        if o.get("trace"):
            a(f"s_lshl_b32 s3, s2, 2\ns_add_u32 s3, s3, s53\ns_lshl_b32 s3, s3, 8\ns_add_u32 s3, s3, {0x1600000}\nv_lshlrev_b32 v1, 2, v0\nbuffer_store_dword v200, v1, {srd(rWS)}, s3 offen")
        a("s_branch L_fin")

    def att(self):
        a = self
        a("L_att:")
        if self.o["att"]:
            import gen_att
            gen_att.emit(self)

    def build(self):
        a = self
        a.launch(KNAME, 256, 512, LDS_BYTES)
        a.kd(KNAME, 256)
        self.entry()
        self.mlp_compute()
        self.mlp_aux()
        self.att()
        a("L_fin:")
        if self.o["stamps"]: a("s_waitcnt vmcnt(0)")
        a.stamp(15)
        self.dump_stamps(4)
        a("L_end:\ns_endpgm\n.p2align 6\n.type order_table,@object\norder_table:")
        for x in range(8):
            w = sum(t << (4 * k) for k, t in enumerate(xcd_order(x) if self.o["perm"] else [(6 * (x & 1) + k) % 12 for k in (0, 1, 2, 3, 6, 7, 8, 9, 4, 5, 10, 11)]))
            a(f".long {w & 0xffffffff}, {w >> 32}")
        a(".size order_table, 64\nL_code_end:")
        return a.text(single=True)


if __name__ == "__main__":
    import json
    opt = json.loads(sys.argv[2]) if len(sys.argv) > 2 else {}
    open(sys.argv[1], "w").write(Gen(**opt).build())
```

```python
from gen import *
import re

A_SLOT, A_NS, A_W = 30720, 4, 16384
IMG_P = 472
PARK = 122880
WPH = PARK + 20480
JUNK7 = WPH + 4096
ZERO = JUNK7 + 2048
JUNK = ZERO + 128
TAB = LN_SCR
KVB = 15360
assert JUNK + 8 <= LN_SCR

cA, cA4, cB0, cB1 = 224, 225, 226, 227
vD = 228
aV, aT4, aK, aKA, aKB, aP, aR, aL, aB, aO, aF, aPK, vT, aS2 = 232, 233, 234, 235, 236, 237, 239, 241, 243, 247, 249, 250, 251, 252
aG = 253
sTB, sTG, sHP = 96, 97, 98


def setup(a):
    o = a.o
    vG, vN, vOOB = 70, 71, 72
    a(f"s_sub_u32 s{sTB}, s{sIDX}, 24\ns_and_b32 s{sTG}, s{sWAVE}, 3\ns_lshr_b32 s{sHP}, s{sWAVE}, 2")
    a(f"v_lshrrev_b32 v{vG}, 4, v0\nv_and_b32 v{vN}, 15, v0\nv_mov_b32 v{vOOB}, {OOB}")
    a(f"s_cmp_eq_u32 s{sHP}, {0}\ns_cbranch_scc1 L_att_ph")
    for i in range(4):
        a(f"v_add_u32 v73, {64*i}, v0")
        a.divmod_const(74, 75, 73, 27, 76)
        a.divmod_const(77, 78, 75, 9, 76)
        a(f"v_mul_u32_u24 v74, 3456, v74\nv_mul_u32_u24 v77, 1152, v77\nv_lshlrev_b32 v78, 4, v78\nv_add3_u32 v74, v74, v77, v78\nv_subrev_u32 v{vD+i}, {1024*i}, v74")
    a(f"s_mul_i32 s28, s{sXCD}, 144\ns_mul_i32 s3, s{sTG}, {8*3456}\ns_add_u32 s28, s28, s3\ns_mul_i32 s99, s{sTG}, 3456\ns_add_u32 s99, s99, {A_W}")
    a("s_branch L_att_pd\nL_att_ph:")
    a(f"v_lshrrev_b32 v73, 5, v0\nv_and_b32 v74, 31, v0\nv_xor_b32 v74, v74, v73\nv_mul_u32_u24 v75, 9216, v73\nv_lshl_add_u32 v{vD}, v74, 4, v75")
    for i in range(1, 4): a(f"v_add_u32 v{vD+i}, {i*(2*9216-1024)}, v{vD}")
    a(f"s_lshl_b32 s28, s{sTB}, 2\ns_add_u32 s28, s28, s{sTG}\ns_mul_i32 s28, s28, {8*9216}\ns_add_u32 s28, s28, {HT}\ns_lshl_b32 s99, s{sTG}, 12")
    a("L_att_pd:")
    a(f"v_lshrrev_b32 v74, 2, v0\nv_lshlrev_b32 v74, 1, v74\nv_and_b32 v75, 3, v0")
    a(f"s_mul_i32 s38, s{sHP}, 72\ns_add_u32 s3, s38, {A_W}\nv_mul_u32_u24 v76, 432, v74\nv_add_u32 v76, s3, v76")
    a(f"v_lshl_add_u32 v{cA}, v75, 3, v76\nv_min_u32 v77, 2, v75\nv_mul_u32_u24 v77, 144, v77\nv_add3_u32 v{cA4}, v76, v77, 64")
    a(f"v_lshrrev_b32 v77, 1, v75\nv_xor_b32 v78, v74, v77\nv_lshlrev_b32 v78, 4, v78\nv_lshl_add_u32 v78, v77, 9, v78")
    a(f"v_and_b32 v77, 1, v75\nv_lshl_add_u32 v78, v77, 3, v78\ns_lshl_b32 s3, s{sTG}, 12\nv_add_u32 v{cB0}, s3, v78\nv_xor_b32 v{cB1}, 16, v{cB0}")
    a(f"v_lshlrev_b32 v{aS2}, 2, v{vN}\nv_mov_b32 v74, 0\nv_add_u32 v75, {ZERO}, v{aS2}\nds_write_b32 v75, v74\nds_write_b32 v75, v74 offset:64")


def late_setup(g):
    o = g.o
    out = []
    def a(t):
        t = re.sub(r"v7(\d)\b", lambda m: f"v{5+int(m.group(1))}", t)
        t = re.sub(r"s3\b", "s41", t)
        ls = t.split("\n")
        k = 0
        while k < len(ls):
            if ls[k].startswith("s_bitcmp"):
                out.append("\n".join(ls[k:k+3])); k += 3
            else:
                out.append(ls[k]); k += 1
    vG, vN, vOOB = 70, 71, 72
    a(f"v_lshrrev_b32 v{vG}, 4, v0\nv_and_b32 v{vN}, 15, v0\nv_mov_b32 v{vOOB}, {OOB}\nv_lshrrev_b32 v73, 5, v0\nv_and_b32 v75, 3, v0")
    a(f"s_lshl_b32 s3, s{sHP}, 11\ns_add_u32 s3, s3, {WPH}\nv_lshl_add_u32 v76, v75, 1, s3\nv_bfe_u32 v77, v0, 2, 2\nv_mul_u32_u24 v77, 18, v77")
    a(f"s_and_b32 s38, s{sTG}, 1\ns_lshl_b32 s38, s38, 1\ns_lshr_b32 s39, s{sTG}, 1\ns_lshl_b32 s3, s39, 4\ns_add_u32 s3, s3, s38\nv_lshl_add_u32 v78, v{vG}, 2, s3")
    a(f"v_sub_u32 v77, v78, v77\nv_cmp_gt_u32 vcc, 18, v77\nv_mul_u32_u24 v78, 36, v78\nv_add_u32 v78, v78, v76\nv_mov_b32 v79, {ZERO}\nv_cndmask_b32 v{aG}, v79, v78, vcc")
    a(f"s_lshl_b32 s39, s39, 1\ns_add_u32 s39, s39, 5\nv_lshrrev_b32 v74, 2, v0\nv_cmp_eq_u32 vcc, s39, v74\ns_mul_i32 s38, s38, 36\ns_add_u32 s38, s38, {32*36}\nv_add_u32 v78, s38, v76\nv_cndmask_b32 v{aG+1}, v79, v78, vcc")
    a(f"s_mul_i32 s3, s{sHP}, 10240\ns_add_u32 s3, s3, {PARK}\nv_lshl_add_u32 v{aPK}, v0, 4, s3\ns_lshl_b32 s3, s{sTG}, 2\nv_add_u32 v15, s3, v{aPK}")
    n_first = len(out)
    a(f"v_lshlrev_b32 v74, 1, v74\ns_mul_i32 s38, s{sHP}, 72")
    a(f"v_lshlrev_b32 v{vT}, 12, v{vG}\nv_lshl_add_u32 v{vT}, v{vN}, 7, v{vT}")
    a(f"s_lshl_b32 s63, s{sTB}, 2\ns_add_u32 s63, s63, s{sTG}\ns_lshl_b32 s63, s63, 2")
    a(f"s_lshr_b32 s42, s{sXCD}, 1\ns_mul_i32 s42, s42, {1152*4096}\ns_and_b32 s3, s{sXCD}, 1\ns_lshl_b32 s3, s3, 11\ns_add_u32 s42, s42, s3")
    a(f"v_lshlrev_b32 v{aF}, 9, v0")
    a(f"s_mul_i32 s3, s{sTG}, {64*IMG_P}\nv_mul_u32_u24 v76, {IMG_P}, v{vN}\nv_add_u32 v76, s3, v76")
    a(f"s_add_u32 s3, s38, 320\nv_lshl_add_u32 v{aV}, v{vG}, 3, s3\nv_add_u32 v{aV}, v{aV}, v76")
    a(f"s_add_u32 s3, s3, 64\nv_cmp_eq_u32 vcc, 3, v{vG}\nv_mov_b32 v77, s3\nv_mov_b32 v78, 464\nv_cndmask_b32 v77, v77, v78, vcc\nv_add_u32 v{aT4}, v77, v76")
    a(f"v_and_b32 v79, 1, v{vG}\nv_mul_u32_u24 v77, 80, v79\nv_mul_u32_u24 v78, {16*IMG_P}, v73\ns_mul_i32 s3, s{sHP}, 160\nv_add3_u32 v{aK}, v76, v77, v78\nv_add_u32 v{aK}, s3, v{aK}")
    a(f"v_and_b32 v76, 14, v74\nv_add_u32 v76, v76, v73\nv_mul_u32_u24 v76, {2*IMG_P}, v76")
    a(f"s_lshr_b32 s39, s{sWAVE}, 1\ns_mul_i32 s3, s39, 80\nv_lshl_add_u32 v{aKA}, v75, 3, s3\nv_add_u32 v{aKA}, v{aKA}, v76")
    a(f"s_add_u32 s38, s38, 320\ns_and_b32 s3, s39, 1\ns_mul_i32 s3, s3, 40\ns_add_u32 s3, s3, s38\nv_lshl_add_u32 v77, v75, 3, s3\ns_add_u32 s38, s38, 32")
    a(f"v_cmp_eq_u32 vcc, 0, v75\nv_mov_b32 v78, 464\nv_mov_b32 v{aKB}, s38\nv_cndmask_b32 v78, v78, v{aKB}, vcc")
    a(f"s_bitcmp0_b32 s{sWAVE}, 0\ns_cselect_b64 vcc, -1, 0\ns_cselect_b32 s38, 16, 8\nv_cndmask_b32 v77, v78, v77, vcc\nv_add_u32 v{aKB}, v77, v76")
    a(f"v_cmp_gt_u32 vcc, s38, v{vN}\nv_mul_u32_u24 v76, s38, v{vG}\nv_add_lshl_u32 v76, v76, v{vN}, 4\ns_lshl_b32 s40, s38, 6")
    a(f"v_cndmask_b32 v{aP}, v{vOOB}, v76, vcc\nv_cmp_gt_u32 vcc, 2, v{vG}\ns_lshl_b32 s30, s{sXCD}, 3\ns_add_u32 s30, s30, s{sTB}\nv_cndmask_b32 v{aP+1}, v{vOOB}, v{aP}, vcc")
    a(f"s_mul_i32 s30, s30, {KVB}\ns_mul_i32 s3, s39, 3840\ns_add_u32 s30, s30, s3\ns_add_u32 s30, s30, {KVP}")
    a(f"s_lshl_b32 s36, s{sXCD}, 12\ns_add_u32 s36, s36, {FLKV}\ns_lshl_b32 s3, s39, 7\ns_add_u32 s36, s36, s3")
    a(f"s_lshl_b32 s31, s{sTB}, 1\ns_and_b32 s3, s{sWAVE}, 1\ns_add_u32 s31, s31, s3\ns_lshl_b32 s31, s31, 2\ns_add_u32 s31, s31, s36\ns_lshl_b32 s3, s{sTB}, 9\ns_add_u32 s36, s36, s3")
    a(f"s_and_b32 s3, s{sWAVE}, 1\ns_mul_i32 s3, s3, 120\nv_add_u32 v76, s3, v0\ns_mul_i32 s38, s39, 1920\ns_add_u32 s38, s38, {TAB}")
    for i in range(2):
        if i: a("v_add_u32 v76, 64, v76")
        a(f"v_cmp_gt_u32 vcc, 160, v76\nv_lshrrev_b32 v77, 4, v76\nv_and_b32 v78, 15, v76\nv_lshrrev_b32 v74, 3, v76\nv_subrev_u32 v74, 20, v74\nv_and_or_b32 v75, v76, 7, 16")
        a(f"v_cndmask_b32 v77, v74, v77, vcc\nv_cndmask_b32 v78, v75, v78, vcc")
        a(f"v_mul_u32_u24 v78, 80, v78\nv_lshlrev_b32 v77, 3, v77\nv_add3_u32 v{aL+i}, v78, v77, s38\nv_lshlrev_b32 v{aR+i}, 4, v76")
    a(f"v_cmp_gt_u32 vcc, 56, v0\nv_mov_b32 v77, {JUNK}\ns_nop 0\nv_cndmask_b32 v{aR+1}, v{vOOB}, v{aR+1}, vcc\nv_cndmask_b32 v{aL+1}, v77, v{aL+1}, vcc")
    a(f"v_lshrrev_b32 v76, 3, v{vN}\nv_and_b32 v77, 7, v0\nv_cmp_eq_u32 vcc, v76, v79")
    a(f"s_mul_i32 s3, s{sHP}, 3840\ns_add_u32 s3, s3, {TAB}\nv_mul_u32_u24 v74, 1920, v76\nv_mul_u32_u24 v75, 40, v73\nv_add3_u32 v74, v74, v75, s3")
    a(f"v_lshlrev_b32 v75, 1, v76\nv_sub_u32 v75, v77, v75\nv_mov_b32 v{aO}, {ZERO}")
    for t in range(4):
        if t < 3:
            a(f"v_add_u32 v78, {8*t+20}, v75\nv_add_u32 v{aB+t}, {8*t}, v75\nv_min_u32 v78, v78, v{aB+t}\nv_min_u32 v78, 20, v78\nv_mul_u32_u24 v78, 80, v78\nv_add_u32 v78, v78, v74")
        else:
            a("v_add_u32 v78, 1600, v74")
        a(f"v_cndmask_b32 v{aB+t}, v{aO}, v78, vcc")
    a(f"v_mul_u32_u24 v76, 18, v76\nv_add_lshl_u32 v76, v76, v77, 4\nv_lshl_add_u32 v78, v79, 1, v73\nv_cmp_gt_u32 vcc, 2, v77")
    a(f"s_mul_i32 s3, s{sWAVE}, 4608\nv_mul_u32_u24 v78, 576, v78\nv_add3_u32 v{aO}, v78, v76, s3")
    a(f"v_mov_b32 v78, {40960}\nv_cndmask_b32 v{aO+1}, v78, v{aO}, vcc")
    a(f"s_lshl_b32 s37, s{sTB}, 2\ns_add_u32 s37, s37, s{sTG}\ns_mul_i32 s37, s37, {8*9216}\ns_mul_i32 s3, s{sXCD}, 1152\ns_add_u32 s37, s37, s3")
    a(f"s_mul_i32 s3, s{sHP}, 576\ns_add_u32 s37, s37, s3\ns_add_u32 s37, s37, {OT}")
    return out, n_first


def early(a):
    a(f"s_and_b32 s3, s{sWAVE}, 3\ns_cmp_lg_u32 s3, 1\ns_cbranch_scc1 L_att_g0\ns_lshr_b32 s49, s{sWAVE}, 2")
    a(f"s_lshl_b32 s3, s49, 11\ns_add_u32 m0, s3, {WPH}\ns_lshl_b32 s48, s{sXCD}, 1\ns_add_u32 s48, s48, s49\ns_mul_i32 s48, s48, 1296")
    a(f"buffer_load_dwordx4 v63, {srd(rWPHI)}, s48 offen lds\nbuffer_load_dwordx4 v63, {srd(rWPHI)}, s48 offen offset:1024 lds")
    a("L_att_g0:")


def mix(a, base, ins, every, start=0):
    ins = list(ins)
    for i, x in enumerate(base):
        a(x)
        if ins and i >= start and (i - start) % every == 0:
            a(ins.pop(0))
    for x in ins: a(x)


def emit(a):
    o = a.o
    ACC = 24
    P, Q = 136, 180
    bA, bA4, bB0, bB1 = 1, 2, 3, 4
    vS = 16
    a(f"s_cmp_eq_u32 s{sWAVE}, 0\ns_cbranch_scc0 L_att_s0")
    a.bar_pub()
    a("L_att_s0:")
    a(f"s_add_u32 s3, s{sXCD}, 24\ns_sub_u32 s48, s{sIDX}, 24")
    a.A_addr("s48", "s3")
    setup(a)
    iW, iH = [], []
    class Both:
        def append(self, x): iW.append(x); iH.append(x)
    issued = Both()
    def w_dma(st):
        r = [f"s_add_u32 m0, s99, {(st % A_NS)*A_SLOT}", "s_nop 0"]
        for i in range(4):
            if "q" in o["dbg"] and i == 0: continue
            if i == 3: r.append("s_mov_b64 exec, 0xffffff")
            r.append(f"buffer_load_dwordx4 v{vD+i}, {srd(rWQKV)}, s28 offen offset:{1024*i} lds")
            iW.append(st)
        return r + ["s_mov_b64 exec, -1", f"s_add_u32 s28, s28, {32*3456}"]
    def h_dma(st):
        r = [f"s_add_u32 m0, s99, {(st % A_NS)*A_SLOT}", "s_nop 0"]
        for i in range(4):
            r.append(f"buffer_load_dwordx4 v{vD+i}, {srd(rWS)}, s28 offen offset:{1024*i} sc1 lds")
            iH.append(st)
        return r + ["s_add_u32 s28, s28, 0x200"]
    def emit_l(r):
        for x in r: a(x)
    def only(hp, r):
        lb = a.label("on")
        a(f"s_cmp_lg_u32 s{sHP}, {hp}\ns_cbranch_scc1 {lb}"); emit_l(r); a(f"{lb}:")
    def vm(st):
        return min(len(l) - 1 - max(i for i, x in enumerate(l) if x == st) for l in (iW, iH))
    def w2_touch(slot):
        r = []
        for r0 in o["at"].get(slot, ()):
            if r0 < 0:
                r += wo_touch(); continue
            assert r0 % 4 == 0 and r0 + 128 <= 1152
            r += [f"s_add_u32 s43, s63, {r0}"] + a.ord_row(3, "s43") + ["s_lshl_b32 s3, s3, 12", "s_add_u32 s3, s3, s42", f"buffer_load_dword v255, v{vT}, {srd(rW2)}, s3 offen"]
            issued.append(-1)
        return r
    def both(x):
        for r0 in o["at"].get("B" + x, ()):
            emit_l([f"s_lshl_b32 s43, s{sHP}, 7", "s_add_u32 s43, s43, s63", f"s_add_u32 s43, s43, {r0}"] + a.ord_row(3, "s43") +
                   ["s_lshl_b32 s3, s3, 12", "s_add_u32 s3, s3, s42", f"buffer_load_dword v255, v{vT}, {srd(rW2)}, s3 offen"])
        if "O" + x in o["at"]: only(0, w2_touch("O" + x))
        if "Y" + x in o["at"]: only(1, w2_touch("Y" + x))
    def wo_touch():
        issued.append(-1)
        return (f"s_mul_i32 s3, s63, 1312\ns_lshr_b32 s49, s{sXCD}, 1\ns_mul_i32 s49, s49, {144*1152}\ns_add_u32 s3, s3, s49\n"
                f"v_min_u32 v10, 40, v0\nv_lshlrev_b32 v10, 7, v10\nv_add_u32 v10, s3, v10\nbuffer_load_dword v255, v10, {srd(rWO)}, 0 offen").split("\n")
    a(f"s_cmp_eq_u32 s{sWAVE}, 3\ns_cbranch_scc0 L_att_s7")
    a.spoll_issue(50, a.A_PARTS)
    a("L_att_s7:")
    a(f"s_cmp_eq_u32 s{sWAVE}, 0\ns_cbranch_scc1 L_att_s1")
    a.bar_pub()
    a("L_att_s1:")
    early(a)
    if o.get("atw"):
        a(f"s_lshl_b32 s52, s{sTB}, 3\ns_add_u32 s52, s52, s{sWAVE}")
        for k, R in enumerate(o["atw"]):
            a.touch_pattern(80, R, 9216)
            a.touch_w1(80, "s52", R, 224 * o["w1a"] + 64 * sum(o["atw"][:k]), 255)
    NPRE = o.get("apre", 2)
    HR = 0
    only(1 - HR, [x for st in range(NPRE) for x in w_dma(st)])
    fill, nf = late_setup(a)
    npre = o.get("apf", 60)
    emit_l(fill[:npre]); del fill[:npre]; nf -= npre
    for x, y in ((bA, cA), (bA4, cA4), (bB0, cB0), (bB1, cB1)): a(f"v_mov_b32 v{x}, v{y}")
    a(f"s_cmp_lg_u32 s{sWAVE}, 3\ns_cbranch_scc1 L_att_np")
    a.spoll_check(50, a.A_PARTS, a.A_REGS)
    a("L_att_np:")
    a("s_barrier")
    a.stamp(3)
    only(HR, h_dma(0) + h_dma(1))
    a(f"s_lshl_b32 s3, s{sTB}, 2\ns_add_u32 s3, s3, s{sTG}\ns_lshl_b32 s3, s3, 8\ns_add_u32 s3, s3, {S2}")
    for t in range(4):
        a(f"buffer_load_dword v{vS+2*t}, v{aS2}, {srd(rWS)}, s3 offen offset:{64*t} sc1")
        issued.append(-1)

    TOFF = [0, 32, 144, 176, None, 288, 320]
    def reads(st):
        r = []
        def rb(tt):
            return [f"ds_read_b64_tr_b16 v[{st+28+4*tt+2*rho}:{st+29+4*tt+2*rho}], v{bB1 if rho else bB0} offset:{1024*tt}" for rho in range(2)]
        r += rb(0)
        for T in range(7):
            if "q" in o["dbg"] and T < 2: continue
            for rho in range(2):
                if T == 4:
                    r.append(f"ds_read_b64_tr_b16 v[{st+4*T+2*rho}:{st+4*T+2*rho+1}], v{bA4} offset:{432*rho}")
                else:
                    r.append(f"ds_read_b64_tr_b16 v[{st+4*T+2*rho}:{st+4*T+2*rho+1}], v{bA} offset:{432*rho+TOFF[T]}")
        for tt in range(1, 4): r += rb(tt)
        return r
    def mfmas(st, first=False):
        m = []
        for tt in range(4):
            for T in (range(6, -1, -1) if (o.get("snake") and tt & 1) else range(7)):
                if "q" in o["dbg"] and T < 2: continue
                d = ACC + 28 * tt + 4 * T
                m.append(f"v_mfma_f32_16x16x32_bf16 v[{d}:{d+3}], v[{st+4*T}:{st+4*T+3}], v[{st+28+4*tt}:{st+31+4*tt}], {'0' if first else f'v[{d}:{d+3}]'}")
        return m
    def advance(st):
        off = (st % A_NS) * A_SLOT
        return [f"v_add_u32 v{x}, {off}, v{y}" for x, y in ((bA, cA), (bA4, cA4), (bB0, cB0), (bB1, cB1))]
    a(f"s_waitcnt vmcnt({vm(0)}) lgkmcnt(0)\ns_barrier")
    a.stamp(4)
    for r in reads(P): a(r)
    for r in advance(1): a(r)
    NS_ = 18
    nh, nw = [2], [NPRE]
    LA = o.get("ala", 2)
    def more(f, cnt, upto):
        r = []
        while cnt[0] <= min(upto, NS_ - 1):
            r += f(cnt[0]); cnt[0] += 1
        return r
    only(HR, more(h_dma, nh, 2))
    if NPRE < 3: only(1 - HR, more(w_dma, nw, 2))
    if o.get("aprio"):
        a(f"s_cmp_lg_u32 s{sHP}, {o['aprio'] - 1}\ns_cbranch_scc1 L_att_pr\ns_setprio 1\nL_att_pr:")
    tails = []
    PQ, PKk, PT, PV = 136, 152, 168, 4
    def conv(tt):
        r = ACC + 28 * tt
        pv = PV + 6 * (tt & 1)
        l = [f"v_cvt_pk_bf16_f32 v{PKk+4*tt+i}, v{r+8+2*i}, v{r+9+2*i}" for i in range(4)]
        l += [f"v_cvt_pk_bf16_f32 v{PT+2*tt+i}, v{r+16+2*i}, v{r+17+2*i}" for i in range(2)]
        l += [f"v_cvt_pk_bf16_f32 v{PQ+4*tt+i}, v{r+2*i}, v{r+1+2*i}" for i in range(4)]
        l += [f"v_pk_mul_f32 v[{r+16+2*i}:{r+17+2*i}], v[{r+16+2*i}:{r+17+2*i}], v[{vS+2*tt}:{vS+2*tt+1}] op_sel_hi:[1,0]" for i in range(6)]
        l += [f"v_cvt_pk_bf16_f32 v{pv+i}, v{r+16+2*i}, v{r+17+2*i}" for i in range(6)]
        l += [f"v_cndmask_b32 v{pv}, v{pv}, v3, vcc", f"v_cndmask_b32 v{pv+1}, v{pv+1}, v3, vcc"]
        l += [f"ds_write_b64 v{aV}, v[{pv+2}:{pv+3}] offset:{16*IMG_P*tt}", f"ds_write_b64 v{aV}, v[{pv+4}:{pv+5}] offset:{16*IMG_P*tt+32}"]
        l += [f"s_mov_b32 exec_lo, 0\nds_write_b64 v{aT4}, v[{pv}:{pv+1}] offset:{16*IMG_P*tt}\ns_mov_b32 exec_lo, -1"]
        return l
    vm1 = lambda l, st: len(l) - 1 - max(i for i, x in enumerate(l) if x == st)
    def gemm(role):
        fl, nf_ = list(fill), nf
        lst, cnt, f = (iH, nh, h_dma) if role == 0 else (iW, nw, w_dma)
        for n in range(NS_ - 1):
            st, nx = (P, Q)[n & 1], (P, Q)[(n + 1) & 1]
            a(f"s_waitcnt vmcnt({vm1(lst, n + 1)}) lgkmcnt(6)\ns_barrier")
            ds = reads(nx)
            if n + 2 < NS_: ds += advance(n + 2)
            dm = more(f, cnt, n + 3)
            dm += w2_touch(f"{'oy'[role]}{n}")
            if role == 0 and n in o.get("acode", ()):
                pc = a.label("pc")
                k = o["acode"].index(n)
                dm += [f"s_getpc_b64 s[48:49]", f"{pc}:", f"s_lshl_b32 s3, s{sTG}, 13", f"s_add_u32 s3, s3, L_att_a-{pc}+65536+{2048*k}*0", f"s_min_u32 s3, s3, L_code_end-{pc}+65536-8192",
                       "s_add_u32 s48, s48, s3", "s_addc_u32 s49, s49, 0", "s_sub_u32 s48, s48, 65536", "s_subb_u32 s49, s49, 0",
                       f"s_lshl_b32 s3, s{sTB}, 3", "v_and_b32 v23, 7, v0", "v_add_lshl_u32 v23, v23, s3, 7", "global_load_dword v255, v23, s[48:49]"]
                issued.append(-1)
            G0 = 3
            ex = []
            if G0 + 1 <= n <= G0 + 10:
                ex += ["v_lshl_or_b32 v21, v19, 16, v17", f"ds_write_b32 v15, v21 offset:{1024*(n-G0-1)}"]
            if G0 <= n <= G0 + 9:
                k_ = n - G0
                assert nf_ <= 0
                ex += [f"ds_read_u16 v17, v{aG + k_ // 5} offset:{8*(k_%5)}", f"ds_read_u16 v19, v{aG + k_ // 5} offset:{8*(k_%5)+36}"]
            nfl = o.get("anf", 10)
            ex += fl[:nfl]; del fl[:nfl]; nf_ -= nfl
            def side():
                per = (len(ex) + 2) // 3 if o.get("amix", 0) else 0
                nb = 0
                for x in dm:
                    a(x)
                    if x.startswith("buffer_load_dwordx4") and nb < 3:
                        emit_l(ex[:per]); del ex[:per]; nb += 1
                emit_l(ex)
            if role == 1: side()
            for i_, m_ in enumerate(mfmas(st, n == 0)):
                if i_ == (5 if "q" in o["dbg"] else 7): a(f"s_waitcnt lgkmcnt({i_})")
                a(m_)
                if ds: a(ds.pop(0))
            for x in ds: a(x)
            if role == 0: side()
        assert not fl
    a(f"L_att_a:\ns_cmp_eq_u32 s{sHP}, 1\ns_cbranch_scc1 L_att_y")
    w0 = list(iW)
    gemm(0)
    a("s_branch L_att_z\nL_att_y:")
    iW[:] = w0
    gemm(1)
    a("L_att_z:")
    a("s_waitcnt lgkmcnt(0)\ns_barrier")
    both("L")
    st = Q
    a("s_mov_b32 vcc_lo, 0\ns_mov_b32 vcc_hi, 0xffff0000\nv_mov_b32 v3, 0x3f803f80")
    m = mfmas(st)
    for x in m[:15]: a(x)
    c0 = conv(0)
    mix(a, m[15:], ["\n".join(c0[2*i:2*i+2]) for i in range(12)], 1)
    for x in c0[24:]: a(x)
    if o.get("trace"):
        a(f"s_sub_u32 s3, s2, 192\ns_lshl_b32 s3, s3, 3\ns_add_u32 s3, s3, s{sWAVE}\ns_lshl_b32 s3, s3, 8\ns_add_u32 s3, s3, {0x1700000}\nv_lshlrev_b32 v1, 2, v0\nbuffer_store_dword v23, v1, {srd(rWS)}, s3 offen")
    a.stamp(5)
    if o["stamps"]: a("s_waitcnt lgkmcnt(0)")
    if o["ab1"] == 0: only(1, ["s_barrier"])
    A0, A1, A3 = 180, 200, 24
    a(f"v_xor_b32 v1, 128, v{aPK}\nv_xor_b32 v2, 256, v{aPK}")
    rd = [f"ds_read_b128 v[{A0+4*u}:{A0+4*u+3}], v{aPK} offset:{1024*u}" for u in range(5)]
    rd += [f"ds_read_b128 v[{A1+4*u}:{A1+4*u+3}], v1 offset:{1024*u}" for u in range(5)]
    rd += [f"ds_read_b128 v[{A3+4*u}:{A3+4*u+3}], v{aPK} offset:{5120+1024*u}" for u in range(5)]
    for x in rd: a(x)
    for x in conv(1): a(x)
    PA = [44, 64]
    E1, E2 = 84, 102
    def fmf(src, p, d0):
        l = []
        for part, (A_, b_) in enumerate(((A0, src + 8 * p), (A1, src + 8 * p + 4), (A3, PT + 4 * p))):
            for u in range(5):
                d = d0 + 4 * u
                l.append(f"v_mfma_f32_16x16x32_bf16 v[{d}:{d+3}], v[{A_+4*u}:{A_+4*u+3}], v[{b_}:{b_+3}], {'0' if part == 0 else f'v[{d}:{d+3}]'}")
        return l
    a("s_waitcnt lgkmcnt(3)")
    c23 = conv(2) + conv(3)
    mix(a, c23, fmf(PKk, 0, PA[0]), 3)
    vL = [120, 122]
    a(f"s_mov_b32 vcc_lo, -1\ns_mov_b32 vcc_hi, 0\ns_mov_b32 s3, {fhex(LOG2E)}\nv_cndmask_b32 v{vL[0]}, v{vS+2}, v{vS}, vcc\nv_cndmask_b32 v{vL[1]}, v{vS+6}, v{vS+4}, vcc")
    a(f"v_mul_f32 v{vL[0]}, s3, v{vL[0]}\nv_mul_f32 v{vL[1]}, s3, v{vL[1]}")
    def soft(p, X, Y, nxt=()):
        d = PA[p]
        L = vL[p]
        a(f"v_max_f32 v4, v{d}, v{d+1}\nv_min_f32 v6, v{d}, v{d+1}")
        for i in range(1, 9):
            a(f"v_max3_f32 v4, v4, v{d+2*i}, v{d+2*i+1}\nv_min3_f32 v6, v6, v{d+2*i}, v{d+2*i+1}")
        a(f"v_mul_f32 v4, v{L}, v4\nv_mul_f32 v6, v{L}, v6")
        for i in range(9):
            a(f"v_pk_fma_f32 v[{E1+2*i}:{E1+2*i+1}], v[{d+2*i}:{d+2*i+1}], v[{L}:{L+1}], v[4:5] op_sel_hi:[1,0,0] neg_lo:[0,0,1] neg_hi:[0,0,1]")
        for i in range(9):
            a(f"v_pk_fma_f32 v[{E2+2*i}:{E2+2*i+1}], v[{d+2*i}:{d+2*i+1}], v[{L}:{L+1}], v[6:7] op_sel_hi:[1,0,0] neg_lo:[1,0,0] neg_hi:[1,0,0]")
        mix(a, [f"v_exp_f32 v{E1+i}, v{E1+i}" for i in range(36)], nxt, 2)
        a(f"v_pk_add_f32 v[4:5], v[{E1}:{E1+1}], v[{E1+2}:{E1+3}]\nv_pk_add_f32 v[6:7], v[{E2}:{E2+1}], v[{E2+2}:{E2+3}]")
        for i in range(2, 9):
            a(f"v_pk_add_f32 v[4:5], v[4:5], v[{E1+2*i}:{E1+2*i+1}]\nv_pk_add_f32 v[6:7], v[6:7], v[{E2+2*i}:{E2+2*i+1}]")
        a("v_add_f32 v4, v4, v5\nv_add_f32 v6, v6, v7\nv_rcp_f32 v4, v4\nv_rcp_f32 v6, v6")
        for E, c in ((E1, 4), (E2, 6)):
            for i in range(9):
                a(f"v_pk_mul_f32 v[{E+2*i}:{E+2*i+1}], v[{E+2*i}:{E+2*i+1}], v[{c}:{c+1}] op_sel_hi:[1,0]")
        for i in range(9): a(f"v_cvt_pk_bf16_f32 v{X+i}, v{E1+2*i}, v{E1+2*i+1}")
        for i in range(9): a(f"v_cvt_pk_bf16_f32 v{Y+i}, v{E2+2*i}, v{E2+2*i+1}")
    XO, YO = 124, 14
    def kwr(p):
        for h, R in enumerate((XO, YO)):
            for i in range(4):
                a(f"ds_write_b64 v{aK}, v[{R+2*i}:{R+2*i+1}] offset:{32*IMG_P*p+40*h+8*i}")
            a(f"ds_write_b32 v{aK}, v{R+8} offset:{32*IMG_P*p+40*h+32}")
    if o["ab1"] == 1: only(1, w2_touch("Y1") + ["s_barrier"])
    a.align8()
    soft(0, XO, YO, fmf(PKk, 1, PA[1]))
    for u in range(5): a(f"ds_read_b128 v[{A3+4*u}:{A3+4*u+3}], v2 offset:{5120+1024*u}")
    kwr(0)
    both("2")
    if o["ab1"] == 2: only(1, ["s_barrier"])
    a.align8()
    soft(1, XO, YO, ["s_waitcnt lgkmcnt(0)"] + fmf(PQ, 0, PA[0]))
    kwr(1)
    a.stamp(6)
    a(f"v_add_u32 v1, {128*IMG_P}, v{aKA}\nv_add_u32 v2, {128*IMG_P}, v{aKB}")
    KA = 152
    FR = [64, 84, 100]
    a("s_waitcnt lgkmcnt(0)\ns_barrier\ns_setprio 1")
    def kvr(ks):
        st = FR[ks % 3]
        ra, rb_ = (aKA, aKB) if ks < 4 else (1, 2)
        off = (ks & 3) * 32 * IMG_P
        r = [f"ds_read_b64_tr_b16 v[{st+12+2*rho}:{st+13+2*rho}], v{rb_} offset:{off+rho*IMG_P}" for rho in range(2)]
        for mt in range(3):
            r += [f"ds_read_b64_tr_b16 v[{st+4*mt+2*rho}:{st+4*mt+2*rho+1}], v{ra} offset:{off+rho*IMG_P+32*mt}" for rho in range(2)]
        return r
    for x in kvr(0) + kvr(1): a(x)
    for ks in range(8):
        a(f"s_waitcnt lgkmcnt({8 if ks + 1 < 8 else 0})")
        st = FR[ks % 3]
        m = [f"v_mfma_f32_16x16x32_bf16 v[{KA+4*mt}:{KA+4*mt+3}], v[{st+4*mt}:{st+4*mt+3}], v[{st+12}:{st+15}], {'0' if ks == 0 else f'v[{KA+4*mt}:{KA+4*mt+3}]'}" for mt in range(3)]
        r = kvr(ks + 2) if ks + 2 < 8 else []
        for mt in range(3):
            a(m[mt])
            for x in r[3*mt:3*mt+3]: a(x)
    a(f"s_and_b32 s3, s{sWAVE}, 1\ns_mul_i32 s3, s3, 2560\ns_add_u32 s3, s3, s30\ns_nop 4")
    for mt in range(3):
        a(f"buffer_store_dwordx4 v[{KA+4*mt}:{KA+4*mt+3}], v{aP+(mt>>1)}, {srd(rWS)}, s3 offen sc1\ns_add_u32 s3, s3, s40")
    a.stamp(7)
    QR = [124, 14, 152, 164]
    def signal():
        a("s_waitcnt vmcnt(0)")
        a.set_flags("s31", aF, 8, 8)
    def swaps(X, Y):
        a(f"v_mov_b32 v{X+9}, 0\nv_mov_b32 v{Y+9}, 0")
        for i in range(9): a(f"v_permlane32_swap_b32 v{X+i}, v{Y+i}")
    signal()
    a("s_setprio 0")
    only(0, w2_touch("O1") + ["s_barrier"])
    a.align8()
    soft(0, QR[0], QR[1], fmf(PQ, 1, PA[1]))
    RD = [180, 24]
    def gather():
        a.save_stamps()
        a(f"s_add_u32 s50, s{rWS}, s36\ns_addc_u32 s51, s{rWS+1}, 0")
        a.spoll_issue(50, [(64, 16, 0)])
        swaps(QR[0], QR[1])
        if o["ab3"]: only(1, ["s_barrier"])
        a.spoll_check(50, [(64, 16, 0)], list(range(64, 80)))
        if o["stamps"]: a("s_waitcnt lgkmcnt(0)")
        a.restore_stamps()
        a(f"s_mul_i32 s3, s{sTB}, {KVB}\ns_sub_u32 s3, s30, s3")
        for t in range(8):
            for i in range(2):
                a(f"buffer_load_dwordx4 v[{RD[i]+4*t}:{RD[i]+4*t+3}], v{aR+i}, {srd(rWS)}, s3 offen sc1")
            a(f"s_add_u32 s3, s3, {KVB}")
    gather()
    if o["ab3"] == 2: a("s_setprio 1")
    a.align8()
    soft(1, QR[2], QR[3]); swaps(QR[2], QR[3])
    a.stamp(8)
    a(f"s_mul_i32 s3, s{sWAVE}, 4608\nv_lshl_add_u32 v1, v0, 4, s3")
    for t in range(1, 8):
        a(f"s_waitcnt vmcnt({14-2*t})")
        for i in range(2):
            for h in range(2):
                a(f"v_pk_add_f32 v[{RD[i]+2*h}:{RD[i]+2*h+1}], v[{RD[i]+2*h}:{RD[i]+2*h+1}], v[{RD[i]+4*t+2*h}:{RD[i]+4*t+2*h+1}]")
    for i in range(2):
        a(f"v_cvt_pk_bf16_f32 v{RD[i]}, v{RD[i]}, v{RD[i]+1}\nv_cvt_pk_bf16_f32 v{RD[i]+1}, v{RD[i]+2}, v{RD[i]+3}")
        a(f"ds_write_b64 v{aL+i}, v[{RD[i]}:{RD[i]+1}]")
    a("s_waitcnt lgkmcnt(0)\ns_barrier")
    if o["ab3"] == 2: a("s_setprio 0")
    a.stamp(9)
    both("3")
    a(f"s_mov_b32 s48, {fhex(1e-6)}")
    BF = [88, 100, 112, 136]
    for t in (3, 0, 1, 2):
        b = BF[t]
        a(f"ds_read2_b64 v[{b}:{b+3}], v{aB+t} offset0:0 offset1:1\nds_read2_b64 v[{b+4}:{b+7}], v{aB+t} offset0:2 offset1:3\nds_read_b32 v{b+8}, v{aB+t} offset:32\nv_mov_b32 v{b+9}, 0")
    for i in range(5):
        a(f"v_add_u32 v2, {64*i}, v0\nv_mul_u32_u24 v3, 1821, v2\nv_lshrrev_b32 v3, 16, v3\nv_mul_u32_u24 v3, 8640, v3\nv_lshl_add_u32 v{204+i}, v2, 4, v3")
    a("s_waitcnt lgkmcnt(0)")
    DD = [24, 40, 56, 72]
    OO = [180, 192]
    def omf(tts):
        l = []
        for c in range(3):
            for tt in tts:
                q = QR[tt]
                for t in (3, 0, 1, 2):
                    d, b = DD[tt] + 4 * t, BF[t]
                    if c < 2:
                        l.append(f"v_mfma_f32_16x16x32_bf16 v[{d}:{d+3}], v[{q+4*c}:{q+4*c+3}], v[{b+4*c}:{b+4*c+3}], {'0' if c == 0 else f'v[{d}:{d+3}]'}")
                    else:
                        l.append(f"v_mfma_f32_16x16x16_bf16 v[{d}:{d+3}], v[{q+8}:{q+9}], v[{b+8}:{b+9}], v[{d}:{d+3}]")
        return l
    def ofin(p):
        l = []
        for tt in (2 * p, 2 * p + 1):
            d = DD[tt]
            l += [f"v_add_f32 v{d+12+r}, s48, v{d+12+r}" for r in range(4)]
            l += [f"v_rcp_f32 v{d+12+r}, v{d+12+r}" for r in range(4)]
        for tt in (2 * p, 2 * p + 1):
            d = DD[tt]
            l += [f"v_pk_mul_f32 v[{d+4*t+2*h}:{d+4*t+2*h+1}], v[{d+4*t+2*h}:{d+4*t+2*h+1}], v[{d+12+2*h}:{d+13+2*h}]" for t in range(3) for h in range(2)]
            l += [f"v_cvt_pk_bf16_f32 v{OO[p]+4*t+2*(tt&1)+h}, v{d+4*t+2*h}, v{d+4*t+2*h+1}" for t in range(3) for h in range(2)]
        for t in range(3):
            r = OO[p] + 4 * t
            l += [f"v_permlane16_swap_b32 v{r}, v{r+2}", f"v_permlane16_swap_b32 v{r+1}, v{r+3}"]
        for t in range(3):
            r = OO[p] + 4 * t
            l.append(f"ds_write_b128 v{aO+(t>>1)}, v[{r}:{r+3}] offset:{128*t+4*576*p}")
        return l
    for x in omf((0, 1)): a(x)
    m = omf((2, 3))
    a(m[0])
    mix(a, ofin(0), m[1:], 2)
    a("s_nop 3")
    for x in ofin(1): a(x)
    for i in range(5): a(f"ds_read_b128 v[{24+4*i}:{27+4*i}], v1 offset:{1024*i}")
    for i in range(5):
        if i == 4: a("s_mov_b32 exec_hi, 0")
        a(f"s_waitcnt lgkmcnt({4-i})\nbuffer_store_dwordx4 v[{24+4*i}:{27+4*i}], v{204+i}, {srd(rWS)}, s37 offen sc1")
    a("s_mov_b32 exec_hi, -1")
    if o["ab3"]: only(0, ["s_barrier"])
    a.stamp(11)
    a(f"s_lshl_b32 s3, s{sTB}, 1\ns_lshr_b32 s48, s{sTG}, 1\ns_add_u32 s3, s3, s48\ns_lshl_b32 s3, s3, 2\ns_lshr_b32 s48, s{sXCD}, 1\ns_add_u32 s3, s3, s48\ns_lshl_b32 s3, s3, 7")
    a(f"s_and_b32 s48, s{sXCD}, 1\ns_lshl_b32 s48, s48, 1\ns_add_u32 s48, s48, s{sHP}\ns_lshl_b32 s48, s48, 1\ns_and_b32 s49, s{sTG}, 1\ns_add_u32 s48, s48, s49\ns_lshl_b32 s48, s48, 2\ns_add_u32 s3, s3, s48\ns_add_u32 s3, s3, {FLO}")
    a("s_waitcnt vmcnt(0)")
    a.set_flag("s3", 4)
    a.stamp(10)
```

```python
import sys
sys.path.insert(0, "work")
from asmlib import *

KNAME = "parallel_sum__linear_kernel_hedgehog__mixer_token_mlp__prompt_kernel"
S, D, F, H, DH = 2048, 576, 4608, 32, 18

EPOCH = 0
FLA, FLB, FLKV, FLO, FLX = 0x80000, 0xA0000, 0xC000, 0x8000, 0xC0000
STAMP = 0x20000
S2 = 0x60000
HT = 0x100000
U = 0x400000
OT = 0xA00000
KVP = 0xD00000
EX = 0xE00000

sWAVE, sXCD, sIDX, sTAG = 4, 5, 6, 7
rX, rWQKV, rWPHI, rWO, rW1, rB1, rW2, rB2, rOUT, rWS = 8, 12, 16, 20, 24, 28, 32, 36, 40, 44
sST = 64
def srd(r): return f"s[{r}:{r+3}]"

G1_SLOT, G1_NS, G1_W = 30720, 5, 18432
LN_SCR, LN_PITCH = 153600, 1216
LN_S2 = LN_SCR + 8 * LN_PITCH
G2_US, G2_WS, G2_PITCH = 12544, 8192, 3136
G2_U = [0, 25088, 122880]
G2_W = [61440, 61440 + 16384, 61440 + 32768]
SH_SCR = 147968
OI, OI_P = 50176, 2432
WO_AT = [0, 12544, 25088, 147968, 110592]
TO_SCR = 122880
LDS_BYTES = 163840
OOB = 0x7FFF0000

LOG2E = 1.4426950408889634
CNT = 160256

def slow_tile(ft):
    a_ = (192 * ft) & 1023
    return 192 < a_ < 512
def xcd_perm(x):
    return sorted(range(6), key=lambda e: slow_tile(6 * x + e))
def xcd_order(x):
    own = [6 * (x & 1) + e for e in xcd_perm(x)]
    oth = [6 * ((x & 1) ^ 1) + e for e in xcd_perm(x ^ 1)]
    return own[:4] + oth[:4] + own[4:] + oth[4:]
for _r in range(1152): assert (_r * 683) >> 16 == _r // 96


class Gen(Asm):
    def __init__(self, **opt):
        super().__init__()
        self.o = dict(stamps=False, att=True, pf_code=True, spin=1 << 16, prefill=3, la1=2, probe=0, clk=False, dbg='',
                      sp=0, latp=4, latin=2, latc=1, un1=2, w2a=0, w2c=0, w2p=4, w2e=1, aw2=(1, 0, 1, 1), aw2r=128, awq=0, rot=7, w1a=1, w1c=0, spn=600, w2r=512, sp2=0, spn2=120, perm=1, spo=0, spc=1, odl=17, g2b=(12, 10, 11), aw5=1, tout=1, dot=1, woe=8, oe=3, awo=1, lat0=3, h1=1, wqa=1, ab1=1, ab3=0, atw=0, snake=2, fp=0, b1p=0, wot=0, e2=0, walk=0, efw=0, lsu=1, ef=4, efb=0, lna=0, wk0=15, at=dict(o15=[0], o16=[128], BL=[256], Y1=[512], B2=[640], B3=[896], Y3=[-1]))
        self.o.update(opt)
        self.nstamp = {}

    def stamp(self, i):
        if self.o["stamps"]:
            self(f"{'s_memtime' if self.o['clk'] else 's_memrealtime'} s[{sST+2*i}:{sST+2*i+1}]")

    def dump_stamps(self, vtmp):
        if not self.o["stamps"]:
            return
        a = self
        a("s_waitcnt lgkmcnt(0)")
        a(f"s_lshl_b32 s3, s2, 3\ns_add_u32 s3, s3, s{sWAVE}\ns_lshl_b32 s3, s3, 6\ns_add_u32 s3, s3, {STAMP}")
        a(f"v_mov_b32 v{vtmp+4}, 0")
        for q in range(4):
            for i in range(4):
                a(f"v_mov_b32 v{vtmp+i}, s{sST+2*(4*q+i)}")
            a(f"buffer_store_dwordx4 v[{vtmp}:{vtmp+3}], v{vtmp+4}, {srd(rWS)}, s3 offen offset:{16*q}")
            a("s_nop 1")

    def align8(self):
        self(".p2align 3")

    def wave_sum(self, v, sdst):
        a = self
        for m in ("row_shr:1", "row_shr:2", "row_shr:4", "row_shr:8"):
            a(f"s_nop 1\nv_add_f32_dpp v{v}, v{v}, v{v} {m} row_mask:0xf bank_mask:0xf bound_ctrl:1")
        a(f"s_nop 1\nv_add_f32_dpp v{v}, v{v}, v{v} row_bcast:15 row_mask:0xa bank_mask:0xf")
        a(f"s_nop 1\nv_add_f32_dpp v{v}, v{v}, v{v} row_bcast:31 row_mask:0xc bank_mask:0xf")
        a(f"s_nop 0\nv_readlane_b32 s{sdst}, v{v}, 63\ns_nop 1")

    def divmod_const(self, vq, vr, vx, c, vt):
        m = (1 << 20) // c + 1
        for x in range(2048):
            assert (x * m) >> 20 == x // c
        assert 2047 * m < (1 << 32) and m < (1 << 24)
        self(f"v_mul_u32_u24 v{vq}, {m}, v{vx}\nv_lshrrev_b32 v{vq}, 20, v{vq}")
        self(f"v_mul_u32_u24 v{vt}, {c}, v{vq}\nv_sub_u32 v{vr}, v{vx}, v{vt}")

    def tr0(self):
        if self.o.get("trace"): self("s_memtime s[92:93]")
    def tr1(self, i):
        if self.o.get("trace"): self(f"s_waitcnt lgkmcnt(0)\nv_writelane_b32 v200, s92, {i}")
    def save_stamps(self):
        if self.o["stamps"]:
            self("s_waitcnt lgkmcnt(0)")
            for i in range(16): self(f"v_writelane_b32 v9, s{sST+2*i}, {i}")
    def restore_stamps(self):
        if self.o["stamps"]:
            for i in range(16): self(f"v_readlane_b32 s{sST+2*i}, v9, {i}")

    def spoll_issue(self, sbase, parts, glc=" glc", first=True):
        if first and self.o["fp"]: self("s_waitcnt lgkmcnt(0)")
        for d, w, off in parts:
            dst = f"s{d}" if w == 1 else f"s[{d}:{d+w-1}]"
            self(f"s_load_dword{'' if w == 1 else 'x'+str(w)} {dst}, s[{sbase}:{sbase+1}], {off}{glc}")

    def spoll_check(self, sbase, parts, regs):
        a = self
        lp, done = a.label("poll"), a.label("polld")
        a(f"s_mov_b32 s48, {self.o['spin']}")
        fp = self.o["fp"]
        a(f"s_waitcnt lgkmcnt(0)\n{lp}:" if fp else f"{lp}:\ns_waitcnt lgkmcnt(0)")
        pairs = [r for r in regs if r % 2 == 0 and r + 1 in regs]
        single = [r for r in regs if r not in pairs and r - 1 not in pairs]
        for k, r in enumerate(pairs):
            a(f"s_cmp_lg_u64 s[{r}:{r+1}], s[0:1]\ns_cselect_b32 s49, 1, {'s49' if k else 0}")
        for r in single:
            a(f"s_cmp_lg_u32 s{r}, s0\ns_cselect_b32 s49, 1, s49")
        a(f"s_cmp_eq_u32 s49, 0\ns_cbranch_scc1 {done}")
        a(f"s_sub_u32 s48, s48, 1\ns_cmp_eq_u32 s48, 0\ns_cbranch_scc1 {done}")
        self.spoll_issue(sbase, parts, first=False)
        if fp > 1: a(f"s_sleep {fp - 1}")
        a(f"s_branch {lp}\n{done}:")
        self.pending = True

    def spoll(self, soff, parts, regs, first_plain=False):
        self(f"s_add_u32 s50, s{rWS}, {soff}\ns_addc_u32 s51, s{rWS+1}, 0")
        self.spoll_issue(50, parts, "" if first_plain else " glc")
        self.spoll_check(50, parts, regs)

    def set_flag(self, soff, vt):
        a = self
        a(f"v_mov_b32 v{vt}, s{sTAG}\ns_mov_b64 exec, 1")
        a(f"buffer_store_dword v{vt}, off, {srd(rWS)}, {soff} sc1")
        a("s_mov_b64 exec, -1")

    def set_flags(self, soff, vaddr, vt, nl):
        a = self
        a(f"v_mov_b32 v{vt}, s{sTAG}\ns_mov_b32 exec_lo, {hex((1 << nl) - 1)}\ns_mov_b32 exec_hi, 0")
        a(f"buffer_store_dword v{vt}, v{vaddr}, {srd(rWS)}, {soff} offen sc1")
        a("s_mov_b64 exec, -1")

    def interleave(self, mf, ds, per_gap=2, start=0):
        ds = list(ds)
        if "m" in self.o["dbg"]: mf = mf[:1]
        if "d" in self.o["dbg"]: ds = [x for x in ds if not x.startswith("ds_")]
        for i, m in enumerate(mf):
            self(m)
            if i >= start:
                for _ in range(per_gap):
                    if ds:
                        self(ds.pop(0))
        for d in ds:
            self(d)

    def sched(self, mf, prev, ds, extra=(), waits=(0,), bar=None, tail_busy=1):
        a = self
        ds, extra = list(ds), list(extra)
        if "d" in self.o["dbg"]: ds = []
        n = len(mf)
        waits = sorted(set(waits))
        npre = [(1 if i in waits or (bar and bar[0] == i and bar[1]) else 0) + (1 if bar and bar[0] == i else 0) for i in range(n)] + [tail_busy]
        first = bar[0] if bar else 0
        cnt = [0] * n
        free = [g for g in range(first, n) if npre[g + 1] < 2]
        k = len(ds)
        for g in free[:k]: cnt[g] = 1
        k -= min(k, len(free))
        for g in sorted(range(first, n), key=lambda g: (cnt[g] * 2 + npre[g + 1], g)):
            if k: cnt[g] += 1; k -= 1
        assert k == 0
        new = 0
        for i, (t, need) in enumerate(mf):
            if bar and bar[0] == i and bar[1]:
                a("s_waitcnt lgkmcnt(0)")
            elif i in waits:
                nxt = [w for w in waits if w > i]
                end = nxt[0] if nxt else n
                idx = max(prev.index(x) for k_ in range(i, end) for x in mf[k_][1])
                a(f"s_waitcnt lgkmcnt({min(14, len(prev) - 1 - idx + new)})")
            if bar and bar[0] == i: a("s_barrier")
            if not ("m" in self.o["dbg"] and i): a(t)
            for _ in range(cnt[i]):
                a(ds.pop(0)[0]); new += 1
            room = 3 - 2 * cnt[i] - npre[i + 1]
            while extra and room > 0:
                a(extra.pop(0)); room -= 1
        for e in extra: a(e)

    def linear(self, mf, place, pre, order, look=3, soft=(), tail_busy=1):
        a = self
        order = list(order)
        known = -1
        waits = {}
        for i, (t, need, acc, kind) in enumerate(mf):
            if "s_waitcnt lgkmcnt(0)" in pre.get(i, []): known = len(order) - 1
            if max(order.index(x) for x in need) > known:
                idx = max(order.index(x) for k in range(i, min(i + look, len(mf))) for x in mf[k][1] if x in order)
                waits[i] = min(14, len(order) - 1 - idx)
                known = len(order) - 1 - waits[i]
            order += [id_ for x, id_ in place.get(i, []) if id_]
        soft = list(soft)
        cnt = [0]
        last = {}
        def em(t):
            a(t); cnt[0] += len(t.split("\n"))
        for i, (t, need, acc, kind) in enumerate(mf):
            for x in pre.get(i, []): em(x)
            if i in waits: em(f"s_waitcnt lgkmcnt({waits[i]})")
            if acc in last and last[acc][1] != kind and cnt[0] - last[acc][0] < 6:
                em(f"s_nop {5 - (cnt[0] - last[acc][0])}")
            em(t); last[acc] = (cnt[0], kind)
            room = 3 - len(pre.get(i + 1, [])) - (1 if i + 1 in waits else 0) - (tail_busy if i + 1 == len(mf) else 0)
            for x, id_ in place.get(i, []):
                em(x); room -= 2 if id_ else 1
            while soft and soft[0][0] <= i and (room > 0 or soft[0][1] <= i):
                em(soft.pop(0)[2]); room -= 1
        assert not soft

    def gelu(self, regs, cA, cB, tmp, out, group=4):
        a = self
        for g0 in range(0, len(regs), group):
            rs = regs[g0:g0 + group]
            T = lambda i: f"v[{tmp+2*i}:{tmp+2*i+1}]"
            R = lambda r: f"v[{r}:{r+1}]"
            for i, r in enumerate(rs): a(f"v_pk_mul_f32 {T(i)}, {R(r)}, {R(r)}")
            for i, r in enumerate(rs): a(f"v_pk_fma_f32 {T(i)}, {T(i)}, {R(cA)}, {R(cB)}")
            for i, r in enumerate(rs): a(f"v_pk_mul_f32 {T(i)}, {T(i)}, {R(r)}")
            for i, r in enumerate(rs): a(f"v_exp_f32 v{tmp+2*i}, v{tmp+2*i}\nv_exp_f32 v{tmp+2*i+1}, v{tmp+2*i+1}")
            for i, r in enumerate(rs): a(f"v_pk_add_f32 {T(i)}, {T(i)}, 1.0 op_sel_hi:[1,0]")
            for i, r in enumerate(rs): a(f"v_rcp_f32 v{tmp+2*i}, v{tmp+2*i}\nv_rcp_f32 v{tmp+2*i+1}, v{tmp+2*i+1}")
            for i, r in enumerate(rs): a(f"v_pk_mul_f32 {T(i)}, {T(i)}, {R(r)}")
            for i, r in enumerate(rs): a(f"v_cvt_pk_bf16_f32 v{out[g0+i]}, v{tmp+2*i}, v{tmp+2*i+1}")
            yield g0

    def gelu_consts(self, cA, cB):
        c = 0.7978845608028654
        for i in range(2):
            self(f"v_mov_b32 v{cA+i}, {fhex(-2*c*0.044715*LOG2E)}\nv_mov_b32 v{cB+i}, {fhex(-2*c*LOG2E)}")

    def entry(self):
        a = self
        a.kernel(KNAME)
        if self.o["e2"]:
            self.entry2()
        else:
            if self.o["stamps"]:
                for i in range(1, 16): a(f"s_mov_b32 s{sST+2*i}, 0")
            a.stamp(0)
            a.load_ptr("x", rX); a.load_ptr("ws", rWS)
            a("s_cmp_ge_u32 s2, 256\ns_cbranch_scc1 L_end")
            a(f"v_readfirstlane_b32 s{sWAVE}, v0\ns_lshr_b32 s{sIDX}, s2, 3\nv_and_b32 v0, 63, v0")
            if self.o["pf_code"]:
                NL = 17
                a(f"s_cmp_lg_u32 s{sWAVE}, 0\ns_cbranch_scc1 L_nopf\ns_getpc_b64 s[50:51]\nL_pc0:")
                a(f"s_mul_i32 s48, s{sIDX}, {128*NL}\ns_min_u32 s48, s48, L_code_end-L_pc0-{128*(31+NL)+4}\nv_min_u32 v254, {31+NL}, v0\nv_lshrrev_b32 v253, 5, v0")
                a("v_lshlrev_b32 v254, 7, v254\nv_mad_u32_u24 v254, v253, s48, v254\nglobal_load_dword v255, v254, s[50:51]\nL_nopf:")
            a(f"s_lshr_b32 s{sWAVE}, s{sWAVE}, 6\ns_and_b32 s{sXCD}, s2, 7")
            a(f"s_lshl_b32 s53, s{sXCD}, 5\ns_add_u32 s53, s53, s{sIDX}\ns_lshl_b32 s3, s53, 3\ns_add_u32 s3, s3, s{sWAVE}\ns_mul_i32 s3, s3, 1152")
            a.srd_finish("x", rX)
            a("v_lshlrev_b32 v1, 3, v0\nv_lshlrev_b32 v7, 1, v0")
            a("s_waitcnt lgkmcnt(0)")
            a(f"buffer_load_dwordx2 v[2:3], v1, {srd(rX)}, s3 offen")
            a(f"buffer_load_dwordx2 v[4:5], v1, {srd(rX)}, s3 offen offset:512")
            a(f"buffer_load_ushort v6, v7, {srd(rX)}, s3 offen offset:1024")
        rest = (("w1", rW1), ("wqkv", rWQKV), ("wphi", rWPHI), ("wo", rWO), ("b1", rB1), ("w2", rW2), ("b2", rB2), ("out", rOUT))
        for n, r in rest: a.load_ptr(n, r)
        for n, r in (("ws", rWS),) + rest: a.srd_finish(n, r)
        a("s_waitcnt lgkmcnt(0)")
        a(f"s_load_dword s{sTAG}, s[{rWS}:{rWS+1}], {EPOCH}")
        a(f"s_getpc_b64 s[50:51]\nL_pc1:\ns_lshl_b32 s3, s{sXCD}, 3\ns_add_u32 s3, s3, order_table-L_pc1\ns_load_dwordx2 s[100:101], s[50:51], s3")
        a(f"s_mul_i32 s3, s{sWAVE}, {LN_PITCH}\ns_add_u32 s3, s3, {LN_SCR}")
        a("v_add_u32 v8, s3, v1\nv_add_u32 v9, s3, v7")
        a(f"s_lshl_b32 s3, s{sWAVE}, 2\ns_add_u32 s3, s3, {LN_S2}\nv_mov_b32 v25, s3\nv_mov_b32 v24, {fhex(1e-5)}\nv_mov_b32 v26, {fhex(-1.0/D)}\nv_mov_b32 v27, {fhex(1.0/D)}")
        a("v_bfe_u32 v60, v0, 2, 2\nv_lshrrev_b32 v61, 4, v0\nv_and_b32 v62, 3, v0")
        a(f"v_mul_u32_u24 v60, {LN_PITCH}, v60\nv_lshlrev_b32 v61, 5, v61\nv_lshlrev_b32 v62, 3, v62")
        a(f"v_add3_u32 v60, v60, v61, v62\nv_add_u32 v60, {LN_SCR}, v60")
        a(f"v_and_b32 v61, 7, v0\nv_lshlrev_b32 v61, 2, v61\nv_add_u32 v62, {LN_S2}, v61\nv_lshlrev_b32 v63, 4, v0\nv_lshlrev_b32 v64, 9, v0")
        a(f"s_mul_i32 s56, s53, 9216\ns_add_u32 s56, s56, {HT}\ns_add_u32 s57, s56, 4096\ns_add_u32 s58, s56, 8192\ns_lshl_b32 s59, s53, 5\ns_add_u32 s59, s59, {S2}")
        a(f"s_lshr_b32 s60, s{sIDX}, 3\ns_lshl_b32 s60, s60, 7\ns_and_b32 s48, s{sIDX}, 7\ns_lshl_b32 s48, s48, 2\ns_add_u32 s60, s60, s48\ns_lshl_b32 s48, s{sXCD}, 14\ns_add_u32 s60, s60, s48\ns_add_u32 s60, s60, {FLA}")
        self.early_prefetch()
        self.ln_compute()
        a(f"s_cmp_lg_u32 s{sWAVE}, 0\ns_cbranch_scc1 L_ln_done")
        self.ln_publish()
        a("L_ln_done:")
        a.stamp(2)
        a(f"s_cmp_ge_u32 s{sIDX}, 24\ns_cbranch_scc1 L_att")
        a(f"s_cmp_ge_u32 s{sWAVE}, 4\ns_cbranch_scc1 L_aux")

    def entry2(self):
        a = self
        a.stamp(0)
        a.load_ptr("x", rX)
        a(f"s_and_b32 s{sXCD}, s2, 7\ns_lshr_b32 s{sIDX}, s2, 3\ns_lshl_b32 s53, s{sXCD}, 5\ns_add_u32 s53, s53, s{sIDX}\ns_mul_i32 s3, s53, 9216")
        a(f"v_lshrrev_b32 v8, 6, v0\nv_and_b32 v0, 63, v0\nv_mul_u32_u24 v9, 1152, v8\nv_add_u32 v9, s3, v9\nv_lshl_add_u32 v10, v0, 3, v9\nv_lshl_add_u32 v9, v0, 1, v9")
        a(f"s_cmp_ge_u32 s{sIDX}, 32\ns_cbranch_scc1 L_end\ns_waitcnt lgkmcnt(0)")
        a(f"global_load_dwordx2 v[2:3], v10, s[{rX}:{rX+1}]\nglobal_load_dwordx2 v[4:5], v10, s[{rX}:{rX+1}] offset:512\nglobal_load_ushort v6, v9, s[{rX}:{rX+1}] offset:1024")
        a.load_ptr("ws", rWS)
        a(f"v_readfirstlane_b32 s{sWAVE}, v8\nv_lshlrev_b32 v1, 3, v0\nv_lshlrev_b32 v7, 1, v0")
        NL = 17
        a(f"s_cmp_lg_u32 s{sWAVE}, {self.o['e2'] - 1}\ns_cbranch_scc1 L_nopf\ns_getpc_b64 s[50:51]\nL_pc0:")
        a(f"s_mul_i32 s48, s{sIDX}, {128*NL}\ns_min_u32 s48, s48, L_code_end-L_pc0-{128*(31+NL)+4}\nv_min_u32 v254, {31+NL}, v0\nv_lshrrev_b32 v253, 5, v0")
        a("v_lshlrev_b32 v254, 7, v254\nv_mad_u32_u24 v254, v253, s48, v254\nglobal_load_dword v255, v254, s[50:51]\nL_nopf:")
        a.srd_finish("x", rX)
        if self.o["stamps"]:
            for i in range(1, 16): a(f"s_mov_b32 s{sST+2*i}, 0")

    def ln_compute(self):
        a = self
        a.stamp(1)
        for i in range(4):
            a(f"v_lshlrev_b32 v{10+2*i}, 16, v{2+i}\nv_and_b32 v{11+2*i}, 0xffff0000, v{2+i}")
        a("v_lshlrev_b32 v18, 16, v6")
        a("v_pk_add_f32 v[20:21], v[10:11], v[12:13]\nv_pk_add_f32 v[22:23], v[14:15], v[16:17]")
        a("v_pk_add_f32 v[20:21], v[20:21], v[22:23]\nv_add_f32 v20, v20, v18\nv_add_f32 v20, v20, v21")
        a.wave_sum(20, 48)
        a("v_mul_f32 v20, s48, v26")
        for i in range(4):
            a(f"v_pk_add_f32 v[{10+2*i}:{11+2*i}], v[{10+2*i}:{11+2*i}], v[20:21] op_sel_hi:[1,0]")
        a("v_add_f32 v18, v18, v20")
        a("v_pk_mul_f32 v[20:21], v[10:11], v[10:11]\nv_pk_mul_f32 v[22:23], v[12:13], v[12:13]")
        a("v_pk_fma_f32 v[20:21], v[14:15], v[14:15], v[20:21]\nv_pk_fma_f32 v[22:23], v[16:17], v[16:17], v[22:23]")
        a("v_pk_add_f32 v[20:21], v[20:21], v[22:23]\nv_fmac_f32 v20, v18, v18\nv_add_f32 v20, v20, v21")
        a.wave_sum(20, 48)
        a("v_mul_f32 v20, s48, v27\nv_add_f32 v21, v20, v24\nv_rsq_f32 v21, v21\ns_nop 0\nv_mul_f32 v22, v21, v21\nv_fma_f32 v22, v22, v20, v24")
        a("v_rsq_f32 v23, v22\ns_nop 0\nv_mul_f32 v20, v21, v23\nv_mul_f32 v22, v22, v23")
        for i in range(4):
            a(f"v_pk_mul_f32 v[{10+2*i}:{11+2*i}], v[{10+2*i}:{11+2*i}], v[20:21] op_sel_hi:[1,0]")
        a("v_mul_f32 v18, v18, v20")
        for i in range(4):
            a(f"v_cvt_pk_bf16_f32 v{2+i}, v{10+2*i}, v{11+2*i}")
        a("v_cvt_pk_bf16_f32 v6, v18, v18")
        a("ds_write_b64 v8, v[2:3]\nds_write_b64 v8, v[4:5] offset:512\nds_write_b16 v9, v6 offset:1024\nds_write_b32 v25, v22")
        a("s_waitcnt lgkmcnt(0)")
        a("s_barrier")
        self.make_tag()

    def ln_publish(self):
        a = self
        for b in range(9):
            a(f"ds_read_b64_tr_b16 v[{12+4*b}:{13+4*b}], v60 offset:{128*b}")
            a(f"ds_read_b64_tr_b16 v[{14+4*b}:{15+4*b}], v60 offset:{128*b+4*LN_PITCH}")
            if b >= 4:
                a("s_waitcnt lgkmcnt(8)")
                a(f"buffer_store_dwordx4 v[{12+4*(b-4)}:{15+4*(b-4)}], v63, {srd(rWS)}, s{56+(b-4)//4} offen offset:{1024*((b-4)%4)} sc1")
        a("ds_read_b32 v5, v62")
        a("s_waitcnt lgkmcnt(0)")
        for b in range(5, 9):
            a(f"buffer_store_dwordx4 v[{12+4*b}:{15+4*b}], v63, {srd(rWS)}, s{56+b//4} offen offset:{1024*(b%4)} sc1")
        a("s_mov_b64 exec, 0xff")
        a(f"buffer_store_dword v5, v61, {srd(rWS)}, s59 offen sc1")
        a("s_mov_b64 exec, -1")
        a.stamp(14)
        a("s_waitcnt vmcnt(0)")
        a.set_flags("s60", 64, 2, 32)

    def make_tag(self):
        self(f"s_mul_i32 s{sTAG}, s{sTAG}, 0x9E3779B1\ns_add_u32 s{sTAG}, s{sTAG}, 0x7F4A7C15\ns_mov_b32 s0, s{sTAG}\ns_mov_b32 s1, s{sTAG}")

    def bar_pub(self):
        self("s_barrier")

    def touch_pattern(self, vdst, R, stride, seg3=False):
        a = self
        a.divmod_const(vdst, vdst + 1, 0, 9, vdst + 2)
        a(f"v_min_u32 v{vdst}, {R-1}, v{vdst}\nv_mul_u32_u24 v{vdst}, {stride}, v{vdst}")
        if not seg3:
            a(f"v_lshl_add_u32 v{vdst}, v{vdst+1}, 7, v{vdst}")
        else:
            a.divmod_const(vdst + 2, vdst + 3, vdst + 1, 3, vdst + 4)
            a(f"v_mul_u32_u24 v{vdst+2}, 1152, v{vdst+2}\nv_mul_u32_u24 v{vdst+3}, 70, v{vdst+3}\nv_and_b32 v{vdst+3}, 0xfc, v{vdst+3}")
            a(f"v_add3_u32 v{vdst}, v{vdst}, v{vdst+2}, v{vdst+3}")

    def touch_w1(self, vpat, sid, R, row0, dst=None):
        a = self
        a(f"s_mul_i32 s3, {sid}, {R}\ns_add_u32 s3, s3, {row0}\ns_and_b32 s48, s{sXCD}, {self.o['rot']}\ns_lshl_b32 s48, s48, 8\ns_add_u32 s3, s3, s48\ns_and_b32 s3, s3, 2047")
        a(f"s_min_u32 s3, s3, {2048-R}\ns_mul_i32 s3, s3, 9216\ns_mul_i32 s48, s{sXCD}, 1152\ns_add_u32 s3, s3, s48")
        a(f"buffer_load_dword v{dst or vpat+5}, v{vpat}, {srd(rW1)}, s3 offen")

    def touch_wqkv(self, vpat, sid, R, row0, dst=None):
        a = self
        a(f"s_mul_i32 s3, {sid}, {R}\ns_add_u32 s3, s3, {row0}\ns_min_u32 s3, s3, {576-R}\ns_mul_i32 s3, s3, 3456\ns_mul_i32 s48, s{sXCD}, 144\ns_add_u32 s3, s3, s48")
        a(f"buffer_load_dword v{dst or vpat+5}, v{vpat}, {srd(rWQKV)}, s3 offen")

    def early_prefetch(self):
        a = self
        o = self.o
        n = o["w1a"] + o["wqa"]
        if not n:
            a("s_waitcnt vmcnt(0)"); return
        if o["lna"]: a(f"s_cmp_lg_u32 s{sWAVE}, 7\ns_cbranch_scc1 L_t0w")
        else: a(f"s_cmp_eq_u32 s{sWAVE}, 7\ns_cbranch_scc1 L_t0\ns_waitcnt vmcnt(0)\ns_branch L_t0c\nL_t0:")
        if o["wqa"]:
            a.divmod_const(80, 81, 0, 6, 82)
            a("v_min_u32 v80, 8, v80\nv_mul_u32_u24 v80, 3456, v80\nv_lshrrev_b32 v82, 1, v81\nv_mul_u32_u24 v82, 1152, v82\nv_and_b32 v81, 1, v81\nv_mul_u32_u24 v81, 140, v81\nv_add3_u32 v80, v80, v81, v82")
            for k in range(o["wqa"]):
                self.touch_wqkv(80, f"s{sIDX}", 9, 288 * k, 255)
        if o["w1a"]:
            self.touch_pattern(248, 7, 9216)
            for k in range(o["w1a"]):
                self.touch_w1(248, f"s{sIDX}", 7, 224 * k, 255)
        if o["lna"]:
            a(f"s_branch L_t0c\n.fill (1024-(.-{KNAME}))/4, 4, 0xbf800000\nL_t0w:\ns_waitcnt vmcnt(0)\nL_t0c:\ns_waitcnt vmcnt({n})")
        else: a(f"s_waitcnt vmcnt({n})\nL_t0c:")

    A_PARTS = [(64 + 8 * i, 8, 128 * i) for i in range(4)]
    A_REGS = list(range(64, 96))
    def A_addr(self, sg, rep=f"s{sIDX}"):
        self(f"s_lshl_b32 s52, {sg}, 5\ns_add_u32 s52, s52, {rep}\ns_lshl_b32 s52, s52, 9\ns_add_u32 s52, s52, {FLA}\ns_add_u32 s50, s{rWS}, s52\ns_addc_u32 s51, s{rWS+1}, 0")
    def wait_A_group(self, sg, rep=f"s{sIDX}"):
        self.A_addr(sg, rep)
        self.spoll_issue(50, self.A_PARTS)
        self.spoll_check(50, self.A_PARTS, self.A_REGS)

    def g1_ids(self):
        self(f"s_and_b32 s54, s{sIDX}, 3\ns_and_b32 s3, s{sIDX}, 28\ns_and_b32 s55, s{sIDX}, 16\ns_add_u32 s3, s3, s55\ns_lshr_b64 s[48:49], s[100:101], s3\ns_and_b32 s55, s48, 15")
        self(f"s_lshr_b32 s3, s{sXCD}, 1\ns_mul_i32 s3, s3, 12\ns_add_u32 s55, s55, s3")

    def ord_row(self, dst, src, t0=48):
        return [f"s_mul_i32 s{dst}, {src}, 683", f"s_lshr_b32 s{dst}, s{dst}, 16", f"s_lshl_b32 s{t0}, s{dst}, 2", f"s_lshr_b64 s[{t0}:{t0+1}], s[100:101], s{t0}",
                f"s_and_b32 s{t0}, s{t0}, 15", f"s_sub_i32 s{dst}, s{t0}, s{dst}", f"s_mul_i32 s{dst}, s{dst}, 96", f"s_add_i32 s{dst}, s{dst}, {src}"]

    def g2_ids(self):
        a = self
        a(f"s_lshr_b32 s58, s{sXCD}, 1\ns_mul_i32 s60, s{sIDX}, 43\ns_lshr_b32 s60, s60, 7\ns_mul_i32 s3, s60, 3\ns_sub_u32 s59, s{sIDX}, s3")
        a(f"s_and_b32 s3, s{sXCD}, 1\ns_lshl_b32 s3, s3, 3\ns_add_u32 s60, s60, s3")

    def mlp_compute(self):
        a = self
        ACC, SH = 16, 64
        P, Q = 80, 120
        b = ((1, 2, 3), (4, 8, 9))
        c = (5, 6, 7)
        self.bar_pub()
        self.g1_ids()
        a("v_lshrrev_b32 v9, 4, v0\nv_lshlrev_b32 v10, 3, v9\ns_mul_i32 s3, s55, 192")
        for t in range(6):
            a(f"buffer_load_dwordx2 v[{P+2*t}:{P+2*t+1}], v10, {srd(rB1)}, s3 offen offset:{32*t}")
        a("v_bfe_u32 v11, v0, 2, 2\nv_lshl_add_u32 v11, v9, 3, v11\nv_mul_u32_u24 v11, 192, v11")
        a("v_and_b32 v12, 3, v0\nv_lshl_add_u32 v11, v12, 3, v11")
        a(f"v_add_u32 v11, {G1_W}, v11\nv_and_b32 v12, 1, v9\nv_lshlrev_b32 v12, 5, v12")
        a(f"v_add_u32 v{c[0]}, v11, v12\nv_sub_u32 v{c[1]}, v11, v12\nv_add_u32 v{c[1]}, 32, v{c[1]}")
        a(f"v_mul_u32_u24 v11, 2304, v9\nv_and_b32 v12, 15, v0\nv_lshl_add_u32 v11, v12, 4, v11")
        a(f"v_mov_b32 v{c[2]}, v11")
        self.precompute_tail()
        a(f"v_mov_b32 v190, {CNT}\nv_mov_b32 v191, 0\nds_write_b32 v190, v191\nds_write_b32 v190, v191 offset:4")
        a("s_barrier")
        a.stamp(3)
        a("s_waitcnt vmcnt(0) lgkmcnt(0)")
        for t in range(6):
            for h in range(2):
                a(f"v_lshlrev_b32 v{ACC+4*t+2*h}, 16, v{P+2*t+h}\nv_and_b32 v{ACC+4*t+2*h+1}, 0xffff0000, v{P+2*t+h}")
        for i in range(24):
            a(f"v_mov_b32 v{ACC+24+i}, v{ACC+i}")
        for w in range(4):
            if w < 3:
                a(f"s_cmp_lg_u32 s{sWAVE}, {w}\ns_cbranch_scc1 L_g1_w{w+1}")
            self.g1_loop(w, ACC, SH, P, Q, b, c)
            if w < 3:
                a(f"s_branch L_g1_done\nL_g1_w{w+1}:")
        a("L_g1_done:\n;@on")
        a.stamp(5)
        self.g1_epilogue(ACC, SH, P, Q)
        self.g2_compute()

    vOUT, vSHW, vUST, vB2, vFB = 15, 13, 14, 12, 11
    cU, cW, cO, cP = 176, 177, 181, 184
    cGA, cGB = 76, 78
    def precompute_tail(self):
        a = self
        self.g2_ids()
        a(f"s_mul_i32 s3, s{sWAVE}, 3072\ns_add_u32 s3, s3, {SH_SCR}\nv_lshl_add_u32 v{self.vSHW}, v0, 4, s3")
        a(f"s_and_b32 s3, s{sWAVE}, 1\ns_lshl_b32 s3, s3, 2\ns_add_u32 s3, s3, s58\ns_lshl_b32 s3, s3, 4\ns_lshl_b32 s48, s60, 7\ns_add_u32 s61, s3, s48")
        a(f"s_lshr_b32 s3, s{sWAVE}, 1\ns_lshl_b32 s48, s59, 1\ns_add_u32 s3, s3, s48\ns_mul_i32 s3, s3, 192\ns_mul_i32 s62, s61, 1152\ns_add_u32 s62, s62, s3")
        a("s_lshl_b32 s61, s61, 1")
        a(f"v_and_b32 v190, 15, v0\nv_lshrrev_b32 v191, 4, v0\nv_bfe_u32 v192, v0, 2, 2\nv_and_b32 v193, 3, v0")
        a(f"v_mul_u32_u24 v{self.vOUT}, 1152, v190\nv_lshl_add_u32 v{self.vOUT}, v191, 4, v{self.vOUT}\nv_lshlrev_b32 v{self.vB2}, 1, v190")
        a(f"v_mul_u32_u24 v{self.vUST}, 9216, v191\nv_lshl_add_u32 v{self.vUST}, v190, 4, v{self.vUST}")
        a(f"s_mul_i32 s96, s55, {12*9216}\ns_mul_i32 s3, s54, 2304\ns_add_u32 s96, s96, s3\ns_lshl_b32 s3, s{sWAVE}, 9\ns_add_u32 s96, s96, s3\ns_add_u32 s96, s96, {U}")
        a(f"s_add_u32 s97, s96, {4*9216}\ns_add_u32 s98, s96, {8*9216}")
        a(f"s_mul_i32 s53, s58, {48*512}\ns_and_b32 s3, s{sXCD}, 1\ns_lshl_b32 s3, s3, 7\ns_add_u32 s53, s53, s3\ns_and_b32 s3, s{sIDX}, 28\ns_add_u32 s53, s53, s3\ns_add_u32 s53, s53, {FLB}")
        a(f"v_sub_u32 v194, s54, v191\nv_lshl_add_u32 v195, v194, 4, v190\nv_lshlrev_b32 v195, 9, v195\nv_lshl_add_u32 v195, v191, 8, v195")
        a(f"v_cmp_gt_u32 vcc, 3, v194\nv_mov_b32 v196, {OOB}\ns_nop 0\nv_cndmask_b32 v{self.vFB}, v196, v195, vcc")
        a(f"s_mul_i32 s56, s60, 3\ns_add_u32 s56, s56, s59")
        a(f"s_lshl_b32 s3, s56, 4\ns_add_u32 s3, s3, s{sWAVE}\ns_lshl_b32 s3, s3, 7\ns_add_u32 s99, s3, {FLX}\ns_lshl_b32 s3, s58, 9\ns_add_u32 s52, s3, s99")
        a(f"s_add_u32 s50, s{rWS}, s52\ns_addc_u32 s51, s{rWS+1}, 0\ns_load_dword s52, s[50:51], 0 glc")
        a.gelu_consts(self.cGA, self.cGB)
        cU, cW, cO = self.cU, self.cW, self.cO
        a(f"v_mul_u32_u24 v{cU}, {G2_PITCH}, v191\nv_lshl_add_u32 v{cU}, v192, 7, v{cU}\nv_lshl_add_u32 v{cU}, v193, 4, v{cU}")
        a(f"s_lshr_b32 s3, s{sWAVE}, 1\ns_mul_i32 s3, s3, 1536\nv_add_u32 v{cU}, s3, v{cU}")
        a("v_lshl_add_u32 v194, v191, 2, v192")
        a(f"v_lshlrev_b32 v195, 8, v194\nv_lshl_add_u32 v195, v193, 3, v195\nv_add_u32 v195, {G2_W[0]}, v195\nv_and_b32 v196, 7, v194")
        for j in range(4):
            a(f"s_add_u32 s3, s58, {j}\ns_and_b32 s3, s3, 3\ns_and_b32 s48, s{sWAVE}, 1\ns_lshl_b32 s48, s48, 2\ns_add_u32 s3, s3, s48")
            a(f"v_xor_b32 v197, s3, v196\nv_lshl_add_u32 v{cW+j}, v197, 5, v195")
        a(f"s_and_b32 s3, s{sWAVE}, 1\ns_mul_i32 s3, s3, {2*OI_P}\ns_add_u32 s3, s3, {OI}\nv_lshrrev_b32 v195, 1, v193\nv_mul_u32_u24 v195, {OI_P}, v195\nv_lshl_add_u32 v195, v194, 4, v195")
        a(f"v_and_b32 v196, 1, v193\nv_lshlrev_b32 v196, 3, v196\nv_add3_u32 v{self.cP}, v195, v196, s3")
        a("v_mul_u32_u24 v195, 384, v194\nv_lshl_add_u32 v195, v193, 4, v195\nv_bfe_u32 v196, v194, 1, 1")
        for p in range(3):
            a(f"s_lshr_b32 s3, s{sWAVE}, 1\ns_mul_i32 s3, s3, 3\ns_add_u32 s3, s3, {p}")
            a(f"v_xor_b32 v197, s3, v196\nv_lshl_add_u32 v{cO+p}, v197, 6, v195")

    def g1_loop(self, w, ACC, SH, P, Q, b, c):
        a = self
        t0, ks = 3 * (w >> 1), w & 1
        for i in range(12):
            a(f"v_mov_b32 v{SH+i}, v{ACC+4*t0+i}" if ks == 0 else f"v_mov_b32 v{SH+i}, 0")
        def reads(st, k, bb):
            bA0, bA1, bB = bb
            rb = lambda j: (f"ds_read_b128 v[{st+24+4*j}:{st+27+4*j}], v{bB} offset:{k*9216+256*j+512*w}", f"B{j}")
            ra = lambda t, rho: (f"ds_read_b64_tr_b16 v[{st+4*t+2*rho}:{st+4*t+2*rho+1}], v{bA1 if t & 1 else bA0} offset:{k*6144+rho*768+(t>>1)*64}", f"A{t}{rho}")
            r = [rb(0), ra(0, 0), ra(0, 1), rb(1)]
            for t in range(1, 6): r += [ra(t, 0), ra(t, 1)]
            if k == ks:
                r.append((f"ds_read_b128 v[{st+32}:{st+35}], v{bB} offset:{k*9216+2048}", "S"))
            return r
        ids = lambda k: [x[1] for x in reads(P, k, b[0])]
        def mfmas(st, k):
            m = []
            for t in range(6):
                for j in ((1, 0) if (self.o["snake"] and t & 1) else (0, 1)):
                    d = ACC + 24 * j + 4 * t
                    m.append((f"v_mfma_f32_16x16x32_bf16 v[{d}:{d+3}], v[{st+4*t}:{st+4*t+3}], v[{st+24+4*j}:{st+27+4*j}], v[{d}:{d+3}]", [f"A{t}1", f"B{j}"]))
            if k == ks:
                for i in range(3):
                    d = SH + 4 * i
                    m.append((f"v_mfma_f32_16x16x32_bf16 v[{d}:{d+3}], v[{st+4*(t0+i)}:{st+4*(t0+i)+3}], v[{st+32}:{st+35}], v[{d}:{d+3}]", ["S"]))
            return m
        W = tuple(self.o.get("w1w", (0, 2, 6, 10)))
        sadv = [f"s_add_u32 s56, s56, {G1_SLOT}", f"s_cmp_eq_u32 s56, {G1_SLOT*G1_NS}", "s_cselect_b32 s56, 0, s56"]
        def stage(par, last=False, tail=()):
            cur, nx = b[par], b[par ^ 1]
            vadv = [f"v_add_u32 v{x}, s56, v{y}" for x, y in zip(nx, c)]
            a.sched(mfmas(P, 0), ids(0), reads(Q, 1, cur), extra=() if last else vadv, waits=W, tail_busy=2)
            if not last:
                a.sched(mfmas(Q, 1), ids(1), reads(P, 0, nx), extra=sadv + list(tail), waits=W, bar=(0, False), tail_busy=2 if tail else 1)
            else:
                m = mfmas(Q, 1)
                a("s_waitcnt lgkmcnt(0)")
                for x in m[12:] + m[:12]: a(x[0])
        for x, y in zip(b[0], c):
            a(f"v_mov_b32 v{x}, v{y}")
        UN = self.o["un1"]
        assert UN % 2 == 0
        nl = 31 // UN
        a(f"s_mov_b32 s56, {G1_SLOT}\ns_mov_b32 s57, {nl}")
        a("s_barrier")
        a.stamp(4)
        if self.o["stamps"]: a("s_waitcnt lgkmcnt(0)")
        for r in reads(P, 0, b[0]): a(r[0])
        lp = a.label("g1")
        a(f"{lp}:")
        for u in range(UN):
            stage(u & 1, tail=("s_sub_u32 s57, s57, 1", "s_cmp_lg_u32 s57, 0") if u == UN - 1 else ())
        a(f"s_cbranch_scc1 {lp}")
        a(";@on")
        XR = 160
        xl = [f"buffer_load_dwordx4 v[{XR+4*p}:{XR+4*p+3}], v{self.vOUT}, {srd(rX)}, s62 offen offset:{64*p}" for p in range(3)]
        xl.append(f"buffer_load_ushort v{XR+12}, v{self.vB2}, {srd(rB2)}, s61 offen")
        for u in range(31 - nl * UN): stage(u & 1, tail=xl if u == 30 - nl * UN else ())
        stage(1, last=True)
        a(";@off")

    def g1_epilogue(self, ACC, SH, P, Q):
        a = self
        XR = 160
        for i in range(3):
            a(f"ds_write_b128 v{self.vSHW}, v[{SH+4*i}:{SH+4*i+3}] offset:{1024*i}")
        a(f"v_mov_b32 v1, {CNT}\nv_mov_b32 v2, 1")
        a("s_waitcnt lgkmcnt(0)\ns_barrier")
        ef = self.o["ef"]
        od_ = [(n & 1, n >> 1) for n in range(6)] if ef else [(n // 3, n % 3) for n in range(6)]
        regs = [ACC + 24 * j + 8 * p + 2 * i for j, p in od_ for i in range(4)]
        out = [P + i for i in range(24)]
        a.align8()
        for g0 in a.gelu(regs, self.cGA, self.cGB, Q, out):
            n = g0 // 4
            j, p = od_[n]
            a(f"buffer_store_dwordx4 v[{P+g0}:{P+g0+3}], v{self.vUST}, {srd(rWS)}, s{96+p} offen offset:{256*j} sc1")
            if ef and n == ef:
                a(f"s_mov_b64 exec, 1\ns_waitcnt vmcnt({n-1})\nds_add_u32 v1, v2 offset:4\ns_mov_b64 exec, -1\ns_nop 0")
        a("s_barrier")
        a.stamp(6)

    def g2_compute(self):
        a = self
        XR = 160
        ACC = 16
        P, Q = 176, 216
        bU, bU2, bW, bO, bO2, bP = 1, 2, 3, 112, 115, 118
        tW, tR, tG = 7, 122, 12
        a(f"v_mov_b32 v{bU}, v{self.cU}\nv_add_u32 v{bU2}, {G2_U[2]}, v{self.cU}\nv_mov_b32 v{bP}, v{self.cP}")
        for j in range(4): a(f"v_mov_b32 v{bW+j}, v{self.cW+j}")
        for p in range(3): a(f"v_mov_b32 v{bO+p}, v{self.cO+p}\nv_add_u32 v{bO2+p}, {WO_AT[4]}, v{self.cO+p}")
        a("s_waitcnt vmcnt(6)")
        a(f"v_lshlrev_b32 v{XR+12}, 16, v{XR+12}")
        for i in range(12):
            a(f"v_lshlrev_b32 v{ACC+2*i}, 16, v{XR+i}\nv_and_b32 v{ACC+2*i+1}, 0xffff0000, v{XR+i}")
        for i in range(12):
            a(f"v_pk_add_f32 v[{ACC+2*i}:{ACC+2*i+1}], v[{ACC+2*i}:{ACC+2*i+1}], v[{XR+12}:{XR+13}] op_sel_hi:[1,0]")
        for i in range(24, 96):
            a(f"v_mov_b32 v{ACC+i}, 0")
        a(f"v_mov_b32 v119, {CNT}\nv_mov_b32 v120, 1\ns_mov_b64 exec, 1\ns_waitcnt vmcnt(0) lgkmcnt(0)\nds_add_rtn_u32 v120, v119, v120\ns_waitcnt lgkmcnt(0)")
        a("v_readfirstlane_b32 s3, v120\ns_mov_b64 exec, -1\ns_cmp_lg_u32 s3, 3\ns_cbranch_scc1 L_noflagB")
        a.set_flags("s53", self.vFB, 121, 32)
        if self.o["efw"]: a("v_mov_b32 v120, 8\nds_write_b32 v119, v120\ns_waitcnt lgkmcnt(0)")
        a("L_noflagB:")
        a.stamp(7)
        a(f"s_mul_i32 s56, s60, 3\ns_add_u32 s56, s56, s59\ns_lshl_b32 s56, s56, 2")
        a(f"v_lshlrev_b32 v8, 4, v0\ns_mul_i32 s63, s{sWAVE}, 3072\ns_add_u32 s63, s63, {EX}\nv_mov_b32 v9, s{sTAG}")
        for j in range(1, 4):
            a(f"s_add_u32 s3, s58, {j}\ns_and_b32 s3, s3, 3\ns_lshl_b32 s48, s3, 9\ns_add_u32 s48, s48, s99\ns_add_u32 s{52+j}, s48, {4*(j-1)}")
            a(f"s_add_u32 s3, s3, s56\ns_mul_i32 s3, s3, 36864\ns_add_u32 s3, s3, s63\ns_add_u32 s{95+j}, s3, {(j-1)*12288}")
        a(f"s_add_u32 s48, s56, s58\ns_mul_i32 s48, s48, 36864\ns_add_u32 s63, s63, s48")
        a(f"s_mul_i32 s3, s{sWAVE}, 3328\ns_add_u32 s3, s3, {TO_SCR}\nv_and_b32 v{tW}, 15, v0\nv_mul_u32_u24 v{tW}, 208, v{tW}\nv_lshrrev_b32 v127, 4, v0\nv_lshlrev_b32 v127, 4, v127\nv_add3_u32 v{tW}, v{tW}, v127, s3")
        for i in range(3):
            a(f"v_add_u32 v133, {64*i}, v0")
            a.divmod_const(134, 135, 133, 12, 136)
            a(f"v_lshlrev_b32 v135, 4, v135\nv_mul_u32_u24 v136, 208, v134\nv_add3_u32 v{tR+i}, v135, v136, s3\nv_mul_u32_u24 v136, 1152, v134\nv_add_u32 v{tG+i}, v135, v136")

        sets = (P, Q)
        def reads(n, tag=""):
            st, sl, k = sets[n & 1], (n >> 1) % 3, n & 1
            ou = (G2_U[sl] if sl < 2 else 0) + k * G2_US
            ow = G2_W[sl] - G2_W[0] + k * G2_WS
            rb = lambda j: [(f"ds_read_b64_tr_b16 v[{st+24+4*j+2*rho}:{st+25+4*j+2*rho}], v{bW+j} offset:{ow+rho*4096}", f"{tag}B{j}{rho}") for rho in range(2)]
            r = rb(0)
            r += [(f"ds_read_b128 v[{st+4*m}:{st+4*m+3}], v{bU if sl < 2 else bU2} offset:{ou+(m>>1)*512+(m&1)*64}", f"{tag}A{m}1") for m in range(6)]
            if self.o["snake"] == 2: return r[:3] + rb(1) + r[3:] + rb(2) + rb(3)
            return r + rb(1) + rb(2) + rb(3)
        def mfmas(n, tag=""):
            st = sets[n & 1]
            m = []
            sn = self.o["snake"]
            if sn == 2: od_ = [(2 * h + (i ^ (t & 1)), t if h == 0 else 5 - t) for h in range(2) for t in range(6) for i in range(2)]
            else: od_ = [(j, 5 - t if (sn and j & 1) else t) for j in range(4) for t in range(6)]
            for j, t in od_:
                d = ACC + 24 * j + 4 * t
                m.append((f"v_mfma_f32_16x16x32_bf16 v[{d}:{d+3}], v[{st+4*t}:{st+4*t+3}], v[{st+24+4*j}:{st+27+4*j}], v[{d}:{d+3}]", [f"{tag}A{t}1", f"{tag}B{j}1"]))
            return m
        def step(n, extra=()):
            prev = [x[1] for x in reads(n)]
            if n & 1:
                a.sched(mfmas(n), prev, reads(n + 1), extra, waits=(0, 3), bar=(3, True), tail_busy=2 if extra else 1)
            else:
                a.sched(mfmas(n), prev, reads(n + 1), extra, waits=(0, 6, 12))
        a("s_barrier")
        a.stamp(9)
        if self.o["stamps"]: a("s_waitcnt lgkmcnt(0)")
        for r in reads(0): a(r[0])
        a("s_mov_b32 s57, 5")
        lp = a.label("g2")
        a.align8()
        a(f"{lp}:")
        for n in range(6): step(n, ("s_sub_u32 s57, s57, 1", "s_cmp_lg_u32 s57, 0") if n == 5 else ())
        a(f"s_cbranch_scc1 {lp}")
        a("L_g2_tail:")
        step(30); step(31)
        AR = {0: [P + 4 * t for t in range(6)], 1: [Q + 4 * t for t in range(6)], 2: [Q + 24 + 4 * t for t in range(4)] + [164, 168],
              3: [126 + 4 * t for t in range(6)], 4: [150 + 2 * t for t in range(6)]}
        BR = {0: P + 24, 1: P + 28, 2: P + 32, 3: P + 36, 4: 162}
        def ra(e):
            base, off = (bO, WO_AT[e]) if e < 3 else (bO2, WO_AT[e] - WO_AT[4])
            return [(f"ds_read_b64_tr_b16 v[{AR[e][t]+2*rho}:{AR[e][t]+2*rho+1}], v{base+(t>>1)} offset:{off+rho*6144+(t&1)*8}", f"a{e}{t}{rho}")
                    for t in range(6) for rho in range(2 if e < 4 else 1)]
        def rb(ph, e):
            return [(f"ds_read_b64_tr_b16 v[{BR[e]+2*rho}:{BR[e]+2*rho+1}], v{bP} offset:{ph*4*OI_P+e*512+rho*256}", f"b{ph}{e}{rho}") for rho in range(2 if e < 4 else 1)]
        mf, place, pre = [], {}, {}
        def put(g, items):
            for k, x in enumerate(items): place.setdefault(g + k, []).append(x)
        for n in range(32, 36):
            mf += [(t, need, t.split(",")[0], 32) for t, need in mfmas(n, str(n))]
        mf = [(t, need, acc.split()[1], kind) for t, need, acc, kind in mf]
        early = ra(3) + ra(4)
        put(0, reads(33, "33")); put(14, early[:7])
        pre[24 + 3] = ["s_waitcnt lgkmcnt(0)", "s_barrier"]
        put(24 + 3, reads(34, "34")); put(24 + 17, early[7:14])
        put(48, reads(35, "35")); put(48 + 14, early[14:])
        put(72, ra(0))
        pre[72 + 15] = ["s_barrier"]
        put(72 + 15, rb(0, 3) + rb(0, 4) + rb(0, 0) + rb(0, 1) + rb(0, 2))
        EO = (3, 4, 0, 1, 2)
        JO = (1, 2, 3, 0)
        for ph, j in enumerate(JO):
            g0 = 96 + 30 * ph
            for e in EO:
                for t in range(6):
                    d = ACC + 24 * j + 4 * t
                    if e < 4:
                        mf.append((f"v_mfma_f32_16x16x32_bf16 v[{d}:{d+3}], v[{AR[e][t]}:{AR[e][t]+3}], v[{BR[e]}:{BR[e]+3}], v[{d}:{d+3}]", [f"a{e}{t}1", f"b{ph}{e}1"], f"v[{d}:{d+3}]", 32))
                    else:
                        mf.append((f"v_mfma_f32_16x16x16_bf16 v[{d}:{d+3}], v[{AR[e][t]}:{AR[e][t]+1}], v[{BR[e]}:{BR[e]+1}], v[{d}:{d+3}]", [f"a{e}{t}0", f"b{ph}{e}0"], f"v[{d}:{d+3}]", 16))
            if ph == 0:
                put(g0, ra(1) + ra(2))
                pre[g0 + 24] = ["s_barrier"]
                put(g0 + 24, rb(1, 3) + rb(1, 4) + rb(1, 0)); put(g0 + 30, rb(1, 1) + rb(1, 2))
            elif ph < 3:
                for k, e in enumerate(EO): put(g0 + 6 * (k + 1), rb(ph + 1, e))
            if ph > 0:
                jp = JO[ph - 1]
                r0 = ACC + 24 * jp
                g = g0 + 4
                for i in range(12):
                    while len(place.get(g, [])) >= 2: g += 1
                    place.setdefault(g, []).append((f"v_cvt_pk_bf16_f32 v{r0+i}, v{r0+2*i}, v{r0+2*i+1}", None))
                    if i % 4 == 3:
                        g += 1
                        while place.get(g): g += 1
                        place[g] = [(f"buffer_store_dwordx4 v[{r0+i-3}:{r0+i}], v8, {srd(rWS)}, s{95+jp} offen offset:{1024*(i//4)} sc1", None)]
                        g += 1
                assert g < g0 + 30
        a.linear(mf, place, pre, [x[1] for x in reads(32, "32")])
        a.stamp(10)
        parts = [(56, 4, 0)]
        a.spoll_issue(50, parts)
        a("s_mov_b64 exec, 1")
        for j in range(1, 4):
            a(f"s_waitcnt vmcnt({(6, 4, 2)[j-1]})\nbuffer_store_dword v9, off, {srd(rWS)}, s{52+j} sc1")
        a("s_mov_b64 exec, -1")
        a.stamp(11)
        IN = P
        a(f"s_mov_b32 s48, {self.o['spin']}\ns_mov_b32 s49, 0\n" + ("s_waitcnt lgkmcnt(0)\nL_x_poll:" if self.o["fp"] else "L_x_poll:\ns_waitcnt lgkmcnt(0)"))
        for j in range(3):
            a(f"s_bitcmp1_b32 s49, {j}\ns_cbranch_scc1 L_x_no{j}\ns_cmp_lg_u32 s{56+j}, s{sTAG}\ns_cbranch_scc1 L_x_no{j}\ns_add_u32 s3, s63, {12288*j}")
            for p in range(3):
                r = IN + 12 * j + 4 * p
                a(f"buffer_load_dwordx4 v[{r}:{r+3}], v8, {srd(rWS)}, s3 offen offset:{1024*p} sc1")
            a(f"s_bitset1_b32 s49, {j}\ns_mov_b32 s60, {j}\nL_x_no{j}:")
        a("s_cmp_eq_u32 s49, 7\ns_cbranch_scc1 L_x_all\ns_sub_u32 s48, s48, 1\ns_cmp_eq_u32 s48, 0\ns_cbranch_scc1 L_x_all")
        a.spoll_issue(50, parts, first=False)
        if self.o["fp"] > 1: a(f"s_sleep {self.o['fp'] - 1}")
        a("s_branch L_x_poll\nL_x_all:")
        a.stamp(12)
        if self.o["dot"]: a("s_mov_b32 s96, 0x3f80\ns_mov_b32 s97, 0x3f800000")
        a("s_cmp_eq_u32 s60, 2\ns_cbranch_scc1 L_x_l2\ns_waitcnt vmcnt(0)\nL_x_l2:\ns_waitcnt vmcnt(3)")
        for j in range(3):
            if j == 2: a("s_waitcnt vmcnt(0) lgkmcnt(0)")
            for i in range(12):
                if self.o["dot"]:
                    a(f"v_dot2c_f32_bf16 v{ACC+2*i}, s96, v{IN+12*j+i}\nv_dot2c_f32_bf16 v{ACC+2*i+1}, s97, v{IN+12*j+i}")
                    continue
                t = 40 + 2 * (i % 4)
                a(f"v_lshlrev_b32 v{t}, 16, v{IN+12*j+i}\nv_and_b32 v{t+1}, 0xffff0000, v{IN+12*j+i}")
                a(f"v_pk_add_f32 v[{ACC+2*i}:{ACC+2*i+1}], v[{ACC+2*i}:{ACC+2*i+1}], v[{t}:{t+1}]")
        of = self.o.get('outf', 'sc1')
        for i in range(12):
            a(f"v_cvt_pk_bf16_f32 v{Q+i}, v{ACC+2*i}, v{ACC+2*i+1}")
            if self.o["tout"] and i % 4 == 3: a(f"ds_write_b128 v{tW}, v[{Q+i-3}:{Q+i}] offset:{16*(i-3)}")
        if self.o["tout"]:
            for p in range(3): a(f"ds_read_b128 v[{Q+12+4*p}:{Q+15+4*p}], v{tR+p}")
            for p in range(3):
                a(f"s_waitcnt lgkmcnt({0 if self.o['stamps'] else 2-p})\nbuffer_store_dwordx4 v[{Q+12+4*p}:{Q+15+4*p}], v{tG+p}, {srd(rOUT)}, s62 offen {of}")
        else:
            for p in range(3):
                a(f"buffer_store_dwordx4 v[{Q+4*p}:{Q+4*p+3}], v{self.vOUT}, {srd(rOUT)}, s62 offen offset:{64*p} {of}")
        a.stamp(13)
        a(";@off\ns_branch L_fin")

    def latin_seq(self, l):
        Dl = self.o["latin"]
        l0 = self.o["lat0"]
        return sorted(range(32), key=lambda s_: max(s_ - Dl - 0.5, min(s_, l0 - 0.5)) if (Dl and s_ % self.o['latp'] == l) else s_)

    def mlp_aux(self):
        a = self
        o = self.o
        a("L_aux:")
        self.g1_ids()
        a(f"s_sub_u32 s53, s{sWAVE}, 4")
        k0 = len(self.lines)
        self.g2_loader_setup()
        late = []
        if o["lsu"]:
            import re
            assert not o["sp"]
            for l in self.lines[k0:]:
                l = re.sub(r"\bs48\b", "s39", re.sub(r"\bs3\b", "s38", l.strip()))
                if l.startswith(("s_cselect", "s_addc")): late[-1] += "\n" + l
                else: late.append(l)
            del self.lines[k0:]
        def late_part(i):
            per = -(-len(late) // 26)
            for x in late[per * (i - 2): per * (i - 1)] if i >= 2 else []: a(x)
        seqs = [self.latin_seq(l) for l in range(o["latp"])]
        la = o["la1"]
        need = lambda pos: max(max(sq[:min(pos, 31) + 1]) for sq in seqs) // 4
        g_first = need(1)
        assert g_first <= 1
        a(f"s_cmp_eq_u32 s{sWAVE}, 7\ns_cbranch_scc1 L_aux7")
        vH, vW = 40, 46
        a("s_lshl_b32 s3, s53, 8\nv_add_u32 v1, s3, v0")
        for i in range(4):
            a(f"v_add_u32 v2, {64*i}, v1")
            if "L" in o["dbg"]:
                a.divmod_const(3, 4, 2, 24, 5); a("v_lshlrev_b32 v3, 1, v3")
            else:
                a.divmod_const(3, 4, 2, 12, 5)
            a(f"v_bfe_u32 v5, v3, 3, 1\nv_lshlrev_b32 v5, 1, v5\nv_xor_b32 v4, v4, v5")
            a(f"v_mul_u32_u24 v3, 9216, v3\nv_lshl_add_u32 v{vW+i}, v4, 4, v3\nv_subrev_u32 v{vW+i}, {1024*i}, v{vW+i}")
        a(f"s_mul_i32 s12, s55, 192\ns_lshl_b32 s14, s53, 12\ns_add_u32 s14, s14, {G1_W}")
        a(f"s_mul_i32 s13, s54, 2304\ns_add_u32 s13, s13, {HT}\ns_mul_i32 s15, s53, 6144\ns_and_b32 s28, s{sXCD}, {o['rot']}\ns_lshl_b32 s28, s28, 2")
        if "L" in o["dbg"]: a("s_and_b32 s3, s55, 1\ns_mul_i32 s3, s3, 9024\ns_add_u32 s12, s12, s3")
        TB = [16, 17, 18, 19, 36, 37]
        if o["latin"]:
            assert o["latp"] == 4
            a(f"s_lshr_b32 s3, s{sIDX}, 2\ns_add_u32 s3, s3, s54\ns_and_b32 s3, s3, 3")
            for l in range(4):
                words = [sum(seqs[l][n] << (5 * (n % 6)) for n in range(6 * k, min(32, 6 * k + 6))) for k in range(6)]
                if l: a(f"s_cmp_eq_u32 s3, {l}")
                for k in range(6):
                    a(f"s_mov_b32 s{TB[k]}, {words[k]}" if l == 0 else f"s_cselect_b32 s{TB[k]}, {words[k]}, s{TB[k]}")
        def stage_of(pos):
            if o["latin"]:
                a(f"s_bfe_u32 s3, s{TB[pos//6]}, {(5 << 16) | (5 * (pos % 6))}\ns_add_u32 s3, s3, s28")
            else:
                a(f"s_add_u32 s3, s28, {pos}")
            a("s_and_b32 s3, s3, 31")
        issued = []
        def w1_load(st):
            stage_of(0 if "W" in o["dbg"] else st)
            a(f"s_mul_i32 s3, s3, {64*9216}\ns_add_u32 m0, s14, {(st % G1_NS)*G1_SLOT}\ns_add_u32 s3, s3, s12")
            for i in range(4):
                if "w" in o["dbg"] and i > 0: continue
                a(f"buffer_load_dwordx4 v{vW+i}, {srd(rW1)}, s3 offen offset:{1024*i} lds")
                issued.append(st)
        def h_load(st):
            stage_of(0 if "H" in o["dbg"] else st)
            a(f"s_mul_i32 s3, s3, {8*9216}\ns_add_u32 s3, s3, s13")
            for i in range(6):
                if "h" in o["dbg"] and i > 0: continue
                if "K" in o["dbg"] and i > 2: continue
                if i % 4 == 0:
                    a(f"s_add_u32 m0, s15, {(st % G1_NS)*G1_SLOT + 1024*i}\ns_nop 0")
                a(f"buffer_load_dwordx4 v{vH+i}, {srd(rWS)}, s3 offen offset:{1024*(i%4)} sc1 lds")
                issued.append(st)
        def wait_stage(st):
            last = max(i for i, x in enumerate(issued) if x == st)
            n = len(issued) - 1 - last
            assert n < 63
            a(f"s_waitcnt vmcnt({n})")
        a(f"s_mul_i32 s3, s53, {192 if 'K' in o['dbg'] else 384}\nv_add_u32 v1, s3, v0")
        if "K" in o["dbg"]: a(f"s_and_b32 s3, s55, 1\ns_mul_i32 s3, s3, {4*9216}\ns_add_u32 s13, s13, s3")
        for i in range(6):
            a(f"v_add_u32 v2, {64*i}, v1")
            a.divmod_const(3, 4, 2, 144, 5)
            a(f"v_mul_u32_u24 v3, 9216, v3\nv_lshl_add_u32 v{vH+i}, v4, 4, v3\nv_subrev_u32 v{vH+i}, {1024*(i%4)}, v{vH+i}")
        self.sp_setup()
        self.bar_pub()
        assert o["prefill"] <= 5
        for st in range(o["prefill"]): w1_load(st)
        if g_first == 1:
            a(f"s_cmp_lg_u32 s{sWAVE}, 6\ns_cbranch_scc1 L_nog1\ns_and_b32 s29, s{sXCD}, {o['rot']}\ns_add_u32 s29, s29, 1\ns_and_b32 s29, s29, 7")
            self.wait_A_group("s29")
            a("L_nog1:")
        a("s_barrier")
        a.stamp(3)
        assert la <= 3
        done = [0]
        def issue(upto):
            while done[0] <= min(upto, 31):
                st = done[0]
                h_load(st)
                if st >= o["prefill"]: w1_load(st)
                done[0] += 1
        issue(o["h1"] if o["prefill"] >= 2 else 0)
        for i in range(32):
            wait_stage(i)
            a("s_barrier")
            a.tr0()
            issue(i + la)
            a.tr1(i)
            late_part(i)
            self.sp_step(i)
            if i == 30: self.g2_prefill(issued)
        a("s_branch L_aux_g1done")
        a("L_aux7:")
        a(f"s_and_b32 s29, s{sXCD}, {o['rot']}")
        self.A_addr("s29"); self.spoll_issue(50, self.A_PARTS)
        if o["w1c"]: self.touch_pattern(248, 7, 9216)
        self.bar_pub()
        for k in range(o["w1c"]):
            self.touch_w1(248, f"s{sIDX}", 7, 224 * o["w1a"] + 168 * k)
        self.spoll_check(50, self.A_PARTS, self.A_REGS)
        a("s_barrier")
        a(f"s_add_u32 s29, s29, {g_first}")
        g_ok, g_fly, t_fly = g_first, None, 0
        for i in range(32):
            while g_ok < need(i + la) or (g_fly is not None and i - t_fly >= 2):
                if g_fly is None:
                    a("s_add_u32 s29, s29, 1\ns_and_b32 s29, s29, 7")
                    self.A_addr("s29"); self.spoll_issue(50, self.A_PARTS)
                self.spoll_check(50, self.A_PARTS, self.A_REGS)
                g_ok += 1; g_fly = None
            if g_fly is None and g_ok < 7:
                a("s_add_u32 s29, s29, 1\ns_and_b32 s29, s29, 7")
                self.A_addr("s29"); self.spoll_issue(50, self.A_PARTS)
                g_fly, t_fly = g_ok + 1, i
            a("s_barrier")
            late_part(i)
            if o["walk"] and i >= o["wk0"]:
                per = -(-self.npad // (30 - o["wk0"]))
                for k in range(per * (i - o["wk0"]), min(self.npad, per * (i - o["wk0"] + 1))):
                    a(f"s_mov_b64 exec, 0\ns_branch L_pad{k}\nL_ret{k}:")
                a("s_mov_b64 exec, -1")
            if o["spc"] == 2 and i == 22: self.code_touch("L_ln_done", "L_g1_done", 24, f"s{sIDX}")
            if o["spc"] and i == 24: self.code_touch("L_g1_done", "L_g2_tail", 24, f"s{sIDX}")
            if o["spc"] and i == 26: self.code_touch("L_aux7", "L_att", 24, f"s{sIDX}")
            if i == 30: self.g2_prefill([])
            if i == 30 and o["wot"]:
                a(f"v_min_u32 v70, 53, v0\nv_lshlrev_b32 v70, 7, v70\ns_mul_i32 s3, s58, 24\ns_add_u32 s3, s3, s{sIDX}\ns_mul_i32 s3, s3, 6912\nbuffer_load_dword v69, v70, {srd(rWO)}, s3 offen")
        assert g_ok == 7 and g_fly is None
        a(f"s_cmp_lg_u32 s2, 0\ns_cbranch_scc1 L_noepoch\ns_mov_b32 s3, {EPOCH}")
        a.set_flag("s3", 20)
        a("L_noepoch:")
        a("L_aux_g1done:")
        if o["walk"]:
            a(f"s_mul_i32 s3, s58, 3\ns_add_u32 s3, s3, s59\ns_lshl_b32 s3, s3, 4\ns_add_u32 s3, s3, s60\ns_lshl_b32 s3, s3, 9\ns_add_u32 s3, s3, {FLB}")
            a(f"s_add_u32 s98, s{rWS}, s3\ns_addc_u32 s99, s{rWS+1}, 0")
        a.stamp(5)
        self.g2_loader()

    def sp_setup(self):
        a, o = self, self.o
        if not o["sp"]: return
        r0 = 2048 - o["spn"]
        a(f"s_and_b32 s38, s{sXCD}, {o['rot']}\ns_lshl_b32 s38, s38, 8\ns_add_u32 s38, s38, s{sIDX}\ns_add_u32 s38, s38, {r0}")
        a(f"s_mul_i32 s39, s{sXCD}, 1152\ns_mul_i32 s3, s53, 384\ns_add_u32 s39, s39, s3\ns_add_u32 s39, s39, 60")
        self.sp_row = r0
    def sp_step(self, i):
        a, o = self, self.o
        if not o["sp"]: return
        n = int((i + 1) * o["sp"]) - int(i * o["sp"])
        for _ in range(n):
            if self.sp_row >= 2048: return
            a(f"s_and_b32 s3, s38, 2047\ns_mul_i32 s3, s3, 9216\ns_add_u32 s3, s3, s39\ns_add_u32 s40, s{rW1}, s3\ns_addc_u32 s41, s{rW1+1}, 0\ns_add_u32 s38, s38, 24")
            for k in range(3): a(f"s_load_dwordx2 s[42:43], s[40:41], {128*k}")
            self.sp_row += 24

    def code_touch(self, l0, l1, nid, sid):
        a = self
        pc = a.label("pc")
        a(f"s_getpc_b64 s[40:41]\n{pc}:\ns_lshl_b32 s3, {sid}, 9\ns_min_u32 s3, s3, {l1}-{l0}-512\ns_sub_u32 s40, s40, {pc}-{l0}\ns_subb_u32 s41, s41, 0")
        a("s_add_u32 s40, s40, s3\ns_addc_u32 s41, s41, 0")
        for k in range(8): a(f"s_load_dword s42, s[40:41], {64*k}")

    def wo_touch(self, k):
        a = self
        a(f"s_lshl_b32 s3, s{sIDX}, 2\ns_add_u32 s3, s3, s53\ns_add_u32 s3, s3, {96*k}\ns_min_u32 s3, s3, 323\ns_lshl_b32 s3, s3, 9\ns_mul_i32 s11, s58, {144*1152}\ns_add_u32 s3, s3, s11")
        a(f"s_add_u32 s40, s{rWO}, s3\ns_addc_u32 s41, s{rWO+1}, 0")
        for k in range(4): a(f"s_load_dwordx2 s[42:43], s[40:41], {128*k+60}")

    def sp2_setup(self):
        a, o = self, self.o
        if not o["sp2"]: return
        assert o["spn2"] % 24 == 0
        a(f"s_lshl_b32 s38, s{sIDX}, 12\ns_add_u32 s38, s38, s10\ns_lshl_b32 s3, s53, 9\ns_add_u32 s38, s38, s3\ns_add_u32 s38, s38, 60")
        self.sp_row = 1152 - o["spn2"]
    def sp2_step(self, i):
        a, o = self, self.o
        if not o["sp2"]: return
        n = int((i + 1) * o["sp2"]) - int(i * o["sp2"])
        for _ in range(n):
            r = self.sp_row
            if r + 24 > 1152: return
            t = r // 96
            a(f"s_bfe_u32 s3, s{100 + t // 8}, {(4 << 16) | (4 * (t % 8))}\ns_mul_i32 s3, s3, {96*4096}\ns_add_u32 s3, s3, s38\ns_add_u32 s3, s3, {(r % 96) * 4096}")
            a(f"s_add_u32 s40, s{rW2}, s3\ns_addc_u32 s41, s{rW2+1}, 0")
            for k in range(4): a(f"s_load_dwordx2 s[42:43], s[40:41], {128*k}")
            self.sp_row += 24

    gP = 18
    gL, gW, gZ, gO, gY = 10, 11, 13, 15, 56
    def g2_loader_setup(self):
        a = self
        vL, vW, vZ, vO, vY = self.gL, self.gW, self.gZ, self.gO, self.gY
        self.g2_ids()
        a(f"v_lshlrev_b32 v{vL}, 4, v0\nv_lshrrev_b32 v1, 4, v0\nv_bfe_u32 v2, v0, 1, 3\nv_and_b32 v3, 1, v0")
        for i in range(2):
            a(f"v_add_u32 v4, {4*i}, v1\nv_xor_b32 v5, v2, v4\nv_lshlrev_b32 v4, 12, v4\nv_lshl_add_u32 v4, v5, 5, v4")
            a(f"v_lshl_add_u32 v{vW+i}, v3, 4, v4\nv_subrev_u32 v{vW+i}, {1024*i}, v{vW+i}")
        a(f"s_cmp_ge_u32 s53, 2\ns_cselect_b32 s3, {OOB}, 0")
        for i in range(3):
            a(f"v_add_u32 v4, {64*i}, v0")
            a.divmod_const(5, 6, 4, 24, 7)
            a(f"v_bfe_u32 v7, v5, 1, 1\nv_lshlrev_b32 v7, 2, v7\nv_xor_b32 v6, v6, v7")
            a(f"v_mul_u32_u24 v5, 1152, v5\nv_lshl_add_u32 v{vO+i}, v6, 4, v5\nv_subrev_u32 v{vO+i}, {1024*i}, v{vO+i}")
            a(f"v_or_b32 v{vY+i}, s3, v{vO+i}")
        a(f"s_mul_i32 s8, s58, 144\ns_add_u32 s8, s8, s53\ns_mul_i32 s8, s8, 9216\ns_mul_i32 s3, s59, 3072\ns_add_u32 s8, s8, s3\ns_add_u32 s8, s8, {U}")
        a(f"s_mul_i32 s9, s58, 1152\ns_lshl_b32 s3, s53, 3\ns_add_u32 s9, s9, s3\ns_lshl_b32 s9, s9, 12\ns_lshl_b32 s3, s60, 8\ns_add_u32 s9, s9, s3")
        a(f"s_mul_i32 s61, s53, {G2_PITCH}\ns_mul_i32 s62, s53, 3072\ns_lshl_b32 s63, s53, 11")
        for h in range(2):
            a(f"s_lshl_b32 s3, s53, 1\ns_add_u32 s3, s3, {h}\ns_cmp_ge_u32 s3, 3\ns_cselect_b32 s48, 3072, 0\ns_lshl_b32 s3, s3, 10\ns_add_u32 s3, s3, s48\ns_add_u32 s3, s3, {SH_SCR}")
            a(f"v_add_u32 v{60+h}, s3, v{vL}")
        a.gelu_consts(64, 66)
        a(f"v_mul_u32_u24 v62, 9216, v1\nv_and_b32 v63, 15, v0\nv_lshl_add_u32 v62, v63, 4, v62")
        a(f"s_mul_i32 s96, s55, 3\ns_add_u32 s96, s96, s53\ns_mul_i32 s96, s96, {4*9216}\ns_mul_i32 s3, s54, 2304\ns_add_u32 s96, s96, s3\ns_add_u32 s96, s96, {U + 2048}")
        if self.o["ef"]:
            a(f"s_mul_i32 s11, s58, {48*512}\ns_and_b32 s3, s{sXCD}, 1\ns_lshl_b32 s3, s3, 7\ns_add_u32 s11, s11, s3\ns_and_b32 s3, s{sIDX}, 28\ns_add_u32 s11, s11, s3\ns_add_u32 s11, s11, {FLB+32}")
            a(f"v_sub_u32 v72, s54, v1\nv_lshl_add_u32 v73, v72, 4, v63\nv_lshlrev_b32 v73, 9, v73\nv_lshl_add_u32 v73, v1, 8, v73")
            a(f"v_cmp_gt_u32 vcc, 3, v72\nv_mov_b32 v74, {OOB}\nv_mov_b32 v71, {CNT}\nv_cndmask_b32 v74, v74, v73, vcc\nv_mov_b32 v72, 1")
        a(f"s_mul_i32 s3, s58, 3\ns_add_u32 s3, s3, s59\ns_lshl_b32 s3, s3, 4\ns_add_u32 s3, s3, s60\ns_lshl_b32 s3, s3, 9\ns_add_u32 s3, s3, {FLB}")
        a(f"s_add_u32 s98, s{rWS}, s3\ns_addc_u32 s99, s{rWS+1}, 0\ns_lshl_b32 s3, s53, 7\ns_load_dword s30, s[98:99], s3 glc")
        a("v_min_u32 v68, 2, v1\nv_lshlrev_b32 v68, 12, v68\nv_lshl_add_u32 v68, v63, 7, v68")
        a(f"s_lshl_b32 s97, s{sIDX}, 2\ns_add_u32 s97, s97, s53\ns_mul_i32 s97, s97, 3\ns_add_u32 s97, s97, {self.o['w2r']}")
        a(f"s_mul_i32 s10, s58, {1152*4096}\ns_and_b32 s3, s{sXCD}, 1\ns_lshl_b32 s3, s3, 11\ns_add_u32 s10, s10, s3")

    def blk(self, n):
        if self.o["ef"] and n < 12: return (n, 0) if n < 4 else ((n - 4) >> 1, 1 + (n & 1))
        return n // 3, n % 3
    def blk_base(self, n, r, base, unit):
        t, p = self.blk(n)
        if n == 0 or self.blk(n - 1) != (t, p - 1):
            self(f"s_bfe_u32 s{r}, s{100 + t // 8}, {(4 << 16) | (4 * (t % 8))}\ns_mul_i32 s{r}, s{r}, {3*unit}\ns_add_u32 s{r}, s{r}, s{base}")
            if p: self(f"s_add_u32 s{r}, s{r}, {p*unit}")

    def g2_w_load(self, n, issued):
        a = self
        self.blk_base(n, 57, 9, 32 * 4096)
        a(f"s_add_u32 m0, s63, {G2_W[(n >> 1) % 3] + (n & 1) * G2_WS}\ns_nop 0")
        for i in range(2):
            a(f"buffer_load_dwordx4 v{self.gW+i}, {srd(rW2)}, s57 offen offset:{1024*i} lds")
            issued.append(100 + (n >> 1))
        a(f"s_add_u32 s57, s57, {32*4096}")

    def w2_touch(self):
        for x in self.ord_row(3, "s97"): self(x)
        self(f"s_lshl_b32 s3, s3, 12\ns_add_u32 s3, s3, s10\nbuffer_load_dword v69, v68, {srd(rW2)}, s3 offen\ns_add_u32 s97, s97, 288")

    def g2_prefill(self, issued):
        if self.o["w2a"]:
            self.w2_touch(); issued.append(99)
        if self.o["w2e"]:
            for n in range(self.o["w2p"]): self.g2_w_load(n, issued)

    def g2_loader(self):
        a = self
        NSTEP, NST = 36, 20
        vL, vO, vY = self.gL, self.gO, self.gY
        issued = []
        def a_load(n):
            self.blk_base(n, 56, 8, 4 * 9216)
            a(f"s_add_u32 m0, s61, {G2_U[(n >> 1) % 3] + (n & 1) * G2_US}\ns_nop 0")
            for i in range(3):
                a(f"buffer_load_dwordx4 v{vL}, {srd(rWS)}, s56 offen offset:{1024*i} sc1 lds")
                issued.append(100 + (n >> 1))
            a(f"s_add_u32 s56, s56, {4*9216}")
        def wo_load(e, tag, which=(0, 1, 2)):
            a(f"s_add_u32 m0, s62, {WO_AT[e]}\ns_add_u32 s3, s36, {32*1152*e}")
            for i in which:
                a(f"buffer_load_dwordx4 v{(vY if e == 4 else vO)+i}, {srd(rWO)}, s3 offen offset:{1024*i} lds")
                issued.append(tag)
        def o_load(ph, tag):
            a(f"s_add_u32 s3, s58, {ph+1}\ns_and_b32 s3, s3, 3\ns_mul_i32 s3, s3, {2*9216}\ns_add_u32 m0, s54, {4*OI_P*ph}\ns_add_u32 s3, s3, s37")
            for i in range(3):
                if i == 2: a("s_mov_b64 exec, 0xffff")
                a(f"buffer_load_dwordx4 v{vL}, {srd(rWS)}, s3 offen offset:{1024*i} sc1 lds")
                issued.append(tag)
            a("s_mov_b64 exec, -1")
        o = self.o
        a("s_setprio 3\ns_barrier")
        a(f"s_cmp_eq_u32 s{sWAVE}, 7\ns_cbranch_scc1 L_nosh")
        for h in range(2):
            a(f"ds_read_b128 v[{24+4*h}:{27+4*h}], v{60+h}\nds_read_b128 v[{32+4*h}:{35+4*h}], v{60+h} offset:3072")
        a("s_waitcnt lgkmcnt(0)")
        for i in range(4):
            a(f"v_pk_add_f32 v[{24+2*i}:{25+2*i}], v[{24+2*i}:{25+2*i}], v[{32+2*i}:{33+2*i}]")
        for g0 in a.gelu([24, 26, 28, 30], 64, 66, 44, [32, 33, 34, 35]):
            a(f"buffer_store_dwordx4 v[32:35], v62, {srd(rWS)}, s96 offen sc1")
        if o["ef"]:
            a(f"s_setprio 0\ns_mov_b64 exec, 1\ns_waitcnt vmcnt(0)\nds_add_u32 v71, v72 offset:4\ns_mov_b64 exec, -1\ns_branch L_e_ok\nL_nosh:\ns_setprio 0\ns_mov_b32 s48, {o['spin']}")
            a("L_e_s:\nds_read_b32 v73, v71 offset:4\ns_sub_u32 s48, s48, 1\ns_cbranch_scc1 L_e_ok\ns_waitcnt lgkmcnt(0)\nv_readfirstlane_b32 s3, v73\ns_cmp_lg_u32 s3, 7\ns_cbranch_scc1 L_e_s")
            a.set_flags("s11", 74, 75, 32)
            a("L_e_ok:")
        else:
            a("L_nosh:\ns_setprio 0\ns_waitcnt vmcnt(0)")
        a(f"s_and_b32 s3, s{sXCD}, 1\ns_lshl_b32 s3, s3, 7\ns_add_u32 s12, s98, s3\ns_addc_u32 s13, s99, 0\ns_xor_b32 s3, s3, 128\ns_add_u32 s14, s98, s3\ns_addc_u32 s15, s99, 0")
        p1 = [(16, 4, 0), (28, 4, 256)]
        r1 = [16, 17, 18, 19, 28, 29, 30, 31]
        a("s_barrier")
        p0 = [(16, 4, 32), (28, 4, 288)] if o["ef"] else p1
        a.spoll_issue(12, p0)
        a.stamp(7)
        if not o["w2e"]:
            for n in range(o["w2p"]): self.g2_w_load(n, issued)
        if o["w2c"]: self.w2_touch(); issued.append(99)
        a.spoll_check(12, p0, r1)
        if o["efw"]:
            a(f"s_cmp_ge_u32 s{sIDX}, {o['efw']}\ns_cbranch_scc1 L_w_ok\ns_mov_b32 s48, {o['spin']}")
            a("L_w_s:\nds_read_b32 v73, v71\ns_sub_u32 s48, s48, 1\ns_cbranch_scc1 L_w_ok\ns_waitcnt lgkmcnt(0)\nv_readfirstlane_b32 s3, v73\ns_cmp_lg_u32 s3, 8\ns_cbranch_scc1 L_w_s\nL_w_ok:")
        a.stamp(8)
        od = o["odl"]
        q = []
        for n in range(NSTEP):
            q.append(("a", n, (n >> 1) - 2 if n >= 6 else (o["efb"] if o["ef"] and n >= 4 else -1)))
            if n >= o["w2p"]: q.append(("w", n, (n >> 1) - 2 if n >= 6 else -1))
        def pump(i, budget):
            for x in list(q):
                c = 3 if x[0] == "a" else 2
                must = (x[1] >> 1) <= i + 1
                if x[2] > i or (budget < c and not must): continue
                if any(y[0] == x[0] and y[1] < x[1] for y in q): continue
                q.remove(x); budget -= c
                a_load(x[1]) if x[0] == "a" else self.g2_w_load(x[1], issued)
        bud = o["g2b"]
        pump(-1, bud[0])
        self.sp2_setup()
        a(f"s_lshl_b32 s52, s60, 2\ns_add_u32 s52, s52, s58\ns_lshl_b32 s52, s52, 7\ns_add_u32 s52, s52, {FLO}")
        a(f"s_add_u32 s50, s{rWS}, s52\ns_addc_u32 s51, s{rWS+1}, 0")
        op = [(64, 8, 0)]
        a(f"s_mul_i32 s36, s58, 144\ns_lshl_b32 s3, s53, 3\ns_add_u32 s36, s36, s3\ns_mul_i32 s36, s36, 1152\ns_mul_i32 s3, s59, 384\ns_add_u32 s36, s36, s3")
        a(f"s_lshl_b32 s37, s60, 1\ns_lshr_b32 s3, s53, 1\ns_add_u32 s37, s37, s3\ns_lshl_b32 s37, s37, 3\ns_and_b32 s3, s53, 1\ns_add_u32 s37, s37, s3\ns_mul_i32 s37, s37, 9216")
        a(f"s_mul_i32 s3, s58, 2304\ns_add_u32 s37, s37, s3\ns_add_u32 s37, s37, {OT}\ns_mul_i32 s54, s53, {OI_P}\ns_add_u32 s54, s54, {OI}")
        assert od == 17
        for i in range(NST):
            last = max(k for k, x in enumerate(issued) if x == 100 + i)
            nn = len(issued) - 1 - last
            assert nn < 63
            nxt = i + 2
            p3 = [(64 + 2 * k, 2, 128 * k + 16) for k in range(4)]
            chk = {3: (14, p1, None), 4: (14, p1, r1), 9: (98, p3, None), 10: (98, p3, list(range(64, 72)))}
            if self.o["att"] and "o" not in o["dbg"]: chk.update({od - 1: (50, op, None), od: (50, op, list(range(64, 72)))})
            if i in chk:
                lb = a.label("nopo")
                a(f"s_cmp_lg_u32 s{sWAVE}, 7\ns_cbranch_scc1 {lb}")
                if chk[i][2] is None: a.spoll_issue(chk[i][0], chk[i][1])
                else: a.spoll_check(*chk[i])
                a(f"{lb}:")
            if o["ef"] and i == o["efb"]: a.spoll_issue(12, p1)
            a(f"s_waitcnt vmcnt({nn})\ns_barrier")
            a.tr0()
            if o["ef"] and i == o["efb"]: a.spoll_check(12, p1, r1)
            pump(i, bud[min(i + 1, len(bud) - 1)])
            if 0 <= i - o["woe"] < 6: wo_load(3 + (i - o["woe"]) // 3, 116, ((i - o["woe"]) % 3,))
            if i == 16: wo_load(0, 117); wo_load(1, 118)
            if i == 17:
                o_load(0, 118); wo_load(2, 118)
                for ph in range(1, 1 + o["oe"]): o_load(ph, 119)
            if i == 18:
                for ph in range(1 + o["oe"], 4): o_load(ph, 119)
            a.tr1(32 + i)
            wot = {6: 0, 7: 1, 8: 2, 11: 3}
            if o["spo"] and i in wot: self.wo_touch(wot[i])
            elif o["spc"] and i == 12:
                a(f"s_lshl_b32 s11, s{sIDX}, 2\ns_add_u32 s11, s11, s53")
                self.code_touch("L_g2_tail", "L_aux", 96, "s11")
            elif i not in (3, 9, od - 1): self.sp2_step(i)
        assert not q
        a.stamp(10)
        if o.get("trace"):
            a(f"s_lshl_b32 s3, s2, 2\ns_add_u32 s3, s3, s53\ns_lshl_b32 s3, s3, 8\ns_add_u32 s3, s3, {0x1600000}\nv_lshlrev_b32 v1, 2, v0\nbuffer_store_dword v200, v1, {srd(rWS)}, s3 offen")
        a("s_branch L_fin")

    def att(self):
        a = self
        a("L_att:")
        if self.o["att"]:
            import gen_att
            gen_att.emit(self)

    def insert_pads(self):
        self.npad = 0
        step = self.o["walk"]
        if not step:
            self.lines = [l for l in self.lines if not l.startswith(";@")]; return
        out, on, acc = [], False, 0
        for l in self.lines:
            if l == ";@on": on, acc = True, step; continue
            if l == ";@off": on = False; continue
            out.append(l)
            t = l.strip()
            if not on or t.endswith(":") or t.startswith("."): continue
            acc += 8 if t.startswith(("v_mfma", "ds_", "buffer_", "v_pk", "v_cvt_pk")) or "0x" in t else 5
            if acc >= step and t.startswith(("v_mfma", "v_")) and not t.startswith(("v_cmp", "v_readfirst")):
                out.append(f"L_pad{self.npad}:"); out.append(f"    s_cbranch_execz L_ret{self.npad}")
                self.npad += 1; acc = 0
        self.lines = out

    def build(self):
        a = self
        a.launch(KNAME, 256, 512, LDS_BYTES)
        a.kd(KNAME, 256)
        self.entry()
        self.mlp_compute()
        self.insert_pads()
        self.mlp_aux()
        self.att()
        a("L_fin:")
        if self.o["stamps"]: a("s_waitcnt vmcnt(0)")
        a.stamp(15)
        self.dump_stamps(4)
        a("L_end:\ns_endpgm\n.p2align 6\n.type order_table,@object\norder_table:")
        for x in range(8):
            w = sum(t << (4 * k) for k, t in enumerate(xcd_order(x) if self.o["perm"] else [(6 * (x & 1) + k) % 12 for k in (0, 1, 2, 3, 6, 7, 8, 9, 4, 5, 10, 11)]))
            a(f".long {w & 0xffffffff}, {w >> 32}")
        a(".size order_table, 64\nL_code_end:")
        return a.text(single=True)


if __name__ == "__main__":
    import json
    opt = json.loads(sys.argv[2]) if len(sys.argv) > 2 else {}
    open(sys.argv[1], "w").write(Gen(**opt).build())
```
